```python
import torch

def _softmax(x, axis=-1):
    return torch.softmax(x, dim=axis)
def _gelu(x):
    return torch.nn.functional.gelu(x, approximate="tanh")
def _silu(x):
    return torch.nn.functional.silu(x)
def _sigmoid(x):
    return torch.sigmoid(x)
def _layernorm(x, axis=-1, eps=1e-5):
    m = x.mean(dim=axis, keepdim=True)
    v = x.var(dim=axis, keepdim=True, unbiased=False)
    return (x - m) / torch.sqrt(v + eps)
def _scatter_add(tgt, idx, src, axis=0):
    return tgt.clone().index_add_(axis, idx, src)
def _segment_sum(src, seg, n):
    out = torch.zeros((n,) + src.shape[1:], dtype=src.dtype)
    return out.index_add_(0, seg, src)
def _pad(x, pw):
    flat = tuple(v for pair in reversed(pw) for v in pair)
    return torch.nn.functional.pad(x, flat)

kernel_name = 'gated_mix__ssm_conv_s5__glu_gated_reglu__prompt'

def setup_inputs():

    _w = (lambda a: (lambda t: t.to(torch.bfloat16) if t.is_floating_point() else t)(torch.as_tensor(a)))
    def _A_setup():
        B, S, D = 1, 2048, 1024
        P = D
        Lambda_re = -0.5 * (lambda _x: torch.exp(torch.as_tensor(_x)))((lambda *s: torch.randn(*s, dtype=torch.bfloat16) * 0.2)(P))
        Lambda_im = (lambda *s: torch.randn(*s, dtype=torch.bfloat16) * 0.4)(P) * 1.0
        B_re = (lambda *s: torch.randn(*s, dtype=torch.bfloat16) * 0.2)(P, D) * (D ** -0.5)
        B_im = (lambda *s: torch.randn(*s, dtype=torch.bfloat16) * 0.2)(P, D) * (D ** -0.5)
        C_re = (lambda *s: torch.randn(*s, dtype=torch.bfloat16) * 0.2)(D, P) * (P ** -0.5)
        C_im = (lambda *s: torch.randn(*s, dtype=torch.bfloat16) * 0.2)(D, P) * (P ** -0.5)
        log_dt = (lambda *s: torch.randn(*s, dtype=torch.bfloat16) * 0.2)(P) * 0.3 - 2.0
        Dskip = (lambda *s: torch.randn(*s, dtype=torch.bfloat16) * 0.05)(D)
        return {
            "x": _w((lambda *s: torch.randn(*s, dtype=torch.bfloat16) * 0.05)(B, S, D)),
            "Lambda_re": _w(Lambda_re),
            "Lambda_im": _w(Lambda_im),
            "B_re": _w(B_re),
            "B_im": _w(B_im),
            "C_re": _w(C_re),
            "C_im": _w(C_im),
            "log_dt": _w(log_dt),
            "Dskip": _w(Dskip),
        }
    _A_in = _A_setup()

    def _B_setup():
        B, S, D, F = 1, 2048, 1024, 3584
        return {
            "x": _w((lambda *s: torch.randn(*s, dtype=torch.bfloat16) * 0.05)(B, S, D)),
            "W_gate": _w((lambda *s: torch.randn(*s, dtype=torch.bfloat16) * 0.8)(D, F) * (2.0 / D) ** 0.5),
            "W_up": _w((lambda *s: torch.randn(*s, dtype=torch.bfloat16) * 0.8)(D, F) * (2.0 / D) ** 0.5),
            "W_down": _w((lambda *s: torch.randn(*s, dtype=torch.bfloat16) * 0.8)(F, D) * (1.0 / F) ** 0.5),
        }
    _B_in = _B_setup()

    return {
        "A_x": _A_in["x"],
        "A_Lambda_re": _A_in["Lambda_re"],
        "A_Lambda_im": _A_in["Lambda_im"],
        "A_B_re": _A_in["B_re"],
        "A_B_im": _A_in["B_im"],
        "A_C_re": _A_in["C_re"],
        "A_C_im": _A_in["C_im"],
        "A_log_dt": _A_in["log_dt"],
        "A_Dskip": _A_in["Dskip"],
        "B_x": _B_in["x"],
        "B_W_gate": _B_in["W_gate"],
        "B_W_up": _B_in["W_up"],
        "B_W_down": _B_in["W_down"],
        "gate_w": _w((lambda *s: torch.randn(*s, dtype=torch.bfloat16) * 0.05)(1024) * 16.0),
    }

def reference(A_x, A_Lambda_re, A_Lambda_im, A_B_re, A_B_im, A_C_re, A_C_im, A_log_dt, A_Dskip, B_x, B_W_gate, B_W_up, B_W_down, gate_w):
    def _A_ref(x, Lambda_re, Lambda_im, B_re, B_im, C_re, C_im, log_dt, Dskip):
        Bsz, L, H = x.shape
        Lam = Lambda_re + 1j * Lambda_im
        Bmat = B_re + 1j * B_im
        Cmat = C_re + 1j * C_im
        dt = torch.exp(log_dt)
        Lam_bar = torch.exp(dt * Lam)
        B_bar = ((Lam_bar - 1.0) / Lam)[:, None] * Bmat
        Bu = torch.einsum("bld,pd->blp", x + 0j, B_bar)
        h = torch.zeros_like(Bu[:, 0, :])
        hs = []
        for t in range(L):
            h = Lam_bar[None, :] * h + Bu[:, t, :]
            hs.append(h)
        hseq = torch.stack(hs, 1)
        y = 2.0 * torch.einsum("blp,dp->bld", hseq, Cmat).real + x * Dskip[None, None, :]
        return y

    def _B_ref(x, W_gate, W_up, W_down):
        gate = torch.einsum("bsd,df->bsf", x, W_gate)
        up = torch.einsum("bsd,df->bsf", x, W_up)
        gate = gate * (lambda x, dt: x.to(dt))(gate > 0, gate.dtype)
        h = gate * up
        return torch.einsum("bsf,fd->bsd", h, W_down)

    x = A_x
    g = _sigmoid((x * gate_w).sum(-1, keepdims=True))
    a = _A_ref(x, A_Lambda_re, A_Lambda_im, A_B_re, A_B_im, A_C_re, A_C_im, A_log_dt, A_Dskip)
    b = _B_ref(x, B_W_gate, B_W_up, B_W_down)
    return g * a + (1 - g) * b
```

```python
import re

_REG = re.compile(r'(?<![\w.])([vas])(?:(\d+)|\[(\d+):(\d+)\])(?![\w])')

def regs_of(op):
    out = set()
    op = op.strip()
    for m in _REG.finditer(op):
        k = m.group(1)
        if m.group(2) is not None:
            out.add((k, int(m.group(2))))
        else:
            for i in range(int(m.group(3)), int(m.group(4)) + 1):
                out.add((k, i))
    if re.search(r'\bvcc\b', op):
        out.add(('s', 'vcc'))
    if re.search(r'\bm0\b', op):
        out.add(('s', 'm0'))
    if re.search(r'\bexec\b', op):
        out.add(('s', 'exec'))
    return out

TRANS = ('v_exp_f32', 'v_log_f32', 'v_rcp_f32', 'v_rsq_f32', 'v_sqrt_f32', 'v_sin_f32', 'v_cos_f32', 'v_rcp_iflag_f32')

class Ins:
    def __init__(self, text):
        self.text = text
        t = text.split(';')[0].strip()
        self.label = t.endswith(':')
        self.directive = t.startswith('.')
        self.op = '' if (self.label or self.directive or not t) else t.split()[0]
        self.rd = set(); self.wr = set()
        self.kind = 'other'
        self.srcC = set(); self.srcAB = set()
        self.dpp = False
        self.data = set()
        if not self.op:
            return
        rest = t[len(self.op):].strip()
        ops = []; depth = 0; cur = ''
        for ch in rest:
            if ch == '[': depth += 1
            if ch == ']': depth -= 1
            if ch == ',' and depth == 0:
                ops.append(cur); cur = ''
            else:
                cur += ch
        if cur.strip(): ops.append(cur)
        mods = ''
        if ops:
            last = ops[-1].strip()
            parts = last.split(None, 1)
            if len(parts) == 2:
                ops[-1] = parts[0]; mods = parts[1]
        self.mods = mods
        op = self.op
        R = [regs_of(o) for o in ops]
        if op.startswith('v_mfma'):
            self.kind = 'mfma'
            self.wr = R[0]; self.srcAB = R[1] | R[2]; self.srcC = R[3]
            self.rd = self.srcAB | self.srcC
            self.passes = 8 if '32x32' in op else 4
        elif op.startswith('v_'):
            self.kind = 'valu'
            self.dpp = ('dpp' in op) or ('row_' in mods) or ('quad_perm' in mods)
            if op.startswith('v_cmp'):
                self.wr = R[0]; self.rd = set().union(*R[1:])
            elif op.startswith('v_permlane') and 'swap' in op:
                self.wr = R[0] | R[1]; self.rd = R[0] | R[1]
            elif op.startswith(('v_add_co', 'v_sub_co', 'v_addc_co', 'v_subb_co')):
                self.wr = R[0] | R[1]; self.rd = set().union(*R[2:])
            else:
                self.wr = R[0]; self.rd = set().union(*R[1:]) if len(R) > 1 else set()
                if op.startswith(('v_fmac', 'v_dot2c', 'v_pk_fmac')) or self.dpp:
                    self.rd |= R[0]
        elif op.startswith('s_'):
            self.kind = 'salu'
            if op.startswith(('s_cmp', 's_cbranch', 's_branch', 's_waitcnt', 's_nop', 's_barrier', 's_endpgm', 's_sleep', 's_setprio', 's_bitcmp')):
                self.rd = set().union(*R) if R else set()
            elif op.startswith('s_load') or op.startswith('s_buffer_load') or op.startswith('s_atomic'):
                self.kind = 'smem'
                self.wr = R[0]; self.rd = set().union(*R[1:])
            else:
                self.wr = R[0]; self.rd = set().union(*R[1:]) if len(R) > 1 else set()
                if 'saveexec' in op:
                    self.wr |= {('s', 'exec')}
        elif op.startswith('ds_'):
            self.kind = 'ds'
            if op.startswith(('ds_read', 'ds_bpermute', 'ds_permute', 'ds_swizzle')):
                self.wr = R[0]; self.rd = set().union(*R[1:])
            else:
                self.rd = set().union(*R)
        elif op.startswith(('buffer_', 'global_')):
            self.kind = 'vmem'
            self.lds = bool(re.search(r'\blds\b', mods)) or 'load_lds' in op
            if op.startswith('buffer_inv') or op.startswith('buffer_wbl2'):
                pass
            elif 'load' in op and not self.lds:
                self.wr = R[0]; self.rd = set().union(*R[1:])
            elif 'store' in op or 'atomic' in op:
                self.rd = set().union(*R)
                if op.startswith('buffer_'):
                    self.data = R[0]
                else:
                    self.data = R[1]
                if 'atomic' in op and re.search(r'\bsc0\b', mods):
                    self.wr = R[0]
            else:
                self.rd = set().union(*R)
                if self.lds: self.rd |= {('s', 'm0')}
        else:
            raise ValueError('unknown op ' + text)

    def states(self):
        if self.op == 's_nop':
            return int(self.text.split(';')[0].split()[1], 0) + 1
        if self.label or self.directive or not self.op:
            return 0
        return 1

def need(p, c):
    n = 0
    if p.kind == 'valu':
        vw = {r for r in p.wr if r[0] in 'va'}
        sw = {r for r in p.wr if r[0] == 's'}
        if c.kind == 'mfma' and vw & c.rd: n = max(n, 2)
        if c.kind == 'mfma' and p.op.startswith('v_pk_') and p.op.endswith('f32'): n = max(n, 1)
        if c.kind == 'valu':
            if p.op.startswith(TRANS) and (vw & c.rd) : n = max(n, 1)
            if c.dpp and vw & c.rd: n = max(n, 2)
            if c.op.startswith(('v_readlane', 'v_readfirstlane')) and vw & c.rd: n = max(n, 1)
            if c.op.startswith('v_permlane') and vw & c.rd: n = max(n, 2)
            if sw & c.rd: n = max(n, 4 if c.op.startswith(('v_readlane', 'v_writelane', 'v_div_fmas')) else 2)
        if c.kind == 'vmem' and sw & c.rd: n = max(n, 5)
        if c.kind in ('salu', 'smem') and sw & c.rd: n = max(n, 2)
    if p.kind == 'mfma':
        d = 8 if p.passes == 4 else 12
        if c.kind == 'mfma':
            if p.wr & c.srcAB: n = max(n, d)
            if p.wr & c.srcC and not (p.wr == c.srcC and p.passes == c.passes): n = max(n, d - 2)
            if p.wr & c.wr and not (p.wr == c.srcC): n = max(n, d)
        elif c.kind in ('valu', 'vmem', 'ds'):
            if p.wr & (c.rd | c.wr): n = max(n, d)
            if c.kind == 'valu' and p.srcC & c.wr: n = max(n, 3 if p.passes == 4 else 7)
    if p.kind == 'salu' and ('s', 'm0') in p.wr:
        if c.kind == 'vmem' and getattr(c, 'lds', False): n = max(n, 1)
    if p.kind == 'vmem' and p.data and ('x4' in p.op or 'x3' in p.op):
        if p.data & c.wr: n = max(n, 2)
    return n

class Prog:
    def __init__(self):
        self.ins = []
    def __call__(self, text):
        for line in text.strip('\n').split('\n'):
            if line.strip():
                self.ins.append(Ins(line.strip()))
    def label(self, l):
        self.ins.append(Ins(l + ':'))
    def pad(self, seq):
        out = []
        for c in seq:
            if c.op:
                req = 0; dist = 0
                for p in reversed(out):
                    if dist >= 20: break
                    if p.op:
                        n = need(p, c)
                        if n > dist: req = max(req, n - dist)
                        dist += p.states()
                while req > 0:
                    k = min(req, 16)
                    out.append(Ins('s_nop %d' % (k - 1))); req -= k
            out.append(c)
        return out
    def text(self):
        seq = self.pad(self.ins)
        labels = {i.text[:-1]: n for n, i in enumerate(seq) if i.label}
        for n, i in enumerate(seq):
            if i.op.startswith(('s_cbranch', 's_branch')):
                tgt = i.text.split(';')[0].split()[1]
                if tgt in labels:
                    t = labels[tgt]
                    tail = seq[max(0, n - 24):n + 1]
                    head = seq[t:t + 24]
                    chk = self.pad(tail + head)
                    if len(chk) != len(tail) + len(head):
                        raise RuntimeError('hazard across branch to %s: %s' % (tgt, [x.text for x in chk]))
        lines = []
        for i in seq:
            lines.append(i.text if (i.label or i.directive) else '    ' + i.text)
        return '\n'.join(lines) + '\n'

class Counter:
    def __init__(self):
        self.q = []
    def issue(self, tag):
        self.q.append(tag)
    def need(self, pred):
        last = -1
        for n, t in enumerate(self.q):
            if pred(t): last = n
        if last < 0:
            return None
        return len(self.q) - 1 - last
```

```python
from asmlib import Prog, Counter

STAGE = 36864
NST = 4
TAB = NST * STAGE
POW = TAB + 2048
WT = TAB + 6144
K1_LDS = TAB + 7168
NKB = 176
WS_G = 0x1600000
WS_T = 0x1602000
EMUL = True

ACC_V0 = 96
def acc_reg(kind, jt, i):
    if kind in 'RI':
        idx = (jt * 2 + (kind == 'I')) * 4 + i
        return ('v', ACC_V0 + idx * 4)
    idx = (jt * 2 + (kind == 'U')) * 4 + i
    if jt < 3:
        return ('v', ACC_V0 + 64 + idx * 4)
    return ('a', (idx - 24) * 4)
XSET = 128
BRING = 192
NRING = 6
PF = 4

def rr(f, b, n=4):
    return '%s[%d:%d]' % (f, b, b + n - 1)

TILES = []
for jt in range(7):
    TILES += [('G', jt), ('U', jt)]
TILES += [('R', 0), ('I', 0), ('R', 1), ('I', 1)]

class Ctx:
    def __init__(self, P, waits):
        self.P = P; self.vm = Counter(); self.lg = Counter(); self.waits = waits; self.emit = P is not None
    def I(self, t):
        if self.emit: self.P(t)
    def vmem(self, t, tag):
        self.vm.issue(tag); self.I(t)
    def ds(self, t, tag):
        self.lg.issue(tag); self.I(t)
    def wait_vm(self, site, pred):
        n = self.vm.need(pred)
        if not self.emit:
            if n is not None: self.waits[site] = min(self.waits.get(site, 63), n, 63)
        else:
            self.P('s_waitcnt vmcnt(%d)' % self.waits[site])
    def wait_lg(self, site, pred):
        n = self.lg.need(pred)
        if not self.emit:
            if n is not None: self.waits[site] = min(self.waits.get(site, 15), n, 15)
        else:
            self.P('s_waitcnt lgkmcnt(%d)' % self.waits[site])

def frag_reads(c, u, j):
    kind, jt = TILES[j]
    hh = u & 1
    slot = BRING + ((j) % NRING) * 4
    th = []
    if kind in 'GU':
        reg = 0 if kind == 'G' else 14336
        for e in range(2):
            off = reg + (32 * hh + 16 * e) * 224 + jt * 32
            th.append(lambda off=off, e=e: c.ds('ds_read_b64_tr_b16 a[%d:%d], v12 offset:%d' % (slot + 2 * e, slot + 2 * e + 1, off), ('B', u, j)))
    else:
        off = 28672 + ((kind == 'I') * 32 + jt * 16) * 128
        th.append(lambda: c.ds('ds_read_b128 %s, v%d offset:%d' % (rr('a', slot), 13 + hh, off), ('B', u, j)))
    return th

def x_load(c, u, i):
    reg = XSET + (u % 4) * 16 + i * 4
    c.vmem('buffer_load_dwordx4 %s, v%d, s[8:11], s28 offen offset:%d' % (rr('a', reg), 1 + (i >> 1), (i & 1) * 2048), ('X', u))

def dma(c, s, n):
    if n < 7:
        if n == 0: c.I('s_mov_b32 m0, s31')
        if n == 4: c.I('s_add_u32 m0, s31, 4096')
        c.vmem('buffer_load_dwordx4 v%d, s[12:15], s30 offen offset:%d lds' % (3 + n, (n & 3) * 1024), ('D', s))
    else:
        if n == 7: c.I('s_mov_b32 m0, s32')
        c.vmem('buffer_load_dwordx4 v%d, s[16:19], s29 offen offset:%d lds' % (10 + n - 7, (n - 7) * 1024), ('D', s))

def dma_advance(c, delta):
    c.I('s_add_u32 s31, s31, %s' % delta)
    c.I('s_add_u32 s32, s32, %s' % delta)
    c.I('s_add_u32 s29, s29, 128')
    c.I('s_add_u32 s30, s30, 458752')

def substep(c, u, ul):
    hh = u & 1
    s = u >> 1
    for j in range(18):
        kind, jt = TILES[j]
        fill = []
        jn = j + PF; un = u
        if jn >= 18: jn -= 18; un += 1
        fill += frag_reads(c, un, jn)
        if j in (1, 5, 9, 13):
            i = (j - 1) // 4
            if i == 0: fill.append(lambda: c.I('s_add_u32 s28, s28, 64'))
            fill.append(lambda i=i: x_load(c, u + 3, i))
        sd = None
        if hh == 1 and j in (15, 17): sd, n = s + 3, (j - 15) // 2
        if hh == 0 and j in (3, 7, 11, 15): sd, n = s + 2, 2 + (j - 3) // 4
        if hh == 1 and j in (3, 7, 11): sd, n = s + 2, 6 + (j - 3) // 4
        if sd is not None:
            if n == 0:
                fill.append(lambda: dma_advance(c, str(STAGE) if ul == 1 else 's35'))
            fill.append(lambda sd=sd, n=n: dma(c, sd, n))
        if hh == 1 and j == 11:
            fill.append(lambda: c.I('v_add_u32 v12, %s, v12' % (str(STAGE) if ul == 1 else 's34')))
        if hh == 1 and j == 16:
            d = str(STAGE) if ul == 1 else 's34'
            fill.append(lambda: c.I('v_add_u32 v13, %s, v13' % d))
            fill.append(lambda: c.I('v_add_u32 v14, %s, v14' % d))
        if j == 0:
            c.wait_vm(('x', ul), lambda t: t == ('X', u))
        c.wait_lg(('b', ul, j), lambda t: t == ('B', u, j))
        slot = BRING + (j % NRING) * 4
        nf = len(fill)
        k = 0
        for i in range(4):
            f, b = acc_reg(kind, jt, i)
            c.I('v_mfma_f32_16x16x32_bf16 %s, %s, %s, %s' % (rr(f, b), rr('a', slot), rr('a', XSET + (u % 4) * 16 + i * 4), rr(f, b)))
            take = (nf * (i + 1) + 3) // 4 - k
            for _ in range(take):
                fill[k](); k += 1
        if hh == 1 and j == 13:
            c.wait_vm(('d', ul), lambda t: t == ('D', s + 1))
            c.I('s_barrier')

def cmul_pk(P, dr, di, ar, ai, br, bi, cr=None, ci=None):
    p = lambda r: 'v[%d:%d]' % (r, r + 1)
    if cr is None:
        P('v_pk_mul_f32 %s, %s, %s' % (p(dr), p(ar), p(br)))
        P('v_pk_mul_f32 %s, %s, %s' % (p(di), p(ar), p(bi)))
    else:
        P('v_pk_fma_f32 %s, %s, %s, %s' % (p(dr), p(ar), p(br), p(cr)))
        P('v_pk_fma_f32 %s, %s, %s, %s' % (p(di), p(ar), p(bi), p(ci)))
    P('v_pk_fma_f32 %s, %s, %s, %s neg_lo:[1,0,0] neg_hi:[1,0,0]' % (p(dr), p(ai), p(bi), p(dr)))
    P('v_pk_fma_f32 %s, %s, %s, %s' % (p(di), p(ai), p(br), p(di)))

def prologue(c):
    I = c.I
    I('''
    s_cmp_ge_u32 s2, 256
    s_cbranch_scc1 K1_done
    s_load_dwordx16 s[36:51], s[0:1], 0
    s_load_dwordx16 s[52:67], s[0:1], 64
    s_load_dwordx2 s[68:69], s[0:1], 128
    v_lshrrev_b32 v16, 6, v0
    v_and_b32 v17, 63, v0
    v_readfirstlane_b32 s3, v16
    s_lshr_b32 s4, s2, 5
    s_and_b32 s5, s2, 7
    s_lshl_b32 s5, s5, 2
    s_bfe_u32 s6, s2, 0x20003
    s_add_u32 s5, s5, s6
    v_and_b32 v18, 15, v0
    v_bfe_u32 v19, v0, 4, 2
    s_lshl_b32 s6, s4, 8
    s_lshl_b32 s7, s3, 6
    s_add_u32 s6, s6, s7
    v_lshl_add_u32 v1, v18, 2, s6
    v_lshlrev_b32 v1, 11, v1
    v_lshl_add_u32 v1, v19, 4, v1
    v_add_u32 v2, 0x1000, v1
    s_mov_b32 s10, 0x400000
    s_mov_b32 s11, 0x00020000
    s_mov_b32 s14, 0x700000
    s_mov_b32 s15, 0x00020000
    s_mov_b32 s18, 0x200000
    s_mov_b32 s19, 0x00020000
    s_mov_b32 s22, 0x10000000
    s_mov_b32 s23, 0x00020000
    s_mov_b32 s26, 256
    s_mov_b32 s27, 0x00020000
    s_mov_b32 s28, 0
    s_mov_b32 s29, 0
    s_mov_b32 s30, 0
    ''')
    I('''
    v_lshrrev_b32 v20, 3, v17
    v_and_b32 v21, 7, v17
    v_xor_b32 v21, v21, v20
    v_lshrrev_b32 v22, 2, v20
    v_and_b32 v23, 3, v20
    v_lshl_add_u32 v22, v22, 3, v23
    s_and_b32 s7, s3, 1
    s_lshl_b32 s6, s5, 5
    s_lshl_b32 s70, s7, 2
    s_add_u32 s6, s6, s70
    v_add_u32 v22, s6, v22
    v_lshlrev_b32 v22, 11, v22
    v_lshl_add_u32 v10, v21, 4, v22
    v_add_u32 v11, 0x7c00, v10
    s_waitcnt lgkmcnt(0)
    s_mov_b32 s8, s36
    s_mov_b32 s9, s37
    s_cmp_ge_u32 s3, 2
    s_cselect_b32 s12, s58, s56
    s_cselect_b32 s13, s59, s57
    s_cselect_b32 s16, s44, s42
    s_cselect_b32 s17, s45, s43
    s_mov_b32 s20, s68
    s_mov_b32 s21, s69
    s_mov_b32 s24, s66
    s_mov_b32 s25, s67
    ''')
    I('''
    v_and_b32 v24, 31, v0
    v_lshl_add_u32 v24, s5, 5, v24
    v_lshlrev_b32 v24, 1, v24
    ''')
    c.vmem('global_load_ushort v32, v24, s[38:39]', ('S',))
    c.vmem('global_load_ushort v33, v24, s[40:41]', ('S',))
    c.vmem('global_load_ushort v34, v24, s[50:51]', ('S',))
    I('''
    s_lshl_b32 s6, s4, 8
    s_lshl_b32 s70, s5, 3
    s_add_u32 s6, s6, s70
    s_lshl_b32 s70, s3, 1
    s_add_u32 s71, s6, s70
    s_lshl_b32 s6, s71, 11
    v_lshlrev_b32 v25, 5, v17
    ''')
    c.vmem('buffer_load_dwordx4 v[40:43], v25, s[8:11], s6 offen', ('S',))
    c.vmem('buffer_load_dwordx4 v[44:47], v25, s[8:11], s6 offen offset:16', ('S',))
    c.vmem('buffer_load_dwordx4 v[48:51], v25, s[8:11], s6 offen offset:2048', ('S',))
    c.vmem('buffer_load_dwordx4 v[52:55], v25, s[8:11], s6 offen offset:2064', ('S',))
    c.vmem('global_load_dwordx4 v[56:59], v25, s[62:63]', ('S',))
    c.vmem('global_load_dwordx4 v[60:63], v25, s[62:63] offset:16', ('S',))
    for i in range(4): x_load(c, 0, i)
    I('''
    s_lshr_b32 s6, s3, 1
    s_mul_i32 s31, s6, 14336
    s_mul_i32 s70, s7, 7168
    s_add_u32 s31, s31, s70
    s_lshl_b32 s32, s3, 11
    s_add_u32 s32, s32, 28672
    ''')
    dma(c, 0, 7); dma(c, 0, 8)
    for sg in range(448):
        assert (sg * 4682) >> 16 == sg // 14
    I('''
    s_mul_i32 s72, s5, 224
    s_mul_i32 s70, s7, 229376
    s_add_u32 s72, s72, s70
    s_and_b32 s73, s5, 1
    s_lshl_b32 s73, s73, 1
    s_movk_i32 s74, 4682
    s_movk_i32 s75, 7168
    ''')
    for n in range(7):
        I('''
        v_add_u32 v26, %d, v17
        v_mul_u32_u24 v27, s74, v26
        v_lshrrev_b32 v27, 16, v27
        v_mul_u32_u24 v28, 14, v27
        v_sub_u32 v28, v26, v28
        v_add_u32 v28, s73, v28
        v_subrev_u32 v29, 14, v28
        v_min_u32 v28, v28, v29
        v_bfe_u32 v29, v27, 2, 2
        v_lshrrev_b32 v30, 4, v27
        v_and_b32 v27, 3, v27
        v_lshl_add_u32 v27, v29, 3, v27
        v_lshl_add_u32 v27, v30, 2, v27
        v_mul_u32_u24 v27, s75, v27
        v_lshl_add_u32 v27, v28, 4, v27
        v_add_u32 v27, s72, v27
        v_subrev_u32 v%d, %d, v27
        ''' % (n * 64, 3 + n, (n & 3) * 1024))
        dma(c, 0, n)
    I('s_add_u32 s28, s28, 64')
    for i in range(4): x_load(c, 1, i)
    dma_advance(c, str(STAGE))
    for n in range(9): dma(c, 1, n)
    I('s_add_u32 s28, s28, 64')
    for i in range(4): x_load(c, 2, i)
    dma_advance(c, str(STAGE))
    for n in range(2): dma(c, 2, n)
    I('''
    v_lshrrev_b32 v26, 2, v18
    v_lshl_add_u32 v26, v19, 2, v26
    v_mul_u32_u24 v26, 224, v26
    v_and_b32 v27, 3, v17
    v_lshl_add_u32 v12, v27, 3, v26
    v_and_b32 v26, 7, v17
    v_xor_b32 v26, v26, v19
    v_lshlrev_b32 v26, 4, v26
    v_lshl_add_u32 v13, v18, 7, v26
    v_xor_b32 v14, 64, v13
    s_mov_b32 s34, %d
    s_mov_b32 s35, %d
    s_mov_b32 s33, 0
    ''' % (STAGE, -3 * STAGE))
    for r in range(ACC_V0, 256): I('v_mov_b32 v%d, 0' % r)
    for r in range(128): I('v_accvgpr_write_b32 a%d, 0' % r)
    c.wait_vm(('s',), lambda t: t == ('S',))
    I('''
    v_lshlrev_b32 v32, 16, v32
    v_lshlrev_b32 v33, 16, v33
    v_lshlrev_b32 v34, 16, v34
    v_mul_f32 v34, 0x3fb8aa3b, v34
    v_exp_f32 v34, v34
    v_cvt_pk_bf16_f32 v34, v34, v34
    v_lshlrev_b32 v34, 16, v34
    v_mul_f32 v35, v34, v32
    v_mul_f32 v36, v34, v33
    v_mul_f32 v35, 0x3fb8aa3b, v35
    v_exp_f32 v35, v35
    v_mul_f32 v36, 0.15915494, v36
    v_fract_f32 v36, v36
    v_cos_f32 v37, v36
    v_sin_f32 v38, v36
    v_mul_f32 v64, v35, v37
    v_mul_f32 v65, v35, v38
    ''')
    I('''
    v_add_f32 v35, -1.0, v64
    v_mul_f32 v36, v32, v32
    v_fmac_f32 v36, v33, v33
    v_rcp_f32 v37, v36
    v_mul_f32 v38, v35, v32
    v_fmac_f32 v38, v65, v33
    v_mul_f32 v39, v65, v32
    v_fma_f32 v39, -v35, v33, v39
    v_fma_f32 v36, -v36, v37, 2.0
    v_mul_f32 v37, v37, v36
    v_add_f32 v37, v37, v37
    v_mul_f32 v82, v38, v37
    v_mul_f32 v83, v39, v37
    ''')
    for k in range(8):
        a = 64 + 2 * k; d = a + 2
        I('''
        v_mul_f32 v%d, v%d, v%d
        v_fma_f32 v%d, -v%d, v%d, v%d
        v_mul_f32 v%d, v%d, v%d
        v_add_f32 v%d, v%d, v%d
        ''' % (d, a, a, d, a + 1, a + 1, d, d + 1, a, a + 1, d + 1, d + 1, d + 1))
    I('''
    v_lshrrev_b32 v35, 5, v0
    v_mov_b32 v84, 1.0
    v_mov_b32 v85, 0
    ''')
    for b in range(3):
        a = 68 + 2 * b
        I('''
        v_mul_f32 v36, v84, v%d
        v_fma_f32 v36, -v85, v%d, v36
        v_mul_f32 v37, v84, v%d
        v_fmac_f32 v37, v85, v%d
        v_and_b32 v38, %d, v35
        v_cmp_ne_u32 vcc, 0, v38
        v_cndmask_b32 v84, v84, v36, vcc
        v_cndmask_b32 v85, v85, v37, vcc
        ''' % (a, a + 1, a + 1, a, 1 << b))
    I('''
    v_mul_f32 v86, v84, v74
    v_fma_f32 v86, -v85, v75, v86
    v_mul_f32 v87, v84, v75
    v_fmac_f32 v87, v85, v74
    v_and_b32 v36, 31, v0
    v_lshlrev_b32 v36, 2, v36
    v_lshl_add_u32 v37, v35, 8, v36
    v_add_u32 v37, %d, v37
    v_add_u32 v36, %d, v36
    ''' % (POW, TAB))
    I('''
    ds_write_b32 v37, v84
    ds_write_b32 v37, v85 offset:128
    ds_write_b32 v37, v86 offset:2048
    ds_write_b32 v37, v87 offset:2176
    ''')
    for idx, r in enumerate([64, 68, 70, 72, 74, 76, 80, 82]):
        I('ds_write_b32 v36, v%d offset:%d' % (r, idx * 256))
        I('ds_write_b32 v36, v%d offset:%d' % (r + 1, idx * 256 + 128))
    for row in range(2):
        xb = 40 + row * 8
        acc = 88 + row
        I('v_mov_b32 v%d, 0' % acc)
        for d in range(8):
            I('''
            v_lshlrev_b32 v32, 16, v%d
            v_and_b32 v33, 0xffff0000, v%d
            v_lshlrev_b32 v34, 16, v%d
            v_and_b32 v35, 0xffff0000, v%d
            v_mul_f32 v32, v32, v34
            v_mul_f32 v33, v33, v35
            v_cvt_pk_bf16_f32 v32, v32, v33
            v_lshlrev_b32 v33, 16, v32
            v_and_b32 v32, 0xffff0000, v32
            v_add_f32 v%d, v%d, v33
            v_add_f32 v%d, v%d, v32
            ''' % (xb + d, xb + d, 56 + d, 56 + d, acc, acc, acc, acc))
    for sh in (1, 2, 4, 8):
        for row in range(2):
            I('v_add_f32_dpp v%d, v%d, v%d row_shr:%d row_mask:0xf bank_mask:0xf bound_ctrl:0' % (88 + row, 88 + row, 88 + row, sh))
    for row in range(2):
        for k in range(4):
            I('v_readlane_b32 s%d, v%d, %d' % (76 + row * 4 + k, 88 + row, 15 + 16 * k))
    I('''
    v_mov_b32 v32, s76
    v_add_f32 v32, s77, v32
    v_add_f32 v32, s78, v32
    v_add_f32 v32, s79, v32
    v_mov_b32 v33, s80
    v_add_f32 v33, s81, v33
    v_add_f32 v33, s82, v33
    v_add_f32 v33, s83, v33
    v_cvt_pk_bf16_f32 v32, v32, v33
    v_lshlrev_b32 v33, 16, v32
    v_and_b32 v34, 0xffff0000, v32
    v_mul_f32 v33, 0xbfb8aa3b, v33
    v_mul_f32 v34, 0xbfb8aa3b, v34
    v_exp_f32 v33, v33
    v_exp_f32 v34, v34
    v_add_f32 v33, 1.0, v33
    v_add_f32 v34, 1.0, v34
    v_rcp_f32 v33, v33
    v_rcp_f32 v34, v34
    v_cvt_pk_bf16_f32 v32, v33, v34
    v_lshlrev_b32 v34, 16, v32
    v_and_b32 v35, 0xffff0000, v32
    s_lshl_b32 s6, s71, 2
    s_add_u32 s6, s6, %d
    v_cmp_eq_u32 vcc, 0, v17
    s_and_saveexec_b64 s[76:77], vcc
    ''' % WS_G)
    c.vmem('buffer_store_dwordx2 v[34:35], off, s[20:23], s6', ('G',))
    I('s_mov_b64 exec, s[76:77]')
    c.wait_vm(('d0',), lambda t: t == ('D', 0))
    I('s_waitcnt lgkmcnt(0)')
    I('s_barrier')
    for j in range(PF):
        for th in frag_reads(c, 0, j): th()

def ffn_out(P, tiles, i, dst, tmp):
    for n, jt in enumerate(tiles):
        src = {}
        for kind, t0 in (('G', tmp), ('U', tmp + 4)):
            f, b = acc_reg(kind, jt, i)
            if f == 'a':
                for r in range(4): P('v_accvgpr_read_b32 v%d, a%d' % (t0 + r, b + r))
                src[kind] = t0
            else:
                src[kind] = b
        g, u = src['G'], src['U']
        for h in range(2):
            g0, u0 = g + 2 * h, u + 2 * h
            ta, tb = tmp + 8, tmp + 10
            if EMUL:
                P('v_cvt_pk_bf16_f32 v%d, v%d, v%d' % (ta, g0, g0 + 1))
                P('v_cvt_pk_bf16_f32 v%d, v%d, v%d' % (tb, u0, u0 + 1))
                P('v_pk_max_i16 v%d, v%d, 0' % (ta, ta))
                P('v_and_b32 v%d, 0xffff0000, v%d' % (tb + 1, tb))
                P('v_lshlrev_b32 v%d, 16, v%d' % (tb, tb))
                P('v_and_b32 v%d, 0xffff0000, v%d' % (ta + 1, ta))
                P('v_lshlrev_b32 v%d, 16, v%d' % (ta, ta))
                P('v_pk_mul_f32 v[%d:%d], v[%d:%d], v[%d:%d]' % (ta, ta + 1, ta, ta + 1, tb, tb + 1))
            else:
                P('v_max_f32 v%d, 0, v%d' % (ta, g0))
                P('v_max_f32 v%d, 0, v%d' % (ta + 1, g0 + 1))
                P('v_pk_mul_f32 v[%d:%d], v[%d:%d], v[%d:%d]' % (ta, ta + 1, ta, ta + 1, u0, u0 + 1))
            P('v_cvt_pk_bf16_f32 v%d, v%d, v%d' % (dst + 2 * n + h, ta, ta + 1))

def epilogue(P):
    R = lambda jt, i: acc_reg('R', jt, i)[1]
    Im = lambda jt, i: acc_reg('I', jt, i)[1]
    P('s_waitcnt vmcnt(0)')
    P('v_lshlrev_b32 v20, 5, v19')
    P('v_add_u32 v20, %d, v20' % TAB)
    def ldconst(idx, dst):
        P('ds_read_b128 v[%d:%d], v20 offset:%d' % (dst, dst + 3, idx * 256))
        P('ds_read_b128 v[%d:%d], v20 offset:%d' % (dst + 4, dst + 7, idx * 256 + 16))
        P('ds_read_b128 v[%d:%d], v20 offset:%d' % (dst + 8, dst + 11, idx * 256 + 128))
        P('ds_read_b128 v[%d:%d], v20 offset:%d' % (dst + 12, dst + 15, idx * 256 + 144))
    LAM = 32; CA = 48; E = 64; T = 80
    ldconst(0, LAM); ldconst(1, CA)
    P('s_waitcnt lgkmcnt(4)')
    cur = None
    bufs = [E, T]
    for i in range(1, 4):
        d = bufs[i & 1]
        for jt in range(2):
            for h in range(2):
                o = jt * 4 + 2 * h
                if cur is None: br, bi = R(jt, 0) + 2 * h, Im(jt, 0) + 2 * h
                else: br, bi = cur + o, cur + 8 + o
                cmul_pk(P, d + o, d + 8 + o, LAM + o, LAM + 8 + o, br, bi, R(jt, i) + 2 * h, Im(jt, i) + 2 * h)
        cur = d
    S = E
    for k, sh in enumerate((1, 2, 4, 8)):
        for r in range(16):
            P('v_mov_b32_dpp v%d, v%d row_shr:%d row_mask:0xf bank_mask:0xf bound_ctrl:0' % (S + r, cur + r, sh))
        P('s_waitcnt lgkmcnt(0)')
        for o in range(0, 8, 2):
            cmul_pk(P, cur + o, cur + 8 + o, CA + o, CA + 8 + o, S + o, S + 8 + o, cur + o, cur + 8 + o)
        ldconst(2 + k, CA)
    P('''
    s_lshl_b32 s6, s3, 8
    s_add_u32 s6, s6, %d
    v_lshl_add_u32 v21, v19, 5, s6
    v_cmp_eq_u32 vcc, 15, v18
    s_and_saveexec_b64 s[76:77], vcc
    ''' % WT)
    P('ds_write_b128 v21, v[%d:%d]' % (cur, cur + 3))
    P('ds_write_b128 v21, v[%d:%d] offset:16' % (cur + 4, cur + 7))
    P('ds_write_b128 v21, v[%d:%d] offset:128' % (cur + 8, cur + 11))
    P('ds_write_b128 v21, v[%d:%d] offset:144' % (cur + 12, cur + 15))
    P('s_mov_b64 exec, s[76:77]')
    for r in range(16):
        P('v_mov_b32_dpp v%d, v%d row_shr:1 row_mask:0xf bank_mask:0xf bound_ctrl:0' % (S + r, cur + r))
    P('s_waitcnt lgkmcnt(0)')
    P('s_barrier')
    P('v_lshlrev_b32 v21, 5, v19')
    P('v_add_u32 v21, %d, v21' % WT)
    P('s_cmp_lg_u32 s3, 3')
    P('s_cbranch_scc1 K1_nopub')
    P('s_cmp_eq_u32 s4, 7')
    P('s_cbranch_scc1 K1_nopub')
    for jt in range(2):
        A, B, W = T, T + 8, 24
        P('ds_read_b128 v[%d:%d], v21 offset:%d' % (A, A + 3, jt * 16))
        P('ds_read_b128 v[%d:%d], v21 offset:%d' % (A + 4, A + 7, jt * 16 + 128))
        for w in range(1, 4):
            P('ds_read_b128 v[%d:%d], v21 offset:%d' % (W, W + 3, w * 256 + jt * 16))
            P('ds_read_b128 v[%d:%d], v21 offset:%d' % (W + 4, W + 7, w * 256 + jt * 16 + 128))
            P('s_waitcnt lgkmcnt(0)')
            for h in range(2):
                o = jt * 4 + 2 * h
                cmul_pk(P, B + 2 * h, B + 4 + 2 * h, CA + o, CA + 8 + o, A + 2 * h, A + 4 + 2 * h, W + 2 * h, W + 4 + 2 * h)
            A, B = B, A
        if jt == 0:
            P('''
            s_lshl_b32 s6, s5, 3
            s_add_u32 s6, s6, s4
            s_lshl_b32 s6, s6, 8
            s_add_u32 s6, s6, %d
            v_lshlrev_b32 v22, 5, v19
            ''' % WS_T)
        P('v_cmp_eq_u32 vcc, 0, v18')
        P('s_and_saveexec_b64 s[76:77], vcc')
        P('buffer_store_dwordx4 v[%d:%d], v22, s[20:23], s6 offen offset:%d sc1' % (A, A + 3, jt * 16))
        P('buffer_store_dwordx4 v[%d:%d], v22, s[20:23], s6 offen offset:%d sc1' % (A + 4, A + 7, jt * 16 + 128))
        P('s_mov_b64 exec, s[76:77]')
        P('s_nop 1')
    P('''
    s_waitcnt vmcnt(0)
    s_lshl_b32 s6, 1, s4
    v_mov_b32 v22, s6
    s_lshl_b32 s7, s5, 2
    v_cmp_eq_u32 vcc, 0, v17
    s_and_saveexec_b64 s[76:77], vcc
    buffer_atomic_add v22, off, s[24:27], s7 sc1
    s_mov_b64 exec, s[76:77]
    ''')
    P.label('K1_nopub')
    P('''
    s_lshl_b32 s6, s4, 1
    s_lshr_b32 s7, s3, 1
    s_add_u32 s6, s6, s7
    s_mul_i32 s6, s6, %d
    s_and_b32 s7, s3, 1
    s_lshl_b32 s7, s7, 12
    s_add_u32 s6, s6, s7
    v_lshl_add_u32 v15, v17, 4, s6
    s_mul_i32 s70, s5, 7
    s_add_u32 s70, s70, 1
    s_lshr_b32 s70, s70, 1
    s_lshl_b32 s70, s70, 13
    s_add_u32 s71, s70, 8192
    s_add_u32 s72, s70, 16384
    s_add_u32 s73, s70, 24576
    s_sub_u32 s74, s70, 8184
    s_bitcmp1_b32 s5, 0
    s_cselect_b32 s73, s74, s73
    ''' % (NKB * 8192))
    tmp = 84
    n = 0
    for pr in range(3):
        for i in range(4):
            dst = 24 + (n & 1) * 4; n += 1
            ffn_out(P, [2 * pr, 2 * pr + 1], i, dst, tmp)
            P('buffer_store_dwordx4 v[%d:%d], v15, s[20:23], s%d offen offset:%d' % (dst, dst + 3, 70 + pr, i * 1024))
    for i in range(4):
        dst = 24 + (n & 1) * 4; n += 1
        ffn_out(P, [6], i, dst, tmp)
        P('buffer_store_dwordx2 v[%d:%d], v15, s[20:23], s73 offen offset:%d' % (dst, dst + 1, i * 1024))
    F = 160
    C0, C1, W, PW = F, F + 16, F + 32, F + 48
    L256 = F + 64
    ldconst(6, L256)
    for r in range(16): P('v_mov_b32 v%d, 0' % (C0 + r))
    P('s_cmp_eq_u32 s4, 0')
    P('s_cbranch_scc1 K1_nocarry')
    P('''
    s_lshl_b32 s6, 1, s4
    s_sub_u32 s6, s6, 1
    s_lshl_b32 s7, s5, 2
    s_mov_b32 s75, 0
    ''')
    P.label('K1_poll')
    P('''
    buffer_load_dword v22, off, s[24:27], s7 sc1
    s_waitcnt vmcnt(0)
    v_readfirstlane_b32 s74, v22
    s_add_u32 s75, s75, 1
    s_and_b32 s74, s74, s6
    s_cmp_eq_u32 s74, s6
    s_cbranch_scc1 K1_got
    s_sleep 2
    s_cmp_lt_u32 s75, 0x100000
    s_cbranch_scc1 K1_poll
    ''')
    P.label('K1_got')
    P('''
    s_lshl_b32 s6, s5, 11
    s_add_u32 s6, s6, %d
    s_mov_b32 s7, 0
    v_lshlrev_b32 v22, 5, v19
    s_waitcnt lgkmcnt(0)
    ''' % WS_T)
    P.label('K1_cloop')
    P('buffer_load_dwordx4 v[%d:%d], v22, s[20:23], s6 offen sc1' % (W, W + 3))
    P('buffer_load_dwordx4 v[%d:%d], v22, s[20:23], s6 offen offset:16 sc1' % (W + 4, W + 7))
    P('buffer_load_dwordx4 v[%d:%d], v22, s[20:23], s6 offen offset:128 sc1' % (W + 8, W + 11))
    P('buffer_load_dwordx4 v[%d:%d], v22, s[20:23], s6 offen offset:144 sc1' % (W + 12, W + 15))
    P('s_waitcnt vmcnt(0)')
    for o in range(0, 8, 2):
        cmul_pk(P, C1 + o, C1 + 8 + o, L256 + o, L256 + 8 + o, C0 + o, C0 + 8 + o, W + o, W + 8 + o)
    for r in range(16): P('v_mov_b32 v%d, v%d' % (C0 + r, C1 + r))
    P('''
    s_add_u32 s6, s6, 256
    s_add_u32 s7, s7, 1
    s_cmp_lt_u32 s7, s4
    s_cbranch_scc1 K1_cloop
    ''')
    P.label('K1_nocarry')
    P('s_mov_b32 s7, 0')
    P('s_cmp_eq_u32 s3, 0')
    P('s_cbranch_scc1 K1_wdone')
    P.label('K1_wloop')
    P('ds_read_b128 v[%d:%d], v21' % (W, W + 3))
    P('ds_read_b128 v[%d:%d], v21 offset:16' % (W + 4, W + 7))
    P('ds_read_b128 v[%d:%d], v21 offset:128' % (W + 8, W + 11))
    P('ds_read_b128 v[%d:%d], v21 offset:144' % (W + 12, W + 15))
    P('s_waitcnt lgkmcnt(0)')
    for o in range(0, 8, 2):
        cmul_pk(P, C1 + o, C1 + 8 + o, CA + o, CA + 8 + o, C0 + o, C0 + 8 + o, W + o, W + 8 + o)
    for r in range(16): P('v_mov_b32 v%d, v%d' % (C0 + r, C1 + r))
    P('''
    v_add_u32 v21, 256, v21
    s_add_u32 s7, s7, 1
    s_cmp_lt_u32 s7, s3
    s_cbranch_scc1 K1_wloop
    ''')
    P.label('K1_wdone')
    P('v_lshl_add_u32 v22, v18, 8, v20')
    P('ds_read_b128 v[%d:%d], v22 offset:2048' % (PW, PW + 3))
    P('ds_read_b128 v[%d:%d], v22 offset:2064' % (PW + 4, PW + 7))
    P('ds_read_b128 v[%d:%d], v22 offset:2176' % (PW + 8, PW + 11))
    P('ds_read_b128 v[%d:%d], v22 offset:2192' % (PW + 12, PW + 15))
    ldconst(7, CA)
    P('s_waitcnt lgkmcnt(0)')
    for o in range(0, 8, 2):
        cmul_pk(P, S + o, S + 8 + o, PW + o, PW + 8 + o, C0 + o, C0 + 8 + o, S + o, S + 8 + o)
    P('''
    s_lshl_b32 s70, s5, 1
    s_add_u32 s70, s70, 112
    s_lshl_b32 s70, s70, 13
    s_add_u32 s71, s70, 8192
    ''')
    for i in range(4):
        O = C1 if (i & 1) else W
        for jt in range(2):
            for h in range(2):
                o = jt * 4 + 2 * h
                if i == 0: br, bi = S + o, S + 8 + o
                else: br, bi = R(jt, i - 1) + 2 * h, Im(jt, i - 1) + 2 * h
                cmul_pk(P, R(jt, i) + 2 * h, Im(jt, i) + 2 * h, LAM + o, LAM + 8 + o, br, bi, R(jt, i) + 2 * h, Im(jt, i) + 2 * h)
        for jt in range(2):
            for h in range(2):
                o = jt * 4 + 2 * h
                cmul_pk(P, O + o, O + 8 + o, CA + o, CA + 8 + o, R(jt, i) + 2 * h, Im(jt, i) + 2 * h)
        d = 24 if (i & 1) else 84
        for k in range(4):
            P('v_cvt_pk_bf16_f32 v%d, v%d, v%d' % (d + k, O + 2 * k, O + 2 * k + 1))
        for k in range(4):
            P('v_cvt_pk_bf16_f32 v%d, -v%d, -v%d' % (d + 4 + k, O + 8 + 2 * k, O + 8 + 2 * k + 1))
        P('buffer_store_dwordx4 v[%d:%d], v15, s[20:23], s70 offen offset:%d' % (d, d + 3, i * 1024))
        P('buffer_store_dwordx4 v[%d:%d], v15, s[20:23], s71 offen offset:%d' % (d + 4, d + 7, i * 1024))

def gen_k1():
    waits = {}
    c = Ctx(None, waits)
    prologue(c)
    for u in range(32): substep(c, u, u % 4)
    P = Prog()
    c = Ctx(P, waits)
    P('.globl k1_kernel\n.p2align 8\n.type k1_kernel,@function')
    P.label('k1_kernel')
    prologue(c)
    P('.p2align 6')
    P.label('K1_loop')
    for u in range(4): substep(c, u, u)
    P('''
    s_xor_b32 s34, s34, s35
    s_xor_b32 s35, s34, s35
    s_xor_b32 s34, s34, s35
    s_add_u32 s33, s33, 1
    s_cmp_lt_u32 s33, 8
    s_cbranch_scc1 K1_loop
    ''')
    epilogue(P)
    P.label('K1_done')
    P('s_endpgm')
    return P.text(), waits

K1_DESC = '''.amdhsa_kernel k1_kernel
  .amdhsa_next_free_vgpr 512
  .amdhsa_next_free_sgpr 96
  .amdhsa_accum_offset 256
  .amdhsa_group_segment_fixed_size 0
  .amdhsa_kernarg_size 136
  .amdhsa_user_sgpr_count 2
  .amdhsa_user_sgpr_kernarg_segment_ptr 1
  .amdhsa_system_sgpr_workgroup_id_x 1
.end_amdhsa_kernel
'''
if __name__ == '__main__':
    t, w = gen_k1()
    print(w)
    print(len(t.splitlines()))
```

```python
from asmlib import Prog, Counter
from k1 import Ctx, rr, NKB, WS_G

RED = 0
RING = 98304
K2_LDS = RING + 65536
ACT = 128
WF = 64
YF = 32
ACCB = 128
EMUL = True

def accY(tau, jt): return ('a', (tau * 4 + jt) * 4)
def accB(tau, jt): return ('v', ACCB + (tau * 4 + jt) * 4)

def act_loads(c, n):
    th = []
    for tau in range(8):
        reg = ACT + (n % 4) * 32 + tau * 4
        th.append(lambda reg=reg, tau=tau: c.vmem('buffer_load_dwordx4 %s, v%d, s[20:23], s28 offen offset:%d' % (rr('a', reg), 1 + (tau >> 2), (tau & 3) * 1024), ('A', n)))
    th.append(lambda: c.I('s_add_u32 s28, s28, 32768') if n != 15 else c.I('s_mov_b32 s28, 0'))
    return th

def w_loads(c, n):
    th = []
    if n < 16:
        for jt in range(4):
            reg = WF + (n % 4) * 16 + jt * 4
            th.append(lambda reg=reg, jt=jt: c.vmem('buffer_load_dwordx4 %s, v%d, s[12:15], s29 offen' % (rr('v', reg), 3 + jt), ('W', n)))
        th.append(lambda: c.I('s_add_u32 s29, s29, 128'))
    else:
        th.append(lambda: c.I('s_add_u32 m0, s31, %d' % ((n % 4) * 4096)))
        for k in range(4):
            th.append(lambda k=k: c.vmem('buffer_load_dwordx4 v%d, s[16:19], s30 offen offset:%d lds' % (7 + k, k * 1024), ('W', n)))
        th.append(lambda: c.I('s_add_u32 s30, s30, 262144'))
    return th

def tr_reads(c, n):
    th = []
    for jt in range(4):
        for e in range(2):
            reg = WF + (n % 2) * 16 + jt * 4 + 2 * e
            th.append(lambda reg=reg, jt=jt, e=e: c.ds('ds_read_b64_tr_b16 v[%d:%d], v%d offset:%d' % (reg, reg + 1, 11 + jt, (n % 4) * 4096 + e * 2048), ('F', n, jt)))
    return th

def step(c, n, site):
    a = act_loads(c, n + 3); w = w_loads(c, n + 3)
    fill = []
    while a or w:
        if a: fill.append(a.pop(0))
        if a: fill.append(a.pop(0))
        if w: fill.append(w.pop(0))
    pre = []
    if n + 1 >= 16:
        pre = [lambda: c.wait_vm((site, 'wn'), lambda t: t == ('W', n + 1))] + tr_reads(c, n + 1)
    slots = [[] for _ in range(32)]
    for k, f in enumerate(fill):
        slots[(k * 30) // len(fill)].append(f)
    for k, f in enumerate(pre):
        slots[10 + k * 2 if k else 9].append(f)
    if n < 16:
        c.wait_vm((site, 'aw'), lambda t: t in (('A', n), ('W', n)))
    else:
        c.wait_vm((site, 'aw'), lambda t: t == ('A', n))
    m = 0
    for jt in range(4):
        if n >= 16:
            c.wait_lg((site, 'f', jt), lambda t: t == ('F', n, jt))
            wreg = WF + (n % 2) * 16 + jt * 4
        else:
            wreg = WF + (n % 4) * 16 + jt * 4
        for tau in range(8):
            f, b = (accY if n < 16 else accB)(tau, jt)
            c.I('v_mfma_f32_16x16x32_bf16 %s, %s, %s, %s' % (rr(f, b), rr('v', wreg), rr('a', ACT + (n % 4) * 32 + tau * 4), rr(f, b)))
            for th in slots[m]: th()
            m += 1

def prologue(c):
    I = c.I
    I('''
    s_cmp_ge_u32 s2, 256
    s_cbranch_scc1 K2_done
    s_load_dwordx16 s[36:51], s[0:1], 0
    s_load_dwordx16 s[52:67], s[0:1], 64
    s_load_dwordx2 s[68:69], s[0:1], 128
    v_lshrrev_b32 v16, 6, v0
    v_and_b32 v17, 63, v0
    v_readfirstlane_b32 s3, v16
    v_and_b32 v18, 15, v0
    v_bfe_u32 v19, v0, 4, 2
    s_bfe_u32 s4, s2, 0x20001
    s_lshl_b32 s4, s4, 2
    s_bfe_u32 s6, s2, 0x20003
    s_add_u32 s4, s4, s6
    s_and_b32 s5, s2, 1
    s_lshl_b32 s5, s5, 3
    s_lshr_b32 s6, s2, 5
    s_add_u32 s5, s5, s6
    s_mov_b32 s10, 0x400000
    s_mov_b32 s11, 0x00020000
    s_mov_b32 s14, 0x200000
    s_mov_b32 s15, 0x00020000
    s_mov_b32 s18, 0x700000
    s_mov_b32 s19, 0x00020000
    s_mov_b32 s22, 0x10000000
    s_mov_b32 s23, 0x00020000
    s_mov_b32 s26, 0x800000
    s_mov_b32 s27, 0x00020000
    s_mul_i32 s6, s4, %d
    s_lshl_b32 s7, s3, 13
    s_add_u32 s6, s6, s7
    v_lshl_add_u32 v1, v17, 4, s6
    v_add_u32 v2, 0x1000, v1
    s_mov_b32 s28, %d
    s_mov_b32 s29, 0
    s_mov_b32 s30, 0
    s_lshl_b32 s6, s5, 6
    v_add_u32 v20, s6, v18
    v_lshlrev_b32 v20, 11, v20
    v_lshl_add_u32 v20, v19, 4, v20
    s_lshr_b32 s7, s3, 1
    s_lshl_b32 s7, s7, 6
    v_add_u32 v3, s7, v20
    v_add_u32 v4, 0x8000, v3
    v_add_u32 v5, 0x10000, v3
    v_add_u32 v6, 0x18000, v3
    s_waitcnt lgkmcnt(0)
    s_mov_b32 s8, s36
    s_mov_b32 s9, s37
    s_bitcmp1_b32 s3, 0
    s_cselect_b32 s12, s48, s46
    s_cselect_b32 s13, s49, s47
    s_mov_b32 s16, s60
    s_mov_b32 s17, s61
    s_mov_b32 s20, s68
    s_mov_b32 s21, s69
    s_mov_b32 s24, s64
    s_mov_b32 s25, s65
    ''' % (NKB * 8192, 112 * 8192))
    for n in range(3):
        for th in w_loads(c, n): th()
        for th in act_loads(c, n): th()
    I('''
    v_lshrrev_b32 v20, 3, v17
    v_and_b32 v21, 7, v17
    v_lshlrev_b32 v22, 1, v19
    v_xor_b32 v21, v21, v22
    v_lshlrev_b32 v20, 11, v20
    v_lshl_add_u32 v20, v21, 4, v20
    s_lshl_b32 s6, s5, 7
    s_lshl_b32 s7, s3, 16
    s_add_u32 s6, s6, s7
    v_add_u32 v7, s6, v20
    v_add_u32 v8, 15360, v7
    v_add_u32 v9, 30720, v7
    v_add_u32 v10, 46080, v7
    s_lshl_b32 s31, s3, 14
    s_add_u32 s31, s31, %d
    v_lshrrev_b32 v20, 2, v18
    v_lshl_add_u32 v20, v19, 2, v20
    v_bfe_u32 v21, v20, 1, 2
    v_and_b32 v22, 3, v17
    v_lshlrev_b32 v20, 7, v20
    v_lshl_add_u32 v20, v22, 3, v20
    v_add_u32 v20, s31, v20
    v_lshl_add_u32 v11, v21, 5, v20
    v_xor_b32 v12, 32, v11
    v_xor_b32 v13, 64, v11
    v_xor_b32 v14, 96, v11
    s_mov_b32 s33, 0
    ''' % RING)
    for r in range(128): I('v_accvgpr_write_b32 a%d, 0' % r)
    for r in range(ACCB, 256): I('v_mov_b32 v%d, 0' % r)

def reduce_write(P, acc, own_dst, tag):
    for Q in range(4):
        P('s_cmp_eq_u32 s3, %d' % Q)
        P('s_cbranch_scc1 K2_%s_own%d' % (tag, Q))
        P('s_cmp_gt_u32 s3, %d' % Q)
        P('s_cselect_b32 s6, 1, 0')
        P('s_sub_u32 s6, s3, s6')
        P('s_lshl_b32 s6, s6, 13')
        P('s_add_u32 s6, s6, %d' % (Q * 24576))
        P('v_add_u32 v16, s6, v15')
        for t in range(8):
            f, b = acc(2 * Q + (t >> 2), t & 3)
            P('ds_write_b128 v16, %s offset:%d' % (rr(f, b), RED + t * 1024))
        P('s_branch K2_%s_nxt%d' % (tag, Q))
        P.label('K2_%s_own%d' % (tag, Q))
        P('s_nop 7')
        for t in range(8):
            f, b = acc(2 * Q + (t >> 2), t & 3)
            for r in range(4):
                if f == 'a': P('v_accvgpr_read_b32 v%d, a%d' % (own_dst + t * 4 + r, b + r))
                else: P('v_mov_b32 v%d, v%d' % (own_dst + t * 4 + r, b + r))
        P.label('K2_%s_nxt%d' % (tag, Q))

def reduce_read(P, dst, tmp):
    P('s_mul_i32 s6, s3, 24576')
    P('v_add_u32 v16, s6, v15')
    for sl in range(3):
        for t in range(8):
            P('ds_read_b128 v[%d:%d], v16 offset:%d' % (tmp + t * 4, tmp + t * 4 + 3, RED + sl * 8192 + t * 1024))
        for t in range(8):
            P('s_waitcnt lgkmcnt(%d)' % (7 - t))
            for h in range(2):
                r = t * 4 + 2 * h
                P('v_pk_add_f32 v[%d:%d], v[%d:%d], v[%d:%d]' % (dst + r, dst + r + 1, dst + r, dst + r + 1, tmp + r, tmp + r + 1))

def mid(c):
    if not c.emit: return
    P = c.P
    P('v_lshlrev_b32 v15, 4, v17')
    P('s_nop 7')
    reduce_write(P, accY, YF, 'y')
    P('s_waitcnt lgkmcnt(0)')
    P('s_barrier')
    reduce_read(P, YF, 96)

def final(P):
    P('''
    s_waitcnt vmcnt(0) lgkmcnt(0)
    s_lshl_b32 s6, s4, 7
    s_lshr_b32 s7, s3, 1
    s_lshl_b32 s7, s7, 6
    s_add_u32 s6, s6, s7
    s_and_b32 s7, s3, 1
    s_lshl_b32 s7, s7, 1
    s_add_u32 s6, s6, s7
    v_lshl_add_u32 v20, v18, 2, s6
    s_lshl_b32 s7, s5, 6
    v_lshl_add_u32 v21, v19, 2, s7
    v_lshlrev_b32 v22, 10, v20
    v_add_u32 v22, v22, v21
    v_lshlrev_b32 v23, 1, v22
    v_lshlrev_b32 v22, 2, v22
    v_add_u32 v27, 0x1000, v22
    v_lshlrev_b32 v24, 1, v21
    v_lshlrev_b32 v25, 2, v20
    s_mov_b32 s6, %d
    ''' % WS_G)
    for k in range(2):
        for jt in range(4):
            P('buffer_load_dwordx2 v[%d:%d], v23, s[8:11], 0 offen offset:%d' % (64 + (k * 4 + jt) * 2, 65 + (k * 4 + jt) * 2, k * 2048 + jt * 32))
    for jt in range(4):
        P('global_load_dwordx2 v[%d:%d], v24, s[52:53] offset:%d' % (80 + jt * 2, 81 + jt * 2, jt * 32))
    P('buffer_load_dwordx2 v[88:89], v25, s[20:23], s6 offen')
    P('s_barrier')
    BF = 96
    reduce_write(P, accB, BF, 'b')
    P('s_waitcnt lgkmcnt(0)')
    P('s_barrier')
    reduce_read(P, BF, 128)
    P('s_waitcnt vmcnt(0)')
    P('v_sub_f32 v90, 1.0, v88')
    P('v_sub_f32 v91, 1.0, v89')
    P('v_cvt_pk_bf16_f32 v90, v90, v91')
    P('v_and_b32 v91, 0xffff0000, v90')
    P('v_lshlrev_b32 v90, 16, v90')
    for jt in range(4):
        for h in range(2):
            P('v_lshlrev_b32 v%d, 16, v%d' % (160 + jt * 4 + 2 * h, 80 + jt * 2 + h))
            P('v_and_b32 v%d, 0xffff0000, v%d' % (161 + jt * 4 + 2 * h, 80 + jt * 2 + h))
    n = 0
    for k in range(2):
        for jt in range(4):
            t = k * 4 + jt
            o = 176 + (n & 1) * 4; n += 1
            for h in range(2):
                xs = 64 + t * 2 + h
                a, b2 = 192, 194
                yb = YF + t * 4 + 2 * h; bb = BF + t * 4 + 2 * h
                P('v_lshlrev_b32 v%d, 16, v%d' % (a, xs))
                P('v_and_b32 v%d, 0xffff0000, v%d' % (a + 1, xs))
                P('v_pk_mul_f32 v[%d:%d], v[%d:%d], v[%d:%d]' % (a, a + 1, a, a + 1, 160 + jt * 4 + 2 * h, 161 + jt * 4 + 2 * h))
                P('v_cvt_pk_bf16_f32 v%d, v%d, v%d' % (a, a, a + 1))
                P('v_and_b32 v%d, 0xffff0000, v%d' % (a + 1, a))
                P('v_lshlrev_b32 v%d, 16, v%d' % (a, a))
                P('v_pk_add_f32 v[%d:%d], v[%d:%d], v[%d:%d]' % (a, a + 1, a, a + 1, yb, yb + 1))
                P('v_cvt_pk_bf16_f32 v%d, v%d, v%d' % (b2, bb, bb + 1))
                P('v_and_b32 v%d, 0xffff0000, v%d' % (b2 + 1, b2))
                P('v_lshlrev_b32 v%d, 16, v%d' % (b2, b2))
                P('v_mul_f32 v%d, v%d, v%d' % (b2, b2, 90 + k))
                P('v_mul_f32 v%d, v%d, v%d' % (b2 + 1, b2 + 1, 90 + k))
                P('v_cvt_pk_bf16_f32 v%d, v%d, v%d' % (b2, b2, b2 + 1))
                P('v_and_b32 v%d, 0xffff0000, v%d' % (b2 + 1, b2))
                P('v_lshlrev_b32 v%d, 16, v%d' % (b2, b2))
                P('v_mul_f32 v%d, v%d, v%d' % (a, a, 88 + k))
                P('v_mul_f32 v%d, v%d, v%d' % (a + 1, a + 1, 88 + k))
                P('v_pk_add_f32 v[%d:%d], v[%d:%d], v[%d:%d]' % (o + 2 * h, o + 2 * h + 1, a, a + 1, b2, b2 + 1))
            P('buffer_store_dwordx4 v[%d:%d], v%d, s[24:27], 0 offen offset:%d' % (o, o + 3, 27 if k else 22, jt * 64))

def site_of(n):
    if n < 12: return ('Y', n % 4)
    if n < 16: return ('P', n % 4)
    return ('B', n % 4)

def gen_k2():
    waits = {}
    c = Ctx(None, waits)
    prologue(c)
    for n in range(44): step(c, n, site_of(n))
    P = Prog()
    c = Ctx(P, waits)
    P('.globl k2_kernel\n.p2align 8\n.type k2_kernel,@function')
    P.label('k2_kernel')
    prologue(c)
    P('.p2align 6')
    P.label('K2_yloop')
    for n in range(4): step(c, n, site_of(n))
    P('''
    s_add_u32 s33, s33, 1
    s_cmp_lt_u32 s33, 3
    s_cbranch_scc1 K2_yloop
    ''')
    for n in range(12, 16): step(c, n, site_of(n))
    mid(c)
    P('s_mov_b32 s33, 0')
    P('.p2align 6')
    P.label('K2_bloop')
    for n in range(16, 20): step(c, n, site_of(n))
    P('''
    s_add_u32 s33, s33, 1
    s_cmp_lt_u32 s33, 7
    s_cbranch_scc1 K2_bloop
    ''')
    final(P)
    P.label('K2_done')
    P('s_endpgm')
    return P.text(), waits

K2_DESC = '''.amdhsa_kernel k2_kernel
  .amdhsa_next_free_vgpr 512
  .amdhsa_next_free_sgpr 96
  .amdhsa_accum_offset 256
  .amdhsa_group_segment_fixed_size 0
  .amdhsa_kernarg_size 136
  .amdhsa_user_sgpr_count 2
  .amdhsa_user_sgpr_kernarg_segment_ptr 1
  .amdhsa_system_sgpr_workgroup_id_x 1
.end_amdhsa_kernel
'''
if __name__ == '__main__':
    t, w = gen_k2()
    print(w)
    print(len(t.splitlines()))
```

```python
import sys
import k1b as k1
import k2b as k2
NAME = 'gated_mix__ssm_conv_s5__glu_gated_reglu__prompt'
ref = open('cdna_kernels/%s.s.ref' % NAME).read().splitlines()
hdr = [l for l in ref if l.startswith(';') and '@launch' not in l and 'Override launch' not in l and 'grid=ceil' not in l]
t1, _ = k1.gen_k1()
t2, _ = k2.gen_k2()
out = '\n'.join(hdr) + '\n'
out += '; @launch kernel=k1_kernel grid=(256,1,1) block=(256,1,1) lds=%d\n' % k1.K1_LDS
out += '; @launch kernel=k2_kernel grid=(256,1,1) block=(256,1,1) lds=%d\n' % k2.K2_LDS
out += '.amdgcn_target "amdgcn-amd-amdhsa--gfx950"\n.text\n'
out += t1 + t2
out += '.section .rodata,"a"\n.p2align 6\n' + k1.K1_DESC + '.p2align 6\n' + k2.K2_DESC
dst = sys.argv[1] if len(sys.argv) > 1 else 'cdna_kernels/%s.s' % NAME
open(dst, 'w').write(out)
print('wrote', dst, len(out))
```

```python
from asmlib import Prog, Counter

STAGE = 36864
NST = 4
TAB = NST * STAGE
POW = TAB + 2048
WT = TAB + 6144
K1_LDS = TAB + 7168
NKB = 176
WS_G = 0x1600000
WS_T = 0x1602000
WS_C2 = 0x1800000
WS_XB = 0x1C00000
WS_FL = 0x1700000
EMUL = bool(int(__import__("os").environ.get("EMUL", "0")))
import os
STAMP = bool(int(os.environ.get('STAMP', '0')))
WS_STAMP = 0x3000000
def stamp(I, idx, vr=16):
    if STAMP:
        I('s_memtime s[%d:%d]' % (84 + 2 * 0, 85))
        I('s_waitcnt lgkmcnt(0)')
        I('v_writelane_b32 v%d, s84, %d' % (vr, idx))
def stamp_rt(I, idx, vr=16):
    if STAMP:
        I('s_memrealtime s[84:85]')
        I('s_waitcnt lgkmcnt(0)')
        I('v_writelane_b32 v%d, s84, %d' % (vr, idx))
def stamp_out(I, kern, vr=16, va=23):
    if STAMP:
        I('s_lshl_b32 s84, s2, 2')
        I('s_add_u32 s84, s84, s3')
        I('s_lshl_b32 s84, s84, 8')
        I('s_add_u32 s84, s84, %d' % (WS_STAMP + kern * 0x40000))
        I('v_lshlrev_b32 v%d, 2, v17' % va)
        I('buffer_store_dword v%d, v%d, s[20:23], s84 offen' % (vr, va))

ACC_V0 = 96
def acc_reg(kind, jt, i):
    if kind in 'RI':
        idx = (jt * 2 + (kind == 'I')) * 4 + i
        return ('v', ACC_V0 + idx * 4)
    idx = (jt * 2 + (kind == 'U')) * 4 + i
    if jt < 3:
        return ('v', ACC_V0 + 64 + idx * 4)
    return ('a', (idx - 24) * 4)
XSET = 128
BRING = 192
NRING = 6
PF = 4

def rr(f, b, n=4):
    return '%s[%d:%d]' % (f, b, b + n - 1)

TILES = []
for jt in range(7):
    TILES += [('G', jt), ('U', jt)]
TILES += [('R', 0), ('I', 0), ('R', 1), ('I', 1)]

class Ctx:
    def __init__(self, P, waits):
        self.P = P; self.vm = Counter(); self.lg = Counter(); self.waits = waits; self.emit = P is not None
    def I(self, t):
        if self.emit: self.P(t)
    def vmem(self, t, tag):
        self.vm.issue(tag); self.I(t)
    def ds(self, t, tag):
        self.lg.issue(tag); self.I(t)
    def wait_vm(self, site, pred):
        n = self.vm.need(pred)
        if not self.emit:
            if n is not None: self.waits[site] = min(self.waits.get(site, 62), n, 62)
        elif site in self.waits:
            self.P('s_waitcnt vmcnt(%d)' % self.waits[site])
    def wait_lg(self, site, pred):
        n = self.lg.need(pred)
        if not self.emit:
            if n is not None: self.waits[site] = min(self.waits.get(site, 14), n, 14)
        elif site in self.waits:
            self.P('s_waitcnt lgkmcnt(%d)' % self.waits[site])

def frag_reads(c, u, j):
    kind, jt = TILES[j]
    hh = u & 1
    slot = BRING + ((j) % NRING) * 4
    th = []
    if kind in 'GU':
        reg = 0 if kind == 'G' else 14336
        for e in range(2):
            off = reg + (32 * hh + 16 * e) * 224 + jt * 32
            th.append(lambda off=off, e=e: c.ds('ds_read_b64_tr_b16 a[%d:%d], v12 offset:%d' % (slot + 2 * e, slot + 2 * e + 1, off), ('B', u, j)))
    else:
        off = 28672 + ((kind == 'I') * 32 + jt * 16) * 128
        th.append(lambda: c.ds('ds_read_b128 %s, v%d offset:%d' % (rr('a', slot), 13 + hh, off), ('B', u, j)))
    return th

def x_load(c, u, i):
    reg = XSET + (u % 4) * 16 + i * 4
    c.vmem('buffer_load_dwordx4 %s, v%d, s[8:11], s28 offen offset:%d' % (rr('a', reg), 1 + (i >> 1), (i & 1) * 2048), ('X', u))

def dma(c, s, n):
    if n < 7:
        if n == 0: c.I('s_mov_b32 m0, s31')
        if n == 4: c.I('s_add_u32 m0, s31, 4096')
        c.vmem('buffer_load_dwordx4 v%d, s[12:15], s30 offen offset:%d lds' % (3 + n, (n & 3) * 1024), ('D', s))
    else:
        if n == 7: c.I('s_mov_b32 m0, s32')
        c.vmem('buffer_load_dwordx4 v%d, s[16:19], s29 offen offset:%d lds' % (10 + n - 7, (n - 7) * 1024), ('D', s))

def dma_advance(c, delta):
    c.I('s_add_u32 s31, s31, %s' % delta)
    c.I('s_add_u32 s32, s32, %s' % delta)
    c.I('s_add_u32 s29, s29, 128')
    c.I('s_add_u32 s30, s30, 458752')

def substep(c, u, ul):
    hh = u & 1
    s = u >> 1
    for j in range(18):
        kind, jt = TILES[j]
        fill = []
        jn = j + PF; un = u
        if jn >= 18: jn -= 18; un += 1
        fill += frag_reads(c, un, jn)
        if j in (1, 5, 9, 13):
            i = (j - 1) // 4
            if i == 0: fill.append(lambda: c.I('s_add_u32 s28, s28, 64'))
            fill.append(lambda i=i: x_load(c, u + 3, i))
        sd = None
        if hh == 1 and j in (15, 17): sd, n = s + 3, (j - 15) // 2
        if hh == 0 and j in (3, 7, 11, 15): sd, n = s + 2, 2 + (j - 3) // 4
        if hh == 1 and j in (3, 7, 11): sd, n = s + 2, 6 + (j - 3) // 4
        if sd is not None:
            if n == 0:
                fill.append(lambda: dma_advance(c, str(STAGE) if ul == 1 else 's35'))
            fill.append(lambda sd=sd, n=n: dma(c, sd, n))
        if hh == 1 and j == 11:
            fill.append(lambda: c.I('v_add_u32 v12, %s, v12' % (str(STAGE) if ul == 1 else 's34')))
        if hh == 1 and j == 16:
            d = str(STAGE) if ul == 1 else 's34'
            fill.append(lambda: c.I('v_add_u32 v13, %s, v13' % d))
            fill.append(lambda: c.I('v_add_u32 v14, %s, v14' % d))
        if j == 0:
            c.wait_vm(('x', ul), lambda t: t == ('X', u))
        c.wait_lg(('b', ul, j), lambda t: t == ('B', u, j))
        slot = BRING + (j % NRING) * 4
        nf = len(fill)
        k = 0
        for i in range(4):
            f, b = acc_reg(kind, jt, i)
            c.I('v_mfma_f32_16x16x32_bf16 %s, %s, %s, %s' % (rr(f, b), rr('a', slot), rr('a', XSET + (u % 4) * 16 + i * 4), rr(f, b)))
            take = (nf * (i + 1) + 3) // 4 - k
            for _ in range(take):
                fill[k](); k += 1
        if hh == 1 and j == 13:
            c.wait_vm(('d', ul), lambda t: t == ('D', s + 1))
            c.I('s_barrier')

def cmul_pk(P, dr, di, ar, ai, br, bi, cr=None, ci=None):
    p = lambda r: 'v[%d:%d]' % (r, r + 1)
    if cr is None:
        P('v_pk_mul_f32 %s, %s, %s' % (p(dr), p(ar), p(br)))
        P('v_pk_mul_f32 %s, %s, %s' % (p(di), p(ar), p(bi)))
    else:
        P('v_pk_fma_f32 %s, %s, %s, %s' % (p(dr), p(ar), p(br), p(cr)))
        P('v_pk_fma_f32 %s, %s, %s, %s' % (p(di), p(ar), p(bi), p(ci)))
    P('v_pk_fma_f32 %s, %s, %s, %s neg_lo:[1,0,0] neg_hi:[1,0,0]' % (p(dr), p(ai), p(bi), p(dr)))
    P('v_pk_fma_f32 %s, %s, %s, %s' % (p(di), p(ai), p(br), p(di)))

def prologue(c):
    I = c.I
    I('''
    s_cmp_ge_u32 s2, 256
    s_cbranch_scc1 K1_done
    s_load_dwordx16 s[36:51], s[0:1], 0
    s_load_dwordx16 s[52:67], s[0:1], 64
    s_load_dwordx2 s[68:69], s[0:1], 128
    v_lshrrev_b32 v16, 6, v0
    v_and_b32 v17, 63, v0
    v_readfirstlane_b32 s3, v16
    s_lshr_b32 s4, s2, 5
    s_and_b32 s5, s2, 7
    s_lshl_b32 s5, s5, 2
    s_bfe_u32 s6, s2, 0x20003
    s_add_u32 s5, s5, s6
    v_and_b32 v18, 15, v0
    v_bfe_u32 v19, v0, 4, 2
    s_lshl_b32 s6, s4, 8
    s_lshl_b32 s7, s3, 6
    s_add_u32 s6, s6, s7
    v_lshl_add_u32 v1, v18, 2, s6
    v_lshlrev_b32 v1, 11, v1
    v_lshl_add_u32 v1, v19, 4, v1
    v_add_u32 v2, 0x1000, v1
    s_mov_b32 s10, 0x400000
    s_mov_b32 s11, 0x00020000
    s_mov_b32 s14, 0x700000
    s_mov_b32 s15, 0x00020000
    s_mov_b32 s18, 0x200000
    s_mov_b32 s19, 0x00020000
    s_mov_b32 s22, 0x10000000
    s_mov_b32 s23, 0x00020000
    s_mov_b32 s26, 256
    s_mov_b32 s27, 0x00020000
    s_mov_b32 s28, 0
    s_mov_b32 s29, 0
    s_mov_b32 s30, 0
    ''')
    I('''
    v_lshrrev_b32 v20, 3, v17
    v_and_b32 v21, 7, v17
    v_xor_b32 v21, v21, v20
    v_lshrrev_b32 v22, 2, v20
    v_and_b32 v23, 3, v20
    v_lshl_add_u32 v22, v22, 3, v23
    s_and_b32 s7, s3, 1
    s_lshl_b32 s6, s5, 5
    s_lshl_b32 s70, s7, 2
    s_add_u32 s6, s6, s70
    v_add_u32 v22, s6, v22
    v_lshlrev_b32 v22, 11, v22
    v_lshl_add_u32 v10, v21, 4, v22
    v_add_u32 v11, 0x7c00, v10
    s_waitcnt lgkmcnt(0)
    s_mov_b32 s8, s36
    s_mov_b32 s9, s37
    s_cmp_ge_u32 s3, 2
    s_cselect_b32 s12, s58, s56
    s_cselect_b32 s13, s59, s57
    s_cselect_b32 s16, s44, s42
    s_cselect_b32 s17, s45, s43
    s_mov_b32 s20, s68
    s_mov_b32 s21, s69
    s_mov_b32 s24, s66
    s_mov_b32 s25, s67
    ''')
    stamp(I, 0); stamp_rt(I, 10)
    I('''
    v_and_b32 v24, 31, v0
    v_lshl_add_u32 v24, s5, 5, v24
    v_lshlrev_b32 v24, 1, v24
    ''')
    c.vmem('global_load_ushort v32, v24, s[38:39]', ('S',))
    c.vmem('global_load_ushort v33, v24, s[40:41]', ('S',))
    c.vmem('global_load_ushort v34, v24, s[50:51]', ('S',))
    I('''
    s_lshl_b32 s6, s4, 8
    s_lshl_b32 s70, s5, 3
    s_add_u32 s6, s6, s70
    s_lshl_b32 s70, s3, 1
    s_add_u32 s71, s6, s70
    s_lshl_b32 s6, s71, 11
    v_lshlrev_b32 v25, 5, v17
    ''')
    c.vmem('buffer_load_dwordx4 v[40:43], v25, s[8:11], s6 offen', ('S',))
    c.vmem('buffer_load_dwordx4 v[44:47], v25, s[8:11], s6 offen offset:16', ('S',))
    c.vmem('buffer_load_dwordx4 v[48:51], v25, s[8:11], s6 offen offset:2048', ('S',))
    c.vmem('buffer_load_dwordx4 v[52:55], v25, s[8:11], s6 offen offset:2064', ('S',))
    c.vmem('global_load_dwordx4 v[56:59], v25, s[62:63]', ('S',))
    c.vmem('global_load_dwordx4 v[60:63], v25, s[62:63] offset:16', ('S',))
    for i in range(4): x_load(c, 0, i)
    I('''
    s_lshr_b32 s6, s3, 1
    s_mul_i32 s31, s6, 14336
    s_mul_i32 s70, s7, 7168
    s_add_u32 s31, s31, s70
    s_lshl_b32 s32, s3, 11
    s_add_u32 s32, s32, 28672
    ''')
    dma(c, 0, 7); dma(c, 0, 8)
    for sg in range(448):
        assert (sg * 4682) >> 16 == sg // 14
    I('''
    s_mul_i32 s72, s5, 224
    s_mul_i32 s70, s7, 229376
    s_add_u32 s72, s72, s70
    s_and_b32 s73, s5, 1
    s_lshl_b32 s73, s73, 1
    s_movk_i32 s74, 4682
    s_movk_i32 s75, 7168
    ''')
    for n in range(7):
        I('''
        v_add_u32 v26, %d, v17
        v_mul_u32_u24 v27, s74, v26
        v_lshrrev_b32 v27, 16, v27
        v_mul_u32_u24 v28, 14, v27
        v_sub_u32 v28, v26, v28
        v_add_u32 v28, s73, v28
        v_subrev_u32 v29, 14, v28
        v_min_u32 v28, v28, v29
        v_bfe_u32 v29, v27, 2, 2
        v_lshrrev_b32 v30, 4, v27
        v_and_b32 v27, 3, v27
        v_lshl_add_u32 v27, v29, 3, v27
        v_lshl_add_u32 v27, v30, 2, v27
        v_mul_u32_u24 v27, s75, v27
        v_lshl_add_u32 v27, v28, 4, v27
        v_add_u32 v27, s72, v27
        v_subrev_u32 v%d, %d, v27
        ''' % (n * 64, 3 + n, (n & 3) * 1024))
        dma(c, 0, n)
    I('s_add_u32 s28, s28, 64')
    for i in range(4): x_load(c, 1, i)
    dma_advance(c, str(STAGE))
    for n in range(9): dma(c, 1, n)
    I('s_add_u32 s28, s28, 64')
    for i in range(4): x_load(c, 2, i)
    dma_advance(c, str(STAGE))
    for n in range(2): dma(c, 2, n)
    I('''
    v_lshrrev_b32 v26, 2, v18
    v_lshl_add_u32 v26, v19, 2, v26
    v_mul_u32_u24 v26, 224, v26
    v_and_b32 v27, 3, v17
    v_lshl_add_u32 v12, v27, 3, v26
    v_and_b32 v26, 7, v17
    v_xor_b32 v26, v26, v19
    v_lshlrev_b32 v26, 4, v26
    v_lshl_add_u32 v13, v18, 7, v26
    v_xor_b32 v14, 64, v13
    s_mov_b32 s34, %d
    s_mov_b32 s35, %d
    s_mov_b32 s33, 0
    ''' % (STAGE, -3 * STAGE))
    I('''
    s_cmp_ge_u32 s3, 2
    s_cselect_b32 s86, s48, s46
    s_cselect_b32 s87, s49, s47
    s_lshl_b32 s6, s4, 7
    s_lshl_b32 s70, s7, 6
    s_add_u32 s6, s6, s70
    v_add_u32 v26, s6, v18
    v_lshlrev_b32 v26, 11, v26
    v_lshl_add_u32 v26, v19, 4, v26
    s_lshl_b32 s6, s5, 6
    v_add_u32 v26, s6, v26
    ''')
    for k in range(4):
        c.vmem('global_load_dwordx4 a[%d:%d], v26, s[86:87]' % (224 + 4 * k, 227 + 4 * k), ('C',))
        if k < 3: I('v_add_u32 v26, 0x8000, v26')
    for r in range(ACC_V0, 256): I('v_mov_b32 v%d, 0' % r)
    for r in range(128): I('v_accvgpr_write_b32 a%d, 0' % r)
    stamp(I, 1)
    c.wait_vm(('s',), lambda t: t == ('S',))
    stamp(I, 2)
    I('''
    v_lshlrev_b32 v32, 16, v32
    v_lshlrev_b32 v33, 16, v33
    v_lshlrev_b32 v34, 16, v34
    v_mul_f32 v34, 0x3fb8aa3b, v34
    v_exp_f32 v34, v34
    v_cvt_pk_bf16_f32 v34, v34, v34
    v_lshlrev_b32 v34, 16, v34
    v_mul_f32 v35, v34, v32
    v_mul_f32 v36, v34, v33
    v_mul_f32 v35, 0x3fb8aa3b, v35
    v_exp_f32 v35, v35
    v_mul_f32 v36, 0.15915494, v36
    v_fract_f32 v36, v36
    v_cos_f32 v37, v36
    v_sin_f32 v38, v36
    v_mul_f32 v64, v35, v37
    v_mul_f32 v65, v35, v38
    ''')
    I('''
    v_add_f32 v35, -1.0, v64
    v_mul_f32 v36, v32, v32
    v_fmac_f32 v36, v33, v33
    v_rcp_f32 v37, v36
    v_mul_f32 v38, v35, v32
    v_fmac_f32 v38, v65, v33
    v_mul_f32 v39, v65, v32
    v_fma_f32 v39, -v35, v33, v39
    v_fma_f32 v36, -v36, v37, 2.0
    v_mul_f32 v37, v37, v36
    v_add_f32 v37, v37, v37
    v_mul_f32 v82, v38, v37
    v_mul_f32 v83, v39, v37
    ''')
    for k in range(8):
        a = 64 + 2 * k; d = a + 2
        I('''
        v_mul_f32 v%d, v%d, v%d
        v_fma_f32 v%d, -v%d, v%d, v%d
        v_mul_f32 v%d, v%d, v%d
        v_add_f32 v%d, v%d, v%d
        ''' % (d, a, a, d, a + 1, a + 1, d, d + 1, a, a + 1, d + 1, d + 1, d + 1))
    I('''
    v_lshrrev_b32 v35, 5, v0
    v_mov_b32 v84, 1.0
    v_mov_b32 v85, 0
    ''')
    for b in range(3):
        a = 68 + 2 * b
        I('''
        v_mul_f32 v36, v84, v%d
        v_fma_f32 v36, -v85, v%d, v36
        v_mul_f32 v37, v84, v%d
        v_fmac_f32 v37, v85, v%d
        v_and_b32 v38, %d, v35
        v_cmp_ne_u32 vcc, 0, v38
        v_cndmask_b32 v84, v84, v36, vcc
        v_cndmask_b32 v85, v85, v37, vcc
        ''' % (a, a + 1, a + 1, a, 1 << b))
    I('''
    v_mul_f32 v86, v84, v74
    v_fma_f32 v86, -v85, v75, v86
    v_mul_f32 v87, v84, v75
    v_fmac_f32 v87, v85, v74
    v_and_b32 v36, 31, v0
    v_lshlrev_b32 v36, 2, v36
    v_lshl_add_u32 v37, v35, 8, v36
    v_add_u32 v37, %d, v37
    v_add_u32 v36, %d, v36
    ''' % (POW, TAB))
    I('''
    ds_write_b32 v37, v84
    ds_write_b32 v37, v85 offset:128
    ds_write_b32 v37, v86 offset:2048
    ds_write_b32 v37, v87 offset:2176
    ''')
    for idx, r in enumerate([64, 68, 70, 72, 74, 76, 80, 82]):
        I('ds_write_b32 v36, v%d offset:%d' % (r, idx * 256))
        I('ds_write_b32 v36, v%d offset:%d' % (r + 1, idx * 256 + 128))
    for row in range(2):
        xb = 40 + row * 8
        acc = 88 + row
        I('v_mov_b32 v%d, 0' % acc)
        for d in range(8):
            I('''
            v_lshlrev_b32 v32, 16, v%d
            v_and_b32 v33, 0xffff0000, v%d
            v_lshlrev_b32 v34, 16, v%d
            v_and_b32 v35, 0xffff0000, v%d
            v_mul_f32 v32, v32, v34
            v_mul_f32 v33, v33, v35
            v_cvt_pk_bf16_f32 v32, v32, v33
            v_lshlrev_b32 v33, 16, v32
            v_and_b32 v32, 0xffff0000, v32
            v_add_f32 v%d, v%d, v33
            v_add_f32 v%d, v%d, v32
            ''' % (xb + d, xb + d, 56 + d, 56 + d, acc, acc, acc, acc))
    for sh in (1, 2, 4, 8):
        for row in range(2):
            I('v_add_f32_dpp v%d, v%d, v%d row_shr:%d row_mask:0xf bank_mask:0xf bound_ctrl:0' % (88 + row, 88 + row, 88 + row, sh))
    for row in range(2):
        for k in range(4):
            I('v_readlane_b32 s%d, v%d, %d' % (76 + row * 4 + k, 88 + row, 15 + 16 * k))
    I('''
    v_mov_b32 v32, s76
    v_add_f32 v32, s77, v32
    v_add_f32 v32, s78, v32
    v_add_f32 v32, s79, v32
    v_mov_b32 v33, s80
    v_add_f32 v33, s81, v33
    v_add_f32 v33, s82, v33
    v_add_f32 v33, s83, v33
    v_cvt_pk_bf16_f32 v32, v32, v33
    v_lshlrev_b32 v33, 16, v32
    v_and_b32 v34, 0xffff0000, v32
    v_mul_f32 v33, 0xbfb8aa3b, v33
    v_mul_f32 v34, 0xbfb8aa3b, v34
    v_exp_f32 v33, v33
    v_exp_f32 v34, v34
    v_add_f32 v33, 1.0, v33
    v_add_f32 v34, 1.0, v34
    v_rcp_f32 v33, v33
    v_rcp_f32 v34, v34
    v_cvt_pk_bf16_f32 v32, v33, v34
    v_lshlrev_b32 v34, 16, v32
    v_and_b32 v35, 0xffff0000, v32
    s_lshl_b32 s6, s71, 2
    s_add_u32 s6, s6, %d
    v_cmp_eq_u32 vcc, 0, v17
    s_and_saveexec_b64 s[76:77], vcc
    ''' % WS_G)
    c.vmem('buffer_store_dwordx2 v[34:35], off, s[20:23], s6', ('G',))
    I('s_mov_b64 exec, s[76:77]')
    stamp(I, 3)
    c.wait_vm(('d0',), lambda t: t == ('D', 0))
    I('s_waitcnt lgkmcnt(0)')
    I('s_barrier')
    stamp(I, 4)
    I('''
    s_mov_b32 s88, s60
    s_mov_b32 s89, s61
    s_mov_b32 s90, 0x700000
    s_mov_b32 s91, 0x00020000
    s_lshl_b32 s6, s2, 2
    s_add_u32 s6, s6, s3
    s_mul_i32 s6, s6, 7168
    v_lshlrev_b32 v26, 7, v17
    s_mov_b32 exec_hi, 0xffffff
    buffer_load_dword v27, v26, s[88:91], s6 offen
    s_mov_b64 exec, -1
    ''')
    for j in range(PF):
        for th in frag_reads(c, 0, j): th()

def ffn_out(P, tiles, i, dst, tmp):
    for n, jt in enumerate(tiles):
        src = {}
        for kind, t0 in (('G', tmp), ('U', tmp + 4)):
            f, b = acc_reg(kind, jt, i)
            if f == 'a':
                for r in range(4): P('v_accvgpr_read_b32 v%d, a%d' % (t0 + r, b + r))
                src[kind] = t0
            else:
                src[kind] = b
        g, u = src['G'], src['U']
        for h in range(2):
            g0, u0 = g + 2 * h, u + 2 * h
            ta, tb = tmp + 8, tmp + 10
            if EMUL:
                P('v_cvt_pk_bf16_f32 v%d, v%d, v%d' % (ta, g0, g0 + 1))
                P('v_cvt_pk_bf16_f32 v%d, v%d, v%d' % (tb, u0, u0 + 1))
                P('v_pk_max_i16 v%d, v%d, 0' % (ta, ta))
                P('v_and_b32 v%d, 0xffff0000, v%d' % (tb + 1, tb))
                P('v_lshlrev_b32 v%d, 16, v%d' % (tb, tb))
                P('v_and_b32 v%d, 0xffff0000, v%d' % (ta + 1, ta))
                P('v_lshlrev_b32 v%d, 16, v%d' % (ta, ta))
                P('v_pk_mul_f32 v[%d:%d], v[%d:%d], v[%d:%d]' % (ta, ta + 1, ta, ta + 1, tb, tb + 1))
            else:
                P('v_max_f32 v%d, 0, v%d' % (ta, g0))
                P('v_max_f32 v%d, 0, v%d' % (ta + 1, g0 + 1))
                P('v_pk_mul_f32 v[%d:%d], v[%d:%d], v[%d:%d]' % (ta, ta + 1, ta, ta + 1, u0, u0 + 1))
            P('v_cvt_pk_bf16_f32 v%d, v%d, v%d' % (dst + 2 * n + h, ta, ta + 1))

def epilogue(P):
    R = lambda jt, i: acc_reg('R', jt, i)[1]
    Im = lambda jt, i: acc_reg('I', jt, i)[1]
    stamp(P, 5)
    P('s_waitcnt vmcnt(0)')
    P('''
    s_lshl_b32 s6, s4, 6
    s_lshr_b32 s7, s3, 1
    s_lshl_b32 s7, s7, 5
    s_add_u32 s6, s6, s7
    s_add_u32 s6, s6, s5
    s_lshl_b32 s6, s6, 13
    s_and_b32 s7, s3, 1
    s_lshl_b32 s7, s7, 12
    s_add_u32 s6, s6, s7
    s_add_u32 s6, s6, %d
    v_lshlrev_b32 v20, 4, v17
    s_lshl_b32 s7, s2, 2
    s_add_u32 s7, s7, s3
    s_lshl_b32 s7, s7, 6
    s_add_u32 s7, s7, %d
    v_mov_b32 v21, 0
    ''' % (WS_C2, WS_FL))
    for k in range(4):
        P('buffer_store_dwordx4 a[%d:%d], v20, s[20:23], s6 offen offset:%d' % (224 + 4 * k, 227 + 4 * k, k * 1024))
    P('buffer_store_dword v21, off, s[20:23], s7')
    P('v_lshlrev_b32 v20, 5, v19')
    P('v_add_u32 v20, %d, v20' % TAB)
    def ldconst(idx, dst):
        P('ds_read_b128 v[%d:%d], v20 offset:%d' % (dst, dst + 3, idx * 256))
        P('ds_read_b128 v[%d:%d], v20 offset:%d' % (dst + 4, dst + 7, idx * 256 + 16))
        P('ds_read_b128 v[%d:%d], v20 offset:%d' % (dst + 8, dst + 11, idx * 256 + 128))
        P('ds_read_b128 v[%d:%d], v20 offset:%d' % (dst + 12, dst + 15, idx * 256 + 144))
    LAM = 32; CA = 48; E = 64; T = 80
    ldconst(0, LAM); ldconst(1, CA)
    P('s_waitcnt lgkmcnt(4)')
    cur = None
    bufs = [E, T]
    for i in range(1, 4):
        d = bufs[i & 1]
        for jt in range(2):
            for h in range(2):
                o = jt * 4 + 2 * h
                if cur is None: br, bi = R(jt, 0) + 2 * h, Im(jt, 0) + 2 * h
                else: br, bi = cur + o, cur + 8 + o
                cmul_pk(P, d + o, d + 8 + o, LAM + o, LAM + 8 + o, br, bi, R(jt, i) + 2 * h, Im(jt, i) + 2 * h)
        cur = d
    S = E
    for k, sh in enumerate((1, 2, 4, 8)):
        for r in range(16):
            P('v_mov_b32_dpp v%d, v%d row_shr:%d row_mask:0xf bank_mask:0xf bound_ctrl:0' % (S + r, cur + r, sh))
        P('s_waitcnt lgkmcnt(0)')
        for o in range(0, 8, 2):
            cmul_pk(P, cur + o, cur + 8 + o, CA + o, CA + 8 + o, S + o, S + 8 + o, cur + o, cur + 8 + o)
        ldconst(2 + k, CA)
    P('''
    s_lshl_b32 s6, s3, 8
    s_add_u32 s6, s6, %d
    v_lshl_add_u32 v21, v19, 5, s6
    v_cmp_eq_u32 vcc, 15, v18
    s_and_saveexec_b64 s[76:77], vcc
    ''' % WT)
    P('ds_write_b128 v21, v[%d:%d]' % (cur, cur + 3))
    P('ds_write_b128 v21, v[%d:%d] offset:16' % (cur + 4, cur + 7))
    P('ds_write_b128 v21, v[%d:%d] offset:128' % (cur + 8, cur + 11))
    P('ds_write_b128 v21, v[%d:%d] offset:144' % (cur + 12, cur + 15))
    P('s_mov_b64 exec, s[76:77]')
    for r in range(16):
        P('v_mov_b32_dpp v%d, v%d row_shr:1 row_mask:0xf bank_mask:0xf bound_ctrl:0' % (S + r, cur + r))
    P('s_waitcnt lgkmcnt(0)')
    P('s_barrier')
    P('v_lshlrev_b32 v21, 5, v19')
    P('v_add_u32 v21, %d, v21' % WT)
    P('s_cmp_lg_u32 s3, 3')
    P('s_cbranch_scc1 K1_nopub')
    P('s_cmp_eq_u32 s4, 7')
    P('s_cbranch_scc1 K1_nopub')
    for jt in range(2):
        A, B, W = T, T + 8, 24
        P('ds_read_b128 v[%d:%d], v21 offset:%d' % (A, A + 3, jt * 16))
        P('ds_read_b128 v[%d:%d], v21 offset:%d' % (A + 4, A + 7, jt * 16 + 128))
        for w in range(1, 4):
            P('ds_read_b128 v[%d:%d], v21 offset:%d' % (W, W + 3, w * 256 + jt * 16))
            P('ds_read_b128 v[%d:%d], v21 offset:%d' % (W + 4, W + 7, w * 256 + jt * 16 + 128))
            P('s_waitcnt lgkmcnt(0)')
            for h in range(2):
                o = jt * 4 + 2 * h
                cmul_pk(P, B + 2 * h, B + 4 + 2 * h, CA + o, CA + 8 + o, A + 2 * h, A + 4 + 2 * h, W + 2 * h, W + 4 + 2 * h)
            A, B = B, A
        if jt == 0:
            P('''
            s_lshl_b32 s6, s5, 3
            s_add_u32 s6, s6, s4
            s_lshl_b32 s6, s6, 8
            s_add_u32 s6, s6, %d
            v_lshlrev_b32 v22, 5, v19
            ''' % WS_T)
        P('v_cmp_eq_u32 vcc, 0, v18')
        P('s_and_saveexec_b64 s[76:77], vcc')
        P('buffer_store_dwordx4 v[%d:%d], v22, s[20:23], s6 offen offset:%d sc1' % (A, A + 3, jt * 16))
        P('buffer_store_dwordx4 v[%d:%d], v22, s[20:23], s6 offen offset:%d sc1' % (A + 4, A + 7, jt * 16 + 128))
        P('s_mov_b64 exec, s[76:77]')
        P('s_nop 1')
    P('''
    s_waitcnt vmcnt(0)
    s_lshl_b32 s6, 1, s4
    v_mov_b32 v22, s6
    s_lshl_b32 s7, s5, 2
    v_cmp_eq_u32 vcc, 0, v17
    s_and_saveexec_b64 s[76:77], vcc
    buffer_atomic_add v22, off, s[24:27], s7 sc1
    s_mov_b64 exec, s[76:77]
    ''')
    P.label('K1_nopub')
    stamp(P, 6)
    P('''
    s_lshl_b32 s6, s4, 1
    s_lshr_b32 s7, s3, 1
    s_add_u32 s6, s6, s7
    s_mul_i32 s6, s6, %d
    s_and_b32 s7, s3, 1
    s_lshl_b32 s7, s7, 12
    s_add_u32 s6, s6, s7
    v_lshl_add_u32 v15, v17, 4, s6
    s_mul_i32 s70, s5, 7
    s_add_u32 s70, s70, 1
    s_lshr_b32 s70, s70, 1
    s_lshl_b32 s70, s70, 13
    s_add_u32 s71, s70, 8192
    s_add_u32 s72, s70, 16384
    s_add_u32 s73, s70, 24576
    s_sub_u32 s74, s70, 8184
    s_bitcmp1_b32 s5, 0
    s_cselect_b32 s73, s74, s73
    ''' % (NKB * 8192))
    tmp = 84
    n = 0
    for pr in range(3):
        for i in range(4):
            dst = 24 + (n & 1) * 4; n += 1
            ffn_out(P, [2 * pr, 2 * pr + 1], i, dst, tmp)
            P('buffer_store_dwordx4 v[%d:%d], v15, s[20:23], s%d offen offset:%d' % (dst, dst + 3, 70 + pr, i * 1024))
    for i in range(4):
        dst = 24 + (n & 1) * 4; n += 1
        ffn_out(P, [6], i, dst, tmp)
        P('buffer_store_dwordx2 v[%d:%d], v15, s[20:23], s73 offen offset:%d' % (dst, dst + 1, i * 1024))
    stamp(P, 7)
    F = 160
    C0, C1, W, PW = F, F + 16, F + 32, F + 48
    L256 = F + 64
    ldconst(6, L256)
    for r in range(16): P('v_mov_b32 v%d, 0' % (C0 + r))
    P('s_cmp_eq_u32 s4, 0')
    P('s_cbranch_scc1 K1_nocarry')
    P('''
    s_lshl_b32 s6, 1, s4
    s_sub_u32 s6, s6, 1
    s_lshl_b32 s7, s5, 2
    s_mov_b32 s75, 0
    ''')
    P.label('K1_poll')
    P('''
    buffer_load_dword v22, off, s[24:27], s7 sc1
    s_waitcnt vmcnt(0)
    v_readfirstlane_b32 s74, v22
    s_add_u32 s75, s75, 1
    s_and_b32 s74, s74, s6
    s_cmp_eq_u32 s74, s6
    s_cbranch_scc1 K1_got
    s_sleep 2
    s_cmp_lt_u32 s75, 0x100000
    s_cbranch_scc1 K1_poll
    ''')
    P.label('K1_got')
    P('''
    s_lshl_b32 s6, s5, 11
    s_add_u32 s6, s6, %d
    s_mov_b32 s7, 0
    v_lshlrev_b32 v22, 5, v19
    s_waitcnt lgkmcnt(0)
    ''' % WS_T)
    P.label('K1_cloop')
    P('buffer_load_dwordx4 v[%d:%d], v22, s[20:23], s6 offen sc1' % (W, W + 3))
    P('buffer_load_dwordx4 v[%d:%d], v22, s[20:23], s6 offen offset:16 sc1' % (W + 4, W + 7))
    P('buffer_load_dwordx4 v[%d:%d], v22, s[20:23], s6 offen offset:128 sc1' % (W + 8, W + 11))
    P('buffer_load_dwordx4 v[%d:%d], v22, s[20:23], s6 offen offset:144 sc1' % (W + 12, W + 15))
    P('s_waitcnt vmcnt(0)')
    for o in range(0, 8, 2):
        cmul_pk(P, C1 + o, C1 + 8 + o, L256 + o, L256 + 8 + o, C0 + o, C0 + 8 + o, W + o, W + 8 + o)
    for r in range(16): P('v_mov_b32 v%d, v%d' % (C0 + r, C1 + r))
    P('''
    s_add_u32 s6, s6, 256
    s_add_u32 s7, s7, 1
    s_cmp_lt_u32 s7, s4
    s_cbranch_scc1 K1_cloop
    ''')
    P.label('K1_nocarry')
    stamp(P, 8)
    P('s_mov_b32 s7, 0')
    P('s_cmp_eq_u32 s3, 0')
    P('s_cbranch_scc1 K1_wdone')
    P.label('K1_wloop')
    P('ds_read_b128 v[%d:%d], v21' % (W, W + 3))
    P('ds_read_b128 v[%d:%d], v21 offset:16' % (W + 4, W + 7))
    P('ds_read_b128 v[%d:%d], v21 offset:128' % (W + 8, W + 11))
    P('ds_read_b128 v[%d:%d], v21 offset:144' % (W + 12, W + 15))
    P('s_waitcnt lgkmcnt(0)')
    for o in range(0, 8, 2):
        cmul_pk(P, C1 + o, C1 + 8 + o, CA + o, CA + 8 + o, C0 + o, C0 + 8 + o, W + o, W + 8 + o)
    for r in range(16): P('v_mov_b32 v%d, v%d' % (C0 + r, C1 + r))
    P('''
    v_add_u32 v21, 256, v21
    s_add_u32 s7, s7, 1
    s_cmp_lt_u32 s7, s3
    s_cbranch_scc1 K1_wloop
    ''')
    P.label('K1_wdone')
    P('v_lshl_add_u32 v22, v18, 8, v20')
    P('ds_read_b128 v[%d:%d], v22 offset:2048' % (PW, PW + 3))
    P('ds_read_b128 v[%d:%d], v22 offset:2064' % (PW + 4, PW + 7))
    P('ds_read_b128 v[%d:%d], v22 offset:2176' % (PW + 8, PW + 11))
    P('ds_read_b128 v[%d:%d], v22 offset:2192' % (PW + 12, PW + 15))
    ldconst(7, CA)
    P('s_waitcnt lgkmcnt(0)')
    for o in range(0, 8, 2):
        cmul_pk(P, S + o, S + 8 + o, PW + o, PW + 8 + o, C0 + o, C0 + 8 + o, S + o, S + 8 + o)
    P('''
    s_add_u32 s70, s5, 112
    s_lshl_b32 s70, s70, 13
    s_add_u32 s71, s70, 262144
    ''')
    for i in range(4):
        O = C1 if (i & 1) else W
        for jt in range(2):
            for h in range(2):
                o = jt * 4 + 2 * h
                if i == 0: br, bi = S + o, S + 8 + o
                else: br, bi = R(jt, i - 1) + 2 * h, Im(jt, i - 1) + 2 * h
                cmul_pk(P, R(jt, i) + 2 * h, Im(jt, i) + 2 * h, LAM + o, LAM + 8 + o, br, bi, R(jt, i) + 2 * h, Im(jt, i) + 2 * h)
        for jt in range(2):
            for h in range(2):
                o = jt * 4 + 2 * h
                cmul_pk(P, O + o, O + 8 + o, CA + o, CA + 8 + o, R(jt, i) + 2 * h, Im(jt, i) + 2 * h)
        d = 24 if (i & 1) else 84
        for k in range(4):
            P('v_cvt_pk_bf16_f32 v%d, v%d, v%d' % (d + k, O + 2 * k, O + 2 * k + 1))
        for k in range(4):
            P('v_cvt_pk_bf16_f32 v%d, -v%d, -v%d' % (d + 4 + k, O + 8 + 2 * k, O + 8 + 2 * k + 1))
        P('buffer_store_dwordx4 v[%d:%d], v15, s[20:23], s70 offen offset:%d' % (d, d + 3, i * 1024))
        P('buffer_store_dwordx4 v[%d:%d], v15, s[20:23], s71 offen offset:%d' % (d + 4, d + 7, i * 1024))

def gen_k1():
    waits = {}
    c = Ctx(None, waits)
    prologue(c)
    for u in range(32): substep(c, u, u % 4)
    P = Prog()
    c = Ctx(P, waits)
    P('.globl k1_kernel\n.p2align 8\n.type k1_kernel,@function')
    P.label('k1_kernel')
    prologue(c)
    P('.p2align 6')
    P.label('K1_loop')
    for u in range(4): substep(c, u, u)
    P('''
    s_xor_b32 s34, s34, s35
    s_xor_b32 s35, s34, s35
    s_xor_b32 s34, s34, s35
    s_add_u32 s33, s33, 1
    s_cmp_lt_u32 s33, 8
    s_cbranch_scc1 K1_loop
    ''')
    epilogue(P)
    stamp(P, 9); stamp_rt(P, 11)
    P('s_waitcnt vmcnt(0)')
    stamp(P, 12)
    stamp_out(P, 0)
    P.label('K1_done')
    P('s_endpgm')
    return P.text(), waits

K1_DESC = '''.amdhsa_kernel k1_kernel
  .amdhsa_next_free_vgpr 512
  .amdhsa_next_free_sgpr 96
  .amdhsa_accum_offset 256
  .amdhsa_group_segment_fixed_size 0
  .amdhsa_kernarg_size 136
  .amdhsa_user_sgpr_count 2
  .amdhsa_user_sgpr_kernarg_segment_ptr 1
  .amdhsa_system_sgpr_workgroup_id_x 1
.end_amdhsa_kernel
'''
if __name__ == '__main__':
    t, w = gen_k1()
    print(w)
    print(len(t.splitlines()))
```

```python
import os
from asmlib import Prog, Counter
import k1
from k1 import Ctx, rr, cmul_pk, ffn_out, acc_reg, ACC_V0, stamp, stamp_rt, stamp_out, NKB, WS_G, WS_T, WS_C2, WS_FL, K1_DESC

XB = 0
WB = 65536
BB = 131072
TAB = 147456
POW = TAB + 2048
WT = TAB + 6144
K1_LDS = TAB + 7168
assert TAB == k1.TAB
XSET = 128
RING = 192
BH = 220
OOB = 0x70000000
PT = int(os.environ.get('PT', '1'))
TOUCH = int(os.environ.get('TOUCH', '1'))

FFN = []
for jt in range(7): FFN += [('G', jt), ('U', jt)]
SSM = [('R', 0), ('I', 0), ('R', 1), ('I', 1)]

def w_read(c, u, t):
    kind, jt = FFN[t]
    slot = RING + (t % 7) * 4
    th = []
    for e in range(2):
        off = (u % 4) * 16384 + ((kind == 'U') * 2 + e) * 4096 + jt * 32
        th.append(lambda off=off, e=e: c.ds('ds_read_b64_tr_b16 a[%d:%d], v12 offset:%d' % (slot + 2 * e, slot + 2 * e + 1, off), ('F', u, t)))
    return th
def b_read(c, s, hh, k):
    kind, jt = SSM[k]
    off = (s % 2) * 8192 + ((kind == 'I') * 32 + jt * 16) * 128
    return lambda: c.ds('ds_read_b128 %s, v%d offset:%d' % (rr('a', BH + hh * 16 + k * 4), 13 + hh, off), ('BF', s, hh))
def x_read(c, s, hh, i):
    off = (s % 2) * 8192 + i * 2048
    return lambda: c.ds('ds_read_b128 %s, v%d offset:%d' % (rr('a', XSET + (s % 2) * 32 + hh * 16 + i * 4), 7 + hh, off), ('XF', s, hh))
def w_dma(c, u, n):
    th = []
    th.append(lambda: c.I('s_add_u32 m0, s32, %d' % ((u % 4) * 16384)))
    th.append(lambda: c.vmem('buffer_load_dwordx4 v%d, s[12:15], s30 offen offset:%d lds' % (3 + n, n * 1024), ('W', u)))
    if n == 3: th.append(lambda: c.I('s_add_u32 s30, s30, 229376'))
    return th
def x_dma(c, s, k):
    th = []
    th.append(lambda: c.I('s_add_u32 m0, s34, %d' % ((s % 2) * 8192 + (k >> 2) * 4096)))
    th.append(lambda: c.vmem('buffer_load_dwordx4 v%d, s[8:11], s%d offen offset:%d lds' % (1 + (k & 1), 28 + (k >> 2), (k & 3) * 1024), ('X', s)))
    if k == 7:
        th.append(lambda: c.I('s_add_u32 s28, s28, 128'))
        th.append(lambda: c.I('s_cmp_lt_u32 s28, 2048'))
        th.append(lambda: c.I('s_cselect_b32 s28, s28, s77'))
        th.append(lambda: c.I('s_add_u32 s29, s28, 4096'))
    return th
def b_dma(c, s, n):
    th = []
    th.append(lambda: c.I('s_add_u32 m0, s35, %d' % ((s % 2) * 8192)))
    th.append(lambda: c.vmem('buffer_load_dwordx4 v%d, s[16:19], s31 offen offset:%d lds' % (10 + n, n * 1024), ('B', s)))
    if n == 1:
        th.append(lambda: c.I('s_add_u32 s31, s31, 128'))
        th.append(lambda: c.I('s_cmp_lt_u32 s31, 2048'))
        th.append(lambda: c.I('s_cselect_b32 s31, s31, s77'))
    return th

def substep(c, u, site, extra=None, first=False, last=False):
    hh = u & 1; s = u >> 1
    for j in range(18):
        fill = []
        if j <= 8: fill += w_read(c, u, j + 5)
        if 12 <= j <= 16 and u != 31: fill += w_read(c, u + 1, j - 12)
        if u == 31: pass
        elif hh == 1:
            if j == 9: fill.append(lambda: c.wait_vm((site, 'x'), lambda t: t == ('X', s + 1)))
            if j in (9, 10): fill += [x_read(c, s + 1, 0, (j - 9) * 2 + k) for k in range(2)]
            if j in (14, 15, 16, 17): fill.append(x_read(c, s + 1, 1, j - 14))
            if j in (12, 13): fill += [b_read(c, s + 1, 0, (j - 12) * 2 + k) for k in range(2)]
        else:
            if j in (0, 2, 4, 6): fill.append(b_read(c, s, 1, j // 2))
        d = []
        if j in (13, 15, 17): d = w_dma(c, u + 4, (j - 13) // 2)
        if j == 1: d = w_dma(c, u + 3, 3)
        if j in (3, 5, 7, 9): d = x_dma(c, s + 2, hh * 4 + (j - 3) // 2)
        if hh == 0 and j in (14, 16): d = b_dma(c, s + 2, (j - 14) // 2)
        if last: d = []
        fill = d[:1] + fill + d[1:]
        if extra:
            room = max(0, 8 - 1 - len(fill))
            for _ in range(min(room, len(extra))): fill.append(extra.pop(0))
        if j == 0: c.wait_lg((site, 'xf'), lambda t: t in (('XF', s, hh), ('F', u, 0)))
        elif j < 14: c.wait_lg((site, 'f', j), lambda t: t == ('F', u, j))
        elif j == 14: c.wait_lg((site, 'bf'), lambda t: t == ('BF', s, hh))
        if j < 14:
            kind, jt = FFN[j]; a = RING + (j % 7) * 4
        else:
            kind, jt = SSM[j - 14]; a = BH + hh * 16 + (j - 14) * 4
        nf = len(fill); k = 0
        for i in range(4):
            f, b = acc_reg(kind, jt, i)
            c.I('v_mfma_f32_16x16x32_bf16 %s, %s, %s, %s' % (rr(f, b), rr('a', a), rr('a', XSET + (s % 2) * 32 + hh * 16 + i * 4), '0' if first else rr(f, b)))
            take = (nf * (i + 1) + 3) // 4 - k
            for _ in range(take):
                fill[k](); k += 1
        if j == 11 and u != 31:
            if hh == 1: c.wait_vm((site, 'd'), lambda t: t in (('W', u + 1), ('B', s + 1)))
            else: c.wait_vm((site, 'd'), lambda t: t == ('W', u + 1))
            c.I('s_waitcnt lgkmcnt(0)')
            c.lg.q = []
            c.I('s_barrier')

def touch(I, batch):
    ks = 2 + 7 * batch
    I('''
    s_mov_b32 s6, %d
    s_mov_b32 s7, %d
    s_mov_b32 exec_hi, 0x1ffff
    buffer_load_dword v27, v28, s[12:15], s6 offen
    s_mov_b64 exec, 0x3fff
    buffer_load_dword v27, v29, s[16:19], s7 offen
    buffer_load_dword v27, v30, s[8:11], s7 offen
    s_mov_b64 exec, -1
    ''' % (ks * 64 * 7168, ks * 128))

def touch_wd(I):
    I('''
    s_lshl_b32 s6, s2, 2
    s_add_u32 s6, s6, s3
    s_mul_i32 s6, s6, 7168
    v_lshlrev_b32 v26, 7, v17
    s_mov_b32 exec_hi, 0xffffff
    buffer_load_dword v27, v26, s[88:91], s6 offen
    s_mov_b64 exec, -1
    ''')

def tables_text():
    t = '''
    v_lshlrev_b32 v48, 16, v48
    v_lshlrev_b32 v49, 16, v49
    v_lshlrev_b32 v50, 16, v50
    v_mul_f32 v50, 0x3fb8aa3b, v50
    v_exp_f32 v50, v50
    v_cvt_pk_bf16_f32 v50, v50, v50
    v_lshlrev_b32 v50, 16, v50
    v_mul_f32 v51, v50, v48
    v_mul_f32 v52, v50, v49
    v_mul_f32 v51, 0x3fb8aa3b, v51
    v_exp_f32 v51, v51
    v_mul_f32 v52, 0.15915494, v52
    v_fract_f32 v52, v52
    v_cos_f32 v53, v52
    v_sin_f32 v54, v52
    v_mul_f32 v64, v51, v53
    v_mul_f32 v65, v51, v54
    v_add_f32 v51, -1.0, v64
    v_mul_f32 v52, v48, v48
    v_fmac_f32 v52, v49, v49
    v_rcp_f32 v53, v52
    v_mul_f32 v54, v51, v48
    v_fmac_f32 v54, v65, v49
    v_mul_f32 v55, v65, v48
    v_fma_f32 v55, -v51, v49, v55
    v_fma_f32 v52, -v52, v53, 2.0
    v_mul_f32 v53, v53, v52
    v_add_f32 v53, v53, v53
    v_mul_f32 v88, v54, v53
    v_mul_f32 v89, v55, v53
    '''
    for k in range(10):
        a = 64 + 2 * k; d = a + 2
        t += '''
        v_mul_f32 v%d, v%d, v%d
        v_fma_f32 v%d, -v%d, v%d, v%d
        v_mul_f32 v%d, v%d, v%d
        v_add_f32 v%d, v%d, v%d
        ''' % (d, a, a, d, a + 1, a + 1, d, d + 1, a, a + 1, d + 1, d + 1, d + 1)
    t += '''
    v_lshrrev_b32 v51, 5, v0
    v_mov_b32 v56, 1.0
    v_mov_b32 v57, 0
    '''
    for b in range(3):
        a = 68 + 2 * b
        t += '''
        v_mul_f32 v52, v56, v%d
        v_fma_f32 v52, -v57, v%d, v52
        v_mul_f32 v53, v56, v%d
        v_fmac_f32 v53, v57, v%d
        v_and_b32 v54, %d, v51
        v_cmp_ne_u32 vcc, 0, v54
        v_cndmask_b32 v56, v56, v52, vcc
        v_cndmask_b32 v57, v57, v53, vcc
        ''' % (a, a + 1, a + 1, a, 1 << b)
    t += '''
    v_mul_f32 v58, v56, v74
    v_fma_f32 v58, -v57, v75, v58
    v_mul_f32 v59, v56, v75
    v_fmac_f32 v59, v57, v74
    v_and_b32 v52, 31, v0
    v_lshlrev_b32 v52, 2, v52
    v_lshl_add_u32 v53, v51, 8, v52
    v_add_u32 v53, %d, v53
    v_add_u32 v52, %d, v52
    ds_write_b32 v53, v56
    ds_write_b32 v53, v57 offset:128
    ds_write_b32 v53, v58 offset:2048
    ds_write_b32 v53, v59 offset:2176
    ''' % (POW, TAB)
    for idx, r in enumerate([64, 68, 70, 72, 74, 76, 80, 88]):
        t += 'ds_write2_b32 v52, v%d, v%d offset0:%d offset1:%d\n' % (r, r + 1, idx * 64, idx * 64 + 32) if idx < 4 else \
             'ds_write_b32 v52, v%d offset:%d\nds_write_b32 v52, v%d offset:%d\n' % (r, idx * 256, r + 1, idx * 256 + 128)
    for idx, r in ((28, 82), (29, 84)):
        t += 'ds_write_b32 v52, v%d offset:%d\nds_write_b32 v52, v%d offset:%d\n' % (r, idx * 256, r + 1, idx * 256 + 128)
    return [l.strip() for l in t.splitlines() if l.strip()]
K1_LDS = TAB + 7680

def as_fill(c, lines):
    out = []
    for l in lines:
        if l.startswith('ds_'): out.append(lambda l=l: c.ds(l, ('T',)))
        else: out.append(lambda l=l: c.I(l))
    return out

def run(ths):
    for t in ths: t()

def prologue(c):
    I = c.I
    I('''
    s_cmp_ge_u32 s2, 256
    s_cbranch_scc1 K1_done
    s_load_dwordx16 s[36:51], s[0:1], 0
    s_load_dwordx16 s[52:67], s[0:1], 64
    s_load_dwordx2 s[68:69], s[0:1], 128
    v_lshrrev_b32 v16, 6, v0
    v_and_b32 v17, 63, v0
    v_readfirstlane_b32 s3, v16
    s_lshr_b32 s4, s2, 5
    s_and_b32 s5, s2, 7
    s_lshl_b32 s5, s5, 2
    s_bfe_u32 s6, s2, 0x20003
    s_add_u32 s5, s5, s6
    v_and_b32 v18, 15, v0
    v_bfe_u32 v19, v0, 4, 2
    v_lshrrev_b32 v20, 3, v17
    v_and_b32 v21, 7, v17
    v_xor_b32 v21, v21, v20
    s_lshl_b32 s6, s4, 8
    s_lshl_b32 s7, s3, 6
    s_add_u32 s6, s6, s7
    v_lshl_add_u32 v1, v20, 2, s6
    v_lshlrev_b32 v1, 11, v1
    v_lshl_add_u32 v1, v21, 4, v1
    v_add_u32 v2, 0xfc00, v1
    s_mov_b32 s10, 0x400000
    s_mov_b32 s11, 0x00020000
    s_mov_b32 s14, 0x700000
    s_mov_b32 s15, 0x00020000
    s_mov_b32 s18, 0x200000
    s_mov_b32 s19, 0x00020000
    s_mov_b32 s22, 0x10000000
    s_mov_b32 s23, 0x00020000
    s_mov_b32 s26, 256
    s_mov_b32 s27, 0x00020000
    s_mov_b32 s90, 0x700000
    s_mov_b32 s91, 0x00020000
    s_mov_b32 s28, 0
    s_mov_b32 s29, 4096
    s_mov_b32 s30, 0
    s_mov_b32 s31, 0
    s_mov_b32 s77, 0x%x
    s_lshl_b32 s32, s3, 12
    s_add_u32 s32, s32, %d
    s_lshl_b32 s34, s3, 14
    s_lshl_b32 s35, s3, 11
    s_add_u32 s35, s35, %d
    v_lshrrev_b32 v22, 2, v20
    v_and_b32 v23, 3, v20
    v_lshl_add_u32 v22, v22, 3, v23
    s_and_b32 s7, s3, 1
    s_lshl_b32 s6, s5, 5
    s_lshl_b32 s70, s7, 2
    s_add_u32 s6, s6, s70
    v_add_u32 v22, s6, v22
    v_lshlrev_b32 v22, 11, v22
    v_lshl_add_u32 v10, v21, 4, v22
    v_add_u32 v11, 0x7c00, v10
    s_mul_i32 s72, s5, 224
    s_mul_i32 s70, s7, 28672
    s_add_u32 s72, s72, s70
    s_and_b32 s73, s5, 1
    s_lshl_b32 s73, s73, 1
    s_movk_i32 s74, 4682
    s_movk_i32 s75, 7168
    s_waitcnt lgkmcnt(0)
    s_mov_b32 s8, s36
    s_mov_b32 s9, s37
    s_cmp_ge_u32 s3, 2
    s_cselect_b32 s12, s58, s56
    s_cselect_b32 s13, s59, s57
    s_cselect_b32 s16, s44, s42
    s_cselect_b32 s17, s45, s43
    s_cselect_b32 s86, s48, s46
    s_cselect_b32 s87, s49, s47
    s_mov_b32 s20, s68
    s_mov_b32 s21, s69
    s_mov_b32 s24, s66
    s_mov_b32 s25, s67
    s_mov_b32 s88, s60
    s_mov_b32 s89, s61
    ''' % (OOB, WB, BB))
    stamp(I, 0); stamp_rt(I, 10)
    if PT:
        I('''
        s_lshr_b32 s78, s2, 3
        s_lshl_b32 s78, s78, 2
        s_add_u32 s78, s78, s3
        s_and_b32 s79, s78, 15
        s_lshr_b32 s80, s78, 4
        s_mov_b32 s82, 0x11111112
        s_mov_b32 s83, 0x14144401
        s_lshl_b32 s81, s79, 2
        s_lshr_b64 s[82:83], s[82:83], s81
        s_and_b32 s82, s82, 15
        s_cmp_lt_u32 s80, s82
        s_cselect_b32 s79, s79, 0
        s_cselect_b32 s80, s80, 0
        s_sub_u32 s81, s78, 64
        s_cmp_lt_u32 s81, 20
        s_cselect_b32 s79, 16, s79
        s_cselect_b32 s80, s81, s80
        s_lshl_b32 s79, s79, 3
        s_lshl_b32 s80, s80, 21
        s_load_dwordx2 s[82:83], s[0:1], s79
        ''')
    for k in range(8): run(x_dma(c, 0, k))
    if PT:
        I('s_waitcnt lgkmcnt(0)')
        I('s_load_dword s81, s[82:83], s80')
    for n in range(4):
        I('''
        v_add_u32 v26, %d, v17
        v_mul_u32_u24 v27, s74, v26
        v_lshrrev_b32 v27, 16, v27
        v_mul_u32_u24 v28, 14, v27
        v_sub_u32 v28, v26, v28
        v_add_u32 v28, s73, v28
        v_subrev_u32 v29, 14, v28
        v_min_u32 v28, v28, v29
        v_lshrrev_b32 v29, 2, v27
        v_and_b32 v27, 3, v27
        v_lshl_add_u32 v27, v29, 3, v27
        v_mul_u32_u24 v27, s75, v27
        v_lshl_add_u32 v27, v28, 4, v27
        v_add_u32 v27, s72, v27
        v_subrev_u32 v%d, %d, v27
        ''' % (n * 64, 3 + n, n * 1024))
        if n == 3:
            I('v_mov_b32 v26, s77\nv_cmp_gt_u32 vcc, 32, v17\nv_cndmask_b32 v6, v26, v6, vcc')
        run(w_dma(c, 0, n))
    for n in range(2): run(b_dma(c, 0, n))
    for n in range(4): run(w_dma(c, 1, n))
    I('''
    v_and_b32 v24, 31, v0
    v_lshl_add_u32 v24, s5, 5, v24
    v_lshlrev_b32 v24, 1, v24
    ''')
    c.vmem('global_load_ushort v48, v24, s[38:39]', ('S',))
    c.vmem('global_load_ushort v49, v24, s[40:41]', ('S',))
    c.vmem('global_load_ushort v50, v24, s[50:51]', ('S',))
    for k in range(8): run(x_dma(c, 1, k))
    for n in range(4): run(w_dma(c, 2, n))
    for n in range(2): run(b_dma(c, 1, n))
    for n in range(3): run(w_dma(c, 3, n))
    for l in range(64): assert (l * 37) >> 8 == l // 7
    I('''
    v_mul_u32_u24 v26, 37, v17
    v_lshrrev_b32 v26, 8, v26
    v_mul_u32_u24 v27, 7, v26
    v_sub_u32 v27, v17, v27
    v_lshlrev_b32 v27, 7, v27
    s_lshr_b32 s6, s2, 3
    s_lshl_b32 s6, s6, 1
    s_add_u32 s6, s6, s7
    s_and_b32 s70, s2, 7
    s_mul_i32 s71, s6, 7
    v_add_u32 v28, s71, v26
    v_mul_u32_u24 v28, s75, v28
    v_add_u32 v28, v28, v27
    s_mul_i32 s71, s70, 896
    v_add_u32 v28, s71, v28
    s_lshl_b32 s71, s70, 7
    s_lshl_b32 s6, s6, 1
    s_add_u32 s71, s71, s6
    v_add_u32 v29, s71, v26
    v_lshl_add_u32 v29, v29, 11, v27
    s_lshl_b32 s6, s4, 8
    s_lshl_b32 s70, s5, 3
    s_add_u32 s6, s6, s70
    s_lshl_b32 s70, s3, 1
    s_add_u32 s71, s6, s70
    v_add_u32 v30, s71, v26
    v_lshl_add_u32 v30, v30, 11, v27
    ''')
    if TOUCH == 1: touch(I, 0)
    I('''
    s_and_b32 s7, s3, 1
    s_lshl_b32 s6, s4, 7
    s_lshl_b32 s70, s7, 6
    s_add_u32 s6, s6, s70
    v_add_u32 v26, s6, v18
    v_lshlrev_b32 v26, 11, v26
    v_lshl_add_u32 v26, v19, 4, v26
    s_lshl_b32 s6, s5, 6
    v_add_u32 v26, s6, v26
    ''')
    for k in range(4):
        I('global_load_dwordx4 v[%d:%d], v26, s[86:87]' % (32 + 4 * k, 35 + 4 * k))
        if k < 3: I('v_add_u32 v26, 0x8000, v26')
    I('''
    v_lshrrev_b32 v26, 2, v18
    v_lshl_add_u32 v26, v19, 2, v26
    v_mul_u32_u24 v26, 224, v26
    v_and_b32 v27, 3, v17
    v_lshl_add_u32 v12, v27, 3, v26
    v_add_u32 v12, %d, v12
    v_and_b32 v26, 7, v17
    v_xor_b32 v26, v26, v19
    v_lshlrev_b32 v26, 4, v26
    v_lshl_add_u32 v26, v18, 7, v26
    v_add_u32 v13, %d, v26
    v_xor_b32 v14, 64, v13
    v_add_u32 v7, s34, v26
    v_xor_b32 v8, 64, v7
    s_mov_b32 s33, 0
    ''' % (WB, BB))
    stamp(I, 3)
    c.wait_vm(('d0',), lambda t: t in (('W', 0), ('B', 0), ('X', 0)))
    I('s_barrier')
    stamp(I, 4)
    for i in range(4): x_read(c, 0, 0, i)()
    for t in range(5): run(w_read(c, 0, t))
    for i in range(4): x_read(c, 0, 1, i)()
    for k in range(4): b_read(c, 0, 0, k)()

def epilogue(P):
    R = lambda jt, i: acc_reg('R', jt, i)[1]
    Im = lambda jt, i: acc_reg('I', jt, i)[1]
    stamp(P, 5)
    P('s_waitcnt vmcnt(0)')
    P("""
    s_lshl_b32 s6, s4, 6
    s_lshr_b32 s7, s3, 1
    s_lshl_b32 s7, s7, 5
    s_add_u32 s6, s6, s7
    s_add_u32 s6, s6, s5
    s_lshl_b32 s6, s6, 13
    s_and_b32 s7, s3, 1
    s_lshl_b32 s7, s7, 12
    s_add_u32 s6, s6, s7
    s_add_u32 s6, s6, %d
    v_lshlrev_b32 v20, 4, v17
    s_lshl_b32 s7, s2, 2
    s_add_u32 s7, s7, s3
    s_lshl_b32 s7, s7, 6
    s_add_u32 s7, s7, %d
    v_mov_b32 v21, 0
    s_lshl_b32 s70, s71, 11
    v_lshlrev_b32 v25, 5, v17
    """ % (WS_C2, WS_FL))
    for k in range(4):
        P('buffer_store_dwordx4 v[%d:%d], v20, s[20:23], s6 offen offset:%d' % (32 + 4 * k, 35 + 4 * k, k * 1024))
    P('buffer_store_dword v21, off, s[20:23], s7')
    P('buffer_load_dwordx4 a[128:131], v25, s[8:11], s70 offen')
    P('buffer_load_dwordx4 a[132:135], v25, s[8:11], s70 offen offset:16')
    P('buffer_load_dwordx4 a[136:139], v25, s[8:11], s70 offen offset:2048')
    P('buffer_load_dwordx4 a[140:143], v25, s[8:11], s70 offen offset:2064')
    P('global_load_dwordx4 a[144:147], v25, s[62:63]')
    P('global_load_dwordx4 a[148:151], v25, s[62:63] offset:16')
    P('s_mov_b32 s92, s71')
    P('v_lshlrev_b32 v20, 5, v19')
    P('v_add_u32 v20, %d, v20' % TAB)
    def ldconst(idx, dst):
        P('ds_read_b128 v[%d:%d], v20 offset:%d' % (dst, dst + 3, idx * 256))
        P('ds_read_b128 v[%d:%d], v20 offset:%d' % (dst + 4, dst + 7, idx * 256 + 16))
        P('ds_read_b128 v[%d:%d], v20 offset:%d' % (dst + 8, dst + 11, idx * 256 + 128))
        P('ds_read_b128 v[%d:%d], v20 offset:%d' % (dst + 12, dst + 15, idx * 256 + 144))
    LAM = 32; CA = 48; E = 64; T = 80
    ldconst(0, LAM); ldconst(1, CA)
    P('s_waitcnt lgkmcnt(4)')
    cur = None
    bufs = [E, T]
    for i in range(1, 4):
        d = bufs[i & 1]
        for jt in range(2):
            for h in range(2):
                o = jt * 4 + 2 * h
                if cur is None: br, bi = R(jt, 0) + 2 * h, Im(jt, 0) + 2 * h
                else: br, bi = cur + o, cur + 8 + o
                cmul_pk(P, d + o, d + 8 + o, LAM + o, LAM + 8 + o, br, bi, R(jt, i) + 2 * h, Im(jt, i) + 2 * h)
        cur = d
    S = E
    for k, sh in enumerate((1, 2, 4, 8)):
        for r in range(16):
            P('v_mov_b32_dpp v%d, v%d row_shr:%d row_mask:0xf bank_mask:0xf bound_ctrl:0' % (S + r, cur + r, sh))
        P('s_waitcnt lgkmcnt(0)')
        for o in range(0, 8, 2):
            cmul_pk(P, cur + o, cur + 8 + o, CA + o, CA + 8 + o, S + o, S + 8 + o, cur + o, cur + 8 + o)
        ldconst(2 + k, CA)
    P("""
    s_lshl_b32 s6, s3, 8
    s_add_u32 s6, s6, %d
    v_lshl_add_u32 v21, v19, 5, s6
    v_cmp_eq_u32 vcc, 15, v18
    s_and_saveexec_b64 s[76:77], vcc
    """ % WT)
    P('ds_write_b128 v21, v[%d:%d]' % (cur, cur + 3))
    P('ds_write_b128 v21, v[%d:%d] offset:16' % (cur + 4, cur + 7))
    P('ds_write_b128 v21, v[%d:%d] offset:128' % (cur + 8, cur + 11))
    P('ds_write_b128 v21, v[%d:%d] offset:144' % (cur + 12, cur + 15))
    P('s_mov_b64 exec, s[76:77]')
    for r in range(16):
        P('v_mov_b32_dpp v%d, v%d row_shr:1 row_mask:0xf bank_mask:0xf bound_ctrl:0' % (S + r, cur + r))
    P('s_waitcnt lgkmcnt(0)')
    P('s_barrier')
    P('v_lshlrev_b32 v21, 5, v19')
    P('v_add_u32 v21, %d, v21' % WT)
    P('s_cmp_lg_u32 s3, 3')
    P('s_cbranch_scc1 K1_nopub')
    P('s_cmp_eq_u32 s4, 7')
    P('s_cbranch_scc1 K1_nopub')
    for jt in range(2):
        A, B, W = T, T + 8, 24
        P('ds_read_b128 v[%d:%d], v21 offset:%d' % (A, A + 3, jt * 16))
        P('ds_read_b128 v[%d:%d], v21 offset:%d' % (A + 4, A + 7, jt * 16 + 128))
        for w in range(1, 4):
            P('ds_read_b128 v[%d:%d], v21 offset:%d' % (W, W + 3, w * 256 + jt * 16))
            P('ds_read_b128 v[%d:%d], v21 offset:%d' % (W + 4, W + 7, w * 256 + jt * 16 + 128))
            P('s_waitcnt lgkmcnt(0)')
            for h in range(2):
                o = jt * 4 + 2 * h
                cmul_pk(P, B + 2 * h, B + 4 + 2 * h, CA + o, CA + 8 + o, A + 2 * h, A + 4 + 2 * h, W + 2 * h, W + 4 + 2 * h)
            A, B = B, A
        if jt == 0:
            P("""
            s_lshl_b32 s6, s5, 3
            s_add_u32 s6, s6, s4
            s_lshl_b32 s6, s6, 8
            s_add_u32 s6, s6, %d
            v_lshlrev_b32 v22, 5, v19
            """ % WS_T)
        P('v_cmp_eq_u32 vcc, 0, v18')
        P('s_and_saveexec_b64 s[76:77], vcc')
        P('buffer_store_dwordx4 v[%d:%d], v22, s[20:23], s6 offen offset:%d sc1' % (A, A + 3, jt * 16))
        P('buffer_store_dwordx4 v[%d:%d], v22, s[20:23], s6 offen offset:%d sc1' % (A + 4, A + 7, jt * 16 + 128))
        P('s_mov_b64 exec, s[76:77]')
        P('s_nop 1')
    P("""
    s_waitcnt vmcnt(0)
    s_lshl_b32 s6, 1, s4
    v_mov_b32 v22, s6
    s_lshl_b32 s7, s5, 2
    s_mov_b64 exec, 1
    buffer_atomic_add v22, off, s[24:27], s7 sc1
    s_mov_b64 exec, -1
    """)
    P.label('K1_nopub')
    stamp(P, 6)
    P("""
    s_lshl_b32 s6, s4, 1
    s_lshr_b32 s7, s3, 1
    s_add_u32 s6, s6, s7
    s_mul_i32 s6, s6, %d
    s_and_b32 s7, s3, 1
    s_lshl_b32 s7, s7, 12
    s_add_u32 s6, s6, s7
    v_lshl_add_u32 v15, v17, 4, s6
    s_mul_i32 s70, s5, 7
    s_add_u32 s70, s70, 1
    s_lshr_b32 s70, s70, 1
    s_lshl_b32 s70, s70, 13
    s_add_u32 s71, s70, 8192
    s_add_u32 s72, s70, 16384
    s_add_u32 s73, s70, 24576
    s_sub_u32 s74, s70, 8184
    s_bitcmp1_b32 s5, 0
    s_cselect_b32 s73, s74, s73
    """ % (NKB * 8192))
    tmp = 84
    n = 0
    for pr in range(3):
        for i in range(4):
            dst = 24 + (n & 1) * 4; n += 1
            ffn_out(P, [2 * pr, 2 * pr + 1], i, dst, tmp)
            P('buffer_store_dwordx4 v[%d:%d], v15, s[20:23], s%d offen offset:%d' % (dst, dst + 3, 70 + pr, i * 1024))
    for i in range(4):
        dst = 24 + (n & 1) * 4; n += 1
        ffn_out(P, [6], i, dst, tmp)
        P('buffer_store_dwordx2 v[%d:%d], v15, s[20:23], s73 offen offset:%d' % (dst, dst + 1, i * 1024))
    stamp(P, 7)
    F = 160
    C0, C1, W, PW, Q, Q1 = F, F + 16, F + 32, F + 48, F + 64, F + 80
    P('s_lshl_b32 s7, s5, 2')
    P('buffer_load_dword v23, off, s[24:27], s7 sc1')
    P('v_lshl_add_u32 v22, v18, 8, v20')
    for dst in (PW, Q):
        P('ds_read_b128 v[%d:%d], v22 offset:2048' % (dst, dst + 3))
        P('ds_read_b128 v[%d:%d], v22 offset:2064' % (dst + 4, dst + 7))
        P('ds_read_b128 v[%d:%d], v22 offset:2176' % (dst + 8, dst + 11))
        P('ds_read_b128 v[%d:%d], v22 offset:2192' % (dst + 12, dst + 15))
    for r in range(16): P('v_mov_b32 v%d, 0' % (C0 + r))
    P('s_mov_b32 s7, 0')
    P('s_cmp_eq_u32 s3, 0')
    P('s_cbranch_scc1 K1_wdone')
    P.label('K1_wloop')
    P('ds_read_b128 v[%d:%d], v21' % (W, W + 3))
    P('ds_read_b128 v[%d:%d], v21 offset:16' % (W + 4, W + 7))
    P('ds_read_b128 v[%d:%d], v21 offset:128' % (W + 8, W + 11))
    P('ds_read_b128 v[%d:%d], v21 offset:144' % (W + 12, W + 15))
    P('s_waitcnt lgkmcnt(0)')
    for o in range(0, 8, 2):
        cmul_pk(P, C1 + o, C1 + 8 + o, CA + o, CA + 8 + o, C0 + o, C0 + 8 + o, W + o, W + 8 + o)
        cmul_pk(P, Q1 + o, Q1 + 8 + o, CA + o, CA + 8 + o, Q + o, Q + 8 + o)
    for r in range(0, 16, 2):
        P('v_mov_b64 v[%d:%d], v[%d:%d]' % (C0 + r, C0 + r + 1, C1 + r, C1 + r + 1))
        P('v_mov_b64 v[%d:%d], v[%d:%d]' % (Q + r, Q + r + 1, Q1 + r, Q1 + r + 1))
    P("""
    v_add_u32 v21, 256, v21
    s_add_u32 s7, s7, 1
    s_cmp_lt_u32 s7, s3
    s_cbranch_scc1 K1_wloop
    """)
    P.label('K1_wdone')
    P('s_waitcnt lgkmcnt(0)')
    for o in range(0, 8, 2):
        cmul_pk(P, S + o, S + 8 + o, PW + o, PW + 8 + o, C0 + o, C0 + 8 + o, S + o, S + 8 + o)
    ldconst(6, C0); ldconst(28, C1); ldconst(29, PW); ldconst(7, CA)
    G = 80
    P('s_waitcnt vmcnt(17)')
    for row in range(2):
        acc = G + 12 + row
        P('v_mov_b32 v%d, 0' % acc)
        for d in range(8):
            P("""
            v_accvgpr_read_b32 v%d, a%d
            v_accvgpr_read_b32 v%d, a%d
            v_and_b32 v%d, 0xffff0000, v%d
            v_lshlrev_b32 v%d, 16, v%d
            v_and_b32 v%d, 0xffff0000, v%d
            v_lshlrev_b32 v%d, 16, v%d
            v_pk_mul_f32 v[%d:%d], v[%d:%d], v[%d:%d]
            v_cvt_pk_bf16_f32 v%d, v%d, v%d
            v_and_b32 v%d, 0xffff0000, v%d
            v_lshlrev_b32 v%d, 16, v%d
            v_add_f32 v%d, v%d, v%d
            v_add_f32 v%d, v%d, v%d
            """ % (G, 128 + row * 8 + d, G + 2, 144 + d, G + 1, G, G, G, G + 3, G + 2, G + 2, G + 2,
                   G, G + 1, G, G + 1, G + 2, G + 3, G, G, G + 1, G + 1, G, G, G, acc, acc, G, acc, acc, G + 1))
    for sh in (1, 2, 4, 8):
        for row in range(2):
            a = G + 12 + row
            P('v_add_f32_dpp v%d, v%d, v%d row_shr:%d row_mask:0xf bank_mask:0xf bound_ctrl:0' % (a, a, a, sh))
    for row in range(2):
        for k in range(4):
            P('v_readlane_b32 s%d, v%d, %d' % (76 + row * 4 + k, G + 12 + row, 15 + 16 * k))
    P("""
    v_mov_b32 v80, s76
    v_add_f32 v80, s77, v80
    v_add_f32 v80, s78, v80
    v_add_f32 v80, s79, v80
    v_mov_b32 v81, s80
    v_add_f32 v81, s81, v81
    v_add_f32 v81, s82, v81
    v_add_f32 v81, s83, v81
    v_cvt_pk_bf16_f32 v80, v80, v81
    v_lshlrev_b32 v81, 16, v80
    v_and_b32 v82, 0xffff0000, v80
    v_mul_f32 v81, 0xbfb8aa3b, v81
    v_mul_f32 v82, 0xbfb8aa3b, v82
    v_exp_f32 v81, v81
    v_exp_f32 v82, v82
    v_add_f32 v81, 1.0, v81
    v_add_f32 v82, 1.0, v82
    v_rcp_f32 v81, v81
    v_rcp_f32 v82, v82
    v_cvt_pk_bf16_f32 v80, v81, v82
    v_lshlrev_b32 v82, 16, v80
    v_and_b32 v83, 0xffff0000, v80
    s_lshl_b32 s6, s92, 2
    s_add_u32 s6, s6, %d
    s_mov_b64 exec, 1
    buffer_store_dwordx2 v[82:83], off, s[20:23], s6
    s_mov_b64 exec, -1
    """ % WS_G)
    P('s_cmp_eq_u32 s4, 0')
    P('s_cbranch_scc1 K1_nocarry')
    P("""
    s_lshl_b32 s6, 1, s4
    s_sub_u32 s6, s6, 1
    s_lshl_b32 s7, s5, 2
    s_mov_b32 s75, 0
    s_sub_u32 s70, s4, 8
    v_add_u32 v22, s70, v18
    v_cmp_gt_u32 vcc, s4, v22
    v_lshlrev_b32 v22, 8, v22
    v_lshl_add_u32 v22, v19, 5, v22
    v_mov_b32 v24, 0x%x
    v_cndmask_b32 v22, v24, v22, vcc
    s_lshl_b32 s70, s5, 11
    s_add_u32 s70, s70, %d
    s_waitcnt vmcnt(1)
    s_branch K1_chk
    """ % (OOB, WS_T))
    P.label('K1_poll')
    P("""
    s_sleep 1
    buffer_load_dword v23, off, s[24:27], s7 sc1
    s_waitcnt vmcnt(0)
    """)
    P.label('K1_chk')
    P("""
    v_readfirstlane_b32 s74, v23
    s_add_u32 s75, s75, 1
    s_and_b32 s74, s74, s6
    s_cmp_eq_u32 s74, s6
    s_cbranch_scc1 K1_got
    s_cmp_lt_u32 s75, 0x100000
    s_cbranch_scc1 K1_poll
    """)
    P.label('K1_got')
    P('buffer_load_dwordx4 v[%d:%d], v22, s[20:23], s70 offen sc1' % (W, W + 3))
    P('buffer_load_dwordx4 v[%d:%d], v22, s[20:23], s70 offen offset:16 sc1' % (W + 4, W + 7))
    P('buffer_load_dwordx4 v[%d:%d], v22, s[20:23], s70 offen offset:128 sc1' % (W + 8, W + 11))
    P('buffer_load_dwordx4 v[%d:%d], v22, s[20:23], s70 offen offset:144 sc1' % (W + 12, W + 15))
    P('s_waitcnt vmcnt(0) lgkmcnt(0)')
    P('s_nop 1')
    for sh, K in ((1, C0), (2, C1), (4, PW)):
        for r in range(16):
            P('v_mov_b32_dpp v%d, v%d row_shr:%d row_mask:0xf bank_mask:0xf bound_ctrl:0' % (Q1 + r, W + r, sh))
        for o in range(0, 8, 2):
            cmul_pk(P, W + o, W + 8 + o, K + o, K + 8 + o, Q1 + o, Q1 + 8 + o, W + o, W + 8 + o)
    for r in range(16):
        P('v_mov_b32_dpp v%d, v%d row_newbcast:7 row_mask:0xf bank_mask:0xf' % (Q1 + r, W + r))
    for o in range(0, 8, 2):
        cmul_pk(P, S + o, S + 8 + o, Q + o, Q + 8 + o, Q1 + o, Q1 + 8 + o, S + o, S + 8 + o)
    P.label('K1_nocarry')
    stamp(P, 8)
    P("""
    s_waitcnt lgkmcnt(0)
    s_add_u32 s70, s5, 112
    s_lshl_b32 s70, s70, 13
    s_add_u32 s71, s70, 262144
    """)
    for i in range(4):
        O = C1 if (i & 1) else W
        for jt in range(2):
            for h in range(2):
                o = jt * 4 + 2 * h
                if i == 0: br, bi = S + o, S + 8 + o
                else: br, bi = R(jt, i - 1) + 2 * h, Im(jt, i - 1) + 2 * h
                cmul_pk(P, R(jt, i) + 2 * h, Im(jt, i) + 2 * h, LAM + o, LAM + 8 + o, br, bi, R(jt, i) + 2 * h, Im(jt, i) + 2 * h)
        for jt in range(2):
            for h in range(2):
                o = jt * 4 + 2 * h
                cmul_pk(P, O + o, O + 8 + o, CA + o, CA + 8 + o, R(jt, i) + 2 * h, Im(jt, i) + 2 * h)
        d = 24 if (i & 1) else 84
        for k in range(4):
            P('v_cvt_pk_bf16_f32 v%d, v%d, v%d' % (d + k, O + 2 * k, O + 2 * k + 1))
        for k in range(4):
            P('v_cvt_pk_bf16_f32 v%d, -v%d, -v%d' % (d + 4 + k, O + 8 + 2 * k, O + 8 + 2 * k + 1))
        P('buffer_store_dwordx4 v[%d:%d], v15, s[20:23], s70 offen offset:%d' % (d, d + 3, i * 1024))
        P('buffer_store_dwordx4 v[%d:%d], v15, s[20:23], s71 offen offset:%d' % (d + 4, d + 7, i * 1024))

def site_of(u):
    if u < 2: return ('F', u)
    if u >= 30: return ('E', u)
    return ('L', u % 4)

def body(c, emit):
    P = c.P
    prologue(c)
    extra = [lambda: c.wait_vm(('s',), lambda t: t == ('S',))] + as_fill(c, tables_text())
    substep(c, 0, site_of(0), extra=extra, first=True)
    substep(c, 1, site_of(1), extra=extra)
    assert not extra, len(extra)
    if emit:
        P('.p2align 6')
        P.label('K1_loop')
        if TOUCH == 1:
            P('s_cmp_eq_u32 s33, 1\ns_cbranch_scc1 K1_t1\ns_cmp_eq_u32 s33, 3\ns_cbranch_scc1 K1_t2')
        P.label('K1_tback')
        for u in range(2, 6): substep(c, u, site_of(u))
        P("""
        s_add_u32 s33, s33, 1
        s_cmp_lt_u32 s33, 7
        s_cbranch_scc1 K1_loop
        """)
    else:
        for u in range(2, 30): substep(c, u, site_of(u))
    if TOUCH == 2: touch_wd(c.I)
    for u in (30, 31): substep(c, u, site_of(u), last=True)

def gen_k1():
    waits = {}
    body(Ctx(None, waits), False)
    P = Prog()
    c = Ctx(P, waits)
    P('.globl k1_kernel\n.p2align 8\n.type k1_kernel,@function')
    P.label('k1_kernel')
    body(c, True)
    epilogue(P)
    stamp(P, 9); stamp_rt(P, 11)
    P('s_waitcnt vmcnt(0)')
    stamp(P, 12)
    stamp_out(P, 0)
    P.label('K1_done')
    P('s_endpgm')
    if TOUCH == 1:
        P.label('K1_t1')
        touch(P, 1)
        P('s_branch K1_tback')
        P.label('K1_t2')
        touch_wd(P)
        P('s_branch K1_tback')
    return P.text(), waits

if __name__ == '__main__':
    t, w = gen_k1()
    print({k: v for k, v in w.items() if 'f' not in k})
    print(len(t.splitlines()))
```

```python
from asmlib import Prog, Counter
from k1 import Ctx, rr, NKB, WS_G, stamp, stamp_rt, stamp_out

RED = 0
RING = 98304
K2_LDS = RING + 65536
ACT = 128
WF = 64
YF = 32
ACCB = 128
EMUL = True

def accY(tau, jt): return ('a', (tau * 4 + jt) * 4)
def accB(tau, jt): return ('v', ACCB + (tau * 4 + jt) * 4)

def act_loads(c, n):
    th = []
    for tau in range(8):
        reg = ACT + (n % 4) * 32 + tau * 4
        th.append(lambda reg=reg, tau=tau: c.vmem('buffer_load_dwordx4 %s, v%d, s[20:23], s28 offen offset:%d' % (rr('a', reg), 1 + (tau >> 2), (tau & 3) * 1024), ('A', n)))
    th.append(lambda: c.I('s_add_u32 s28, s28, 32768') if n != 15 else c.I('s_mov_b32 s28, 0'))
    return th

def w_loads(c, n):
    th = []
    if n < 16:
        for jt in range(4):
            reg = WF + (n % 4) * 16 + jt * 4
            th.append(lambda reg=reg, jt=jt: c.vmem('buffer_load_dwordx4 %s, v%d, s[12:15], s29 offen' % (rr('v', reg), 3 + jt), ('W', n)))
        th.append(lambda: c.I('s_add_u32 s29, s29, 128'))
    else:
        th.append(lambda: c.I('s_add_u32 m0, s31, %d' % ((n % 4) * 4096)))
        for k in range(4):
            th.append(lambda k=k: c.vmem('buffer_load_dwordx4 v%d, s[16:19], s30 offen offset:%d lds' % (7 + k, k * 1024), ('W', n)))
        th.append(lambda: c.I('s_add_u32 s30, s30, 262144'))
    return th

def tr_reads(c, n):
    th = []
    for jt in range(4):
        for e in range(2):
            reg = WF + (n % 2) * 16 + jt * 4 + 2 * e
            th.append(lambda reg=reg, jt=jt, e=e: c.ds('ds_read_b64_tr_b16 v[%d:%d], v%d offset:%d' % (reg, reg + 1, 11 + jt, (n % 4) * 4096 + e * 2048), ('F', n, jt)))
    return th

import os
PFF = int(os.environ.get('PFF', '8'))
def prefetch(c, grp_a, grp_w):
    c.I('s_mov_b64 exec, 0xffffffff')
    c.I('buffer_load_dword v28, v26, s[20:23], %s offen' % grp_a)
    c.I('buffer_load_dword v28, v29, s[16:19], %s offen' % grp_w)
    c.I('s_mov_b64 exec, -1')

def step(c, n, site):
    a = act_loads(c, n + 3); w = w_loads(c, n + 3)
    fill = []
    while a or w:
        if a: fill.append(a.pop(0))
        if a: fill.append(a.pop(0))
        if w: fill.append(w.pop(0))
    pre = []
    if n + 1 >= 16:
        pre = [lambda: c.wait_vm((site, 'wn'), lambda t: t == ('W', n + 1))] + tr_reads(c, n + 1)
    slots = [[] for _ in range(32)]
    for k, f in enumerate(fill):
        slots[(k * 30) // len(fill)].append(f)
    for k, f in enumerate(pre):
        slots[10 + k * 2 if k else 9].append(f)
    if n < 16:
        c.wait_vm((site, 'aw'), lambda t: t in (('A', n), ('W', n)))
    else:
        c.wait_vm((site, 'aw'), lambda t: t == ('A', n))
    m = 0
    for jt in range(4):
        if n >= 16:
            c.wait_lg((site, 'f', jt), lambda t: t == ('F', n, jt))
            wreg = WF + (n % 2) * 16 + jt * 4
        else:
            wreg = WF + (n % 4) * 16 + jt * 4
        for tau in range(8):
            f, b = (accY if n < 16 else accB)(tau, jt)
            c.I('v_mfma_f32_16x16x32_bf16 %s, %s, %s, %s' % (rr(f, b), rr('v', wreg), rr('a', ACT + (n % 4) * 32 + tau * 4), rr(f, b)))
            for th in slots[m]: th()
            m += 1

def prologue(c):
    I = c.I
    I('''
    s_cmp_ge_u32 s2, 256
    s_cbranch_scc1 K2_done
    s_load_dwordx16 s[36:51], s[0:1], 0
    s_load_dwordx16 s[52:67], s[0:1], 64
    s_load_dwordx2 s[68:69], s[0:1], 128
    v_lshrrev_b32 v16, 6, v0
    v_and_b32 v17, 63, v0
    v_readfirstlane_b32 s3, v16
    v_and_b32 v18, 15, v0
    v_bfe_u32 v19, v0, 4, 2
    s_bfe_u32 s4, s2, 0x20001
    s_lshl_b32 s4, s4, 2
    s_bfe_u32 s6, s2, 0x20003
    s_add_u32 s4, s4, s6
    s_and_b32 s5, s2, 1
    s_lshl_b32 s5, s5, 3
    s_lshr_b32 s6, s2, 5
    s_add_u32 s5, s5, s6
    s_mov_b32 s10, 0x400000
    s_mov_b32 s11, 0x00020000
    s_mov_b32 s14, 0x200000
    s_mov_b32 s15, 0x00020000
    s_mov_b32 s18, 0x700000
    s_mov_b32 s19, 0x00020000
    s_mov_b32 s22, 0x10000000
    s_mov_b32 s23, 0x00020000
    s_mov_b32 s26, 0x800000
    s_mov_b32 s27, 0x00020000
    s_mul_i32 s6, s4, %d
    s_lshl_b32 s7, s3, 13
    s_add_u32 s6, s6, s7
    v_lshl_add_u32 v1, v17, 4, s6
    v_add_u32 v2, 0x1000, v1
    s_mov_b32 s28, %d
    s_mov_b32 s29, 0
    s_mov_b32 s30, 0
    s_lshl_b32 s6, s5, 6
    v_add_u32 v20, s6, v18
    v_lshlrev_b32 v20, 11, v20
    v_lshl_add_u32 v20, v19, 4, v20
    s_lshr_b32 s7, s3, 1
    s_lshl_b32 s7, s7, 6
    v_add_u32 v3, s7, v20
    v_add_u32 v4, 0x8000, v3
    v_add_u32 v5, 0x10000, v3
    v_add_u32 v6, 0x18000, v3
    s_waitcnt lgkmcnt(0)
    s_mov_b32 s8, s36
    s_mov_b32 s9, s37
    s_bitcmp1_b32 s3, 0
    s_cselect_b32 s12, s48, s46
    s_cselect_b32 s13, s49, s47
    s_mov_b32 s16, s60
    s_mov_b32 s17, s61
    s_mov_b32 s20, s68
    s_mov_b32 s21, s69
    s_mov_b32 s24, s64
    s_mov_b32 s25, s65
    ''' % (NKB * 8192, 112 * 8192))
    stamp(I, 0, 31); stamp_rt(I, 10, 31)
    for n in range(3):
        for th in w_loads(c, n): th()
        for th in act_loads(c, n): th()
    I('''
    v_lshrrev_b32 v20, 3, v17
    v_and_b32 v21, 7, v17
    v_lshlrev_b32 v22, 1, v19
    v_xor_b32 v21, v21, v22
    v_lshlrev_b32 v20, 11, v20
    v_lshl_add_u32 v20, v21, 4, v20
    s_lshl_b32 s6, s5, 7
    s_lshl_b32 s7, s3, 16
    s_add_u32 s6, s6, s7
    v_add_u32 v7, s6, v20
    v_add_u32 v8, 15360, v7
    v_add_u32 v9, 30720, v7
    v_add_u32 v10, 46080, v7
    s_lshl_b32 s31, s3, 14
    s_add_u32 s31, s31, %d
    v_lshrrev_b32 v20, 2, v18
    v_lshl_add_u32 v20, v19, 2, v20
    v_bfe_u32 v21, v20, 1, 2
    v_and_b32 v22, 3, v17
    v_lshlrev_b32 v20, 7, v20
    v_lshl_add_u32 v20, v22, 3, v20
    v_add_u32 v20, s31, v20
    v_lshl_add_u32 v11, v21, 5, v20
    v_xor_b32 v12, 32, v11
    v_xor_b32 v13, 64, v11
    v_xor_b32 v14, 96, v11
    s_mov_b32 s33, 0
    v_lshrrev_b32 v20, 3, v17
    v_and_b32 v21, 7, v17
    s_mul_i32 s6, s4, %d
    s_lshl_b32 s7, s3, 13
    s_add_u32 s6, s6, s7
    s_lshr_b32 s7, s2, 5
    s_lshl_b32 s7, s7, 10
    s_add_u32 s6, s6, s7
    v_lshlrev_b32 v26, 15, v20
    v_lshl_add_u32 v26, v21, 7, v26
    v_add_u32 v26, s6, v26
    s_lshl_b32 s6, s3, 16
    s_bfe_u32 s7, s2, 0x20003
    s_lshl_b32 s7, s7, 14
    s_add_u32 s6, s6, s7
    s_lshl_b32 s7, s5, 7
    s_add_u32 s6, s6, s7
    v_lshlrev_b32 v29, 18, v20
    v_lshl_add_u32 v29, v21, 11, v29
    v_add_u32 v29, s6, v29
    ''' % (RING, NKB * 8192))
    for r in range(128): I('v_accvgpr_write_b32 a%d, 0' % r)
    for r in range(ACCB, 256): I('v_mov_b32 v%d, 0' % r)

def reduce_write(P, acc, own_dst, tag):
    for Q in range(4):
        P('s_cmp_eq_u32 s3, %d' % Q)
        P('s_cbranch_scc1 K2_%s_own%d' % (tag, Q))
        P('s_cmp_gt_u32 s3, %d' % Q)
        P('s_cselect_b32 s6, 1, 0')
        P('s_sub_u32 s6, s3, s6')
        P('s_lshl_b32 s6, s6, 13')
        P('s_add_u32 s6, s6, %d' % (Q * 24576))
        P('v_add_u32 v16, s6, v15')
        for t in range(8):
            f, b = acc(2 * Q + (t >> 2), t & 3)
            P('ds_write_b128 v16, %s offset:%d' % (rr(f, b), RED + t * 1024))
        P('s_branch K2_%s_nxt%d' % (tag, Q))
        P.label('K2_%s_own%d' % (tag, Q))
        P('s_nop 7')
        for t in range(8):
            f, b = acc(2 * Q + (t >> 2), t & 3)
            for r in range(4):
                if f == 'a': P('v_accvgpr_read_b32 v%d, a%d' % (own_dst + t * 4 + r, b + r))
                else: P('v_mov_b32 v%d, v%d' % (own_dst + t * 4 + r, b + r))
        P.label('K2_%s_nxt%d' % (tag, Q))

def reduce_read(P, dst, tmp):
    P('s_mul_i32 s6, s3, 24576')
    P('v_add_u32 v16, s6, v15')
    for sl in range(3):
        for t in range(8):
            P('ds_read_b128 v[%d:%d], v16 offset:%d' % (tmp + t * 4, tmp + t * 4 + 3, RED + sl * 8192 + t * 1024))
        for t in range(8):
            P('s_waitcnt lgkmcnt(%d)' % (7 - t))
            for h in range(2):
                r = t * 4 + 2 * h
                P('v_pk_add_f32 v[%d:%d], v[%d:%d], v[%d:%d]' % (dst + r, dst + r + 1, dst + r, dst + r + 1, tmp + r, tmp + r + 1))

def mid(c):
    if not c.emit: return
    P = c.P
    P('v_lshlrev_b32 v15, 4, v17')
    P('s_nop 7')
    reduce_write(P, accY, YF, 'y')
    P('s_waitcnt lgkmcnt(0)')
    P('s_barrier')
    reduce_read(P, YF, 96)

def final(P):
    P('''
    s_waitcnt vmcnt(0) lgkmcnt(0)
    s_lshl_b32 s6, s4, 7
    s_lshr_b32 s7, s3, 1
    s_lshl_b32 s7, s7, 6
    s_add_u32 s6, s6, s7
    s_and_b32 s7, s3, 1
    s_lshl_b32 s7, s7, 1
    s_add_u32 s6, s6, s7
    v_lshl_add_u32 v20, v18, 2, s6
    s_lshl_b32 s7, s5, 6
    v_lshl_add_u32 v21, v19, 2, s7
    v_lshlrev_b32 v22, 10, v20
    v_add_u32 v22, v22, v21
    v_lshlrev_b32 v23, 1, v22
    v_lshlrev_b32 v22, 2, v22
    v_add_u32 v27, 0x1000, v22
    v_lshlrev_b32 v24, 1, v21
    v_lshlrev_b32 v25, 2, v20
    s_mov_b32 s6, %d
    ''' % WS_G)
    for k in range(2):
        for jt in range(4):
            P('buffer_load_dwordx2 v[%d:%d], v23, s[8:11], 0 offen offset:%d' % (64 + (k * 4 + jt) * 2, 65 + (k * 4 + jt) * 2, k * 2048 + jt * 32))
    for jt in range(4):
        P('global_load_dwordx2 v[%d:%d], v24, s[52:53] offset:%d' % (80 + jt * 2, 81 + jt * 2, jt * 32))
    P('buffer_load_dwordx2 v[88:89], v25, s[20:23], s6 offen')
    P('s_barrier')
    BF = 96
    reduce_write(P, accB, BF, 'b')
    P('s_waitcnt lgkmcnt(0)')
    P('s_barrier')
    reduce_read(P, BF, 128)
    P('s_waitcnt vmcnt(0)')
    P('v_sub_f32 v90, 1.0, v88')
    P('v_sub_f32 v91, 1.0, v89')
    P('v_cvt_pk_bf16_f32 v90, v90, v91')
    P('v_and_b32 v91, 0xffff0000, v90')
    P('v_lshlrev_b32 v90, 16, v90')
    for jt in range(4):
        for h in range(2):
            P('v_lshlrev_b32 v%d, 16, v%d' % (160 + jt * 4 + 2 * h, 80 + jt * 2 + h))
            P('v_and_b32 v%d, 0xffff0000, v%d' % (161 + jt * 4 + 2 * h, 80 + jt * 2 + h))
    n = 0
    for k in range(2):
        for jt in range(4):
            t = k * 4 + jt
            o = 176 + (n & 1) * 4; n += 1
            for h in range(2):
                xs = 64 + t * 2 + h
                a, b2 = 192, 194
                yb = YF + t * 4 + 2 * h; bb = BF + t * 4 + 2 * h
                P('v_lshlrev_b32 v%d, 16, v%d' % (a, xs))
                P('v_and_b32 v%d, 0xffff0000, v%d' % (a + 1, xs))
                P('v_pk_mul_f32 v[%d:%d], v[%d:%d], v[%d:%d]' % (a, a + 1, a, a + 1, 160 + jt * 4 + 2 * h, 161 + jt * 4 + 2 * h))
                P('v_cvt_pk_bf16_f32 v%d, v%d, v%d' % (a, a, a + 1))
                P('v_and_b32 v%d, 0xffff0000, v%d' % (a + 1, a))
                P('v_lshlrev_b32 v%d, 16, v%d' % (a, a))
                P('v_pk_add_f32 v[%d:%d], v[%d:%d], v[%d:%d]' % (a, a + 1, a, a + 1, yb, yb + 1))
                P('v_cvt_pk_bf16_f32 v%d, v%d, v%d' % (b2, bb, bb + 1))
                P('v_and_b32 v%d, 0xffff0000, v%d' % (b2 + 1, b2))
                P('v_lshlrev_b32 v%d, 16, v%d' % (b2, b2))
                P('v_mul_f32 v%d, v%d, v%d' % (b2, b2, 90 + k))
                P('v_mul_f32 v%d, v%d, v%d' % (b2 + 1, b2 + 1, 90 + k))
                P('v_cvt_pk_bf16_f32 v%d, v%d, v%d' % (b2, b2, b2 + 1))
                P('v_and_b32 v%d, 0xffff0000, v%d' % (b2 + 1, b2))
                P('v_lshlrev_b32 v%d, 16, v%d' % (b2, b2))
                P('v_mul_f32 v%d, v%d, v%d' % (a, a, 88 + k))
                P('v_mul_f32 v%d, v%d, v%d' % (a + 1, a + 1, 88 + k))
                P('v_pk_add_f32 v[%d:%d], v[%d:%d], v[%d:%d]' % (o + 2 * h, o + 2 * h + 1, a, a + 1, b2, b2 + 1))
            P('buffer_store_dwordx4 v[%d:%d], v%d, s[24:27], 0 offen offset:%d' % (o, o + 3, 27 if k else 22, jt * 64))

def site_of(n):
    if n < 12: return ('Y', n % 4)
    if n < 16: return ('P', n % 4)
    return ('B', n % 4)

def gen_k2():
    waits = {}
    c = Ctx(None, waits)
    prologue(c)
    for n in range(44): step(c, n, site_of(n))
    P = Prog()
    c = Ctx(P, waits)
    P('.globl k2_kernel\n.p2align 8\n.type k2_kernel,@function')
    P.label('k2_kernel')
    prologue(c)
    stamp(P, 1, 31)
    P('s_waitcnt vmcnt(24)')
    stamp(P, 2, 31)
    P('.p2align 6')
    P.label('K2_yloop')
    for n in range(4): step(c, n, site_of(n))
    P('''
    s_add_u32 s33, s33, 1
    s_cmp_lt_u32 s33, 3
    s_cbranch_scc1 K2_yloop
    ''')
    if PFF:
        for g in range(PFF // 4):
            P('s_mov_b32 s70, %d' % (g * 4 * 32768)); P('s_mov_b32 s71, %d' % (g * 4 * 262144))
            prefetch(c, 's70', 's71')
    for n in range(12, 16): step(c, n, site_of(n))
    stamp(P, 3, 31)
    mid(c)
    stamp(P, 4, 31)
    P('s_mov_b32 s33, 0')
    P('.p2align 6')
    P.label('K2_bloop')
    if PFF:
        P('s_add_u32 s70, s28, %d' % ((PFF - 3) * 32768)); P('s_add_u32 s71, s30, %d' % ((PFF - 3) * 262144))
        prefetch(c, 's70', 's71')
    for n in range(16, 20): step(c, n, site_of(n))
    P('''
    s_add_u32 s33, s33, 1
    s_cmp_lt_u32 s33, 7
    s_cbranch_scc1 K2_bloop
    ''')
    stamp(P, 5, 31)
    final(P)
    stamp(P, 9, 31); stamp_rt(P, 11, 31)
    P('s_waitcnt vmcnt(0)')
    stamp(P, 12, 31)
    stamp_out(P, 1, 31, 30)
    P.label('K2_done')
    P('s_endpgm')
    return P.text(), waits

K2_DESC = '''.amdhsa_kernel k2_kernel
  .amdhsa_next_free_vgpr 512
  .amdhsa_next_free_sgpr 96
  .amdhsa_accum_offset 256
  .amdhsa_group_segment_fixed_size 0
  .amdhsa_kernarg_size 136
  .amdhsa_user_sgpr_count 2
  .amdhsa_user_sgpr_kernarg_segment_ptr 1
  .amdhsa_system_sgpr_workgroup_id_x 1
.end_amdhsa_kernel
'''
if __name__ == '__main__':
    t, w = gen_k2()
    print(w)
    print(len(t.splitlines()))
```

```python
import os
from asmlib import Prog, Counter
from k1 import Ctx, rr, NKB, WS_G, stamp, stamp_rt, stamp_out, WS_C2, WS_XB, WS_FL

K2_LDS = 163840
NS = 5
ACT = 96
WF = 32
FD = 3
PFF = int(os.environ.get('PFF', '7'))
OOB = 0x70000000

def acc(tau, jt): return (tau * 8 + jt) * 4

def load_setup(c):
    return [lambda: c.I('s_cmp_gt_i32 s32, 0'),
            lambda: c.I('s_cselect_b32 s72, s28, s77'),
            lambda: c.I('s_cselect_b32 s73, s30, s77'),
            lambda: c.I('s_cselect_b32 s74, s35, s77'),
            lambda: c.I('s_cmp_gt_i32 s32, %d' % (PFF - (NS - 1))),
            lambda: c.I('s_cselect_b32 s75, s28, s77'),
            lambda: c.I('s_cselect_b32 s76, s30, s77'),
            lambda: c.I('s_sub_u32 s32, s32, 1'),
            lambda: c.I('s_add_u32 s28, s28, 8192'),
            lambda: c.I('s_add_u32 s30, s30, s34'),
            lambda: c.I('s_add_u32 s35, s35, s34')]

def act_loads(c, n):
    th = []
    for tau in range(8):
        reg = ACT + (n % NS) * 32 + tau * 4
        th.append(lambda reg=reg, tau=tau: c.vmem('buffer_load_dwordx4 %s, v%d, s[20:23], s72 offen offset:%d' % (rr('v', reg), 1 + (tau >> 2), (tau & 3) * 1024), ('A', n)))
    return th

def w_loads(c, n):
    th = []
    for k in range(8):
        def f(k=k):
            if k & 3 == 0: c.I('s_add_u32 m0, s31, %d' % ((n % NS) * 8192 + (k >> 2) * 4096))
            c.vmem('buffer_load_dwordx4 v%d, s[16:19], s%d offen offset:%d lds' % (3 + (k & 3), 73 + (k >> 2), (k & 3) * 1024), ('W', n))
        th.append(f)
    return th

def pf_ops(c):
    if not PFF: return []
    def f():
        c.I('s_mov_b64 exec, 0xffff')
        c.vmem('buffer_load_dword v28, v26, s[20:23], s75 offen', ('P',))
        c.I('s_mov_b64 exec, 0xff')
        c.vmem('buffer_load_dword v28, v29, s[16:19], s76 offen', ('P',))
        c.I('s_mov_b64 exec, -1')
    return [f]

def frag_read(c, role, n, jt):
    reg = WF + jt * 4
    so = (n % NS) * 8192
    if role == 'Y':
        return [lambda: c.ds('ds_read_b128 %s, v7 offset:%d' % (rr('v', reg), so + jt * 1024), ('F', n, jt))]
    return [lambda e=e: c.ds('ds_read_b64_tr_b16 v[%d:%d], v%d offset:%d' % (reg + 2 * e, reg + 2 * e + 1, 7 + jt, so + e * 4096), ('F', n, jt)) for e in range(2)]

def step(c, role, n):
    site = (role, n % NS)
    a = act_loads(c, n + NS - 1); w = w_loads(c, n + NS - 1)
    vm = []
    for k in range(8): vm += [w[k], a[k]]
    setup = load_setup(c)
    c.wait_vm((site, 'a'), lambda t: t == ('A', n))
    for jt in range(8):
        slots = [[] for _ in range(8)]
        jn, nn = jt + FD, n
        if jn >= 8: jn -= 8; nn += 1
        fr = frag_read(c, role, nn, jn)
        if jt + FD == 8:
            slots[0].append(lambda: c.wait_vm((site, 'w'), lambda t: t == ('W', n + 1)))
        for k, f in enumerate(fr): slots[1 + k].append(f)
        if jt == 0:
            for k, f in enumerate(setup): slots[min(k // 2, 5)].append(f)
            slots[6].append(vm[0]); slots[7].append(vm[1])
        else:
            slots[3].append(vm[2 * jt]); slots[6].append(vm[2 * jt + 1])
        if jt == 7:
            for f in pf_ops(c): slots[7].append(f)
        c.wait_lg((site, 'f', jt), lambda t: t == ('F', n, jt))
        for tau in range(8):
            b = acc(tau, jt)
            c.I('v_mfma_f32_16x16x32_bf16 %s, %s, %s, %s' % (rr('a', b), rr('v', WF + jt * 4), rr('v', ACT + (n % NS) * 32 + tau * 4), rr('a', b)))
            for th in slots[tau]: th()

def prologue_common(c):
    I = c.I
    k0 = [112, 134, 155, 0, 22, 45, 68, 90]
    cn = [22, 21, 21, 22, 23, 23, 22, 22]
    pk = lambda a: sum(v << (8 * i) for i, v in enumerate(a))
    I('''
    s_cmp_ge_u32 s2, 256
    s_cbranch_scc1 K2_done
    s_load_dwordx16 s[36:51], s[0:1], 0
    s_load_dwordx16 s[52:67], s[0:1], 64
    s_load_dwordx2 s[68:69], s[0:1], 128
    v_lshrrev_b32 v16, 6, v0
    v_and_b32 v17, 63, v0
    v_readfirstlane_b32 s3, v16
    v_and_b32 v18, 15, v0
    v_bfe_u32 v19, v0, 4, 2
    s_bfe_u32 s4, s2, 0x10002
    s_lshl_b32 s4, s4, 3
    s_bfe_u32 s6, s2, 0x30003
    s_add_u32 s4, s4, s6
    s_bfe_u32 s5, s2, 0x10001
    s_lshl_b32 s5, s5, 2
    s_lshr_b32 s6, s2, 6
    s_add_u32 s5, s5, s6
    s_and_b32 s78, s2, 1
    s_lshl_b32 s79, s78, 2
    s_add_u32 s79, s79, s3
    s_lshl_b32 s6, s79, 3
    s_mov_b32 s80, 0x%x
    s_mov_b32 s81, 0x%x
    s_lshr_b64 s[80:81], s[80:81], s6
    s_and_b32 s80, s80, 0xff
    s_mov_b32 s82, 0x%x
    s_mov_b32 s83, 0x%x
    s_lshr_b64 s[82:83], s[82:83], s6
    s_and_b32 s33, s82, 0xff
    s_mov_b32 s32, s33
    s_mov_b32 s77, 0x%x
    s_mov_b32 s10, 0x400000
    s_mov_b32 s11, 0x00020000
    s_mov_b32 s19, 0x00020000
    s_mov_b32 s22, 0x10000000
    s_mov_b32 s23, 0x00020000
    s_mov_b32 s26, 0x800000
    s_mov_b32 s27, 0x00020000
    v_lshlrev_b32 v15, 4, v17
    s_mul_i32 s6, s4, %d
    v_add_u32 v1, s6, v15
    v_add_u32 v2, 0x1000, v1
    s_lshl_b32 s28, s80, 13
    s_mul_i32 s31, s3, %d
    s_lshr_b32 s7, s2, 6
    s_lshl_b32 s7, s7, 11
    s_add_u32 s6, s6, s7
    s_add_u32 s6, s6, %d
    v_lshl_add_u32 v26, v17, 7, s6
    s_waitcnt lgkmcnt(0)
    s_mov_b32 s8, s36
    s_mov_b32 s9, s37
    s_mov_b32 s20, s68
    s_mov_b32 s21, s69
    s_mov_b32 s24, s64
    s_mov_b32 s25, s65
    ''' % (pk(k0[:4]), pk(k0[4:]), pk(cn[:4]), pk(cn[4:]), OOB, NKB * 8192, NS * 8192, (PFF - (NS - 1)) * 8192))

def prologue_role(c, role):
    I = c.I
    if role == 'Y':
        I('''
        s_mov_b32 s16, s68
        s_mov_b32 s17, s69
        s_mov_b32 s18, 0x10000000
        s_lshl_b32 s6, s5, 19
        s_add_u32 s6, s6, %d
        v_add_u32 v3, s6, v15
        v_mov_b32 v4, v3
        v_mov_b32 v5, v3
        v_mov_b32 v6, v3
        s_sub_u32 s30, s80, 112
        s_lshl_b32 s30, s30, 13
        s_add_u32 s35, s30, 4096
        s_mov_b32 s34, 8192
        v_add_u32 v7, s31, v15
        s_bfe_u32 s7, s2, 0x30003
        s_lshl_b32 s7, s7, 10
        s_add_u32 s6, s6, s7
        s_add_u32 s6, s6, %d
        v_lshl_add_u32 v29, v17, 7, s6
        ''' % (WS_C2, (PFF - (NS - 1)) * 8192))
    else:
        I('''
        s_mov_b32 s16, s60
        s_mov_b32 s17, s61
        s_mov_b32 s18, 0x700000
        v_lshlrev_b32 v20, 1, v19
        v_xor_b32 v20, v20, v18
        v_xor_b32 v21, 8, v20
        s_lshl_b32 s6, s5, 8
        v_lshl_add_u32 v22, v19, 11, s6
        v_lshl_add_u32 v3, v20, 4, v22
        v_lshl_add_u32 v4, v21, 4, v22
        v_add_u32 v4, 7168, v4
        v_add_u32 v5, 14336, v3
        v_add_u32 v6, 14336, v4
        s_lshl_b32 s30, s80, 16
        s_add_u32 s35, s30, 32768
        s_mov_b32 s34, 65536
        v_lshrrev_b32 v20, 2, v18
        v_lshl_add_u32 v20, v19, 2, v20
        v_and_b32 v21, 7, v20
        v_and_b32 v22, 3, v17
        v_lshlrev_b32 v20, 8, v20
        v_lshl_add_u32 v20, v22, 3, v20
        v_add_u32 v20, s31, v20
        v_lshl_add_u32 v7, v21, 5, v20
        s_lshl_b32 s7, s78, 7
        v_xor_b32 v7, s7, v7
        ''')
        for jt in range(1, 8): I('v_xor_b32 v%d, %d, v7' % (7 + jt, jt * 32))
        I('''
        s_bfe_u32 s7, s2, 0x30003
        s_lshl_b32 s7, s7, 13
        s_add_u32 s6, s6, s7
        s_add_u32 s6, s6, %d
        v_lshrrev_b32 v20, 1, v17
        v_and_b32 v21, 1, v17
        v_lshlrev_b32 v20, 11, v20
        v_lshl_add_u32 v20, v21, 7, v20
        v_add_u32 v29, s6, v20
        ''' % ((PFF - (NS - 1)) * 65536))
    for n in range(NS - 1):
        for th in load_setup(c): th()
        for th in w_loads(c, n): th()
        for th in act_loads(c, n): th()
        if n + PFF - (NS - 1) >= NS - 1:
            for th in pf_ops(c): th()
    for r in range(256): I('v_accvgpr_write_b32 a%d, 0' % r)
    c.wait_vm((role, 'w0'), lambda t: t == ('W', 0))
    for jt in range(FD):
        for th in frag_read(c, role, 0, jt): th()

def reduce_write(P, jt0, own, tag):
    for Q in range(4):
        P('s_cmp_eq_u32 s3, %d' % Q)
        P('s_cbranch_scc1 K2_%s_own%d' % (tag, Q))
        P('s_cmp_gt_u32 s3, %d' % Q)
        P('s_cselect_b32 s6, 1, 0')
        P('s_sub_u32 s6, s3, s6')
        P('s_lshl_b32 s6, s6, 13')
        P('s_add_u32 s6, s6, %d' % (Q * 24576))
        P('v_add_u32 v16, s6, v15')
        for t in range(8):
            P('ds_write_b128 v16, %s offset:%d' % (rr('a', acc(2 * Q + (t >> 2), jt0 + (t & 3))), t * 1024))
        P('s_branch K2_%s_nxt%d' % (tag, Q))
        P.label('K2_%s_own%d' % (tag, Q))
        for t in range(8):
            b = acc(2 * Q + (t >> 2), jt0 + (t & 3))
            for r in range(4): P('v_accvgpr_read_b32 v%d, a%d' % (own + t * 4 + r, b + r))
        P.label('K2_%s_nxt%d' % (tag, Q))

def pkmul_bc(P, d, a, f):
    P('v_pk_mul_f32 v[%d:%d], v[%d:%d], v[%d:%d] op_sel_hi:[1,0]' % (d, d + 1, a, a + 1, f, f + 1))
def pkfma_bc(P, d, a, f, cc):
    P('v_pk_fma_f32 v[%d:%d], v[%d:%d], v[%d:%d], v[%d:%d] op_sel_hi:[1,0,1]' % (d, d + 1, a, a + 1, f, f + 1, cc, cc + 1))

def FR(src, k): return 40 + src * 4 + k * 2

def reduce_read(P, dst, tmp):
    P('s_mul_i32 s6, s3, 24576')
    P('v_add_u32 v16, s6, v15')
    for sl in range(3):
        for t in range(8):
            P('ds_read_b128 v[%d:%d], v16 offset:%d' % (tmp + sl * 32 + t * 4, tmp + sl * 32 + t * 4 + 3, sl * 8192 + t * 1024))
    for t in range(8):
        for h in range(2):
            r = t * 4 + 2 * h
            pkmul_bc(P, dst + r, dst + r, FR(0, t >> 2))
    for sl in range(3):
        for t in range(8):
            n = 23 - (sl * 8 + t)
            if n <= 15: P('s_waitcnt lgkmcnt(%d)' % n)
            elif n == 23: P('s_waitcnt lgkmcnt(15)')
            for h in range(2):
                r = t * 4 + 2 * h
                pkfma_bc(P, dst + r, tmp + sl * 32 + r, FR(1 + sl, t >> 2), dst + r)

def final(P):
    P('''
    s_lshl_b32 s6, s4, 7
    s_lshr_b32 s7, s3, 1
    s_lshl_b32 s7, s7, 6
    s_add_u32 s6, s6, s7
    s_and_b32 s7, s3, 1
    s_lshl_b32 s7, s7, 1
    s_add_u32 s6, s6, s7
    v_lshl_add_u32 v20, v18, 2, s6
    s_lshl_b32 s7, s5, 7
    s_lshl_b32 s6, s78, 6
    s_add_u32 s7, s7, s6
    v_lshl_add_u32 v21, v19, 2, s7
    v_lshlrev_b32 v22, 10, v20
    v_add_u32 v22, v22, v21
    v_lshlrev_b32 v23, 1, v22
    v_lshlrev_b32 v22, 2, v22
    v_add_u32 v27, 0x1000, v22
    v_lshlrev_b32 v24, 1, v21
    v_lshlrev_b32 v25, 2, v20
    s_mov_b32 s6, %d
    s_waitcnt vmcnt(0) lgkmcnt(0)
    ''' % WS_G)
    P('buffer_load_dwordx2 v[36:37], v25, s[20:23], s6 offen')
    for k in range(2):
        for jt in range(4):
            P('buffer_load_dwordx2 v[%d:%d], v23, s[8:11], 0 offen offset:%d' % (64 + (k * 4 + jt) * 2, 65 + (k * 4 + jt) * 2, k * 2048 + jt * 32))
    for jt in range(4):
        P('global_load_dwordx2 v[%d:%d], v24, s[52:53] offset:%d' % (80 + jt * 2, 81 + jt * 2, jt * 32))
    P('s_barrier')
    ZS, ZK, TMP = 96, 128, 160
    reduce_write(P, 4, ZS, 's')
    P('s_waitcnt vmcnt(12)')
    P('''
    v_sub_f32 v38, 1.0, v36
    v_sub_f32 v39, 1.0, v37
    v_cvt_pk_bf16_f32 v38, v38, v39
    v_and_b32 v39, 0xffff0000, v38
    v_lshlrev_b32 v38, 16, v38
    ''')
    for src in range(4):
        if src == 0:
            P('s_mov_b32 s6, s79')
        else:
            sl = src - 1
            P('s_cmp_le_u32 s3, %d' % sl)
            P('s_cselect_b32 s6, %d, %d' % (sl + 1, sl))
            P('s_lshl_b32 s7, s78, 2')
            P('s_add_u32 s6, s6, s7')
        P('s_cmp_lt_u32 s6, 3')
        P('s_cselect_b64 vcc, -1, 0')
        P('v_cndmask_b32 v%d, v38, v36, vcc' % FR(src, 0))
        P('v_cndmask_b32 v%d, v39, v37, vcc' % FR(src, 1))
    P('s_waitcnt lgkmcnt(0)')
    P('s_barrier')
    reduce_read(P, ZS, TMP)
    P('''
    s_lshl_b32 s6, s2, 2
    s_add_u32 s6, s6, s3
    s_lshl_b32 s70, s6, 13
    s_add_u32 s70, s70, %d
    s_add_u32 s71, s70, 4096
    s_lshl_b32 s72, s6, 6
    s_add_u32 s72, s72, %d
    s_xor_b32 s73, s70, 0x8000
    s_add_u32 s74, s73, 4096
    s_xor_b32 s75, s72, 0x100
    ''' % (WS_XB, WS_FL))
    for t in range(8):
        P('buffer_store_dwordx4 v[%d:%d], v15, s[20:23], s%d offen offset:%d sc1' % (ZS + t * 4, ZS + t * 4 + 3, 70 + (t >> 2), (t & 3) * 1024))
    P('s_barrier')
    reduce_write(P, 0, ZK, 'k')
    P('s_waitcnt vmcnt(0)')
    P('v_mov_b32 v16, 1')
    P('s_mov_b64 exec, 1')
    P('buffer_store_dword v16, off, s[20:23], s72 sc1')
    P('s_mov_b64 exec, -1')
    P('s_waitcnt lgkmcnt(0)')
    P('s_barrier')
    reduce_read(P, ZK, TMP)
    for jt in range(4):
        for h in range(2):
            P('v_lshlrev_b32 v%d, 16, v%d' % (TMP + jt * 4 + 2 * h, 80 + jt * 2 + h))
            P('v_and_b32 v%d, 0xffff0000, v%d' % (TMP + 1 + jt * 4 + 2 * h, 80 + jt * 2 + h))
    P('v_mov_b32 v38, v37')
    for k in range(2):
        for jt in range(4):
            t = k * 4 + jt
            for h in range(2):
                xs = 64 + t * 2 + h
                a = TMP + 16 + ((t * 2 + h) & 3) * 2
                z = ZK + t * 4 + 2 * h
                P('v_lshlrev_b32 v%d, 16, v%d' % (a, xs))
                P('v_and_b32 v%d, 0xffff0000, v%d' % (a + 1, xs))
                P('v_pk_mul_f32 v[%d:%d], v[%d:%d], v[%d:%d]' % (a, a + 1, a, a + 1, TMP + jt * 4 + 2 * h, TMP + 1 + jt * 4 + 2 * h))
                P('v_cvt_pk_bf16_f32 v%d, v%d, v%d' % (a, a, a + 1))
                P('v_and_b32 v%d, 0xffff0000, v%d' % (a + 1, a))
                P('v_lshlrev_b32 v%d, 16, v%d' % (a, a))
                pkfma_bc(P, z, a, 36 + 2 * k, z)
    stamp(P, 6, 31)
    P('s_mov_b32 s76, 0')
    P.label('K2_poll')
    P('''
    buffer_load_dword v16, off, s[20:23], s75 sc1
    s_waitcnt vmcnt(0)
    v_readfirstlane_b32 s6, v16
    s_add_u32 s76, s76, 1
    s_cmp_eq_u32 s6, 1
    s_cbranch_scc1 K2_got
    s_sleep 1
    s_cmp_lt_u32 s76, 0x100000
    s_cbranch_scc1 K2_poll
    ''')
    P.label('K2_got')
    stamp(P, 7, 31)
    for t in range(8):
        P('buffer_load_dwordx4 v[%d:%d], v15, s[20:23], s%d offen offset:%d sc1' % (TMP + t * 4, TMP + t * 4 + 3, 73 + (t >> 2), (t & 3) * 1024))
    for t in range(8):
        P('s_waitcnt vmcnt(%d)' % 7)
        for h in range(2):
            r = t * 4 + 2 * h
            P('v_pk_add_f32 v[%d:%d], v[%d:%d], v[%d:%d]' % (ZK + r, ZK + r + 1, ZK + r, ZK + r + 1, TMP + r, TMP + r + 1))
        P('buffer_store_dwordx4 v[%d:%d], v%d, s[24:27], 0 offen offset:%d' % (ZK + t * 4, ZK + t * 4 + 3, 27 if t >= 4 else 22, (t & 3) * 64))

def gen_k2():
    waits = {}
    for role in 'YB':
        c = Ctx(None, waits)
        prologue_common(c); prologue_role(c, role)
        for n in range(25): step(c, role, n)
    P = Prog()
    c = Ctx(P, waits)
    P('.globl k2_kernel\n.p2align 8\n.type k2_kernel,@function')
    P.label('k2_kernel')
    prologue_common(c)
    stamp(P, 0, 31); stamp_rt(P, 10, 31)
    P('s_cmp_lt_u32 s79, 3')
    P('s_cbranch_scc1 K2_roleY')
    for role in 'BY':
        if role == 'Y': P.label('K2_roleY')
        prologue_role(c, role)
        P('.p2align 6')
        P.label('K2_loop' + role)
        for n in range(NS):
            step(c, role, n)
            P('s_sub_u32 s33, s33, 1')
            P('s_cmp_eq_u32 s33, 0')
            if n < NS - 1:
                P('s_cbranch_scc1 K2_end')
            else:
                P('s_cbranch_scc0 K2_loop' + role)
        if role == 'B': P('s_branch K2_end')
    P.label('K2_end')
    stamp(P, 5, 31)
    P('s_nop 7')
    final(P)
    stamp(P, 9, 31); stamp_rt(P, 11, 31)
    P('s_waitcnt vmcnt(0)')
    stamp(P, 12, 31)
    stamp_out(P, 1, 31, 30)
    P.label('K2_done')
    P('s_endpgm')
    return P.text(), waits

from k2 import K2_DESC
if __name__ == '__main__':
    t, w = gen_k2()
    print(w)
    print(len(t.splitlines()))
```

```python
import os
from asmlib import Prog, Counter
import k1
from k1 import Ctx, rr, cmul_pk, ffn_out, acc_reg, ACC_V0, stamp, stamp_rt, stamp_out, NKB, WS_G, WS_T, WS_C2, WS_FL, WS_XB, K1_DESC

XB = 0
WB = 65536
BB = 131072
TAB = 147456
POW = TAB + 2048
WG64 = TAB + 6144
K1_LDS = 163840
assert TAB == k1.TAB
XSET = 128
RING = 192
BH = 220
OOB = 0x70000000
EXP = int(os.environ.get('EXP', '0'))
TS0 = int(os.environ.get('TS0', '4'))
TPRE = int(os.environ.get('TPRE', '1'))
DEFER = int(os.environ.get('DEFER', '1'))
NTW = 'nt' if int(os.environ.get('NTW', '1')) else ''
NTB = 'nt' if int(os.environ.get('NTB', '1')) else ''
NTC = 'nt' if int(os.environ.get('NTC', '1')) else ''
NTT = 'nt' if int(os.environ.get('NTT', os.environ.get('NTW', '1'))) else ''
NTX = 'nt' if int(os.environ.get('NTX', '0')) else ''
WDT = int(os.environ.get('WDT', '1'))
PT = int(os.environ.get('PT', '1'))
TOUCH = int(os.environ.get('TOUCH', '1'))

FFN = []
for jt in range(7): FFN += [('G', jt), ('U', jt)]
SSM = [('R', 0), ('I', 0), ('R', 1), ('I', 1)]

def w_read(c, u, t):
    kind, jt = FFN[t]
    slot = RING + (t % 7) * 4
    th = []
    for e in range(2):
        off = (u % 4) * 16384 + ((kind == 'U') * 2 + e) * 4096 + jt * 32
        th.append(lambda off=off, e=e: c.ds('ds_read_b64_tr_b16 a[%d:%d], v12 offset:%d' % (slot + 2 * e, slot + 2 * e + 1, off), ('F', u, t)))
    return th
def b_read(c, s, hh, k):
    kind, jt = SSM[k]
    off = (s % 2) * 8192 + ((kind == 'I') * 32 + jt * 16) * 128
    return lambda: c.ds('ds_read_b128 %s, v%d offset:%d' % (rr('a', BH + hh * 16 + k * 4), 13 + hh, off), ('BF', s, hh))
def x_read(c, s, hh, i):
    off = (s % 2) * 8192 + i * 2048
    return lambda: c.ds('ds_read_b128 %s, v%d offset:%d' % (rr('a', XSET + (s % 2) * 32 + hh * 16 + i * 4), 7 + hh, off), ('XF', s, hh))
def w_dma(c, u, n):
    th = []
    th.append(lambda: c.I('s_add_u32 m0, s32, %d' % ((u % 4) * 16384)))
    th.append(lambda: c.vmem('buffer_load_dwordx4 v%d, s[12:15], s30 offen offset:%d %s lds' % (3 + n, n * 1024, NTW), ('W', u)))
    if n == 3: th.append(lambda: c.I('s_add_u32 s30, s30, 229376'))
    return th
def x_dma(c, s, k):
    th = []
    th.append(lambda: c.I('s_add_u32 m0, s34, %d' % ((s % 2) * 8192 + (k >> 2) * 4096)))
    th.append(lambda: c.vmem('buffer_load_dwordx4 v%d, s[8:11], s%d offen offset:%d %s lds' % (1 + (k & 1), 28 + (k >> 2), (k & 3) * 1024, NTX), ('X', s)))
    if k == 7:
        th.append(lambda: c.I('s_add_u32 s28, s28, 128'))
        th.append(lambda: c.I('s_cmp_lt_u32 s28, 2048'))
        th.append(lambda: c.I('s_cselect_b32 s28, s28, s77'))
        th.append(lambda: c.I('s_add_u32 s29, s28, 4096'))
    return th
def b_dma(c, s, n):
    th = []
    th.append(lambda: c.I('s_add_u32 m0, s35, %d' % ((s % 2) * 8192)))
    th.append(lambda: c.vmem('buffer_load_dwordx4 v%d, s[16:19], s31 offen offset:%d %s lds' % (10 + n, n * 1024, NTB), ('B', s)))
    if n == 1:
        th.append(lambda: c.I('s_add_u32 s31, s31, 128'))
        th.append(lambda: c.I('s_cmp_lt_u32 s31, 2048'))
        th.append(lambda: c.I('s_cselect_b32 s31, s31, s77'))
    return th

def substep(c, u, site, extra=None, first=False, last=0, room_extra=0):
    hh = u & 1; s = u >> 1
    for j in range(18):
        fill = []
        if j <= 8: fill += w_read(c, u, j + 5)
        if 12 <= j <= 16 and u != 31: fill += w_read(c, u + 1, j - 12)
        if u == 31: pass
        elif hh == 1:
            if j == 9: fill.append(lambda: c.wait_vm((site, 'x'), lambda t: t == ('X', s + 1)))
            if j in (9, 10): fill += [x_read(c, s + 1, 0, (j - 9) * 2 + k) for k in range(2)]
            if j in (14, 15, 16, 17): fill.append(x_read(c, s + 1, 1, j - 14))
            if j in (12, 13): fill += [b_read(c, s + 1, 0, (j - 12) * 2 + k) for k in range(2)]
        else:
            if j in (0, 2, 4, 6): fill.append(b_read(c, s, 1, j // 2))
        d = []
        if j in (13, 15, 17): d = w_dma(c, u + 4, (j - 13) // 2)
        if j == 1: d = w_dma(c, u + 3, 3)
        if j in (3, 5, 7, 9): d = x_dma(c, s + 2, hh * 4 + (j - 3) // 2)
        if hh == 0 and j in (14, 16): d = b_dma(c, s + 2, (j - 14) // 2)
        if last == 2 or (last == 1 and j != 1): d = []
        if DEFER and u == 0:
            seq = [('x', 1, k) for k in range(8)] + [('w', 2, n) for n in range(4)] + [('b', 1, n) for n in range(2)] + [('w', 3, n) for n in range(4)] + [('x', 2, k) for k in range(4)]
            if j <= 10:
                d = []
                for ty, a, b in seq[2 * j:2 * j + 2]:
                    d += {'x': x_dma, 'w': w_dma, 'b': b_dma}[ty](c, a, b)
        fill = d[:1] + fill + d[1:]
        if extra:
            room = max(0, 8 - 1 - len(fill)) + room_extra
            for _ in range(min(room, len(extra))): fill.append(extra.pop(0))
        if j == 0: c.wait_lg((site, 'xf'), lambda t: t in (('XF', s, hh), ('F', u, 0)))
        elif j < 14: c.wait_lg((site, 'f', j), lambda t: t == ('F', u, j))
        elif j == 14: c.wait_lg((site, 'bf'), lambda t: t == ('BF', s, hh))
        if j < 14:
            kind, jt = FFN[j]; a = RING + (j % 7) * 4
        else:
            kind, jt = SSM[j - 14]; a = BH + hh * 16 + (j - 14) * 4
        nf = len(fill); k = 0
        for i in range(4):
            f, b = acc_reg(kind, jt, i)
            c.I('v_mfma_f32_16x16x32_bf16 %s, %s, %s, %s' % (rr(f, b), rr('a', a), rr('a', XSET + (s % 2) * 32 + hh * 16 + i * 4), '0' if first else rr(f, b)))
            take = (nf * (i + 1) + 3) // 4 - k
            for _ in range(take):
                fill[k](); k += 1
        if j == 11 and u != 31:
            if hh == 1: c.wait_vm((site, 'd'), lambda t: t in (('W', u + 1), ('B', s + 1)))
            else: c.wait_vm((site, 'd'), lambda t: t == ('W', u + 1))
            c.I('s_waitcnt lgkmcnt(0)')
            c.lg.q = []
            c.I('s_barrier')

def touch(I, batch):
    ks = 2 + 7 * batch
    I('''
    s_mov_b32 s6, %d
    s_mov_b32 s7, %d
    s_mov_b32 exec_hi, 0x1ffff
    buffer_load_dword a255, v28, s[12:15], s6 offen
    s_mov_b64 exec, 0x3fff
    buffer_load_dword a255, v29, s[16:19], s7 offen
    buffer_load_dword a255, v30, s[8:11], s7 offen
    s_mov_b64 exec, -1
    ''' % (ks * 64 * 7168, ks * 128))

def touch_wd(I):
    I('''
    s_lshl_b32 s6, s2, 2
    s_add_u32 s6, s6, s3
    s_mul_i32 s6, s6, 7168
    v_lshlrev_b32 v26, 7, v17
    s_mov_b32 exec_hi, 0xffffff
    buffer_load_dword a255, v26, s[88:91], s6 offen
    s_mov_b64 exec, -1
    ''')


def c_addr(I):
    I("""
    s_and_b32 s7, s3, 1
    s_lshl_b32 s6, s4, 7
    s_lshl_b32 s70, s7, 6
    s_add_u32 s6, s6, s70
    v_add_u32 v9, s6, v18
    v_lshlrev_b32 v9, 11, v9
    v_lshl_add_u32 v9, v19, 4, v9
    s_lshl_b32 s6, s5, 6
    v_add_u32 v9, s6, v9
    """)

def c_loads(P):
    for k in range(4):
        P('s_cmp_lg_u32 s33, %d' % (k + 1))
        P('s_cbranch_scc1 K1_c%d' % k)
        P('global_load_dwordx4 v[%d:%d], v9, s[86:87] %s' % (32 + 4 * k, 35 + 4 * k, NTC))
        P('v_add_u32 v9, 0x8000, v9')
        P.label('K1_c%d' % k)

def c_stores(c):
    R = Rec(c, 'cs')
    R("""
    s_lshl_b32 s6, s4, 6
    s_lshr_b32 s7, s3, 1
    s_lshl_b32 s7, s7, 5
    s_add_u32 s6, s6, s7
    s_add_u32 s6, s6, s5
    s_lshl_b32 s6, s6, 13
    s_and_b32 s7, s3, 1
    s_lshl_b32 s7, s7, 12
    s_add_u32 s6, s6, s7
    s_add_u32 s6, s6, %d
    v_lshlrev_b32 v20, 4, v17
    """ % WS_C2)
    for k in range(4):
        R.vm('buffer_store_dwordx4 v[%d:%d], v20, s[20:23], s6 offen offset:%d sc1' % (32 + 4 * k, 35 + 4 * k, k * 1024), ('SV',))
    return R.th

def ptouch(I, wd=True):
    I("""
    s_mov_b64 exec, 0x3fff
    buffer_load_dword a255, v28, s[12:15], s95 offen %s
    s_mov_b64 exec, 0xf
    buffer_load_dword a255, v29, s[16:19], s94 offen %s
    buffer_load_dword a255, v30, s[8:11], s94 offen
    """ % (NTT, NTB))
    if wd and WDT: I("""
    s_mov_b64 exec, 0x3ff
    buffer_load_dword a255, v31, s[88:91], s92 offen
    s_add_u32 s92, s92, 1280
    """)
    I("""
    s_mov_b64 exec, -1
    s_add_u32 s95, s95, 917504
    s_add_u32 s94, s94, 256
    s_cmp_lt_u32 s94, 2048
    s_cselect_b32 s94, s94, s77
    """)

def tables_text():
    t = """
    v_lshlrev_b32 v48, 16, v48
    v_lshlrev_b32 v49, 16, v49
    v_lshlrev_b32 v50, 16, v50
    v_mul_f32 v50, 0x3fb8aa3b, v50
    v_exp_f32 v50, v50
    v_cvt_pk_bf16_f32 v50, v50, v50
    v_lshlrev_b32 v50, 16, v50
    v_mul_f32 v51, v50, v48
    v_mul_f32 v52, v50, v49
    v_mul_f32 v51, 0x3fb8aa3b, v51
    v_exp_f32 v51, v51
    v_mul_f32 v52, 0.15915494, v52
    v_fract_f32 v52, v52
    v_cos_f32 v53, v52
    v_sin_f32 v54, v52
    v_mul_f32 v64, v51, v53
    v_mul_f32 v65, v51, v54
    v_add_f32 v51, -1.0, v64
    v_mul_f32 v52, v48, v48
    v_fmac_f32 v52, v49, v49
    v_rcp_f32 v53, v52
    v_mul_f32 v54, v51, v48
    v_fmac_f32 v54, v65, v49
    v_mul_f32 v55, v65, v48
    v_fma_f32 v55, -v51, v49, v55
    v_fma_f32 v52, -v52, v53, 2.0
    v_mul_f32 v53, v53, v52
    v_add_f32 v53, v53, v53
    v_mul_f32 v88, v54, v53
    v_mul_f32 v89, v55, v53
    """
    for k in range(9):
        a = 64 + 2 * k; d = a + 2
        t += """
        v_mul_f32 v%d, v%d, v%d
        v_fma_f32 v%d, -v%d, v%d, v%d
        v_mul_f32 v%d, v%d, v%d
        v_add_f32 v%d, v%d, v%d
        """ % (d, a, a, d, a + 1, a + 1, d, d + 1, a, a + 1, d + 1, d + 1, d + 1)
    t += """
    v_lshrrev_b32 v51, 5, v0
    v_mov_b32 v56, 1.0
    v_mov_b32 v57, 0
    v_mov_b32 v60, 1.0
    v_mov_b32 v61, 0
    """
    def cm(dr, di, ar, ai, br, bi):
        return """
        v_mul_f32 v%d, v%d, v%d
        v_fma_f32 v%d, -v%d, v%d, v%d
        v_mul_f32 v%d, v%d, v%d
        v_fmac_f32 v%d, v%d, v%d
        """ % (dr, ar, br, dr, ai, bi, dr, di, ar, bi, di, ai, br)
    for b in range(3):
        a = 68 + 2 * b; a2 = 76 + 2 * b
        t += 'v_and_b32 v54, %d, v51\nv_cmp_ne_u32 vcc, 0, v54\n' % (1 << b)
        t += cm(52, 53, 56, 57, a, a + 1) + cm(62, 63, 60, 61, a2, a2 + 1)
        t += """
        v_cndmask_b32 v56, v56, v52, vcc
        v_cndmask_b32 v57, v57, v53, vcc
        v_cndmask_b32 v60, v60, v62, vcc
        v_cndmask_b32 v61, v61, v63, vcc
        """
    t += cm(58, 59, 56, 57, 74, 75)
    t += cm(62, 63, 60, 61, 82, 83) + cm(84, 85, 62, 63, 82, 83) + cm(86, 87, 84, 85, 82, 83)
    t += """
    v_and_b32 v52, 31, v0
    v_lshlrev_b32 v52, 2, v52
    v_lshl_add_u32 v53, v51, 8, v52
    v_add_u32 v53, %d, v53
    v_add_u32 v52, %d, v52
    ds_write2_b32 v53, v56, v57 offset0:0 offset1:32
    ds_write_b32 v53, v58 offset:2048
    ds_write_b32 v53, v59 offset:2176
    """ % (POW, TAB)
    for k, r in enumerate((60, 62, 84, 86)):
        t += 'ds_write_b32 v53, v%d offset:%d\nds_write_b32 v53, v%d offset:%d\n' % (r, 4096 + k * 2048, r + 1, 4096 + k * 2048 + 128)
    for idx, r in enumerate([64, 68, 70, 72]):
        t += 'ds_write2_b32 v52, v%d, v%d offset0:%d offset1:%d\n' % (r, r + 1, idx * 64, idx * 64 + 32)
    for idx, r in ((4, 74), (5, 88)):
        t += 'ds_write_b32 v52, v%d offset:%d\nds_write_b32 v52, v%d offset:%d\n' % (r, idx * 256, r + 1, idx * 256 + 128)
    return [l.strip() for l in t.splitlines() if l.strip()]

class Rec:
    def __init__(self, c, name):
        self.c = c; self.th = []; self.name = name; self.n = 0
    def __call__(self, text):
        for l in text.strip('\n').split('\n'):
            l = l.strip()
            if l: self.th.append(lambda l=l: self.c.I(l))
    def blk(self, items):
        def f():
            for k, t in items:
                if k == 'vm': self.c.vmem(t, ('SV',))
                else: self.c.I(t)
        self.th.append(f)
    def ds(self, text, tag): self.th.append(lambda: self.c.ds(text, tag))
    def vm(self, text, tag): self.th.append(lambda: self.c.vmem(text, tag))
    def wl(self, tag):
        self.n += 1; site = (self.name, 'l', self.n)
        self.th.append(lambda: self.c.wait_lg(site, lambda t: t == tag))
    def wv(self, tag):
        self.n += 1; site = (self.name, 'v', self.n)
        self.th.append(lambda: self.c.wait_vm(site, lambda t: t == tag))

def g_work(c):
    R = Rec(c, 'g')
    R("""
    s_lshl_b32 s6, s4, 1
    s_lshr_b32 s7, s3, 1
    s_add_u32 s6, s6, s7
    s_lshl_b32 s6, s6, 6
    s_lshl_b32 s7, s5, 1
    s_add_u32 s6, s6, s7
    s_and_b32 s7, s3, 1
    s_add_u32 s6, s6, s7
    s_lshl_b32 s76, s6, 7
    s_add_u32 s76, s76, %d
    s_add_u32 s7, s76, 0x20000
    v_mov_b32 v21, 0
    s_lshl_b32 s70, s71, 11
    v_lshlrev_b32 v25, 5, v17
    s_lshl_b32 s6, s2, 2
    s_add_u32 s6, s6, s3
    s_lshl_b32 s6, s6, 7
    s_add_u32 s6, s6, %d
    """ % (WS_FL, WS_FL + 0x40000))
    R.vm('buffer_load_dwordx4 v[64:67], v25, s[8:11], s70 offen', ('GL',))
    R.vm('buffer_load_dwordx4 v[68:71], v25, s[8:11], s70 offen offset:16', ('GL',))
    R.vm('buffer_load_dwordx4 v[72:75], v25, s[8:11], s70 offen offset:2048', ('GL',))
    R.vm('buffer_load_dwordx4 v[76:79], v25, s[8:11], s70 offen offset:2064', ('GL',))
    R.vm('global_load_dwordx4 v[80:83], v25, s[62:63]', ('GL',))
    R.vm('global_load_dwordx4 v[84:87], v25, s[62:63] offset:16', ('GL',))
    R.blk([('i', 's_mov_b64 exec, 1'), ('vm', 'buffer_store_dword v21, off, s[20:23], s76 sc1'), ('vm', 'buffer_store_dword v21, off, s[20:23], s7 sc1'), ('vm', 'buffer_store_dword v21, off, s[20:23], s6 sc1'), ('i', 's_mov_b64 exec, -1')])
    first = len(R.th)
    R.wv(('GL',))
    G = 48
    for d in range(8):
        R('v_and_b32 v%d, 0xffff0000, v%d\nv_lshlrev_b32 v%d, 16, v%d' % (G + 3, 80 + d, G + 2, 80 + d))
        for row in range(2):
            xr = 64 + row * 8 + d; a = G + 4 + row * 2; t = G + 8 + row * 2
            R("""
            v_and_b32 v%d, 0xffff0000, v%d
            v_lshlrev_b32 v%d, 16, v%d
            v_pk_mul_f32 v[%d:%d], v[%d:%d], v[%d:%d]
            v_cvt_pk_bf16_f32 v%d, v%d, v%d
            v_and_b32 v%d, 0xffff0000, v%d
            v_lshlrev_b32 v%d, 16, v%d
            """ % (t + 1, xr, t, xr, t, t + 1, t, t + 1, G + 2, G + 3, t, t, t + 1, t + 1, t, t, t))
            if d == 0: R('v_mov_b64 v[%d:%d], v[%d:%d]' % (a, a + 1, t, t + 1))
            else: R('v_pk_add_f32 v[%d:%d], v[%d:%d], v[%d:%d]' % (a, a + 1, a, a + 1, t, t + 1))
    for row in range(2):
        a = G + 4 + row * 2
        R('v_add_f32 v%d, v%d, v%d' % (a, a, a + 1))
    for sh in (1, 2, 4, 8):
        for row in range(2):
            a = G + 4 + row * 2
            R('v_add_f32_dpp v%d, v%d, v%d row_shr:%d row_mask:0xf bank_mask:0xf bound_ctrl:0' % (a, a, a, sh))
    for row in range(2):
        for k in range(4):
            R('v_readlane_b32 s%d, v%d, %d' % (78 + row * 4 + k, G + 4 + row * 2, 15 + 16 * k))
    R("""
    v_mov_b32 v48, s78
    v_add_f32 v48, s79, v48
    v_add_f32 v48, s80, v48
    v_add_f32 v48, s81, v48
    v_mov_b32 v49, s82
    v_add_f32 v49, s83, v49
    v_add_f32 v49, s84, v49
    v_add_f32 v49, s85, v49
    v_cvt_pk_bf16_f32 v48, v48, v49
    v_lshlrev_b32 v49, 16, v48
    v_and_b32 v50, 0xffff0000, v48
    v_mul_f32 v49, 0xbfb8aa3b, v49
    v_mul_f32 v50, 0xbfb8aa3b, v50
    v_exp_f32 v49, v49
    v_exp_f32 v50, v50
    v_add_f32 v49, 1.0, v49
    v_add_f32 v50, 1.0, v50
    v_rcp_f32 v49, v49
    v_rcp_f32 v50, v50
    v_cvt_pk_bf16_f32 v48, v49, v50
    v_lshlrev_b32 v50, 16, v48
    v_and_b32 v51, 0xffff0000, v48
    s_lshl_b32 s6, s71, 2
    s_add_u32 s6, s6, %d
    """ % WS_G)
    R.blk([('i', 's_mov_b64 exec, 1'), ('vm', 'buffer_store_dwordx2 v[50:51], off, s[20:23], s6 sc1'), ('i', 's_mov_b64 exec, -1')])
    return R.th[:first], R.th[first:]
def as_fill(c, lines):
    out = []
    for l in lines:
        if l.startswith('ds_'): out.append(lambda l=l: c.ds(l, ('T',)))
        else: out.append(lambda l=l: c.I(l))
    return out

def run(ths):
    for t in ths: t()

def prologue(c):
    I = c.I
    I('''
    s_cmp_ge_u32 s2, 256
    s_cbranch_scc1 K1_done
    s_load_dwordx16 s[36:51], s[0:1], 0
    s_load_dwordx16 s[52:67], s[0:1], 64
    s_load_dwordx2 s[68:69], s[0:1], 128
    v_lshrrev_b32 v16, 6, v0
    v_and_b32 v17, 63, v0
    v_readfirstlane_b32 s3, v16
    s_lshr_b32 s4, s2, 5
    s_and_b32 s5, s2, 7
    s_lshl_b32 s5, s5, 2
    s_bfe_u32 s6, s2, 0x20003
    s_add_u32 s5, s5, s6
    v_and_b32 v18, 15, v0
    v_bfe_u32 v19, v0, 4, 2
    v_lshrrev_b32 v20, 3, v17
    v_and_b32 v21, 7, v17
    v_xor_b32 v21, v21, v20
    s_lshl_b32 s6, s4, 8
    s_lshl_b32 s7, s3, 6
    s_add_u32 s6, s6, s7
    v_lshl_add_u32 v1, v20, 2, s6
    v_lshlrev_b32 v1, 11, v1
    v_lshl_add_u32 v1, v21, 4, v1
    v_add_u32 v2, 0xfc00, v1
    s_mov_b32 s10, 0x400000
    s_mov_b32 s11, 0x00020000
    s_mov_b32 s14, 0x700000
    s_mov_b32 s15, 0x00020000
    s_mov_b32 s18, 0x200000
    s_mov_b32 s19, 0x00020000
    s_mov_b32 s22, 0x10000000
    s_mov_b32 s23, 0x00020000
    s_mov_b32 s26, 256
    s_mov_b32 s27, 0x00020000
    s_mov_b32 s90, 0x700000
    s_mov_b32 s91, 0x00020000
    s_mov_b32 s28, 0
    s_mov_b32 s29, 4096
    s_mov_b32 s30, 0
    s_mov_b32 s31, 0
    s_mov_b32 s77, 0x%x
    s_lshl_b32 s32, s3, 12
    s_add_u32 s32, s32, %d
    s_lshl_b32 s34, s3, 14
    s_lshl_b32 s35, s3, 11
    s_add_u32 s35, s35, %d
    v_lshrrev_b32 v22, 2, v20
    v_and_b32 v23, 3, v20
    v_lshl_add_u32 v22, v22, 3, v23
    s_and_b32 s7, s3, 1
    s_lshl_b32 s6, s5, 5
    s_lshl_b32 s70, s7, 2
    s_add_u32 s6, s6, s70
    v_add_u32 v22, s6, v22
    v_lshlrev_b32 v22, 11, v22
    v_lshl_add_u32 v10, v21, 4, v22
    v_add_u32 v11, 0x7c00, v10
    s_mul_i32 s72, s5, 224
    s_mul_i32 s70, s7, 28672
    s_add_u32 s72, s72, s70
    s_and_b32 s73, s5, 1
    s_lshl_b32 s73, s73, 1
    s_movk_i32 s74, 4682
    s_movk_i32 s75, 7168
    s_waitcnt lgkmcnt(0)
    s_mov_b32 s8, s36
    s_mov_b32 s9, s37
    s_cmp_ge_u32 s3, 2
    s_cselect_b32 s12, s58, s56
    s_cselect_b32 s13, s59, s57
    s_cselect_b32 s16, s44, s42
    s_cselect_b32 s17, s45, s43
    s_cselect_b32 s86, s48, s46
    s_cselect_b32 s87, s49, s47
    s_mov_b32 s20, s68
    s_mov_b32 s21, s69
    s_mov_b32 s24, s66
    s_mov_b32 s25, s67
    s_mov_b32 s88, s60
    s_mov_b32 s89, s61
    ''' % (OOB, WB, BB))
    stamp(I, 0); stamp_rt(I, 10)
    if PT:
        I('''
        s_lshr_b32 s78, s2, 3
        s_lshl_b32 s78, s78, 2
        s_add_u32 s78, s78, s3
        s_and_b32 s79, s78, 15
        s_lshr_b32 s80, s78, 4
        s_mov_b32 s82, 0x11111112
        s_mov_b32 s83, 0x14144401
        s_lshl_b32 s81, s79, 2
        s_lshr_b64 s[82:83], s[82:83], s81
        s_and_b32 s82, s82, 15
        s_cmp_lt_u32 s80, s82
        s_cselect_b32 s79, s79, 0
        s_cselect_b32 s80, s80, 0
        s_sub_u32 s81, s78, 64
        s_cmp_lt_u32 s81, 20
        s_cselect_b32 s79, 16, s79
        s_cselect_b32 s80, s81, s80
        s_lshl_b32 s79, s79, 3
        s_lshl_b32 s80, s80, 21
        s_load_dwordx2 s[82:83], s[0:1], s79
        ''')
    for l in range(64): assert (l * 37) >> 8 == l // 7
    I("""
    v_mul_u32_u24 v26, 37, v17
    v_lshrrev_b32 v26, 8, v26
    v_mul_u32_u24 v27, 7, v26
    v_sub_u32 v27, v17, v27
    v_lshlrev_b32 v27, 7, v27
    s_lshr_b32 s6, s2, 3
    s_lshl_b32 s6, s6, 1
    s_add_u32 s6, s6, s7
    s_lshl_b32 s6, s6, 1
    s_and_b32 s70, s2, 7
    v_add_u32 v28, s6, v26
    v_mul_u32_u24 v28, s75, v28
    v_add_u32 v28, v28, v27
    s_mul_i32 s71, s70, 896
    v_add_u32 v28, s71, v28
    v_lshrrev_b32 v26, 1, v17
    v_and_b32 v27, 1, v17
    v_lshlrev_b32 v27, 7, v27
    s_lshl_b32 s71, s70, 7
    s_add_u32 s71, s71, s6
    v_add_u32 v29, s71, v26
    v_lshl_add_u32 v29, v29, 11, v27
    s_lshl_b32 s6, s4, 8
    s_lshl_b32 s70, s5, 3
    s_add_u32 s6, s6, s70
    s_lshl_b32 s70, s3, 1
    s_add_u32 s71, s6, s70
    v_add_u32 v30, s71, v26
    v_lshl_add_u32 v30, v30, 11, v27
    s_mov_b32 s94, %d
    s_mov_b32 s95, %d
    s_lshl_b32 s92, s2, 2
    s_add_u32 s92, s92, s3
    s_mul_i32 s92, s92, 7168
    v_lshlrev_b32 v31, 7, v17
    """ % (TS0 * 128, TS0 * 458752))
    for _ in range(TPRE): ptouch(I, wd=False)
    for k in range(8): run(x_dma(c, 0, k))
    if PT:
        I('s_waitcnt lgkmcnt(0)')
        I('s_load_dword s81, s[82:83], s80')
    for n in range(4):
        I('''
        v_add_u32 v20, %d, v17
        v_mul_u32_u24 v21, s74, v20
        v_lshrrev_b32 v21, 16, v21
        v_mul_u32_u24 v22, 14, v21
        v_sub_u32 v22, v20, v22
        v_add_u32 v22, s73, v22
        v_subrev_u32 v23, 14, v22
        v_min_u32 v22, v22, v23
        v_lshrrev_b32 v23, 2, v21
        v_and_b32 v21, 3, v21
        v_lshl_add_u32 v21, v23, 3, v21
        v_mul_u32_u24 v21, s75, v21
        v_lshl_add_u32 v21, v22, 4, v21
        v_add_u32 v21, s72, v21
        v_subrev_u32 v%d, %d, v21
        ''' % (n * 64, 3 + n, n * 1024))
        if n == 3:
            I('v_mov_b32 v20, s77\nv_cmp_gt_u32 vcc, 32, v17\nv_cndmask_b32 v6, v20, v6, vcc')
        run(w_dma(c, 0, n))
    for n in range(2): run(b_dma(c, 0, n))
    for n in range(4): run(w_dma(c, 1, n))
    I('''
    v_and_b32 v24, 31, v0
    v_lshl_add_u32 v24, s5, 5, v24
    v_lshlrev_b32 v24, 1, v24
    ''')
    c.vmem('global_load_ushort v48, v24, s[38:39]', ('S',))
    c.vmem('global_load_ushort v49, v24, s[40:41]', ('S',))
    c.vmem('global_load_ushort v50, v24, s[50:51]', ('S',))
    if not DEFER:
        for k in range(8): run(x_dma(c, 1, k))
        for n in range(4): run(w_dma(c, 2, n))
        for n in range(2): run(b_dma(c, 1, n))
        for n in range(3): run(w_dma(c, 3, n))
    c_addr(I)
    I('''
    s_lshl_b32 s6, s5, 5
    s_lshl_b32 s7, s4, 2
    s_add_u32 s6, s6, s7
    s_add_u32 s6, s6, s3
    s_lshl_b32 s6, s6, 8
    s_add_u32 s6, s6, %d
    v_lshlrev_b32 v26, 4, v17
    v_mov_b32 v24, -1
    v_mov_b32 v25, -1
    v_mov_b32 v22, -1
    v_mov_b32 v23, -1
    s_mov_b64 exec, 0xffff
    ''' % WS_T)
    c.vmem('buffer_store_dwordx4 v[22:25], v26, s[20:23], s6 offen sc1', ('SV',))
    I('''
    s_mov_b64 exec, -1
    s_bfe_u32 s93, s2, 0x20005
    s_add_u32 s93, s93, 1
    s_cmp_eq_u32 s3, 0
    s_cselect_b32 s93, s93, 99
    ''')
    I('''
    v_lshrrev_b32 v26, 2, v18
    v_lshl_add_u32 v26, v19, 2, v26
    v_mul_u32_u24 v26, 224, v26
    v_and_b32 v27, 3, v17
    v_lshl_add_u32 v12, v27, 3, v26
    v_add_u32 v12, %d, v12
    v_and_b32 v26, 7, v17
    v_xor_b32 v26, v26, v19
    v_lshlrev_b32 v26, 4, v26
    v_lshl_add_u32 v26, v18, 7, v26
    v_add_u32 v13, %d, v26
    v_xor_b32 v14, 64, v13
    v_add_u32 v7, s34, v26
    v_xor_b32 v8, 64, v7
    s_mov_b32 s33, 0
    ''' % (WB, BB))
    stamp(I, 3)
    c.wait_vm(('d0',), lambda t: t in (('W', 0), ('B', 0), ('X', 0)))
    I('s_barrier')
    stamp(I, 4)
    for i in range(4): x_read(c, 0, 0, i)()
    for t in range(5): run(w_read(c, 0, t))
    for i in range(4): x_read(c, 0, 1, i)()
    for k in range(4): b_read(c, 0, 0, k)()


RR = lambda jt, i: acc_reg('R', jt, i)[1]
II = lambda jt, i: acc_reg('I', jt, i)[1]
BA, BBk, BC, BD = 32, 48, 64, 80

def ld16(R, base_v, off, dst, tag):
    R.ds('ds_read_b128 v[%d:%d], v%d offset:%d' % (dst, dst + 3, base_v, off), tag)
    R.ds('ds_read_b128 v[%d:%d], v%d offset:%d' % (dst + 4, dst + 7, base_v, off + 16), tag)
    R.ds('ds_read_b128 v[%d:%d], v%d offset:%d' % (dst + 8, dst + 11, base_v, off + 128), tag)
    R.ds('ds_read_b128 v[%d:%d], v%d offset:%d' % (dst + 12, dst + 15, base_v, off + 144), tag)

def s1_pre(c):
    R = Rec(c, 's1p')
    R('v_lshlrev_b32 v20, 5, v19')
    R('v_add_u32 v20, %d, v20' % TAB)
    ld16(R, 20, 0, BA, ('K', 0)); ld16(R, 20, 256, BBk, ('K', 1))
    R("""
    s_lshl_b32 s78, s4, 2
    s_add_u32 s78, s78, s3
    s_lshl_b32 s79, s5, 13
    s_add_u32 s79, s79, %d
    s_lshl_b32 s80, s78, 8
    s_add_u32 s80, s80, s79
    v_lshlrev_b32 v21, 6, v19
    s_sub_u32 s81, s78, 1
    v_sub_u32 v22, s81, v18
    v_subrev_u32 v23, 16, v22
    v_cmp_gt_u32 vcc, 32, v22
    v_lshl_add_u32 v22, v22, 8, v21
    v_mov_b32 v24, s77
    v_cndmask_b32 v22, v24, v22, vcc
    v_cmp_gt_u32 vcc, 32, v23
    v_lshl_add_u32 v23, v23, 8, v21
    s_lshl_b32 s7, s5, 2
    v_cndmask_b32 v23, v24, v23, vcc
    v_cmp_eq_u32 s[82:83], 15, v18
    """ % WS_T)
    R('v_and_b32 v26, 31, v17')
    R('v_lshlrev_b32 v26, 2, v26')
    R.vm('buffer_load_dword v25, v26, s[24:27], 0 offen sc1', ('IF',))
    return R.th

def s1_work(c):
    R = Rec(c, 's1')
    LAM, CA, E, T = BA, BBk, BC, BD
    R.wl(('K', 0))
    cur = None; bufs = [E, T]
    for i in range(1, 4):
        d = bufs[i & 1]
        for jt in range(2):
            for h in range(2):
                o = jt * 4 + 2 * h
                if cur is None: br, bi = RR(jt, 0) + 2 * h, II(jt, 0) + 2 * h
                else: br, bi = cur + o, cur + 8 + o
                cmul_pk(R, d + o, d + 8 + o, LAM + o, LAM + 8 + o, br, bi, RR(jt, i) + 2 * h, II(jt, i) + 2 * h)
        cur = d
    S = E
    for k, sh in enumerate((1, 2, 4, 8)):
        for r in range(16):
            R('v_mov_b32_dpp v%d, v%d row_shr:%d row_mask:0xf bank_mask:0xf bound_ctrl:0' % (S + r, cur + r, sh))
        R.wl(('K', 1 + k))
        for o in range(0, 8, 2):
            cmul_pk(R, cur + o, cur + 8 + o, CA + o, CA + 8 + o, S + o, S + 8 + o, cur + o, cur + 8 + o)
        if k < 3: ld16(R, 20, (2 + k) * 256, CA, ('K', 2 + k))
    R.blk([('i', 's_mov_b64 exec, s[82:83]')] +
          [('vm', 'buffer_store_dwordx4 v[%d:%d], v21, s[20:23], s80 offen offset:%d sc1' % (cur + 4 * k, cur + 4 * k + 3, 16 * k)) for k in range(4)] +
          [('i', 's_mov_b64 exec, -1')])
    for r in range(16):
        R('v_mov_b32_dpp v%d, v%d row_shr:1 row_mask:0xf bank_mask:0xf bound_ctrl:0' % (S + r, cur + r))
    return R.th

def last_stage(c):
    s = 15
    order = [('S', 0, k) for k in range(4)] + [('S', 1, k) for k in range(4)] + [('F', 30, t) for t in range(14)] + [('F', 31, t) for t in range(14)]
    pre = s1_pre(c); work = s1_work(c)
    nF = 28
    per = -(-len(work) // (nF - 2))
    for n, (ty, a, b) in enumerate(order):
        fill = []
        site = ('Z', n)
        if ty == 'S':
            hh, k = a, b
            if hh == 0: fill.append(b_read(c, s, 1, k))
            for _ in range(min(5, len(pre))): fill.append(pre.pop(0))
            if k == 0: c.wait_lg((site, 'bf'), lambda t: t in (('BF', s, hh), ('XF', s, hh)))
            kind, jt = SSM[k]; areg = BH + hh * 16 + k * 4
        else:
            u, t = a, b; hh = u & 1
            if t <= 8: fill += w_read(c, u, t + 5)
            if u == 30 and t >= 10:
                for tt in {10: [], 11: [0], 12: [1, 2], 13: [3, 4]}[t]: fill += w_read(c, 31, tt)
            assert not pre
            if n >= 10:
                for _ in range(min(per, len(work))): fill.append(work.pop(0))
            c.wait_lg((site, 'f'), lambda tg: tg == ('F', u, t))
            kind, jt = FFN[t]; areg = RING + (t % 7) * 4
        nf = len(fill); k2 = 0
        for i in range(4):
            f, bb = acc_reg(kind, jt, i)
            c.I('v_mfma_f32_16x16x32_bf16 %s, %s, %s, %s' % (rr(f, bb), rr('a', areg), rr('a', XSET + 32 + hh * 16 + i * 4), rr(f, bb)))
            take = (nf * (i + 1) + 3) // 4 - k2
            for _ in range(take):
                fill[k2](); k2 += 1
        if ty == 'F' and a == 30 and b == 9:
            c.wait_vm((site, 'd'), lambda t: t == ('W', 31))
            c.I('s_barrier')
    assert not work


def cmul16(P, d, a, b, c=None):
    p = lambda r: 'v[%d:%d]' % (r, r + 1)
    G = range(0, 8, 2)
    for o in G:
        if c is None: P('v_pk_mul_f32 %s, %s, %s' % (p(d(o)[0]), p(a(o)[0]), p(b(o)[0])))
        else: P('v_pk_fma_f32 %s, %s, %s, %s' % (p(d(o)[0]), p(a(o)[0]), p(b(o)[0]), p(c(o)[0])))
    for o in G:
        if c is None: P('v_pk_mul_f32 %s, %s, %s' % (p(d(o)[1]), p(a(o)[0]), p(b(o)[1])))
        else: P('v_pk_fma_f32 %s, %s, %s, %s' % (p(d(o)[1]), p(a(o)[0]), p(b(o)[1]), p(c(o)[1])))
    for o in G:
        P('v_pk_fma_f32 %s, %s, %s, %s neg_lo:[1,0,0] neg_hi:[1,0,0]' % (p(d(o)[0]), p(a(o)[1]), p(b(o)[1]), p(d(o)[0])))
    for o in G:
        P('v_pk_fma_f32 %s, %s, %s, %s' % (p(d(o)[1]), p(a(o)[1]), p(b(o)[0]), p(d(o)[1])))
blk = lambda base: (lambda o: (base + o, base + 8 + o))
uacc = lambda i: (lambda o: (RR(o >> 2, i) + (o & 3), II(o >> 2, i) + (o & 3)))

def ffn_out2(P, items, dst, tmp):
    ch = []
    for n, (jt, i) in enumerate(items):
        for h in range(2):
            ta = tmp + (n * 2 + h) * 4; tb = ta + 2
            seq = []
            srcs = []
            for kind, t in (('G', ta), ('U', tb)):
                f, b = acc_reg(kind, jt, i)
                if f == 'a':
                    seq.append('v_accvgpr_read_b32 v%d, a%d' % (t, b + 2 * h))
                    seq.append('v_accvgpr_read_b32 v%d, a%d' % (t + 1, b + 2 * h + 1))
                    srcs.append(t)
                else: srcs.append(b + 2 * h)
            g0, u0 = srcs
            if k1.EMUL:
                seq += ['v_cvt_pk_bf16_f32 v%d, v%d, v%d' % (ta, g0, g0 + 1),
                        'v_cvt_pk_bf16_f32 v%d, v%d, v%d' % (tb, u0, u0 + 1),
                        'v_pk_max_i16 v%d, v%d, 0' % (ta, ta),
                        'v_and_b32 v%d, 0xffff0000, v%d' % (tb + 1, tb),
                        'v_lshlrev_b32 v%d, 16, v%d' % (tb, tb),
                        'v_and_b32 v%d, 0xffff0000, v%d' % (ta + 1, ta),
                        'v_lshlrev_b32 v%d, 16, v%d' % (ta, ta),
                        'v_pk_mul_f32 v[%d:%d], v[%d:%d], v[%d:%d]' % (ta, ta + 1, ta, ta + 1, tb, tb + 1)]
            else:
                seq += ['v_max_f32 v%d, 0, v%d' % (ta, g0), 'v_max_f32 v%d, 0, v%d' % (ta + 1, g0 + 1),
                        'v_pk_mul_f32 v[%d:%d], v[%d:%d], v[%d:%d]' % (ta, ta + 1, ta, ta + 1, u0, u0 + 1)]
            seq.append('v_cvt_pk_bf16_f32 v%d, v%d, v%d' % (dst + 2 * n + h, ta, ta + 1))
            ch.append(seq)
    m = max(len(x) for x in ch)
    for k in range(m):
        for x in ch:
            kk = k - (m - len(x))
            if kk >= 0: P(x[kk])

NS = 5
ACT = 96
WF = 32
FD = 3
def acc2(tau, jt): return (tau * 8 + jt) * 4
def a_setup(c):
    return [lambda: c.I('s_cmp_gt_i32 s32, 0'), lambda: c.I('s_cselect_b32 s86, s28, s77'),
            lambda: c.I('s_sub_u32 s32, s32, 1'), lambda: c.I('s_add_u32 s28, s28, 8192')]
def w_setup(c):
    return [lambda: c.I('s_cmp_gt_i32 s29, 0'), lambda: c.I('s_cselect_b32 s87, s30, s77'), lambda: c.I('s_cselect_b32 s88, s35, s77'),
            lambda: c.I('s_sub_u32 s29, s29, 1'), lambda: c.I('s_add_u32 s30, s30, s34'), lambda: c.I('s_add_u32 s35, s35, s34')]
def act_loads(c, n):
    return [lambda tau=tau: c.vmem('buffer_load_dwordx4 %s, v%d, s[20:23], s86 offen offset:%d sc1' % (rr('v', ACT + (n % NS) * 32 + tau * 4), 1 + (tau >> 2), (tau & 3) * 1024), ('A', n)) for tau in range(8)]
def w_loads(c, n, role):
    th = []
    for k in range(8):
        def f(k=k):
            if k & 3 == 0: c.I('s_add_u32 m0, s31, %d' % ((n % NS) * 8192 + (k >> 2) * 4096))
            c.vmem('buffer_load_dwordx4 v%d, s[16:19], s%d offen offset:%d %s lds' % (3 + (k & 3), 87 + (k >> 2), (k & 3) * 1024, 'sc1' if role == 'Y' else ''), ('W', n))
        th.append(f)
    return th
def frag_read(c, role, n, jt):
    reg = WF + jt * 4
    so = (n % NS) * 8192
    if role == 'Y':
        return [lambda: c.ds('ds_read_b128 %s, v7 offset:%d' % (rr('v', reg), so + jt * 1024), ('F', n, jt))]
    return [lambda e=e: c.ds('ds_read_b64_tr_b16 v[%d:%d], v%d offset:%d' % (reg + 2 * e, reg + 2 * e + 1, 7 + jt, so + e * 2048), ('F', n, jt)) for e in range(2)]

def step2(c, role, n, first=False):
    site = (role, 'first' if first else n % NS)
    a = act_loads(c, n + NS - 1); w = w_loads(c, n + NS - 1, role)
    vm = []
    for k in range(8): vm += [w[k], a[k]]
    setup = w_setup(c) + a_setup(c)
    c.wait_vm((site, 'a'), lambda t: t == ('A', n))
    for jt in range(8):
        slots = [[] for _ in range(8)]
        jn, nn = jt + FD, n
        if jn >= 8: jn -= 8; nn += 1
        fr = frag_read(c, role, nn, jn)
        if jt + FD == 8:
            slots[0].append(lambda: c.wait_vm((site, 'w'), lambda t: t == ('W', n + 1)))
        for k, f in enumerate(fr): slots[1 + k].append(f)
        if jt == 0:
            for k, f in enumerate(setup): slots[min(k // 2, 5)].append(f)
            slots[6].append(vm[0]); slots[7].append(vm[1])
        else:
            slots[3].append(vm[2 * jt]); slots[6].append(vm[2 * jt + 1])
        c.wait_lg((site, 'f', jt), lambda t: t == ('F', n, jt))
        for tau in range(8):
            b = acc2(tau, jt)
            c.I('v_mfma_f32_16x16x32_bf16 %s, %s, %s, %s' % (rr('a', b), rr('v', WF + jt * 4), rr('v', ACT + (n % NS) * 32 + tau * 4), '0' if first else rr('a', b)))
            for th in slots[tau]: th()

def p2_setup(P):
    k0 = [112, 134, 155, 0, 22, 45, 68, 90]
    cn = [22, 21, 21, 22, 23, 23, 22, 22]
    pk = lambda a: sum(v << (8 * i) for i, v in enumerate(a))
    P('''
    s_bfe_u32 s92, s2, 0x10002
    s_lshl_b32 s92, s92, 3
    s_bfe_u32 s6, s2, 0x30003
    s_add_u32 s92, s92, s6
    s_bfe_u32 s93, s2, 0x10001
    s_lshl_b32 s93, s93, 2
    s_lshr_b32 s6, s2, 6
    s_add_u32 s93, s93, s6
    s_and_b32 s94, s2, 1
    s_lshl_b32 s95, s94, 2
    s_add_u32 s95, s95, s3
    s_lshl_b32 s6, s95, 3
    s_mov_b32 s86, 0x%x
    s_mov_b32 s87, 0x%x
    s_lshr_b64 s[86:87], s[86:87], s6
    s_and_b32 s89, s86, 0xff
    s_mov_b32 s86, 0x%x
    s_mov_b32 s87, 0x%x
    s_lshr_b64 s[86:87], s[86:87], s6
    s_and_b32 s33, s86, 0xff
    s_mov_b32 s32, s33
    s_mov_b32 s29, s33
    s_mov_b32 s12, s64
    s_mov_b32 s13, s65
    s_mov_b32 s14, 0x800000
    v_lshlrev_b32 v84, 4, v17
    s_mul_i32 s6, s92, %d
    v_add_u32 v1, s6, v84
    v_add_u32 v2, 0x1000, v1
    s_lshl_b32 s28, s89, 13
    s_mul_i32 s31, s3, %d
    s_cmp_lt_u32 s95, 3
    s_cbranch_scc1 P2_setY
    ''' % (pk(k0[:4]), pk(k0[4:]), pk(cn[:4]), pk(cn[4:]), NKB * 8192, NS * 8192))
    P('''
    s_mov_b32 s16, s60
    s_mov_b32 s17, s61
    s_mov_b32 s18, 0x700000
    v_lshlrev_b32 v84, 1, v19
    v_xor_b32 v84, v84, v18
    v_xor_b32 v85, 8, v84
    s_lshl_b32 s6, s93, 8
    v_lshl_add_u32 v86, v19, 11, s6
    v_lshl_add_u32 v3, v84, 4, v86
    v_lshl_add_u32 v4, v85, 4, v86
    v_add_u32 v4, 7168, v4
    v_add_u32 v5, 14336, v3
    v_add_u32 v6, 14336, v4
    s_lshl_b32 s30, s89, 16
    s_add_u32 s35, s30, 32768
    s_mov_b32 s34, 65536
    ''')
    c = Ctx(P, {})
    for n in range(3):
        run(w_setup(c)); run(w_loads(c, n, 'B'))
    P('''
    v_lshrrev_b32 v84, 2, v18
    v_lshl_add_u32 v84, v19, 2, v84
    v_and_b32 v85, 7, v84
    v_and_b32 v86, 8, v84
    v_lshl_add_u32 v84, v86, 1, v85
    v_and_b32 v86, 3, v17
    v_lshlrev_b32 v84, 8, v84
    v_lshl_add_u32 v84, v86, 3, v84
    v_add_u32 v84, s31, v84
    v_lshl_add_u32 v7, v85, 5, v84
    s_lshl_b32 s7, s94, 7
    v_xor_b32 v7, s7, v7
    ''')
    for jt in range(1, 8): P('v_xor_b32 v%d, %d, v7' % (7 + jt, jt * 32))
    P('s_branch P2_setdone')
    P.label('P2_setY')
    P('''
    s_mov_b32 s16, s68
    s_mov_b32 s17, s69
    s_mov_b32 s18, 0x10000000
    s_lshl_b32 s6, s93, 19
    s_add_u32 s6, s6, %d
    v_add_u32 v3, s6, v84
    v_mov_b32 v4, v3
    v_mov_b32 v5, v3
    v_mov_b32 v6, v3
    s_sub_u32 s30, s89, 112
    s_lshl_b32 s30, s30, 13
    s_add_u32 s35, s30, 4096
    s_mov_b32 s34, 8192
    v_add_u32 v7, s31, v84
    ''' % WS_C2)
    P.label('P2_setdone')

def epilogue(P):
    LAM, CA, S, T = BA, BBk, BC, BD
    stamp(P, 5)
    P('s_waitcnt lgkmcnt(0)')
    P('s_barrier')
    p2_setup(P)
    P("""
    s_lshl_b32 s6, s4, 1
    s_lshr_b32 s7, s3, 1
    s_add_u32 s6, s6, s7
    s_mul_i32 s6, s6, %d
    s_and_b32 s7, s3, 1
    s_lshl_b32 s7, s7, 12
    s_add_u32 s6, s6, s7
    v_lshl_add_u32 v15, v17, 4, s6
    s_mul_i32 s70, s5, 7
    s_add_u32 s70, s70, 1
    s_lshr_b32 s70, s70, 1
    s_lshl_b32 s70, s70, 13
    s_add_u32 s71, s70, 8192
    s_add_u32 s72, s70, 16384
    s_add_u32 s73, s70, 24576
    s_sub_u32 s74, s70, 7680
    s_bitcmp1_b32 s5, 0
    s_cselect_b32 s73, s74, s73
    v_and_b32 v27, 31, v17
    v_lshrrev_b32 v24, 5, v17
    v_lshl_add_u32 v27, v27, 4, s6
    v_lshl_add_u32 v27, v24, 10, v27
    v_lshl_add_u32 v21, v18, 8, v20
    """ % (NKB * 8192))
    tmp = 80; n = 0
    def outreg():
        nonlocal n
        n += 1
        return 48 + (n % 4) * 4
    F = 160
    TA, TB, WA, WBk = F, F + 16, F + 32, F + 48
    def t_loads():
        for k in range(4):
            P('buffer_load_dwordx4 v[%d:%d], v22, s[20:23], s79 offen offset:%d sc1' % (TA + 4 * k, TA + 4 * k + 3, 16 * k))
        for k in range(4):
            P('buffer_load_dwordx4 v[%d:%d], v23, s[20:23], s79 offen offset:%d sc1' % (TB + 4 * k, TB + 4 * k + 3, 16 * k))
    def fin(dst, va, so, off):
        P('v_permlane32_swap_b32 v%d, v%d' % (dst, dst + 2))
        P('v_permlane32_swap_b32 v%d, v%d' % (dst + 1, dst + 3))
        P('buffer_store_dwordx4 v[%d:%d], v%d, s[20:23], s%d offen offset:%d sc1' % (dst, dst + 3, va, so, off))
    for pr in range(3):
        for i in range(4):
            dst = outreg()
            ffn_out2(P, [(2 * pr, i), (2 * pr + 1, i)], dst, tmp)
            fin(dst, 15, 70 + pr, i * 1024)
        if pr == 1:
            P('s_mov_b32 s75, 0')
            P('s_waitcnt vmcnt(8)')
            P.label('K1_ichk')
            P("""
            v_cmp_ne_u32 vcc, 0xff, v25
            s_add_u32 s75, s75, 1
            s_cmp_eq_u64 vcc, 0
            s_cbranch_scc1 K1_iok
            s_cmp_ge_u32 s75, 0x100000
            s_cbranch_scc1 K1_iok
            s_sleep 4
            buffer_load_dword v25, v26, s[24:27], 0 offen sc1
            s_waitcnt vmcnt(0)
            s_branch K1_ichk
            """)
            P.label('K1_iok')
            t_loads()
            for off, dst in ((6144, WA), (6144 + 4096, WBk)):
                for k, o in enumerate((0, 16, 128, 144)):
                    P('ds_read_b128 v[%d:%d], v21 offset:%d' % (dst + 4 * k, dst + 4 * k + 3, off + o))
    for i in (0, 2):
        dst = outreg()
        ffn_out2(P, [(6, i), (6, i + 1)], dst, tmp)
        fin(dst, 27, 73, i * 1024)
    stamp(P, 7)
    PWr = F + 64; AC = F + 80
    S2 = BD
    for k, o in enumerate((0, 16, 128, 144)):
        P('ds_read_b128 v[%d:%d], v21 offset:%d' % (PWr + 4 * k, PWr + 4 * k + 3, 2048 + o))
        P('ds_read_b128 v[%d:%d], v20 offset:%d' % (S2 + 4 * k, S2 + 4 * k + 3, 5 * 256 + o))
    P('s_mov_b32 s75, 0')
    P('s_waitcnt vmcnt(6)')
    P.label('K1_tchk')
    P('v_max3_u32 v24, v%d, v%d, v%d' % (TA, TA + 1, TA + 2))
    P('v_max3_u32 v25, v%d, v%d, v%d' % (TB, TB + 1, TB + 2))
    for r in range(3, 15, 2):
        P('v_max3_u32 v24, v24, v%d, v%d' % (TA + r, TA + r + 1))
        P('v_max3_u32 v25, v25, v%d, v%d' % (TB + r, TB + r + 1))
    P('v_max3_u32 v24, v24, v%d, v%d' % (TA + 15, TB + 15))
    P('v_max_u32 v24, v24, v25')
    P("""
    v_cmp_eq_u32 vcc, -1, v24
    s_add_u32 s75, s75, 1
    s_cmp_eq_u64 vcc, 0
    s_cbranch_scc1 K1_tok
    s_cmp_ge_u32 s75, 0x40000
    s_cbranch_scc1 K1_tok
    s_sleep 2
    """)
    t_loads()
    P('s_waitcnt vmcnt(0)')
    P('s_branch K1_tchk')
    P.label('K1_tok')
    stamp(P, 8)
    P('s_waitcnt lgkmcnt(0)')
    cmul16(P, blk(AC), blk(WA), blk(TA))
    cmul16(P, blk(AC), blk(WBk), blk(TB), blk(AC))
    for sh in (8, 4, 2, 1):
        for r in range(16):
            P('v_add_f32_dpp v%d, v%d, v%d row_ror:%d row_mask:0xf bank_mask:0xf' % (AC + r, AC + r, AC + r, sh))
    cmul16(P, blk(S), blk(PWr), blk(AC), blk(S))
    P("""
    s_add_u32 s70, s5, 112
    s_lshl_b32 s70, s70, 13
    s_add_u32 s71, s70, 262144
    v_mov_b32 v24, 1
    """)
    for i in range(4):
        O = TA if (i & 1) else TB
        cmul16(P, uacc(i), blk(LAM), blk(S) if i == 0 else uacc(i - 1), uacc(i))
        cmul16(P, blk(O), blk(S2), uacc(i))
        d = WA if (i & 1) else WBk
        for k in range(4):
            P('v_cvt_pk_bf16_f32 v%d, v%d, v%d' % (d + k, O + 2 * k, O + 2 * k + 1))
        for k in range(4):
            P('v_cvt_pk_bf16_f32 v%d, -v%d, -v%d' % (d + 4 + k, O + 8 + 2 * k, O + 8 + 2 * k + 1))
        if i == 0:
            P('s_waitcnt vmcnt(0)\ns_mov_b64 exec, 1\nbuffer_store_dword v24, off, s[20:23], s76 sc1\ns_mov_b64 exec, -1')
        P('buffer_store_dwordx4 v[%d:%d], v15, s[20:23], s70 offen offset:%d sc1' % (d, d + 3, i * 1024))
        P('buffer_store_dwordx4 v[%d:%d], v15, s[20:23], s71 offen offset:%d sc1' % (d + 4, d + 7, i * 1024))
    stamp(P, 9)

def pk_bc(op, d, a, f, cc=None):
    base = f & ~1; hi = f & 1
    if cc is None:
        return 'v_pk_mul_f32 v[%d:%d], v[%d:%d], v[%d:%d] op_sel:[0,%d] op_sel_hi:[1,%d]' % (d, d + 1, a, a + 1, base, base + 1, hi, hi)
    return 'v_pk_fma_f32 v[%d:%d], v[%d:%d], v[%d:%d], v[%d:%d] op_sel:[0,%d,0] op_sel_hi:[1,%d,1]' % (d, d + 1, a, a + 1, base, base + 1, cc, cc + 1, hi, hi)
def FR(src, k): return 20 + src * 2 + k
XD = 64

def p2_enter(P):
    P('''
    s_lshl_b32 s6, s92, 7
    s_lshr_b32 s7, s3, 1
    s_lshl_b32 s7, s7, 6
    s_add_u32 s6, s6, s7
    s_and_b32 s7, s3, 1
    s_lshl_b32 s7, s7, 1
    s_add_u32 s6, s6, s7
    v_lshl_add_u32 v20, v18, 2, s6
    s_lshl_b32 s7, s93, 7
    s_lshl_b32 s6, s94, 6
    s_add_u32 s7, s7, s6
    v_lshl_add_u32 v21, v19, 2, s7
    v_lshlrev_b32 v28, 10, v20
    v_add_u32 v28, v28, v21
    v_lshlrev_b32 v23, 1, v28
    v_lshlrev_b32 v28, 2, v28
    v_add_u32 v29, 0x1000, v28
    v_lshlrev_b32 v22, 1, v21
    v_lshlrev_b32 v25, 2, v20
    s_mov_b32 s6, %d
    v_lshlrev_b32 v15, 4, v17
    v_lshlrev_b32 v26, 7, v17
    ''' % WS_G)
    P('buffer_load_dwordx2 v[30:31], v25, s[20:23], s6 offen sc1')
    for k in range(2):
        for jt in range(4):
            P('buffer_load_dwordx2 v[%d:%d], v23, s[8:11], 0 offen offset:%d' % (32 + (k * 4 + jt) * 2, 33 + (k * 4 + jt) * 2, k * 2048 + jt * 32))
    for jt in range(4):
        P('global_load_dwordx2 v[%d:%d], v22, s[52:53] offset:%d' % (48 + jt * 2, 49 + jt * 2, jt * 32))
    P('''
    s_lshl_b32 s70, s92, 13
    s_add_u32 s70, s70, %d
    s_lshl_b32 s71, s93, 14
    s_add_u32 s71, s71, %d
    s_add_u32 s72, s71, 8192
    s_add_u32 s73, s70, 0x20000
    s_cmp_lt_u32 s95, 3
    s_cselect_b32 s71, s71, s70
    s_cselect_b32 s72, s72, s70
    s_cselect_b32 s70, s73, s70
    s_add_u32 s7, s76, 0x20000
    s_waitcnt vmcnt(13)
    s_mov_b64 exec, 1
    buffer_store_dword v24, off, s[20:23], s7 sc1
    s_mov_b64 exec, -1
    s_mov_b32 s75, 0
    s_barrier
    ''' % (WS_FL, WS_FL))

def p2_poll(P, role):
    L = 'P2_poll' + role
    P.label(L)
    P('buffer_load_dword v56, v26, s[20:23], s70 offen sc1')
    if role == 'Y':
        P('buffer_load_dword v57, v26, s[20:23], s71 offen sc1')
        P('buffer_load_dword v58, v26, s[20:23], s72 offen sc1')
    P('s_waitcnt vmcnt(0)')
    if role == 'Y':
        P('v_and_b32 v56, v56, v57\nv_and_b32 v56, v56, v58')
    P('''
    v_cmp_ne_u32 vcc, 1, v56
    s_add_u32 s75, s75, 1
    s_cmp_eq_u64 vcc, 0
    s_cbranch_scc1 %sok
    s_cmp_ge_u32 s75, 0x40000
    s_cbranch_scc1 %sok
    s_sleep 2
    s_branch %s
    ''' % (L, L, L))
    P.label(L + 'ok')

def e0_math(I):
    I('''
    v_sub_f32 v56, 1.0, v30
    v_sub_f32 v57, 1.0, v31
    v_cvt_pk_bf16_f32 v56, v56, v57
    v_and_b32 v57, 0xffff0000, v56
    v_lshlrev_b32 v56, 16, v56
    ''')
    for src in range(4):
        if src == 0: I('s_mov_b32 s6, s95')
        else:
            sl = src - 1
            I('s_cmp_le_u32 s3, %d\ns_cselect_b32 s6, %d, %d\ns_lshl_b32 s7, s94, 2\ns_add_u32 s6, s6, s7' % (sl, sl + 1, sl))
        I('s_cmp_lt_u32 s6, 3\ns_cselect_b64 vcc, -1, 0')
        I('v_cndmask_b32 v%d, v56, v30, vcc\nv_cndmask_b32 v%d, v57, v31, vcc' % (FR(src, 0), FR(src, 1)))
    for jt in range(4):
        for h in range(2):
            I('v_and_b32 v59, 0xffff0000, v%d\nv_lshlrev_b32 v58, 16, v%d' % (48 + jt * 2 + h, 48 + jt * 2 + h))
            seqs = []
            for k in range(2):
                t = k * 4 + jt; xs = 32 + t * 2 + h; a = XD + t * 4 + 2 * h
                seqs.append(['v_lshlrev_b32 v%d, 16, v%d' % (a, xs), 'v_and_b32 v%d, 0xffff0000, v%d' % (a + 1, xs),
                             'v_pk_mul_f32 v[%d:%d], v[%d:%d], v[58:59]' % (a, a + 1, a, a + 1),
                             'v_cvt_pk_bf16_f32 v%d, v%d, v%d' % (a, a, a + 1),
                             'v_and_b32 v%d, 0xffff0000, v%d' % (a + 1, a), 'v_lshlrev_b32 v%d, 16, v%d' % (a, a),
                             pk_bc('mul', a, a, 30 + k)])
            for x, y in zip(*seqs): I(x); I(y)

def p2_prologue(c, role):
    if role == 'Y':
        for n in range(3):
            run(w_setup(c)); run(w_loads(c, n, role)); run(a_setup(c)); run(act_loads(c, n))
    else:
        for n in range(3):
            run(a_setup(c)); run(act_loads(c, n))
    run(w_setup(c)); run(w_loads(c, 3, role)); run(a_setup(c)); run(act_loads(c, 3))
    e0_math(c.I)
    c.wait_vm((role, 'w0'), lambda t: t == ('W', 0))
    for jt in range(FD): run(frag_read(c, role, 0, jt))

def slab_writes(P, jt0, tag, Qs, slot_of, own=None):
    pass

def p2_final(P):
    ZS, ZK, TMP = 96, XD, 160
    def wr(Q, jt0):
        for t in range(8):
            P('ds_write_b128 v61, %s offset:%d' % (rr('a', acc2(2 * Q + (t >> 2), jt0 + (t & 3))), t * 1024))
    def own(Q, jt0, dst, accum):
        for t in range(8):
            b = acc2(2 * Q + (t >> 2), jt0 + (t & 3))
            for r in range(4): P('v_accvgpr_read_b32 v%d, a%d' % (128 + t * 4 + r, b + r))
    P('s_waitcnt vmcnt(0) lgkmcnt(0)')
    P('v_add_u32 v60, s31, v15')
    for Q in range(4):
        P('s_cmp_eq_u32 s3, %d\ns_cbranch_scc1 P2_so%d' % (Q, Q))
        P('s_cmp_lt_u32 s3, %d\ns_cselect_b32 s6, %d, %d\ns_lshl_b32 s6, s6, 13' % (Q, max(Q - 1, 0), min(Q, 2)))
        P('v_add_u32 v61, s6, v60')
        wr(Q, 4)
        P('s_branch P2_sn%d' % Q)
        P.label('P2_so%d' % Q)
        own(Q, 4, ZS, False)
        P.label('P2_sn%d' % Q)
    for sl in range(3):
        P('''
        s_cmp_le_u32 s3, %d
        s_cselect_b32 s6, %d, %d
        s_cselect_b32 s7, 0, 1
        s_mul_i32 s6, s6, 40960
        s_sub_u32 s7, s3, s7
        s_lshl_b32 s%d, s7, 13
        s_add_u32 s%d, s%d, s6
        s_add_u32 s7, s7, 3
        s_cmp_eq_u32 s7, 5
        s_cselect_b32 s7, 0, s7
        s_lshl_b32 s%d, s7, 13
        s_add_u32 s%d, s%d, s6
        ''' % (sl, sl + 1, sl, 70 + sl, 70 + sl, 70 + sl, 73 + sl, 73 + sl, 73 + sl))
    for t in range(8):
        for h in range(2):
            r = t * 4 + 2 * h
            P(pk_bc('mul', ZS + r, 128 + r, FR(0, t >> 2)))
    P('''
    s_lshl_b32 s6, s2, 2
    s_add_u32 s6, s6, s3
    s_lshl_b32 s78, s6, 13
    s_add_u32 s78, s78, %d
    s_add_u32 s79, s78, 4096
    s_xor_b32 s80, s78, 0x8000
    s_add_u32 s81, s80, 4096
    s_lshl_b32 s82, s6, 7
    s_add_u32 s82, s82, %d
    s_xor_b32 s83, s82, 0x200
    s_waitcnt lgkmcnt(0)
    s_barrier
    ''' % (WS_XB, WS_FL + 0x40000))
    def rd(s0, dst):
        for sl in range(3):
            P('v_add_u32 v%d, s%d, v15' % (56 + sl, s0 + sl))
        for t in range(8):
            for sl in range(3):
                P('ds_read_b128 v[%d:%d], v%d offset:%d' % (TMP + sl * 32 + t * 4, TMP + sl * 32 + t * 4 + 3, 56 + sl, t * 1024))
        for t in range(8):
            n = 21 - 3 * t
            P('s_waitcnt lgkmcnt(%d)' % min(n, 14))
            for sl in range(3):
                for h in range(2):
                    r = t * 4 + 2 * h
                    P(pk_bc('fma', dst + r, TMP + sl * 32 + r, FR(1 + sl, t >> 2), dst + r))
            if dst == ZS:
                P('buffer_store_dwordx4 v[%d:%d], v15, s[20:23], s%d offen offset:%d sc1' % (ZS + t * 4, ZS + t * 4 + 3, 78 + (t >> 2), (t & 3) * 1024))
    rd(70, ZS)
    stamp(P, 16)
    for Q in range(4):
        P('s_cmp_eq_u32 s3, %d\ns_cbranch_scc1 P2_ko%d' % (Q, Q))
        if Q == 3:
            P('s_branch P2_kn3')
        else:
            if Q == 2: P('s_cmp_eq_u32 s3, 3\ns_cbranch_scc1 P2_kn2')
            P('s_cmp_lt_u32 s3, %d\ns_cselect_b32 s6, %d, %d\ns_lshl_b32 s6, s6, 13' % (Q, 3 + max(Q - 1, 0), 3 + min(Q, 1)))
            P('v_add_u32 v61, s6, v60')
            wr(Q, 0)
            P('s_branch P2_kn%d' % Q)
        P.label('P2_ko%d' % Q)
        own(Q, 0, ZK, True)
        P.label('P2_kn%d' % Q)
    P('v_mov_b32 v59, 1')
    P('s_waitcnt vmcnt(0)\ns_mov_b64 exec, 1\nbuffer_store_dword v59, off, s[20:23], s82 sc1\ns_mov_b64 exec, -1')
    P('s_barrier')
    P('v_mov_b32 v61, v60')
    P('s_cmp_eq_u32 s3, 3\ns_cbranch_scc1 P2_l2')
    wr(3, 0)
    P('s_branch P2_l3')
    P.label('P2_l2')
    wr(2, 0)
    P.label('P2_l3')
    def xb_loads():
        for t in range(8):
            P('buffer_load_dwordx4 v[%d:%d], v15, s[20:23], s%d offen offset:%d sc1' % (ZS + t * 4, ZS + t * 4 + 3, 80 + (t >> 2), (t & 3) * 1024))
    for t in range(8):
        for h in range(2):
            r = t * 4 + 2 * h
            P(pk_bc('fma', ZK + r, 128 + r, FR(0, t >> 2), ZK + r))
    P('s_waitcnt lgkmcnt(0)')
    P('s_barrier')
    P('buffer_load_dword v59, off, s[20:23], s83 sc1')
    rd(73, ZK)
    stamp(P, 17)
    P('s_mov_b32 s75, 0')
    P.label('P2_xchk')
    P('''
    s_waitcnt vmcnt(0)
    v_readfirstlane_b32 s6, v59
    s_add_u32 s75, s75, 1
    s_cmp_eq_u32 s6, 1
    s_cbranch_scc1 P2_xok
    s_cmp_ge_u32 s75, 0x40000
    s_cbranch_scc1 P2_xok
    s_sleep 1
    buffer_load_dword v59, off, s[20:23], s83 sc1
    s_branch P2_xchk
    ''')
    P.label('P2_xok')
    xb_loads()
    stamp(P, 18)
    for t in range(8):
        P('s_waitcnt vmcnt(7)')
        for h in range(2):
            r = t * 4 + 2 * h
            P('v_pk_add_f32 v[%d:%d], v[%d:%d], v[%d:%d]' % (ZK + r, ZK + r + 1, ZK + r, ZK + r + 1, ZS + r, ZS + r + 1))
        P('buffer_store_dwordx4 v[%d:%d], v%d, s[12:15], 0 offen offset:%d nt' % (ZK + t * 4, ZK + t * 4 + 3, 29 if t >= 4 else 28, (t & 3) * 64))

def site_of(u):
    if u < 4: return ('F', u)
    if u >= 28: return ('E', u)
    return ('L', u % 4)

def body(c, emit):
    P = c.P
    prologue(c)
    extra = [lambda: c.wait_vm(('s',), lambda t: t == ('S',))] + as_fill(c, tables_text())
    g1, g2 = g_work(c)
    substep(c, 0, site_of(0), extra=extra, first=True)
    substep(c, 1, site_of(1), extra=extra)
    extra += g1
    substep(c, 2, site_of(2), extra=extra, room_extra=1)
    assert not extra, len(extra)
    extra += g2
    substep(c, 3, site_of(3), extra=extra, room_extra=6)
    assert not extra, len(extra)
    if emit:
        stamp(P, 1)
        P('.p2align 6')
        P.label('K1_loop')
        P('s_cmp_eq_u32 s33, s93\ns_cbranch_scc1 K1_t1')
        P.label('K1_tback')
        c_loads(P)
        if TOUCH: ptouch(P)
        for u in range(4, 8): substep(c, u, site_of(u))
        P("""
        s_add_u32 s33, s33, 1
        s_cmp_lt_u32 s33, 6
        s_cbranch_scc1 K1_loop
        """)
    else:
        for u in range(4, 28): substep(c, u, site_of(u))
    stamp(c.I, 2)
    substep(c, 28, site_of(28), last=1)
    substep(c, 29, site_of(29), last=2, extra=c_stores(c))
    stamp(c.I, 6)
    last_stage(c)

KNAME = 'gated_mix__ssm_conv_s5__glu_gated_reglu__prompt_kernel'
def gen():
    waits = {}
    body(Ctx(None, waits), False)
    for role in 'YB':
        c = Ctx(None, waits)
        p2_prologue(c, role)
        step2(c, role, 0, first=True)
        for n in range(1, 25): step2(c, role, n)
    P = Prog()
    c = Ctx(P, waits)
    P('.globl %s\n.p2align 8\n.type %s,@function' % (KNAME, KNAME))
    P.label(KNAME)
    body(c, True)
    epilogue(P)
    p2_enter(P)
    stamp(P, 12)
    P('s_cmp_lt_u32 s95, 3\ns_cbranch_scc1 P2_roleY')
    for role in 'BY':
        if role == 'Y': P.label('P2_roleY')
        p2_poll(P, role)
        stamp(P, 13)
        p2_prologue(c, role)
        step2(c, role, 0, first=True)
        P('s_sub_u32 s33, s33, 1')
        P('.p2align 6')
        P.label('P2_loop' + role)
        for n in range(1, NS + 1):
            step2(c, role, n)
            P('s_sub_u32 s33, s33, 1')
            P('s_cmp_eq_u32 s33, 0')
            if n < NS: P('s_cbranch_scc1 P2_end')
            else: P('s_cbranch_scc0 P2_loop' + role)
        if role == 'B': P('s_branch P2_end')
    P.label('P2_end')
    stamp(P, 15)
    P('s_nop 7')
    p2_final(P)
    stamp(P, 19); stamp_rt(P, 11)
    P('s_waitcnt vmcnt(0)')
    stamp(P, 20)
    stamp_out(P, 0)
    P.label('K1_done')
    P('s_endpgm')
    P.label('K1_t1')
    P("""
    s_lshl_b32 s6, 1, s4
    v_mov_b32 v26, s6
    s_lshl_b32 s7, s5, 2
    s_mov_b64 exec, 1
    buffer_atomic_add v26, off, s[24:27], s7 sc1
    s_mov_b64 exec, -1
    s_branch K1_tback
    """)
    return P.text(), waits

if __name__ == '__main__':
    import sys
    NAME = 'gated_mix__ssm_conv_s5__glu_gated_reglu__prompt'
    ref = open('cdna_kernels/%s.s.ref' % NAME).read().splitlines()
    hdr = [l for l in ref if l.startswith(';') and '@launch' not in l]
    t, w = gen()
    out = '\n'.join(hdr) + '\n; @launch grid=(256,1,1) block=(256,1,1) lds=%d\n' % K1_LDS
    out += '.amdgcn_target "amdgcn-amd-amdhsa--gfx950"\n.text\n' + t
    out += '.section .rodata,"a"\n.p2align 6\n' + K1_DESC.replace('k1_kernel', KNAME)
    dst = sys.argv[1] if len(sys.argv) > 1 else 'cdna_kernels/%s.s' % NAME
    open(dst, 'w').write(out)
    print('wrote', dst, len(out))
```

```python
import os
from asmlib import Prog, Counter
import k1
from k1 import Ctx, rr, cmul_pk, ffn_out, acc_reg, ACC_V0, stamp, stamp_rt, stamp_out, NKB, WS_G, WS_T, WS_C2, WS_FL, WS_XB, K1_DESC

XB = 0
WB = 65536
BB = 131072
TAB = 147456
POW = TAB + 2048
WG64 = TAB + 6144
K1_LDS = 163840
assert TAB == k1.TAB
XSET = 128
RING = 192
BH = 220
OOB = 0x70000000
EXP = int(os.environ.get('EXP', '0'))
TS0 = int(os.environ.get('TS0', '4'))
TPRE = int(os.environ.get('TPRE', '1'))
DEFER = int(os.environ.get('DEFER', '1'))
NTW = 'nt' if int(os.environ.get('NTW', '1')) else ''
NTB = 'nt' if int(os.environ.get('NTB', '1')) else ''
NTC = 'nt' if int(os.environ.get('NTC', '1')) else ''
NTT = 'nt' if int(os.environ.get('NTT', os.environ.get('NTW', '1'))) else ''
NTX = 'nt' if int(os.environ.get('NTX', '0')) else ''
WDT = int(os.environ.get('WDT', '1'))
PT = int(os.environ.get('PT', '1'))
TOUCH = int(os.environ.get('TOUCH', '1'))

FFN = []
for jt in range(7): FFN += [('G', jt), ('U', jt)]
SSM = [('R', 0), ('I', 0), ('R', 1), ('I', 1)]

def w_read(c, u, t):
    kind, jt = FFN[t]
    slot = RING + (t % 7) * 4
    th = []
    for e in range(2):
        off = (u % 4) * 16384 + ((kind == 'U') * 2 + e) * 4096 + jt * 32
        th.append(lambda off=off, e=e: c.ds('ds_read_b64_tr_b16 a[%d:%d], v12 offset:%d' % (slot + 2 * e, slot + 2 * e + 1, off), ('F', u, t)))
    return th
def b_read(c, s, hh, k):
    kind, jt = SSM[k]
    off = (s % 2) * 8192 + ((kind == 'I') * 32 + jt * 16) * 128
    return lambda: c.ds('ds_read_b128 %s, v%d offset:%d' % (rr('a', BH + hh * 16 + k * 4), 13 + hh, off), ('BF', s, hh))
def x_read(c, s, hh, i):
    off = (s % 2) * 8192 + i * 2048
    return lambda: c.ds('ds_read_b128 %s, v%d offset:%d' % (rr('a', XSET + (s % 2) * 32 + hh * 16 + i * 4), 7 + hh, off), ('XF', s, hh))
def w_dma(c, u, n):
    th = []
    th.append(lambda: c.I('s_add_u32 m0, s32, %d' % ((u % 4) * 16384)))
    th.append(lambda: c.vmem('buffer_load_dwordx4 v%d, s[12:15], s30 offen offset:%d %s lds' % (3 + n, n * 1024, NTW), ('W', u)))
    if n == 3: th.append(lambda: c.I('s_add_u32 s30, s30, 229376'))
    return th
def x_dma(c, s, k):
    th = []
    th.append(lambda: c.I('s_add_u32 m0, s34, %d' % ((s % 2) * 8192 + (k >> 2) * 4096)))
    th.append(lambda: c.vmem('buffer_load_dwordx4 v%d, s[8:11], s%d offen offset:%d %s lds' % (1 + (k & 1), 28 + (k >> 2), (k & 3) * 1024, NTX), ('X', s)))
    if k == 7:
        th.append(lambda: c.I('s_add_u32 s28, s28, 128'))
        th.append(lambda: c.I('s_cmp_lt_u32 s28, 2048'))
        th.append(lambda: c.I('s_cselect_b32 s28, s28, s77'))
        th.append(lambda: c.I('s_add_u32 s29, s28, 4096'))
    return th
def b_dma(c, s, n):
    th = []
    th.append(lambda: c.I('s_add_u32 m0, s35, %d' % ((s % 2) * 8192)))
    th.append(lambda: c.vmem('buffer_load_dwordx4 v%d, s[16:19], s31 offen offset:%d %s lds' % (10 + n, n * 1024, NTB), ('B', s)))
    if n == 1:
        th.append(lambda: c.I('s_add_u32 s31, s31, 128'))
        th.append(lambda: c.I('s_cmp_lt_u32 s31, 2048'))
        th.append(lambda: c.I('s_cselect_b32 s31, s31, s77'))
    return th

def substep(c, u, site, extra=None, first=False, last=0, room_extra=0):
    hh = u & 1; s = u >> 1
    for j in range(18):
        fill = []
        if j <= 8: fill += w_read(c, u, j + 5)
        if 12 <= j <= 16 and u != 31: fill += w_read(c, u + 1, j - 12)
        if u == 31: pass
        elif hh == 1:
            if j == 9: fill.append(lambda: c.wait_vm((site, 'x'), lambda t: t == ('X', s + 1)))
            if j in (9, 10): fill += [x_read(c, s + 1, 0, (j - 9) * 2 + k) for k in range(2)]
            if j in (14, 15, 16, 17): fill.append(x_read(c, s + 1, 1, j - 14))
            if j in (12, 13): fill += [b_read(c, s + 1, 0, (j - 12) * 2 + k) for k in range(2)]
        else:
            if j in (0, 2, 4, 6): fill.append(b_read(c, s, 1, j // 2))
        d = []
        if j in (13, 15, 17): d = w_dma(c, u + 4, (j - 13) // 2)
        if j == 1: d = w_dma(c, u + 3, 3)
        if j in (3, 5, 7, 9): d = x_dma(c, s + 2, hh * 4 + (j - 3) // 2)
        if hh == 0 and j in (14, 16): d = b_dma(c, s + 2, (j - 14) // 2)
        if last == 2 or (last == 1 and j != 1): d = []
        if DEFER and u == 0:
            seq = [('x', 1, k) for k in range(8)] + [('w', 2, n) for n in range(4)] + [('b', 1, n) for n in range(2)] + [('w', 3, n) for n in range(4)] + [('x', 2, k) for k in range(4)]
            if j <= 10:
                d = []
                for ty, a, b in seq[2 * j:2 * j + 2]:
                    d += {'x': x_dma, 'w': w_dma, 'b': b_dma}[ty](c, a, b)
        fill = d[:1] + fill + d[1:]
        if extra:
            room = max(0, 8 - 1 - len(fill)) + room_extra
            for _ in range(min(room, len(extra))): fill.append(extra.pop(0))
        if j == 0: c.wait_lg((site, 'xf'), lambda t: t in (('XF', s, hh), ('F', u, 0)))
        elif j < 14: c.wait_lg((site, 'f', j), lambda t: t == ('F', u, j))
        elif j == 14: c.wait_lg((site, 'bf'), lambda t: t == ('BF', s, hh))
        if j < 14:
            kind, jt = FFN[j]; a = RING + (j % 7) * 4
        else:
            kind, jt = SSM[j - 14]; a = BH + hh * 16 + (j - 14) * 4
        nf = len(fill); k = 0
        for i in range(4):
            f, b = acc_reg(kind, jt, i)
            c.I('v_mfma_f32_16x16x32_bf16 %s, %s, %s, %s' % (rr(f, b), rr('a', a), rr('a', XSET + (s % 2) * 32 + hh * 16 + i * 4), '0' if first else rr(f, b)))
            take = (nf * (i + 1) + 3) // 4 - k
            for _ in range(take):
                fill[k](); k += 1
        if j == 11 and u != 31:
            if hh == 1: c.wait_vm((site, 'd'), lambda t: t in (('W', u + 1), ('B', s + 1)))
            else: c.wait_vm((site, 'd'), lambda t: t == ('W', u + 1))
            c.I('s_waitcnt lgkmcnt(0)')
            c.lg.q = []
            c.I('s_barrier')

def touch(I, batch):
    ks = 2 + 7 * batch
    I('''
    s_mov_b32 s6, %d
    s_mov_b32 s7, %d
    s_mov_b32 exec_hi, 0x1ffff
    buffer_load_dword a255, v28, s[12:15], s6 offen
    s_mov_b64 exec, 0x3fff
    buffer_load_dword a255, v29, s[16:19], s7 offen
    buffer_load_dword a255, v30, s[8:11], s7 offen
    s_mov_b64 exec, -1
    ''' % (ks * 64 * 7168, ks * 128))

def touch_wd(I):
    I('''
    s_lshl_b32 s6, s2, 2
    s_add_u32 s6, s6, s3
    s_mul_i32 s6, s6, 7168
    v_lshlrev_b32 v26, 7, v17
    s_mov_b32 exec_hi, 0xffffff
    buffer_load_dword a255, v26, s[88:91], s6 offen
    s_mov_b64 exec, -1
    ''')


def c_addr(I):
    I("""
    s_and_b32 s7, s3, 1
    s_lshl_b32 s6, s4, 7
    s_lshl_b32 s70, s7, 6
    s_add_u32 s6, s6, s70
    v_add_u32 v9, s6, v18
    v_lshlrev_b32 v9, 11, v9
    v_lshl_add_u32 v9, v19, 4, v9
    s_lshl_b32 s6, s5, 6
    v_add_u32 v9, s6, v9
    """)

def c_loads(P):
    for k in range(4):
        P('s_cmp_lg_u32 s33, %d' % (k + 1))
        P('s_cbranch_scc1 K1_c%d' % k)
        P('global_load_dwordx4 v[%d:%d], v9, s[86:87] %s' % (32 + 4 * k, 35 + 4 * k, NTC))
        P('v_add_u32 v9, 0x8000, v9')
        P.label('K1_c%d' % k)

def c_stores(c):
    R = Rec(c, 'cs')
    R("""
    s_lshl_b32 s6, s4, 6
    s_lshr_b32 s7, s3, 1
    s_lshl_b32 s7, s7, 5
    s_add_u32 s6, s6, s7
    s_add_u32 s6, s6, s5
    s_lshl_b32 s6, s6, 13
    s_and_b32 s7, s3, 1
    s_lshl_b32 s7, s7, 12
    s_add_u32 s6, s6, s7
    s_add_u32 s6, s6, %d
    v_lshlrev_b32 v20, 4, v17
    """ % WS_C2)
    for k in range(4):
        R.vm('buffer_store_dwordx4 v[%d:%d], v20, s[20:23], s6 offen offset:%d sc1' % (32 + 4 * k, 35 + 4 * k, k * 1024), ('SV',))
    return R.th

def ptouch(I, wd=True):
    I("""
    s_mov_b64 exec, 0x3fff
    buffer_load_dword a255, v28, s[12:15], s95 offen %s
    s_mov_b64 exec, 0xf
    buffer_load_dword a255, v29, s[16:19], s94 offen %s
    buffer_load_dword a255, v30, s[8:11], s94 offen
    """ % (NTT, NTB))
    if wd and WDT: I("""
    s_mov_b64 exec, 0x3ff
    buffer_load_dword a255, v31, s[88:91], s92 offen
    s_add_u32 s92, s92, 1280
    """)
    I("""
    s_mov_b64 exec, -1
    s_add_u32 s95, s95, 917504
    s_add_u32 s94, s94, 256
    s_cmp_lt_u32 s94, 2048
    s_cselect_b32 s94, s94, s77
    """)

def tables_text():
    t = """
    v_lshlrev_b32 v48, 16, v48
    v_lshlrev_b32 v49, 16, v49
    v_lshlrev_b32 v50, 16, v50
    v_mul_f32 v50, 0x3fb8aa3b, v50
    v_exp_f32 v50, v50
    v_cvt_pk_bf16_f32 v50, v50, v50
    v_lshlrev_b32 v50, 16, v50
    v_mul_f32 v51, v50, v48
    v_mul_f32 v52, v50, v49
    v_mul_f32 v51, 0x3fb8aa3b, v51
    v_exp_f32 v51, v51
    v_mul_f32 v52, 0.15915494, v52
    v_fract_f32 v52, v52
    v_cos_f32 v53, v52
    v_sin_f32 v54, v52
    v_mul_f32 v64, v51, v53
    v_mul_f32 v65, v51, v54
    v_add_f32 v51, -1.0, v64
    v_mul_f32 v52, v48, v48
    v_fmac_f32 v52, v49, v49
    v_rcp_f32 v53, v52
    v_mul_f32 v54, v51, v48
    v_fmac_f32 v54, v65, v49
    v_mul_f32 v55, v65, v48
    v_fma_f32 v55, -v51, v49, v55
    v_fma_f32 v52, -v52, v53, 2.0
    v_mul_f32 v53, v53, v52
    v_add_f32 v53, v53, v53
    v_mul_f32 v88, v54, v53
    v_mul_f32 v89, v55, v53
    """
    for k in range(9):
        a = 64 + 2 * k; d = a + 2
        t += """
        v_mul_f32 v%d, v%d, v%d
        v_fma_f32 v%d, -v%d, v%d, v%d
        v_mul_f32 v%d, v%d, v%d
        v_add_f32 v%d, v%d, v%d
        """ % (d, a, a, d, a + 1, a + 1, d, d + 1, a, a + 1, d + 1, d + 1, d + 1)
    t += """
    v_lshrrev_b32 v51, 5, v0
    v_mov_b32 v56, 1.0
    v_mov_b32 v57, 0
    v_mov_b32 v60, 1.0
    v_mov_b32 v61, 0
    """
    def cm(dr, di, ar, ai, br, bi):
        return """
        v_mul_f32 v%d, v%d, v%d
        v_fma_f32 v%d, -v%d, v%d, v%d
        v_mul_f32 v%d, v%d, v%d
        v_fmac_f32 v%d, v%d, v%d
        """ % (dr, ar, br, dr, ai, bi, dr, di, ar, bi, di, ai, br)
    for b in range(3):
        a = 68 + 2 * b; a2 = 76 + 2 * b
        t += 'v_and_b32 v54, %d, v51\nv_cmp_ne_u32 vcc, 0, v54\n' % (1 << b)
        t += cm(52, 53, 56, 57, a, a + 1) + cm(62, 63, 60, 61, a2, a2 + 1)
        t += """
        v_cndmask_b32 v56, v56, v52, vcc
        v_cndmask_b32 v57, v57, v53, vcc
        v_cndmask_b32 v60, v60, v62, vcc
        v_cndmask_b32 v61, v61, v63, vcc
        """
    t += cm(58, 59, 56, 57, 74, 75)
    t += cm(62, 63, 60, 61, 82, 83) + cm(84, 85, 62, 63, 82, 83) + cm(86, 87, 84, 85, 82, 83)
    t += """
    v_and_b32 v52, 31, v0
    v_lshlrev_b32 v52, 2, v52
    v_lshl_add_u32 v53, v51, 8, v52
    v_add_u32 v53, %d, v53
    v_add_u32 v52, %d, v52
    ds_write2_b32 v53, v56, v57 offset0:0 offset1:32
    ds_write_b32 v53, v58 offset:2048
    ds_write_b32 v53, v59 offset:2176
    """ % (POW, TAB)
    for k, r in enumerate((60, 62, 84, 86)):
        t += 'ds_write_b32 v53, v%d offset:%d\nds_write_b32 v53, v%d offset:%d\n' % (r, 4096 + k * 2048, r + 1, 4096 + k * 2048 + 128)
    for idx, r in enumerate([64, 68, 70, 72]):
        t += 'ds_write2_b32 v52, v%d, v%d offset0:%d offset1:%d\n' % (r, r + 1, idx * 64, idx * 64 + 32)
    for idx, r in ((4, 74), (5, 88)):
        t += 'ds_write_b32 v52, v%d offset:%d\nds_write_b32 v52, v%d offset:%d\n' % (r, idx * 256, r + 1, idx * 256 + 128)
    return [l.strip() for l in t.splitlines() if l.strip()]

class Rec:
    def __init__(self, c, name):
        self.c = c; self.th = []; self.name = name; self.n = 0
    def __call__(self, text):
        for l in text.strip('\n').split('\n'):
            l = l.strip()
            if l: self.th.append(lambda l=l: self.c.I(l))
    def blk(self, items):
        def f():
            for k, t in items:
                if k == 'vm': self.c.vmem(t, ('SV',))
                else: self.c.I(t)
        self.th.append(f)
    def ds(self, text, tag): self.th.append(lambda: self.c.ds(text, tag))
    def vm(self, text, tag): self.th.append(lambda: self.c.vmem(text, tag))
    def wl(self, tag):
        self.n += 1; site = (self.name, 'l', self.n)
        self.th.append(lambda: self.c.wait_lg(site, lambda t: t == tag))
    def wv(self, tag):
        self.n += 1; site = (self.name, 'v', self.n)
        self.th.append(lambda: self.c.wait_vm(site, lambda t: t == tag))

def g_work(c):
    R = Rec(c, 'g')
    R("""
    s_lshl_b32 s6, s4, 1
    s_lshr_b32 s7, s3, 1
    s_add_u32 s6, s6, s7
    s_lshl_b32 s6, s6, 6
    s_lshl_b32 s7, s5, 1
    s_add_u32 s6, s6, s7
    s_and_b32 s7, s3, 1
    s_add_u32 s6, s6, s7
    s_lshl_b32 s76, s6, 7
    s_add_u32 s76, s76, %d
    s_add_u32 s7, s76, 0x20000
    v_mov_b32 v21, 0
    s_lshl_b32 s70, s71, 11
    v_lshlrev_b32 v25, 5, v17
    s_lshl_b32 s6, s2, 2
    s_add_u32 s6, s6, s3
    s_lshl_b32 s6, s6, 7
    s_add_u32 s6, s6, %d
    """ % (WS_FL, WS_FL + 0x40000))
    R.vm('buffer_load_dwordx4 v[64:67], v25, s[8:11], s70 offen', ('GL',))
    R.vm('buffer_load_dwordx4 v[68:71], v25, s[8:11], s70 offen offset:16', ('GL',))
    R.vm('buffer_load_dwordx4 v[72:75], v25, s[8:11], s70 offen offset:2048', ('GL',))
    R.vm('buffer_load_dwordx4 v[76:79], v25, s[8:11], s70 offen offset:2064', ('GL',))
    R.vm('global_load_dwordx4 v[80:83], v25, s[62:63]', ('GL',))
    R.vm('global_load_dwordx4 v[84:87], v25, s[62:63] offset:16', ('GL',))
    R.blk([('i', 's_mov_b64 exec, 1'), ('vm', 'buffer_store_dword v21, off, s[20:23], s76 sc1'), ('vm', 'buffer_store_dword v21, off, s[20:23], s7 sc1'), ('vm', 'buffer_store_dword v21, off, s[20:23], s6 sc1'), ('i', 's_mov_b64 exec, -1')])
    first = len(R.th)
    R.wv(('GL',))
    G = 48
    for d in range(8):
        R('v_and_b32 v%d, 0xffff0000, v%d\nv_lshlrev_b32 v%d, 16, v%d' % (G + 3, 80 + d, G + 2, 80 + d))
        for row in range(2):
            xr = 64 + row * 8 + d; a = G + 4 + row * 2; t = G + 8 + row * 2
            R("""
            v_and_b32 v%d, 0xffff0000, v%d
            v_lshlrev_b32 v%d, 16, v%d
            v_pk_mul_f32 v[%d:%d], v[%d:%d], v[%d:%d]
            v_cvt_pk_bf16_f32 v%d, v%d, v%d
            v_and_b32 v%d, 0xffff0000, v%d
            v_lshlrev_b32 v%d, 16, v%d
            """ % (t + 1, xr, t, xr, t, t + 1, t, t + 1, G + 2, G + 3, t, t, t + 1, t + 1, t, t, t))
            if d == 0: R('v_mov_b64 v[%d:%d], v[%d:%d]' % (a, a + 1, t, t + 1))
            else: R('v_pk_add_f32 v[%d:%d], v[%d:%d], v[%d:%d]' % (a, a + 1, a, a + 1, t, t + 1))
    for row in range(2):
        a = G + 4 + row * 2
        R('v_add_f32 v%d, v%d, v%d' % (a, a, a + 1))
    for sh in (1, 2, 4, 8):
        for row in range(2):
            a = G + 4 + row * 2
            R('v_add_f32_dpp v%d, v%d, v%d row_shr:%d row_mask:0xf bank_mask:0xf bound_ctrl:0' % (a, a, a, sh))
    for row in range(2):
        for k in range(4):
            R('v_readlane_b32 s%d, v%d, %d' % (78 + row * 4 + k, G + 4 + row * 2, 15 + 16 * k))
    R("""
    v_mov_b32 v48, s78
    v_add_f32 v48, s79, v48
    v_add_f32 v48, s80, v48
    v_add_f32 v48, s81, v48
    v_mov_b32 v49, s82
    v_add_f32 v49, s83, v49
    v_add_f32 v49, s84, v49
    v_add_f32 v49, s85, v49
    v_cvt_pk_bf16_f32 v48, v48, v49
    v_lshlrev_b32 v49, 16, v48
    v_and_b32 v50, 0xffff0000, v48
    v_mul_f32 v49, 0xbfb8aa3b, v49
    v_mul_f32 v50, 0xbfb8aa3b, v50
    v_exp_f32 v49, v49
    v_exp_f32 v50, v50
    v_add_f32 v49, 1.0, v49
    v_add_f32 v50, 1.0, v50
    v_rcp_f32 v49, v49
    v_rcp_f32 v50, v50
    v_cvt_pk_bf16_f32 v48, v49, v50
    v_lshlrev_b32 v50, 16, v48
    v_and_b32 v51, 0xffff0000, v48
    s_lshl_b32 s6, s71, 2
    s_add_u32 s6, s6, %d
    """ % WS_G)
    R.blk([('i', 's_mov_b64 exec, 1'), ('vm', 'buffer_store_dwordx2 v[50:51], off, s[20:23], s6 sc1'), ('i', 's_mov_b64 exec, -1')])
    return R.th[:first], R.th[first:]
def as_fill(c, lines):
    out = []
    for l in lines:
        if l.startswith('ds_'): out.append(lambda l=l: c.ds(l, ('T',)))
        else: out.append(lambda l=l: c.I(l))
    return out

def run(ths):
    for t in ths: t()

def prologue(c):
    I = c.I
    I('''
    s_cmp_ge_u32 s2, 256
    s_cbranch_scc1 K1_done
    s_load_dwordx16 s[36:51], s[0:1], 0
    s_load_dwordx16 s[52:67], s[0:1], 64
    s_load_dwordx2 s[68:69], s[0:1], 128
    v_lshrrev_b32 v16, 6, v0
    v_and_b32 v17, 63, v0
    v_readfirstlane_b32 s3, v16
    s_lshr_b32 s4, s2, 5
    s_and_b32 s5, s2, 7
    s_lshl_b32 s5, s5, 2
    s_bfe_u32 s6, s2, 0x20003
    s_add_u32 s5, s5, s6
    v_and_b32 v18, 15, v0
    v_bfe_u32 v19, v0, 4, 2
    v_lshrrev_b32 v20, 3, v17
    v_and_b32 v21, 7, v17
    v_xor_b32 v21, v21, v20
    s_lshl_b32 s6, s4, 8
    s_lshl_b32 s7, s3, 6
    s_add_u32 s6, s6, s7
    v_lshl_add_u32 v1, v20, 2, s6
    v_lshlrev_b32 v1, 11, v1
    v_lshl_add_u32 v1, v21, 4, v1
    v_add_u32 v2, 0xfc00, v1
    s_mov_b32 s10, 0x400000
    s_mov_b32 s11, 0x00020000
    s_mov_b32 s14, 0x700000
    s_mov_b32 s15, 0x00020000
    s_mov_b32 s18, 0x200000
    s_mov_b32 s19, 0x00020000
    s_mov_b32 s22, 0x10000000
    s_mov_b32 s23, 0x00020000
    s_mov_b32 s26, 256
    s_mov_b32 s27, 0x00020000
    s_mov_b32 s90, 0x700000
    s_mov_b32 s91, 0x00020000
    s_mov_b32 s28, 0
    s_mov_b32 s29, 4096
    s_mov_b32 s30, 0
    s_mov_b32 s31, 0
    s_mov_b32 s77, 0x%x
    s_lshl_b32 s32, s3, 12
    s_add_u32 s32, s32, %d
    s_lshl_b32 s34, s3, 14
    s_lshl_b32 s35, s3, 11
    s_add_u32 s35, s35, %d
    v_lshrrev_b32 v22, 2, v20
    v_and_b32 v23, 3, v20
    v_lshl_add_u32 v22, v22, 3, v23
    s_and_b32 s7, s3, 1
    s_lshl_b32 s6, s5, 5
    s_lshl_b32 s70, s7, 2
    s_add_u32 s6, s6, s70
    v_add_u32 v22, s6, v22
    v_lshlrev_b32 v22, 11, v22
    v_lshl_add_u32 v10, v21, 4, v22
    v_add_u32 v11, 0x7c00, v10
    s_mul_i32 s72, s5, 224
    s_mul_i32 s70, s7, 28672
    s_add_u32 s72, s72, s70
    s_and_b32 s73, s5, 1
    s_lshl_b32 s73, s73, 1
    s_movk_i32 s74, 4682
    s_movk_i32 s75, 7168
    s_waitcnt lgkmcnt(0)
    s_mov_b32 s8, s36
    s_mov_b32 s9, s37
    s_cmp_ge_u32 s3, 2
    s_cselect_b32 s12, s58, s56
    s_cselect_b32 s13, s59, s57
    s_cselect_b32 s16, s44, s42
    s_cselect_b32 s17, s45, s43
    s_cselect_b32 s86, s48, s46
    s_cselect_b32 s87, s49, s47
    s_mov_b32 s20, s68
    s_mov_b32 s21, s69
    s_mov_b32 s24, s66
    s_mov_b32 s25, s67
    s_mov_b32 s88, s60
    s_mov_b32 s89, s61
    ''' % (OOB, WB, BB))
    stamp(I, 0); stamp_rt(I, 10)
    if PT:
        I('''
        s_lshr_b32 s78, s2, 3
        s_lshl_b32 s78, s78, 2
        s_add_u32 s78, s78, s3
        s_and_b32 s79, s78, 15
        s_lshr_b32 s80, s78, 4
        s_mov_b32 s82, 0x11111112
        s_mov_b32 s83, 0x14144401
        s_lshl_b32 s81, s79, 2
        s_lshr_b64 s[82:83], s[82:83], s81
        s_and_b32 s82, s82, 15
        s_cmp_lt_u32 s80, s82
        s_cselect_b32 s79, s79, 0
        s_cselect_b32 s80, s80, 0
        s_sub_u32 s81, s78, 64
        s_cmp_lt_u32 s81, 20
        s_cselect_b32 s79, 16, s79
        s_cselect_b32 s80, s81, s80
        s_lshl_b32 s79, s79, 3
        s_lshl_b32 s80, s80, 21
        s_load_dwordx2 s[82:83], s[0:1], s79
        ''')
    for l in range(64): assert (l * 37) >> 8 == l // 7
    I("""
    v_mul_u32_u24 v26, 37, v17
    v_lshrrev_b32 v26, 8, v26
    v_mul_u32_u24 v27, 7, v26
    v_sub_u32 v27, v17, v27
    v_lshlrev_b32 v27, 7, v27
    s_lshr_b32 s6, s2, 3
    s_lshl_b32 s6, s6, 1
    s_add_u32 s6, s6, s7
    s_lshl_b32 s6, s6, 1
    s_and_b32 s70, s2, 7
    v_add_u32 v28, s6, v26
    v_mul_u32_u24 v28, s75, v28
    v_add_u32 v28, v28, v27
    s_mul_i32 s71, s70, 896
    v_add_u32 v28, s71, v28
    v_lshrrev_b32 v26, 1, v17
    v_and_b32 v27, 1, v17
    v_lshlrev_b32 v27, 7, v27
    s_lshl_b32 s71, s70, 7
    s_add_u32 s71, s71, s6
    v_add_u32 v29, s71, v26
    v_lshl_add_u32 v29, v29, 11, v27
    s_lshl_b32 s6, s4, 8
    s_lshl_b32 s70, s5, 3
    s_add_u32 s6, s6, s70
    s_lshl_b32 s70, s3, 1
    s_add_u32 s71, s6, s70
    v_add_u32 v30, s71, v26
    v_lshl_add_u32 v30, v30, 11, v27
    s_mov_b32 s94, %d
    s_mov_b32 s95, %d
    s_lshl_b32 s92, s2, 2
    s_add_u32 s92, s92, s3
    s_mul_i32 s92, s92, 7168
    v_lshlrev_b32 v31, 7, v17
    """ % (TS0 * 128, TS0 * 458752))
    for _ in range(TPRE): ptouch(I, wd=False)
    for k in range(8): run(x_dma(c, 0, k))
    if PT:
        I('s_waitcnt lgkmcnt(0)')
        I('s_load_dword s81, s[82:83], s80')
    for n in range(4):
        I('''
        v_add_u32 v20, %d, v17
        v_mul_u32_u24 v21, s74, v20
        v_lshrrev_b32 v21, 16, v21
        v_mul_u32_u24 v22, 14, v21
        v_sub_u32 v22, v20, v22
        v_add_u32 v22, s73, v22
        v_subrev_u32 v23, 14, v22
        v_min_u32 v22, v22, v23
        v_lshrrev_b32 v23, 2, v21
        v_and_b32 v21, 3, v21
        v_lshl_add_u32 v21, v23, 3, v21
        v_mul_u32_u24 v21, s75, v21
        v_lshl_add_u32 v21, v22, 4, v21
        v_add_u32 v21, s72, v21
        v_subrev_u32 v%d, %d, v21
        ''' % (n * 64, 3 + n, n * 1024))
        if n == 3:
            I('v_mov_b32 v20, s77\nv_cmp_gt_u32 vcc, 32, v17\nv_cndmask_b32 v6, v20, v6, vcc')
        run(w_dma(c, 0, n))
    for n in range(2): run(b_dma(c, 0, n))
    for n in range(4): run(w_dma(c, 1, n))
    I('''
    v_and_b32 v24, 31, v0
    v_lshl_add_u32 v24, s5, 5, v24
    v_lshlrev_b32 v24, 1, v24
    ''')
    c.vmem('global_load_ushort v48, v24, s[38:39]', ('S',))
    c.vmem('global_load_ushort v49, v24, s[40:41]', ('S',))
    c.vmem('global_load_ushort v50, v24, s[50:51]', ('S',))
    if not DEFER:
        for k in range(8): run(x_dma(c, 1, k))
        for n in range(4): run(w_dma(c, 2, n))
        for n in range(2): run(b_dma(c, 1, n))
        for n in range(3): run(w_dma(c, 3, n))
    c_addr(I)
    I('''
    s_lshl_b32 s6, s5, 5
    s_lshl_b32 s7, s4, 2
    s_add_u32 s6, s6, s7
    s_add_u32 s6, s6, s3
    s_lshl_b32 s6, s6, 8
    s_add_u32 s6, s6, %d
    v_lshlrev_b32 v26, 4, v17
    v_mov_b32 v24, -1
    v_mov_b32 v25, -1
    v_mov_b32 v22, -1
    v_mov_b32 v23, -1
    s_mov_b64 exec, 0xffff
    ''' % WS_T)
    c.vmem('buffer_store_dwordx4 v[22:25], v26, s[20:23], s6 offen sc1', ('SV',))
    I('''
    s_mov_b64 exec, -1
    s_bfe_u32 s93, s2, 0x20005
    s_add_u32 s93, s93, 1
    s_cmp_eq_u32 s3, 0
    s_cselect_b32 s93, s93, 99
    ''')
    I('''
    v_lshrrev_b32 v26, 2, v18
    v_lshl_add_u32 v26, v19, 2, v26
    v_mul_u32_u24 v26, 224, v26
    v_and_b32 v27, 3, v17
    v_lshl_add_u32 v12, v27, 3, v26
    v_add_u32 v12, %d, v12
    v_and_b32 v26, 7, v17
    v_xor_b32 v26, v26, v19
    v_lshlrev_b32 v26, 4, v26
    v_lshl_add_u32 v26, v18, 7, v26
    v_add_u32 v13, %d, v26
    v_xor_b32 v14, 64, v13
    v_add_u32 v7, s34, v26
    v_xor_b32 v8, 64, v7
    s_mov_b32 s33, 0
    ''' % (WB, BB))
    stamp(I, 3)
    c.wait_vm(('d0',), lambda t: t in (('W', 0), ('B', 0), ('X', 0)))
    I('s_barrier')
    stamp(I, 4)
    for i in range(4): x_read(c, 0, 0, i)()
    for t in range(5): run(w_read(c, 0, t))
    for i in range(4): x_read(c, 0, 1, i)()
    for k in range(4): b_read(c, 0, 0, k)()


RR = lambda jt, i: acc_reg('R', jt, i)[1]
II = lambda jt, i: acc_reg('I', jt, i)[1]
BA, BBk, BC, BD = 32, 48, 64, 80

def ld16(R, base_v, off, dst, tag):
    R.ds('ds_read_b128 v[%d:%d], v%d offset:%d' % (dst, dst + 3, base_v, off), tag)
    R.ds('ds_read_b128 v[%d:%d], v%d offset:%d' % (dst + 4, dst + 7, base_v, off + 16), tag)
    R.ds('ds_read_b128 v[%d:%d], v%d offset:%d' % (dst + 8, dst + 11, base_v, off + 128), tag)
    R.ds('ds_read_b128 v[%d:%d], v%d offset:%d' % (dst + 12, dst + 15, base_v, off + 144), tag)

def s1_pre(c):
    R = Rec(c, 's1p')
    R('v_lshlrev_b32 v20, 5, v19')
    R('v_add_u32 v20, %d, v20' % TAB)
    ld16(R, 20, 0, BA, ('K', 0)); ld16(R, 20, 256, BBk, ('K', 1))
    R("""
    s_lshl_b32 s78, s4, 2
    s_add_u32 s78, s78, s3
    s_lshl_b32 s79, s5, 13
    s_add_u32 s79, s79, %d
    s_lshl_b32 s80, s78, 8
    s_add_u32 s80, s80, s79
    v_lshlrev_b32 v21, 6, v19
    s_sub_u32 s81, s78, 1
    v_sub_u32 v22, s81, v18
    v_subrev_u32 v23, 16, v22
    v_cmp_gt_u32 vcc, 32, v22
    v_lshl_add_u32 v22, v22, 8, v21
    v_mov_b32 v24, s77
    v_cndmask_b32 v22, v24, v22, vcc
    v_cmp_gt_u32 vcc, 32, v23
    v_lshl_add_u32 v23, v23, 8, v21
    s_lshl_b32 s7, s5, 2
    v_cndmask_b32 v23, v24, v23, vcc
    v_cmp_eq_u32 s[82:83], 15, v18
    """ % WS_T)
    R('v_and_b32 v26, 31, v17')
    R('v_lshlrev_b32 v26, 2, v26')
    R.vm('buffer_load_dword v25, v26, s[24:27], 0 offen sc1', ('IF',))
    return R.th

def s1_work(c):
    R = Rec(c, 's1')
    LAM, CA, E, T = BA, BBk, BC, BD
    R.wl(('K', 0))
    cur = None; bufs = [E, T]
    for i in range(1, 4):
        d = bufs[i & 1]
        for jt in range(2):
            for h in range(2):
                o = jt * 4 + 2 * h
                if cur is None: br, bi = RR(jt, 0) + 2 * h, II(jt, 0) + 2 * h
                else: br, bi = cur + o, cur + 8 + o
                cmul_pk(R, d + o, d + 8 + o, LAM + o, LAM + 8 + o, br, bi, RR(jt, i) + 2 * h, II(jt, i) + 2 * h)
        cur = d
    S = E
    for k, sh in enumerate((1, 2, 4, 8)):
        for r in range(16):
            R('v_mov_b32_dpp v%d, v%d row_shr:%d row_mask:0xf bank_mask:0xf bound_ctrl:0' % (S + r, cur + r, sh))
        R.wl(('K', 1 + k))
        for o in range(0, 8, 2):
            cmul_pk(R, cur + o, cur + 8 + o, CA + o, CA + 8 + o, S + o, S + 8 + o, cur + o, cur + 8 + o)
        if k < 3: ld16(R, 20, (2 + k) * 256, CA, ('K', 2 + k))
    R.blk([('i', 's_mov_b64 exec, s[82:83]')] +
          [('vm', 'buffer_store_dwordx4 v[%d:%d], v21, s[20:23], s80 offen offset:%d sc1' % (cur + 4 * k, cur + 4 * k + 3, 16 * k)) for k in range(4)] +
          [('i', 's_mov_b64 exec, -1')])
    for r in range(16):
        R('v_mov_b32_dpp v%d, v%d row_shr:1 row_mask:0xf bank_mask:0xf bound_ctrl:0' % (S + r, cur + r))
    return R.th

def last_stage(c):
    s = 15
    order = [('S', 0, k) for k in range(4)] + [('S', 1, k) for k in range(4)] + [('F', 30, t) for t in range(14)] + [('F', 31, t) for t in range(14)]
    pre = s1_pre(c); work = s1_work(c)
    nF = 28
    per = -(-len(work) // (nF - 2))
    for n, (ty, a, b) in enumerate(order):
        fill = []
        site = ('Z', n)
        if ty == 'S':
            hh, k = a, b
            if hh == 0: fill.append(b_read(c, s, 1, k))
            for _ in range(min(5, len(pre))): fill.append(pre.pop(0))
            if k == 0: c.wait_lg((site, 'bf'), lambda t: t in (('BF', s, hh), ('XF', s, hh)))
            kind, jt = SSM[k]; areg = BH + hh * 16 + k * 4
        else:
            u, t = a, b; hh = u & 1
            if t <= 8: fill += w_read(c, u, t + 5)
            if u == 30 and t >= 10:
                for tt in {10: [], 11: [0], 12: [1, 2], 13: [3, 4]}[t]: fill += w_read(c, 31, tt)
            assert not pre
            if n >= 10:
                for _ in range(min(per, len(work))): fill.append(work.pop(0))
            c.wait_lg((site, 'f'), lambda tg: tg == ('F', u, t))
            kind, jt = FFN[t]; areg = RING + (t % 7) * 4
        nf = len(fill); k2 = 0
        for i in range(4):
            f, bb = acc_reg(kind, jt, i)
            c.I('v_mfma_f32_16x16x32_bf16 %s, %s, %s, %s' % (rr(f, bb), rr('a', areg), rr('a', XSET + 32 + hh * 16 + i * 4), rr(f, bb)))
            take = (nf * (i + 1) + 3) // 4 - k2
            for _ in range(take):
                fill[k2](); k2 += 1
        if ty == 'F' and a == 30 and b == 9:
            c.wait_vm((site, 'd'), lambda t: t == ('W', 31))
            c.I('s_barrier')
    assert not work


def cmul16(P, d, a, b, c=None):
    p = lambda r: 'v[%d:%d]' % (r, r + 1)
    G = range(0, 8, 2)
    for o in G:
        if c is None: P('v_pk_mul_f32 %s, %s, %s' % (p(d(o)[0]), p(a(o)[0]), p(b(o)[0])))
        else: P('v_pk_fma_f32 %s, %s, %s, %s' % (p(d(o)[0]), p(a(o)[0]), p(b(o)[0]), p(c(o)[0])))
    for o in G:
        if c is None: P('v_pk_mul_f32 %s, %s, %s' % (p(d(o)[1]), p(a(o)[0]), p(b(o)[1])))
        else: P('v_pk_fma_f32 %s, %s, %s, %s' % (p(d(o)[1]), p(a(o)[0]), p(b(o)[1]), p(c(o)[1])))
    for o in G:
        P('v_pk_fma_f32 %s, %s, %s, %s neg_lo:[1,0,0] neg_hi:[1,0,0]' % (p(d(o)[0]), p(a(o)[1]), p(b(o)[1]), p(d(o)[0])))
    for o in G:
        P('v_pk_fma_f32 %s, %s, %s, %s' % (p(d(o)[1]), p(a(o)[1]), p(b(o)[0]), p(d(o)[1])))
blk = lambda base: (lambda o: (base + o, base + 8 + o))
uacc = lambda i: (lambda o: (RR(o >> 2, i) + (o & 3), II(o >> 2, i) + (o & 3)))

def ffn_out2(P, items, dst, tmp):
    ch = []
    for n, (jt, i) in enumerate(items):
        for h in range(2):
            ta = tmp + (n * 2 + h) * 4; tb = ta + 2
            seq = []
            srcs = []
            for kind, t in (('G', ta), ('U', tb)):
                f, b = acc_reg(kind, jt, i)
                if f == 'a':
                    seq.append('v_accvgpr_read_b32 v%d, a%d' % (t, b + 2 * h))
                    seq.append('v_accvgpr_read_b32 v%d, a%d' % (t + 1, b + 2 * h + 1))
                    srcs.append(t)
                else: srcs.append(b + 2 * h)
            g0, u0 = srcs
            if k1.EMUL:
                seq += ['v_cvt_pk_bf16_f32 v%d, v%d, v%d' % (ta, g0, g0 + 1),
                        'v_cvt_pk_bf16_f32 v%d, v%d, v%d' % (tb, u0, u0 + 1),
                        'v_pk_max_i16 v%d, v%d, 0' % (ta, ta),
                        'v_and_b32 v%d, 0xffff0000, v%d' % (tb + 1, tb),
                        'v_lshlrev_b32 v%d, 16, v%d' % (tb, tb),
                        'v_and_b32 v%d, 0xffff0000, v%d' % (ta + 1, ta),
                        'v_lshlrev_b32 v%d, 16, v%d' % (ta, ta),
                        'v_pk_mul_f32 v[%d:%d], v[%d:%d], v[%d:%d]' % (ta, ta + 1, ta, ta + 1, tb, tb + 1)]
            else:
                seq += ['v_max_f32 v%d, 0, v%d' % (ta, g0), 'v_max_f32 v%d, 0, v%d' % (ta + 1, g0 + 1),
                        'v_pk_mul_f32 v[%d:%d], v[%d:%d], v[%d:%d]' % (ta, ta + 1, ta, ta + 1, u0, u0 + 1)]
            seq.append('v_cvt_pk_bf16_f32 v%d, v%d, v%d' % (dst + 2 * n + h, ta, ta + 1))
            ch.append(seq)
    m = max(len(x) for x in ch)
    for k in range(m):
        for x in ch:
            kk = k - (m - len(x))
            if kk >= 0: P(x[kk])

NS = 5
ACT = 96
WF = 32
FD = 3
def acc2(tau, jt): return (tau * 8 + jt) * 4
def a_setup(c):
    return [lambda: c.I('s_cmp_gt_i32 s32, 0'), lambda: c.I('s_cselect_b32 s86, s28, s77'),
            lambda: c.I('s_sub_u32 s32, s32, 1'), lambda: c.I('s_add_u32 s28, s28, 8192')]
def w_setup(c):
    return [lambda: c.I('s_cmp_gt_i32 s29, 0'), lambda: c.I('s_cselect_b32 s87, s30, s77'), lambda: c.I('s_cselect_b32 s88, s35, s77'),
            lambda: c.I('s_sub_u32 s29, s29, 1'), lambda: c.I('s_add_u32 s30, s30, s34'), lambda: c.I('s_add_u32 s35, s35, s34')]
def act_loads(c, n):
    return [lambda tau=tau: c.vmem('buffer_load_dwordx4 %s, v%d, s[20:23], s86 offen offset:%d sc1' % (rr('v', ACT + (n % NS) * 32 + tau * 4), 1 + (tau >> 2), (tau & 3) * 1024), ('A', n)) for tau in range(8)]
def w_loads(c, n, role):
    th = []
    for k in range(8):
        def f(k=k):
            if k & 3 == 0: c.I('s_add_u32 m0, s31, %d' % ((n % NS) * 8192 + (k >> 2) * 4096))
            c.vmem('buffer_load_dwordx4 v%d, s[16:19], s%d offen offset:%d %s lds' % (3 + (k & 3), 87 + (k >> 2), (k & 3) * 1024, 'sc1' if role == 'Y' else ''), ('W', n))
        th.append(f)
    return th
def frag_read(c, role, n, jt):
    reg = WF + jt * 4
    so = (n % NS) * 8192
    if role == 'Y':
        return [lambda: c.ds('ds_read_b128 %s, v7 offset:%d' % (rr('v', reg), so + jt * 1024), ('F', n, jt))]
    return [lambda e=e: c.ds('ds_read_b64_tr_b16 v[%d:%d], v%d offset:%d' % (reg + 2 * e, reg + 2 * e + 1, 7 + jt, so + e * 2048), ('F', n, jt)) for e in range(2)]

def step2(c, role, n, first=False):
    site = (role, 'first' if first else n % NS)
    a = act_loads(c, n + NS - 1); w = w_loads(c, n + NS - 1, role)
    vm = []
    for k in range(8): vm += [w[k], a[k]]
    setup = w_setup(c) + a_setup(c)
    c.wait_vm((site, 'a'), lambda t: t == ('A', n))
    for jt in range(8):
        slots = [[] for _ in range(8)]
        jn, nn = jt + FD, n
        if jn >= 8: jn -= 8; nn += 1
        fr = frag_read(c, role, nn, jn)
        if jt + FD == 8:
            slots[0].append(lambda: c.wait_vm((site, 'w'), lambda t: t == ('W', n + 1)))
        for k, f in enumerate(fr): slots[1 + k].append(f)
        if jt == 0:
            for k, f in enumerate(setup): slots[min(k // 2, 5)].append(f)
            slots[6].append(vm[0]); slots[7].append(vm[1])
        else:
            slots[3].append(vm[2 * jt]); slots[6].append(vm[2 * jt + 1])
        c.wait_lg((site, 'f', jt), lambda t: t == ('F', n, jt))
        for tau in range(8):
            b = acc2(tau, jt)
            c.I('v_mfma_f32_16x16x32_bf16 %s, %s, %s, %s' % (rr('a', b), rr('v', WF + jt * 4), rr('v', ACT + (n % NS) * 32 + tau * 4), '0' if first else rr('a', b)))
            for th in slots[tau]: th()

def p2_setup(P):
    k0 = [112, 134, 155, 0, 22, 45, 68, 90]
    cn = [22, 21, 21, 22, 23, 23, 22, 22]
    pk = lambda a: sum(v << (8 * i) for i, v in enumerate(a))
    P('''
    s_bfe_u32 s92, s2, 0x10002
    s_lshl_b32 s92, s92, 3
    s_bfe_u32 s6, s2, 0x30003
    s_add_u32 s92, s92, s6
    s_bfe_u32 s93, s2, 0x10001
    s_lshl_b32 s93, s93, 2
    s_lshr_b32 s6, s2, 6
    s_add_u32 s93, s93, s6
    s_and_b32 s94, s2, 1
    s_lshl_b32 s95, s94, 2
    s_add_u32 s95, s95, s3
    s_lshl_b32 s6, s95, 3
    s_mov_b32 s86, 0x%x
    s_mov_b32 s87, 0x%x
    s_lshr_b64 s[86:87], s[86:87], s6
    s_and_b32 s89, s86, 0xff
    s_mov_b32 s86, 0x%x
    s_mov_b32 s87, 0x%x
    s_lshr_b64 s[86:87], s[86:87], s6
    s_and_b32 s33, s86, 0xff
    s_mov_b32 s32, s33
    s_mov_b32 s29, s33
    s_mov_b32 s12, s64
    s_mov_b32 s13, s65
    s_mov_b32 s14, 0x800000
    v_lshlrev_b32 v84, 4, v17
    s_mul_i32 s6, s92, %d
    v_add_u32 v1, s6, v84
    v_add_u32 v2, 0x1000, v1
    s_lshl_b32 s28, s89, 13
    s_mul_i32 s31, s3, %d
    s_cmp_lt_u32 s95, 3
    s_cbranch_scc1 P2_setY
    ''' % (pk(k0[:4]), pk(k0[4:]), pk(cn[:4]), pk(cn[4:]), NKB * 8192, NS * 8192))
    P('''
    s_mov_b32 s16, s60
    s_mov_b32 s17, s61
    s_mov_b32 s18, 0x700000
    v_lshlrev_b32 v84, 1, v19
    v_xor_b32 v84, v84, v18
    v_xor_b32 v85, 8, v84
    s_lshl_b32 s6, s93, 8
    v_lshl_add_u32 v86, v19, 11, s6
    v_lshl_add_u32 v3, v84, 4, v86
    v_lshl_add_u32 v4, v85, 4, v86
    v_add_u32 v4, 7168, v4
    v_add_u32 v5, 14336, v3
    v_add_u32 v6, 14336, v4
    s_lshl_b32 s30, s89, 16
    s_add_u32 s35, s30, 32768
    s_mov_b32 s34, 65536
    ''')
    c = Ctx(P, {})
    for n in range(3):
        run(w_setup(c)); run(w_loads(c, n, 'B'))
    P('''
    v_lshrrev_b32 v84, 2, v18
    v_lshl_add_u32 v84, v19, 2, v84
    v_and_b32 v85, 7, v84
    v_and_b32 v86, 8, v84
    v_lshl_add_u32 v84, v86, 1, v85
    v_and_b32 v86, 3, v17
    v_lshlrev_b32 v84, 8, v84
    v_lshl_add_u32 v84, v86, 3, v84
    v_add_u32 v84, s31, v84
    v_lshl_add_u32 v7, v85, 5, v84
    s_lshl_b32 s7, s94, 7
    v_xor_b32 v7, s7, v7
    ''')
    for jt in range(1, 8): P('v_xor_b32 v%d, %d, v7' % (7 + jt, jt * 32))
    P('s_branch P2_setdone')
    P.label('P2_setY')
    P('''
    s_mov_b32 s16, s68
    s_mov_b32 s17, s69
    s_mov_b32 s18, 0x10000000
    s_lshl_b32 s6, s93, 19
    s_add_u32 s6, s6, %d
    v_add_u32 v3, s6, v84
    v_mov_b32 v4, v3
    v_mov_b32 v5, v3
    v_mov_b32 v6, v3
    s_sub_u32 s30, s89, 112
    s_lshl_b32 s30, s30, 13
    s_add_u32 s35, s30, 4096
    s_mov_b32 s34, 8192
    v_add_u32 v7, s31, v84
    ''' % WS_C2)
    P.label('P2_setdone')

def epilogue(P):
    LAM, CA, S, T = BA, BBk, BC, BD
    stamp(P, 5)
    P('s_waitcnt lgkmcnt(0)')
    P('s_barrier')
    p2_setup(P)
    P("""
    s_lshl_b32 s6, s4, 1
    s_lshr_b32 s7, s3, 1
    s_add_u32 s6, s6, s7
    s_mul_i32 s6, s6, %d
    s_and_b32 s7, s3, 1
    s_lshl_b32 s7, s7, 12
    s_add_u32 s6, s6, s7
    v_lshl_add_u32 v15, v17, 4, s6
    s_mul_i32 s70, s5, 7
    s_add_u32 s70, s70, 1
    s_lshr_b32 s70, s70, 1
    s_lshl_b32 s70, s70, 13
    s_add_u32 s71, s70, 8192
    s_add_u32 s72, s70, 16384
    s_add_u32 s73, s70, 24576
    s_sub_u32 s74, s70, 7680
    s_bitcmp1_b32 s5, 0
    s_cselect_b32 s73, s74, s73
    v_and_b32 v27, 31, v17
    v_lshrrev_b32 v24, 5, v17
    v_lshl_add_u32 v27, v27, 4, s6
    v_lshl_add_u32 v27, v24, 10, v27
    v_lshl_add_u32 v21, v18, 8, v20
    """ % (NKB * 8192))
    tmp = 80; n = 0
    def outreg():
        nonlocal n
        n += 1
        return 48 + (n % 4) * 4
    F = 160
    TA, TB, WA, WBk = F, F + 16, F + 32, F + 48
    def t_loads():
        for k in range(4):
            P('buffer_load_dwordx4 v[%d:%d], v22, s[20:23], s79 offen offset:%d sc1' % (TA + 4 * k, TA + 4 * k + 3, 16 * k))
        for k in range(4):
            P('buffer_load_dwordx4 v[%d:%d], v23, s[20:23], s79 offen offset:%d sc1' % (TB + 4 * k, TB + 4 * k + 3, 16 * k))
    def fin(dst, va, so, off):
        P('v_permlane32_swap_b32 v%d, v%d' % (dst, dst + 2))
        P('v_permlane32_swap_b32 v%d, v%d' % (dst + 1, dst + 3))
        P('buffer_store_dwordx4 v[%d:%d], v%d, s[20:23], s%d offen offset:%d sc1' % (dst, dst + 3, va, so, off))
    for pr in range(3):
        for i in range(4):
            dst = outreg()
            ffn_out2(P, [(2 * pr, i), (2 * pr + 1, i)], dst, tmp)
            fin(dst, 15, 70 + pr, i * 1024)
        if pr == 1:
            P('s_mov_b32 s75, 0')
            P('s_waitcnt vmcnt(8)')
            P.label('K1_ichk')
            P("""
            v_cmp_ne_u32 vcc, 0xff, v25
            s_add_u32 s75, s75, 1
            s_cmp_eq_u64 vcc, 0
            s_cbranch_scc1 K1_iok
            s_cmp_ge_u32 s75, 0x4000
            s_cbranch_scc1 K1_iok
            s_sleep 4
            buffer_load_dword v25, v26, s[24:27], 0 offen sc1
            s_waitcnt vmcnt(0)
            s_branch K1_ichk
            """)
            P.label('K1_iok')
            t_loads()
            for off, dst in ((6144, WA), (6144 + 4096, WBk)):
                for k, o in enumerate((0, 16, 128, 144)):
                    P('ds_read_b128 v[%d:%d], v21 offset:%d' % (dst + 4 * k, dst + 4 * k + 3, off + o))
    for i in (0, 2):
        dst = outreg()
        ffn_out2(P, [(6, i), (6, i + 1)], dst, tmp)
        fin(dst, 27, 73, i * 1024)
    stamp(P, 7)
    PWr = F + 64; AC = F + 80
    S2 = BD
    for k, o in enumerate((0, 16, 128, 144)):
        P('ds_read_b128 v[%d:%d], v21 offset:%d' % (PWr + 4 * k, PWr + 4 * k + 3, 2048 + o))
        P('ds_read_b128 v[%d:%d], v20 offset:%d' % (S2 + 4 * k, S2 + 4 * k + 3, 5 * 256 + o))
    P('s_mov_b32 s75, 0')
    P('s_waitcnt vmcnt(6)')
    P.label('K1_tchk')
    P('v_max3_u32 v24, v%d, v%d, v%d' % (TA, TA + 1, TA + 2))
    P('v_max3_u32 v25, v%d, v%d, v%d' % (TB, TB + 1, TB + 2))
    for r in range(3, 15, 2):
        P('v_max3_u32 v24, v24, v%d, v%d' % (TA + r, TA + r + 1))
        P('v_max3_u32 v25, v25, v%d, v%d' % (TB + r, TB + r + 1))
    P('v_max3_u32 v24, v24, v%d, v%d' % (TA + 15, TB + 15))
    P('v_max_u32 v24, v24, v25')
    P("""
    v_cmp_eq_u32 vcc, -1, v24
    s_add_u32 s75, s75, 1
    s_cmp_eq_u64 vcc, 0
    s_cbranch_scc1 K1_tok
    s_cmp_ge_u32 s75, 0x4000
    s_cbranch_scc1 K1_tok
    s_sleep 2
    """)
    t_loads()
    P('s_waitcnt vmcnt(0)')
    P('s_branch K1_tchk')
    P.label('K1_tok')
    stamp(P, 8)
    P('s_waitcnt lgkmcnt(0)')
    cmul16(P, blk(AC), blk(WA), blk(TA))
    cmul16(P, blk(AC), blk(WBk), blk(TB), blk(AC))
    for sh in (8, 4, 2, 1):
        for r in range(16):
            P('v_add_f32_dpp v%d, v%d, v%d row_ror:%d row_mask:0xf bank_mask:0xf' % (AC + r, AC + r, AC + r, sh))
    cmul16(P, blk(S), blk(PWr), blk(AC), blk(S))
    P("""
    s_add_u32 s70, s5, 112
    s_lshl_b32 s70, s70, 13
    s_add_u32 s71, s70, 262144
    v_mov_b32 v24, 1
    """)
    for i in range(4):
        O = TA if (i & 1) else TB
        cmul16(P, uacc(i), blk(LAM), blk(S) if i == 0 else uacc(i - 1), uacc(i))
        cmul16(P, blk(O), blk(S2), uacc(i))
        d = WA if (i & 1) else WBk
        for k in range(4):
            P('v_cvt_pk_bf16_f32 v%d, v%d, v%d' % (d + k, O + 2 * k, O + 2 * k + 1))
        for k in range(4):
            P('v_cvt_pk_bf16_f32 v%d, -v%d, -v%d' % (d + 4 + k, O + 8 + 2 * k, O + 8 + 2 * k + 1))
        if i == 0:
            P('s_waitcnt vmcnt(0)\ns_mov_b64 exec, 1\nbuffer_store_dword v24, off, s[20:23], s76 sc1\ns_mov_b64 exec, -1')
        P('buffer_store_dwordx4 v[%d:%d], v15, s[20:23], s70 offen offset:%d sc1' % (d, d + 3, i * 1024))
        P('buffer_store_dwordx4 v[%d:%d], v15, s[20:23], s71 offen offset:%d sc1' % (d + 4, d + 7, i * 1024))
    stamp(P, 9)

def pk_bc(op, d, a, f, cc=None):
    base = f & ~1; hi = f & 1
    if cc is None:
        return 'v_pk_mul_f32 v[%d:%d], v[%d:%d], v[%d:%d] op_sel:[0,%d] op_sel_hi:[1,%d]' % (d, d + 1, a, a + 1, base, base + 1, hi, hi)
    return 'v_pk_fma_f32 v[%d:%d], v[%d:%d], v[%d:%d], v[%d:%d] op_sel:[0,%d,0] op_sel_hi:[1,%d,1]' % (d, d + 1, a, a + 1, base, base + 1, cc, cc + 1, hi, hi)
def FR(src, k): return 20 + src * 2 + k
XD = 64

def p2_enter(P):
    P('''
    s_lshl_b32 s6, s92, 7
    s_lshr_b32 s7, s3, 1
    s_lshl_b32 s7, s7, 6
    s_add_u32 s6, s6, s7
    s_and_b32 s7, s3, 1
    s_lshl_b32 s7, s7, 1
    s_add_u32 s6, s6, s7
    v_lshl_add_u32 v20, v18, 2, s6
    s_lshl_b32 s7, s93, 7
    s_lshl_b32 s6, s94, 6
    s_add_u32 s7, s7, s6
    v_lshl_add_u32 v21, v19, 2, s7
    v_lshlrev_b32 v28, 10, v20
    v_add_u32 v28, v28, v21
    v_lshlrev_b32 v23, 1, v28
    v_lshlrev_b32 v28, 2, v28
    v_add_u32 v29, 0x1000, v28
    v_lshlrev_b32 v22, 1, v21
    v_lshlrev_b32 v25, 2, v20
    s_mov_b32 s6, %d
    v_lshlrev_b32 v15, 4, v17
    v_lshlrev_b32 v26, 7, v17
    ''' % WS_G)
    P('buffer_load_dwordx2 v[30:31], v25, s[20:23], s6 offen sc1')
    for k in range(2):
        for jt in range(4):
            P('buffer_load_dwordx2 v[%d:%d], v23, s[8:11], 0 offen offset:%d' % (32 + (k * 4 + jt) * 2, 33 + (k * 4 + jt) * 2, k * 2048 + jt * 32))
    for jt in range(4):
        P('global_load_dwordx2 v[%d:%d], v22, s[52:53] offset:%d' % (48 + jt * 2, 49 + jt * 2, jt * 32))
    P('''
    s_lshl_b32 s70, s92, 13
    s_add_u32 s70, s70, %d
    s_lshl_b32 s71, s93, 14
    s_add_u32 s71, s71, %d
    s_add_u32 s72, s71, 8192
    s_add_u32 s73, s70, 0x20000
    s_cmp_lt_u32 s95, 3
    s_cselect_b32 s71, s71, s70
    s_cselect_b32 s72, s72, s70
    s_cselect_b32 s70, s73, s70
    s_add_u32 s7, s76, 0x20000
    s_waitcnt vmcnt(13)
    s_mov_b64 exec, 1
    buffer_store_dword v24, off, s[20:23], s7 sc1
    s_mov_b64 exec, -1
    s_mov_b32 s75, 0
    s_barrier
    ''' % (WS_FL, WS_FL))

def p2_poll(P, role):
    L = 'P2_poll' + role
    P.label(L)
    P('buffer_load_dword v56, v26, s[20:23], s70 offen sc1')
    if role == 'Y':
        P('buffer_load_dword v57, v26, s[20:23], s71 offen sc1')
        P('buffer_load_dword v58, v26, s[20:23], s72 offen sc1')
    P('s_waitcnt vmcnt(0)')
    if role == 'Y':
        P('v_and_b32 v56, v56, v57\nv_and_b32 v56, v56, v58')
    P('''
    v_cmp_ne_u32 vcc, 1, v56
    s_add_u32 s75, s75, 1
    s_cmp_eq_u64 vcc, 0
    s_cbranch_scc1 %sok
    s_cmp_ge_u32 s75, 0x4000
    s_cbranch_scc1 %sok
    s_sleep 2
    s_branch %s
    ''' % (L, L, L))
    P.label(L + 'ok')

def e0_math(I):
    I('''
    v_sub_f32 v56, 1.0, v30
    v_sub_f32 v57, 1.0, v31
    v_cvt_pk_bf16_f32 v56, v56, v57
    v_and_b32 v57, 0xffff0000, v56
    v_lshlrev_b32 v56, 16, v56
    ''')
    for src in range(4):
        if src == 0: I('s_mov_b32 s6, s95')
        else:
            sl = src - 1
            I('s_cmp_le_u32 s3, %d\ns_cselect_b32 s6, %d, %d\ns_lshl_b32 s7, s94, 2\ns_add_u32 s6, s6, s7' % (sl, sl + 1, sl))
        I('s_cmp_lt_u32 s6, 3\ns_cselect_b64 vcc, -1, 0')
        I('v_cndmask_b32 v%d, v56, v30, vcc\nv_cndmask_b32 v%d, v57, v31, vcc' % (FR(src, 0), FR(src, 1)))
    for jt in range(4):
        for h in range(2):
            I('v_and_b32 v59, 0xffff0000, v%d\nv_lshlrev_b32 v58, 16, v%d' % (48 + jt * 2 + h, 48 + jt * 2 + h))
            seqs = []
            for k in range(2):
                t = k * 4 + jt; xs = 32 + t * 2 + h; a = XD + t * 4 + 2 * h
                seqs.append(['v_lshlrev_b32 v%d, 16, v%d' % (a, xs), 'v_and_b32 v%d, 0xffff0000, v%d' % (a + 1, xs),
                             'v_pk_mul_f32 v[%d:%d], v[%d:%d], v[58:59]' % (a, a + 1, a, a + 1),
                             'v_cvt_pk_bf16_f32 v%d, v%d, v%d' % (a, a, a + 1),
                             'v_and_b32 v%d, 0xffff0000, v%d' % (a + 1, a), 'v_lshlrev_b32 v%d, 16, v%d' % (a, a),
                             pk_bc('mul', a, a, 30 + k)])
            for x, y in zip(*seqs): I(x); I(y)

def p2_prologue(c, role):
    if role == 'Y':
        for n in range(3):
            run(w_setup(c)); run(w_loads(c, n, role)); run(a_setup(c)); run(act_loads(c, n))
    else:
        for n in range(3):
            run(a_setup(c)); run(act_loads(c, n))
    run(w_setup(c)); run(w_loads(c, 3, role)); run(a_setup(c)); run(act_loads(c, 3))
    e0_math(c.I)
    c.wait_vm((role, 'w0'), lambda t: t == ('W', 0))
    for jt in range(FD): run(frag_read(c, role, 0, jt))

def slab_writes(P, jt0, tag, Qs, slot_of, own=None):
    pass

def p2_final(P):
    ZS, ZK, TMP = 96, XD, 160
    def wr(Q, jt0):
        for t in range(8):
            P('ds_write_b128 v61, %s offset:%d' % (rr('a', acc2(2 * Q + (t >> 2), jt0 + (t & 3))), t * 1024))
    def own(Q, jt0, dst, accum):
        for t in range(8):
            b = acc2(2 * Q + (t >> 2), jt0 + (t & 3))
            for r in range(4): P('v_accvgpr_read_b32 v%d, a%d' % (128 + t * 4 + r, b + r))
    P('s_waitcnt vmcnt(0) lgkmcnt(0)')
    P('v_add_u32 v60, s31, v15')
    for Q in range(4):
        P('s_cmp_eq_u32 s3, %d\ns_cbranch_scc1 P2_so%d' % (Q, Q))
        P('s_cmp_lt_u32 s3, %d\ns_cselect_b32 s6, %d, %d\ns_lshl_b32 s6, s6, 13' % (Q, max(Q - 1, 0), min(Q, 2)))
        P('v_add_u32 v61, s6, v60')
        wr(Q, 4)
        P('s_branch P2_sn%d' % Q)
        P.label('P2_so%d' % Q)
        own(Q, 4, ZS, False)
        P.label('P2_sn%d' % Q)
    for sl in range(3):
        P('''
        s_cmp_le_u32 s3, %d
        s_cselect_b32 s6, %d, %d
        s_cselect_b32 s7, 0, 1
        s_mul_i32 s6, s6, 40960
        s_sub_u32 s7, s3, s7
        s_lshl_b32 s%d, s7, 13
        s_add_u32 s%d, s%d, s6
        s_add_u32 s7, s7, 3
        s_cmp_eq_u32 s7, 5
        s_cselect_b32 s7, 0, s7
        s_lshl_b32 s%d, s7, 13
        s_add_u32 s%d, s%d, s6
        ''' % (sl, sl + 1, sl, 70 + sl, 70 + sl, 70 + sl, 73 + sl, 73 + sl, 73 + sl))
    for t in range(8):
        for h in range(2):
            r = t * 4 + 2 * h
            P(pk_bc('mul', ZS + r, 128 + r, FR(0, t >> 2)))
    P('''
    s_lshl_b32 s6, s2, 2
    s_add_u32 s6, s6, s3
    s_lshl_b32 s78, s6, 13
    s_add_u32 s78, s78, %d
    s_add_u32 s79, s78, 4096
    s_xor_b32 s80, s78, 0x8000
    s_add_u32 s81, s80, 4096
    s_lshl_b32 s82, s6, 7
    s_add_u32 s82, s82, %d
    s_xor_b32 s83, s82, 0x200
    s_waitcnt lgkmcnt(0)
    s_barrier
    ''' % (WS_XB, WS_FL + 0x40000))
    def rd(s0, dst):
        for sl in range(3):
            P('v_add_u32 v%d, s%d, v15' % (56 + sl, s0 + sl))
        for t in range(8):
            for sl in range(3):
                P('ds_read_b128 v[%d:%d], v%d offset:%d' % (TMP + sl * 32 + t * 4, TMP + sl * 32 + t * 4 + 3, 56 + sl, t * 1024))
        for t in range(8):
            n = 21 - 3 * t
            P('s_waitcnt lgkmcnt(%d)' % min(n, 14))
            for sl in range(3):
                for h in range(2):
                    r = t * 4 + 2 * h
                    P(pk_bc('fma', dst + r, TMP + sl * 32 + r, FR(1 + sl, t >> 2), dst + r))
            if dst == ZS:
                P('buffer_store_dwordx4 v[%d:%d], v15, s[20:23], s%d offen offset:%d sc1' % (ZS + t * 4, ZS + t * 4 + 3, 78 + (t >> 2), (t & 3) * 1024))
    rd(70, ZS)
    stamp(P, 16)
    for Q in range(4):
        P('s_cmp_eq_u32 s3, %d\ns_cbranch_scc1 P2_ko%d' % (Q, Q))
        if Q == 3:
            P('s_branch P2_kn3')
        else:
            if Q == 2: P('s_cmp_eq_u32 s3, 3\ns_cbranch_scc1 P2_kn2')
            P('s_cmp_lt_u32 s3, %d\ns_cselect_b32 s6, %d, %d\ns_lshl_b32 s6, s6, 13' % (Q, 3 + max(Q - 1, 0), 3 + min(Q, 1)))
            P('v_add_u32 v61, s6, v60')
            wr(Q, 0)
            P('s_branch P2_kn%d' % Q)
        P.label('P2_ko%d' % Q)
        own(Q, 0, ZK, True)
        P.label('P2_kn%d' % Q)
    P('v_mov_b32 v59, 1')
    P('s_waitcnt vmcnt(0)\ns_mov_b64 exec, 1\nbuffer_store_dword v59, off, s[20:23], s82 sc1\ns_mov_b64 exec, -1')
    P('s_barrier')
    P('v_mov_b32 v61, v60')
    P('s_cmp_eq_u32 s3, 3\ns_cbranch_scc1 P2_l2')
    wr(3, 0)
    P('s_branch P2_l3')
    P.label('P2_l2')
    wr(2, 0)
    P.label('P2_l3')
    def xb_loads():
        for t in range(8):
            P('buffer_load_dwordx4 v[%d:%d], v15, s[20:23], s%d offen offset:%d sc1' % (ZS + t * 4, ZS + t * 4 + 3, 80 + (t >> 2), (t & 3) * 1024))
    for t in range(8):
        for h in range(2):
            r = t * 4 + 2 * h
            P(pk_bc('fma', ZK + r, 128 + r, FR(0, t >> 2), ZK + r))
    P('s_waitcnt lgkmcnt(0)')
    P('s_barrier')
    P('buffer_load_dword v59, off, s[20:23], s83 sc1')
    rd(73, ZK)
    stamp(P, 17)
    P('s_mov_b32 s75, 0')
    P.label('P2_xchk')
    P('''
    s_waitcnt vmcnt(0)
    v_readfirstlane_b32 s6, v59
    s_add_u32 s75, s75, 1
    s_cmp_eq_u32 s6, 1
    s_cbranch_scc1 P2_xok
    s_cmp_ge_u32 s75, 0x4000
    s_cbranch_scc1 P2_xok
    s_sleep 1
    buffer_load_dword v59, off, s[20:23], s83 sc1
    s_branch P2_xchk
    ''')
    P.label('P2_xok')
    xb_loads()
    stamp(P, 18)
    for t in range(8):
        P('s_waitcnt vmcnt(7)')
        for h in range(2):
            r = t * 4 + 2 * h
            P('v_pk_add_f32 v[%d:%d], v[%d:%d], v[%d:%d]' % (ZK + r, ZK + r + 1, ZK + r, ZK + r + 1, ZS + r, ZS + r + 1))
        P('buffer_store_dwordx4 v[%d:%d], v%d, s[12:15], 0 offen offset:%d %s' % (ZK + t * 4, ZK + t * 4 + 3, 29 if t >= 4 else 28, (t & 3) * 64, os.environ.get('OMOD', '')))

def site_of(u):
    if u < 4: return ('F', u)
    if u >= 28: return ('E', u)
    return ('L', u % 4)

def body(c, emit):
    P = c.P
    prologue(c)
    extra = [lambda: c.wait_vm(('s',), lambda t: t == ('S',))] + as_fill(c, tables_text())
    g1, g2 = g_work(c)
    substep(c, 0, site_of(0), extra=extra, first=True)
    substep(c, 1, site_of(1), extra=extra)
    extra += g1
    substep(c, 2, site_of(2), extra=extra, room_extra=1)
    assert not extra, len(extra)
    extra += g2
    substep(c, 3, site_of(3), extra=extra, room_extra=6)
    assert not extra, len(extra)
    if emit:
        stamp(P, 1)
        P('.p2align 6')
        P.label('K1_loop')
        P('s_cmp_eq_u32 s33, s93\ns_cbranch_scc1 K1_t1')
        P.label('K1_tback')
        c_loads(P)
        if TOUCH: ptouch(P)
        for u in range(4, 8): substep(c, u, site_of(u))
        P("""
        s_add_u32 s33, s33, 1
        s_cmp_lt_u32 s33, 6
        s_cbranch_scc1 K1_loop
        """)
    else:
        for u in range(4, 28): substep(c, u, site_of(u))
    stamp(c.I, 2)
    substep(c, 28, site_of(28), last=1)
    substep(c, 29, site_of(29), last=2, extra=c_stores(c))
    stamp(c.I, 6)
    last_stage(c)

KNAME = 'gated_mix__ssm_conv_s5__glu_gated_reglu__prompt_kernel'
def gen():
    waits = {}
    body(Ctx(None, waits), False)
    for role in 'YB':
        c = Ctx(None, waits)
        p2_prologue(c, role)
        step2(c, role, 0, first=True)
        for n in range(1, 25): step2(c, role, n)
    P = Prog()
    c = Ctx(P, waits)
    P('.globl %s\n.p2align 8\n.type %s,@function' % (KNAME, KNAME))
    P.label(KNAME)
    body(c, True)
    epilogue(P)
    p2_enter(P)
    stamp(P, 12)
    P('s_cmp_lt_u32 s95, 3\ns_cbranch_scc1 P2_roleY')
    for role in 'BY':
        if role == 'Y': P.label('P2_roleY')
        p2_poll(P, role)
        stamp(P, 13)
        p2_prologue(c, role)
        step2(c, role, 0, first=True)
        P('s_sub_u32 s33, s33, 1')
        P('.p2align 6')
        P.label('P2_loop' + role)
        for n in range(1, NS + 1):
            step2(c, role, n)
            P('s_sub_u32 s33, s33, 1')
            P('s_cmp_eq_u32 s33, 0')
            if n < NS: P('s_cbranch_scc1 P2_end')
            else: P('s_cbranch_scc0 P2_loop' + role)
        if role == 'B': P('s_branch P2_end')
    P.label('P2_end')
    stamp(P, 15)
    P('s_nop 7')
    p2_final(P)
    stamp(P, 19); stamp_rt(P, 11)
    P('s_waitcnt vmcnt(0)')
    stamp(P, 20)
    stamp_out(P, 0)
    P.label('K1_done')
    P('s_endpgm')
    P.label('K1_t1')
    P("""
    s_lshl_b32 s6, 1, s4
    v_mov_b32 v26, s6
    s_lshl_b32 s7, s5, 2
    s_mov_b64 exec, 1
    buffer_atomic_add v26, off, s[24:27], s7 sc1
    s_mov_b64 exec, -1
    s_branch K1_tback
    """)
    return P.text(), waits

if __name__ == '__main__':
    import sys
    NAME = 'gated_mix__ssm_conv_s5__glu_gated_reglu__prompt'
    ref = open('cdna_kernels/%s.s.ref' % NAME).read().splitlines()
    hdr = [l for l in ref if l.startswith(';') and '@launch' not in l]
    t, w = gen()
    out = '\n'.join(hdr) + '\n; @launch grid=(256,1,1) block=(256,1,1) lds=%d\n' % K1_LDS
    out += '.amdgcn_target "amdgcn-amd-amdhsa--gfx950"\n.text\n' + t
    out += '.section .rodata,"a"\n.p2align 6\n' + K1_DESC.replace('k1_kernel', KNAME)
    dst = sys.argv[1] if len(sys.argv) > 1 else 'cdna_kernels/%s.s' % NAME
    open(dst, 'w').write(out)
    print('wrote', dst, len(out))
```

```python
import os
from asmlib import Prog, Counter
import k1
from k1 import Ctx, rr, cmul_pk, ffn_out, acc_reg, ACC_V0, stamp, stamp_rt, stamp_out, NKB, WS_G, WS_T, WS_C2, WS_FL, WS_XB, K1_DESC

XB = 0
WB = 65536
BB = 131072
TAB = 147456
POW = TAB + 2048
WG64 = TAB + 6144
K1_LDS = 163840
assert TAB == k1.TAB
XSET = 128
RING = 192
BH = 220
OOB = 0x70000000
EXP = int(os.environ.get('EXP', '0'))
TS0 = int(os.environ.get('TS0', '4'))
TPRE = int(os.environ.get('TPRE', '1'))
DEFER = int(os.environ.get('DEFER', '1'))
NTW = 'nt' if int(os.environ.get('NTW', '1')) else ''
NTB = 'nt' if int(os.environ.get('NTB', '1')) else ''
NTC = 'nt' if int(os.environ.get('NTC', '1')) else ''
NTT = 'nt' if int(os.environ.get('NTT', os.environ.get('NTW', '1'))) else ''
NTX = 'nt' if int(os.environ.get('NTX', '0')) else ''
WDT = int(os.environ.get('WDT', '1'))
PT = int(os.environ.get('PT', '1'))
TOUCH = int(os.environ.get('TOUCH', '1'))

FFN = []
for jt in range(7): FFN += [('G', jt), ('U', jt)]
SSM = [('R', 0), ('I', 0), ('R', 1), ('I', 1)]

def w_read(c, u, t):
    kind, jt = FFN[t]
    slot = RING + (t % 7) * 4
    th = []
    for e in range(2):
        off = (u % 4) * 16384 + ((kind == 'U') * 2 + e) * 4096 + jt * 32
        th.append(lambda off=off, e=e: c.ds('ds_read_b64_tr_b16 a[%d:%d], v12 offset:%d' % (slot + 2 * e, slot + 2 * e + 1, off), ('F', u, t)))
    return th
def b_read(c, s, hh, k):
    kind, jt = SSM[k]
    off = (s % 2) * 8192 + ((kind == 'I') * 32 + jt * 16) * 128
    return lambda: c.ds('ds_read_b128 %s, v%d offset:%d' % (rr('a', BH + hh * 16 + k * 4), 13 + hh, off), ('BF', s, hh))
def x_read(c, s, hh, i):
    off = (s % 2) * 8192 + i * 2048
    return lambda: c.ds('ds_read_b128 %s, v%d offset:%d' % (rr('a', XSET + (s % 2) * 32 + hh * 16 + i * 4), 7 + hh, off), ('XF', s, hh))
def w_dma(c, u, n):
    th = []
    th.append(lambda: c.I('s_add_u32 m0, s32, %d' % ((u % 4) * 16384)))
    th.append(lambda: c.vmem('buffer_load_dwordx4 v%d, s[12:15], s30 offen offset:%d %s lds' % (3 + n, n * 1024, NTW), ('W', u)))
    if n == 3: th.append(lambda: c.I('s_add_u32 s30, s30, 229376'))
    return th
def x_dma(c, s, k):
    th = []
    th.append(lambda: c.I('s_add_u32 m0, s34, %d' % ((s % 2) * 8192 + (k >> 2) * 4096)))
    th.append(lambda: c.vmem('buffer_load_dwordx4 v%d, s[8:11], s%d offen offset:%d %s lds' % (1 + (k & 1), 28 + (k >> 2), (k & 3) * 1024, NTX), ('X', s)))
    if k == 7:
        th.append(lambda: c.I('s_add_u32 s28, s28, 128'))
        th.append(lambda: c.I('s_cmp_lt_u32 s28, 2048'))
        th.append(lambda: c.I('s_cselect_b32 s28, s28, s77'))
        th.append(lambda: c.I('s_add_u32 s29, s28, 4096'))
    return th
def b_dma(c, s, n):
    th = []
    th.append(lambda: c.I('s_add_u32 m0, s35, %d' % ((s % 2) * 8192)))
    th.append(lambda: c.vmem('buffer_load_dwordx4 v%d, s[16:19], s31 offen offset:%d %s lds' % (10 + n, n * 1024, NTB), ('B', s)))
    if n == 1:
        th.append(lambda: c.I('s_add_u32 s31, s31, 128'))
        th.append(lambda: c.I('s_cmp_lt_u32 s31, 2048'))
        th.append(lambda: c.I('s_cselect_b32 s31, s31, s77'))
    return th

def substep(c, u, site, extra=None, first=False, last=0, room_extra=0):
    hh = u & 1; s = u >> 1
    for j in range(18):
        fill = []
        if j <= 8: fill += w_read(c, u, j + 5)
        if 12 <= j <= 16 and u != 31: fill += w_read(c, u + 1, j - 12)
        if u == 31: pass
        elif hh == 1:
            if j == 9: fill.append(lambda: c.wait_vm((site, 'x'), lambda t: t == ('X', s + 1)))
            if j in (9, 10): fill += [x_read(c, s + 1, 0, (j - 9) * 2 + k) for k in range(2)]
            if j in (14, 15, 16, 17): fill.append(x_read(c, s + 1, 1, j - 14))
            if j in (12, 13): fill += [b_read(c, s + 1, 0, (j - 12) * 2 + k) for k in range(2)]
        else:
            if j in (0, 2, 4, 6): fill.append(b_read(c, s, 1, j // 2))
        d = []
        if j in (13, 15, 17): d = w_dma(c, u + 4, (j - 13) // 2)
        if j == 1: d = w_dma(c, u + 3, 3)
        if j in (3, 5, 7, 9): d = x_dma(c, s + 2, hh * 4 + (j - 3) // 2)
        if hh == 0 and j in (14, 16): d = b_dma(c, s + 2, (j - 14) // 2)
        if last == 2 or (last == 1 and j != 1): d = []
        if DEFER and u == 0:
            seq = [('x', 1, k) for k in range(8)] + [('w', 2, n) for n in range(4)] + [('b', 1, n) for n in range(2)] + [('w', 3, n) for n in range(4)] + [('x', 2, k) for k in range(4)]
            if j <= 10:
                d = []
                for ty, a, b in seq[2 * j:2 * j + 2]:
                    d += {'x': x_dma, 'w': w_dma, 'b': b_dma}[ty](c, a, b)
        fill = d[:1] + fill + d[1:]
        if extra:
            room = max(0, 8 - 1 - len(fill)) + room_extra
            for _ in range(min(room, len(extra))): fill.append(extra.pop(0))
        if j == 0: c.wait_lg((site, 'xf'), lambda t: t in (('XF', s, hh), ('F', u, 0)))
        elif j < 14: c.wait_lg((site, 'f', j), lambda t: t == ('F', u, j))
        elif j == 14: c.wait_lg((site, 'bf'), lambda t: t == ('BF', s, hh))
        if j < 14:
            kind, jt = FFN[j]; a = RING + (j % 7) * 4
        else:
            kind, jt = SSM[j - 14]; a = BH + hh * 16 + (j - 14) * 4
        nf = len(fill); k = 0
        for i in range(4):
            f, b = acc_reg(kind, jt, i)
            c.I('v_mfma_f32_16x16x32_bf16 %s, %s, %s, %s' % (rr(f, b), rr('a', a), rr('a', XSET + (s % 2) * 32 + hh * 16 + i * 4), '0' if first else rr(f, b)))
            take = (nf * (i + 1) + 3) // 4 - k
            for _ in range(take):
                fill[k](); k += 1
        if j == 11 and u != 31:
            if hh == 1: c.wait_vm((site, 'd'), lambda t: t in (('W', u + 1), ('B', s + 1)))
            else: c.wait_vm((site, 'd'), lambda t: t == ('W', u + 1))
            c.I('s_waitcnt lgkmcnt(0)')
            c.lg.q = []
            c.I('s_barrier')

def touch(I, batch):
    ks = 2 + 7 * batch
    I('''
    s_mov_b32 s6, %d
    s_mov_b32 s7, %d
    s_mov_b32 exec_hi, 0x1ffff
    buffer_load_dword a255, v28, s[12:15], s6 offen
    s_mov_b64 exec, 0x3fff
    buffer_load_dword a255, v29, s[16:19], s7 offen
    buffer_load_dword a255, v30, s[8:11], s7 offen
    s_mov_b64 exec, -1
    ''' % (ks * 64 * 7168, ks * 128))

def touch_wd(I):
    I('''
    s_lshl_b32 s6, s2, 2
    s_add_u32 s6, s6, s3
    s_mul_i32 s6, s6, 7168
    v_lshlrev_b32 v26, 7, v17
    s_mov_b32 exec_hi, 0xffffff
    buffer_load_dword a255, v26, s[88:91], s6 offen
    s_mov_b64 exec, -1
    ''')


def c_addr(I):
    I("""
    s_and_b32 s7, s3, 1
    s_lshl_b32 s6, s4, 7
    s_lshl_b32 s70, s7, 6
    s_add_u32 s6, s6, s70
    v_add_u32 v9, s6, v18
    v_lshlrev_b32 v9, 11, v9
    v_lshl_add_u32 v9, v19, 4, v9
    s_lshl_b32 s6, s5, 6
    v_add_u32 v9, s6, v9
    """)

def c_loads(P):
    for k in range(4):
        P('s_cmp_lg_u32 s33, %d' % (k + 1))
        P('s_cbranch_scc1 K1_c%d' % k)
        P('global_load_dwordx4 v[%d:%d], v9, s[86:87] %s' % (32 + 4 * k, 35 + 4 * k, NTC))
        P('v_add_u32 v9, 0x8000, v9')
        P.label('K1_c%d' % k)

def c_stores(c):
    R = Rec(c, 'cs')
    R("""
    s_lshl_b32 s6, s4, 6
    s_lshr_b32 s7, s3, 1
    s_lshl_b32 s7, s7, 5
    s_add_u32 s6, s6, s7
    s_add_u32 s6, s6, s5
    s_lshl_b32 s6, s6, 13
    s_and_b32 s7, s3, 1
    s_lshl_b32 s7, s7, 12
    s_add_u32 s6, s6, s7
    s_add_u32 s6, s6, %d
    v_lshlrev_b32 v20, 4, v17
    """ % WS_C2)
    for k in range(4):
        R.vm('buffer_store_dwordx4 v[%d:%d], v20, s[20:23], s6 offen offset:%d sc1' % (32 + 4 * k, 35 + 4 * k, k * 1024), ('SV',))
    return R.th

def ptouch(I, wd=True):
    I("""
    s_mov_b64 exec, 0x3fff
    buffer_load_dword a255, v28, s[12:15], s95 offen %s
    s_mov_b64 exec, 0xf
    buffer_load_dword a255, v29, s[16:19], s94 offen %s
    buffer_load_dword a255, v30, s[8:11], s94 offen
    """ % (NTT, NTB))
    if wd and WDT: I("""
    s_mov_b64 exec, 0x3ff
    buffer_load_dword a255, v31, s[88:91], s92 offen
    s_add_u32 s92, s92, 1280
    """)
    I("""
    s_mov_b64 exec, -1
    s_add_u32 s95, s95, 917504
    s_add_u32 s94, s94, 256
    s_cmp_lt_u32 s94, 2048
    s_cselect_b32 s94, s94, s77
    """)

def tables_text():
    t = """
    v_lshlrev_b32 v48, 16, v48
    v_lshlrev_b32 v49, 16, v49
    v_lshlrev_b32 v50, 16, v50
    v_mul_f32 v50, 0x3fb8aa3b, v50
    v_exp_f32 v50, v50
    v_cvt_pk_bf16_f32 v50, v50, v50
    v_lshlrev_b32 v50, 16, v50
    v_mul_f32 v51, v50, v48
    v_mul_f32 v52, v50, v49
    v_mul_f32 v51, 0x3fb8aa3b, v51
    v_exp_f32 v51, v51
    v_mul_f32 v52, 0.15915494, v52
    v_fract_f32 v52, v52
    v_cos_f32 v53, v52
    v_sin_f32 v54, v52
    v_mul_f32 v64, v51, v53
    v_mul_f32 v65, v51, v54
    v_add_f32 v51, -1.0, v64
    v_mul_f32 v52, v48, v48
    v_fmac_f32 v52, v49, v49
    v_rcp_f32 v53, v52
    v_mul_f32 v54, v51, v48
    v_fmac_f32 v54, v65, v49
    v_mul_f32 v55, v65, v48
    v_fma_f32 v55, -v51, v49, v55
    v_fma_f32 v52, -v52, v53, 2.0
    v_mul_f32 v53, v53, v52
    v_add_f32 v53, v53, v53
    v_mul_f32 v88, v54, v53
    v_mul_f32 v89, v55, v53
    """
    for k in range(9):
        a = 64 + 2 * k; d = a + 2
        t += """
        v_mul_f32 v%d, v%d, v%d
        v_fma_f32 v%d, -v%d, v%d, v%d
        v_mul_f32 v%d, v%d, v%d
        v_add_f32 v%d, v%d, v%d
        """ % (d, a, a, d, a + 1, a + 1, d, d + 1, a, a + 1, d + 1, d + 1, d + 1)
    t += """
    v_lshrrev_b32 v51, 5, v0
    v_mov_b32 v56, 1.0
    v_mov_b32 v57, 0
    v_mov_b32 v60, 1.0
    v_mov_b32 v61, 0
    """
    def cm(dr, di, ar, ai, br, bi):
        return """
        v_mul_f32 v%d, v%d, v%d
        v_fma_f32 v%d, -v%d, v%d, v%d
        v_mul_f32 v%d, v%d, v%d
        v_fmac_f32 v%d, v%d, v%d
        """ % (dr, ar, br, dr, ai, bi, dr, di, ar, bi, di, ai, br)
    for b in range(3):
        a = 68 + 2 * b; a2 = 76 + 2 * b
        t += 'v_and_b32 v54, %d, v51\nv_cmp_ne_u32 vcc, 0, v54\n' % (1 << b)
        t += cm(52, 53, 56, 57, a, a + 1) + cm(62, 63, 60, 61, a2, a2 + 1)
        t += """
        v_cndmask_b32 v56, v56, v52, vcc
        v_cndmask_b32 v57, v57, v53, vcc
        v_cndmask_b32 v60, v60, v62, vcc
        v_cndmask_b32 v61, v61, v63, vcc
        """
    t += cm(58, 59, 56, 57, 74, 75)
    t += cm(62, 63, 60, 61, 82, 83) + cm(84, 85, 62, 63, 82, 83) + cm(86, 87, 84, 85, 82, 83)
    t += """
    v_and_b32 v52, 31, v0
    v_lshlrev_b32 v52, 2, v52
    v_lshl_add_u32 v53, v51, 8, v52
    v_add_u32 v53, %d, v53
    v_add_u32 v52, %d, v52
    ds_write2_b32 v53, v56, v57 offset0:0 offset1:32
    ds_write_b32 v53, v58 offset:2048
    ds_write_b32 v53, v59 offset:2176
    """ % (POW, TAB)
    for k, r in enumerate((60, 62, 84, 86)):
        t += 'ds_write_b32 v53, v%d offset:%d\nds_write_b32 v53, v%d offset:%d\n' % (r, 4096 + k * 2048, r + 1, 4096 + k * 2048 + 128)
    for idx, r in enumerate([64, 68, 70, 72]):
        t += 'ds_write2_b32 v52, v%d, v%d offset0:%d offset1:%d\n' % (r, r + 1, idx * 64, idx * 64 + 32)
    for idx, r in ((4, 74), (5, 88)):
        t += 'ds_write_b32 v52, v%d offset:%d\nds_write_b32 v52, v%d offset:%d\n' % (r, idx * 256, r + 1, idx * 256 + 128)
    return [l.strip() for l in t.splitlines() if l.strip()]

class Rec:
    def __init__(self, c, name):
        self.c = c; self.th = []; self.name = name; self.n = 0
    def __call__(self, text):
        for l in text.strip('\n').split('\n'):
            l = l.strip()
            if l: self.th.append(lambda l=l: self.c.I(l))
    def blk(self, items):
        def f():
            for k, t in items:
                if k == 'vm': self.c.vmem(t, ('SV',))
                else: self.c.I(t)
        self.th.append(f)
    def ds(self, text, tag): self.th.append(lambda: self.c.ds(text, tag))
    def vm(self, text, tag): self.th.append(lambda: self.c.vmem(text, tag))
    def wl(self, tag):
        self.n += 1; site = (self.name, 'l', self.n)
        self.th.append(lambda: self.c.wait_lg(site, lambda t: t == tag))
    def wv(self, tag):
        self.n += 1; site = (self.name, 'v', self.n)
        self.th.append(lambda: self.c.wait_vm(site, lambda t: t == tag))

def g_work(c):
    R = Rec(c, 'g')
    R("""
    s_lshl_b32 s6, s4, 1
    s_lshr_b32 s7, s3, 1
    s_add_u32 s6, s6, s7
    s_lshl_b32 s6, s6, 6
    s_lshl_b32 s7, s5, 1
    s_add_u32 s6, s6, s7
    s_and_b32 s7, s3, 1
    s_add_u32 s6, s6, s7
    s_lshl_b32 s76, s6, 7
    s_add_u32 s76, s76, %d
    s_add_u32 s7, s76, 0x20000
    v_mov_b32 v21, 0
    s_lshl_b32 s70, s71, 11
    v_lshlrev_b32 v25, 5, v17
    s_lshl_b32 s6, s2, 2
    s_add_u32 s6, s6, s3
    s_lshl_b32 s6, s6, 7
    s_add_u32 s6, s6, %d
    """ % (WS_FL, WS_FL + 0x40000))
    R.vm('buffer_load_dwordx4 v[64:67], v25, s[8:11], s70 offen', ('GL',))
    R.vm('buffer_load_dwordx4 v[68:71], v25, s[8:11], s70 offen offset:16', ('GL',))
    R.vm('buffer_load_dwordx4 v[72:75], v25, s[8:11], s70 offen offset:2048', ('GL',))
    R.vm('buffer_load_dwordx4 v[76:79], v25, s[8:11], s70 offen offset:2064', ('GL',))
    R.vm('global_load_dwordx4 v[80:83], v25, s[62:63]', ('GL',))
    R.vm('global_load_dwordx4 v[84:87], v25, s[62:63] offset:16', ('GL',))
    R.blk([('i', 's_mov_b64 exec, 1'), ('vm', 'buffer_store_dword v21, off, s[20:23], s76 sc1'), ('vm', 'buffer_store_dword v21, off, s[20:23], s7 sc1'), ('vm', 'buffer_store_dword v21, off, s[20:23], s6 sc1'), ('i', 's_mov_b64 exec, -1')])
    first = len(R.th)
    R.wv(('GL',))
    G = 48
    for d in range(8):
        R('v_and_b32 v%d, 0xffff0000, v%d\nv_lshlrev_b32 v%d, 16, v%d' % (G + 3, 80 + d, G + 2, 80 + d))
        for row in range(2):
            xr = 64 + row * 8 + d; a = G + 4 + row * 2; t = G + 8 + row * 2
            R("""
            v_and_b32 v%d, 0xffff0000, v%d
            v_lshlrev_b32 v%d, 16, v%d
            v_pk_mul_f32 v[%d:%d], v[%d:%d], v[%d:%d]
            v_cvt_pk_bf16_f32 v%d, v%d, v%d
            v_and_b32 v%d, 0xffff0000, v%d
            v_lshlrev_b32 v%d, 16, v%d
            """ % (t + 1, xr, t, xr, t, t + 1, t, t + 1, G + 2, G + 3, t, t, t + 1, t + 1, t, t, t))
            if d == 0: R('v_mov_b64 v[%d:%d], v[%d:%d]' % (a, a + 1, t, t + 1))
            else: R('v_pk_add_f32 v[%d:%d], v[%d:%d], v[%d:%d]' % (a, a + 1, a, a + 1, t, t + 1))
    for row in range(2):
        a = G + 4 + row * 2
        R('v_add_f32 v%d, v%d, v%d' % (a, a, a + 1))
    for sh in (1, 2, 4, 8):
        for row in range(2):
            a = G + 4 + row * 2
            R('v_add_f32_dpp v%d, v%d, v%d row_shr:%d row_mask:0xf bank_mask:0xf bound_ctrl:0' % (a, a, a, sh))
    for row in range(2):
        for k in range(4):
            R('v_readlane_b32 s%d, v%d, %d' % (78 + row * 4 + k, G + 4 + row * 2, 15 + 16 * k))
    R("""
    v_mov_b32 v48, s78
    v_add_f32 v48, s79, v48
    v_add_f32 v48, s80, v48
    v_add_f32 v48, s81, v48
    v_mov_b32 v49, s82
    v_add_f32 v49, s83, v49
    v_add_f32 v49, s84, v49
    v_add_f32 v49, s85, v49
    v_cvt_pk_bf16_f32 v48, v48, v49
    v_lshlrev_b32 v49, 16, v48
    v_and_b32 v50, 0xffff0000, v48
    v_mul_f32 v49, 0xbfb8aa3b, v49
    v_mul_f32 v50, 0xbfb8aa3b, v50
    v_exp_f32 v49, v49
    v_exp_f32 v50, v50
    v_add_f32 v49, 1.0, v49
    v_add_f32 v50, 1.0, v50
    v_rcp_f32 v49, v49
    v_rcp_f32 v50, v50
    v_cvt_pk_bf16_f32 v48, v49, v50
    v_lshlrev_b32 v50, 16, v48
    v_and_b32 v51, 0xffff0000, v48
    s_lshl_b32 s6, s71, 2
    s_add_u32 s6, s6, %d
    """ % WS_G)
    R.blk([('i', 's_mov_b64 exec, 1'), ('vm', 'buffer_store_dwordx2 v[50:51], off, s[20:23], s6 sc1'), ('i', 's_mov_b64 exec, -1')])
    return R.th[:first], R.th[first:]
def as_fill(c, lines):
    out = []
    for l in lines:
        if l.startswith('ds_'): out.append(lambda l=l: c.ds(l, ('T',)))
        else: out.append(lambda l=l: c.I(l))
    return out

def run(ths):
    for t in ths: t()

def prologue(c):
    I = c.I
    I('''
    s_cmp_ge_u32 s2, 256
    s_cbranch_scc1 K1_done
    s_load_dwordx16 s[36:51], s[0:1], 0
    s_load_dwordx16 s[52:67], s[0:1], 64
    s_load_dwordx2 s[68:69], s[0:1], 128
    v_lshrrev_b32 v16, 6, v0
    v_and_b32 v17, 63, v0
    v_readfirstlane_b32 s3, v16
    s_lshr_b32 s4, s2, 5
    s_and_b32 s5, s2, 7
    s_lshl_b32 s5, s5, 2
    s_bfe_u32 s6, s2, 0x20003
    s_add_u32 s5, s5, s6
    v_and_b32 v18, 15, v0
    v_bfe_u32 v19, v0, 4, 2
    v_lshrrev_b32 v20, 3, v17
    v_and_b32 v21, 7, v17
    v_xor_b32 v21, v21, v20
    s_lshl_b32 s6, s4, 8
    s_lshl_b32 s7, s3, 6
    s_add_u32 s6, s6, s7
    v_lshl_add_u32 v1, v20, 2, s6
    v_lshlrev_b32 v1, 11, v1
    v_lshl_add_u32 v1, v21, 4, v1
    v_add_u32 v2, 0xfc00, v1
    s_mov_b32 s10, 0x400000
    s_mov_b32 s11, 0x00020000
    s_mov_b32 s14, 0x700000
    s_mov_b32 s15, 0x00020000
    s_mov_b32 s18, 0x200000
    s_mov_b32 s19, 0x00020000
    s_mov_b32 s22, 0x10000000
    s_mov_b32 s23, 0x00020000
    s_mov_b32 s26, 256
    s_mov_b32 s27, 0x00020000
    s_mov_b32 s90, 0x700000
    s_mov_b32 s91, 0x00020000
    s_mov_b32 s28, 0
    s_mov_b32 s29, 4096
    s_mov_b32 s30, 0
    s_mov_b32 s31, 0
    s_mov_b32 s77, 0x%x
    s_lshl_b32 s32, s3, 12
    s_add_u32 s32, s32, %d
    s_lshl_b32 s34, s3, 14
    s_lshl_b32 s35, s3, 11
    s_add_u32 s35, s35, %d
    v_lshrrev_b32 v22, 2, v20
    v_and_b32 v23, 3, v20
    v_lshl_add_u32 v22, v22, 3, v23
    s_and_b32 s7, s3, 1
    s_lshl_b32 s6, s5, 5
    s_lshl_b32 s70, s7, 2
    s_add_u32 s6, s6, s70
    v_add_u32 v22, s6, v22
    v_lshlrev_b32 v22, 11, v22
    v_lshl_add_u32 v10, v21, 4, v22
    v_add_u32 v11, 0x7c00, v10
    s_mul_i32 s72, s5, 224
    s_mul_i32 s70, s7, 28672
    s_add_u32 s72, s72, s70
    s_and_b32 s73, s5, 1
    s_lshl_b32 s73, s73, 1
    s_movk_i32 s74, 4682
    s_movk_i32 s75, 7168
    s_waitcnt lgkmcnt(0)
    s_mov_b32 s8, s36
    s_mov_b32 s9, s37
    s_cmp_ge_u32 s3, 2
    s_cselect_b32 s12, s58, s56
    s_cselect_b32 s13, s59, s57
    s_cselect_b32 s16, s44, s42
    s_cselect_b32 s17, s45, s43
    s_cselect_b32 s86, s48, s46
    s_cselect_b32 s87, s49, s47
    s_mov_b32 s20, s68
    s_mov_b32 s21, s69
    s_mov_b32 s24, s66
    s_mov_b32 s25, s67
    s_mov_b32 s88, s60
    s_mov_b32 s89, s61
    ''' % (OOB, WB, BB))
    stamp(I, 0); stamp_rt(I, 10)
    if PT:
        I('''
        s_lshr_b32 s78, s2, 3
        s_lshl_b32 s78, s78, 2
        s_add_u32 s78, s78, s3
        s_and_b32 s79, s78, 15
        s_lshr_b32 s80, s78, 4
        s_mov_b32 s82, 0x11111112
        s_mov_b32 s83, 0x14144401
        s_lshl_b32 s81, s79, 2
        s_lshr_b64 s[82:83], s[82:83], s81
        s_and_b32 s82, s82, 15
        s_cmp_lt_u32 s80, s82
        s_cselect_b32 s79, s79, 0
        s_cselect_b32 s80, s80, 0
        s_sub_u32 s81, s78, 64
        s_cmp_lt_u32 s81, 20
        s_cselect_b32 s79, 16, s79
        s_cselect_b32 s80, s81, s80
        s_lshl_b32 s79, s79, 3
        s_lshl_b32 s80, s80, 21
        s_load_dwordx2 s[82:83], s[0:1], s79
        ''')
    for l in range(64): assert (l * 37) >> 8 == l // 7
    I("""
    v_mul_u32_u24 v26, 37, v17
    v_lshrrev_b32 v26, 8, v26
    v_mul_u32_u24 v27, 7, v26
    v_sub_u32 v27, v17, v27
    v_lshlrev_b32 v27, 7, v27
    s_lshr_b32 s6, s2, 3
    s_lshl_b32 s6, s6, 1
    s_add_u32 s6, s6, s7
    s_lshl_b32 s6, s6, 1
    s_and_b32 s70, s2, 7
    v_add_u32 v28, s6, v26
    v_mul_u32_u24 v28, s75, v28
    v_add_u32 v28, v28, v27
    s_mul_i32 s71, s70, 896
    v_add_u32 v28, s71, v28
    v_lshrrev_b32 v26, 1, v17
    v_and_b32 v27, 1, v17
    v_lshlrev_b32 v27, 7, v27
    s_lshl_b32 s71, s70, 7
    s_add_u32 s71, s71, s6
    v_add_u32 v29, s71, v26
    v_lshl_add_u32 v29, v29, 11, v27
    s_lshl_b32 s6, s4, 8
    s_lshl_b32 s70, s5, 3
    s_add_u32 s6, s6, s70
    s_lshl_b32 s70, s3, 1
    s_add_u32 s71, s6, s70
    v_add_u32 v30, s71, v26
    v_lshl_add_u32 v30, v30, 11, v27
    s_mov_b32 s94, %d
    s_mov_b32 s95, %d
    s_lshl_b32 s92, s2, 2
    s_add_u32 s92, s92, s3
    s_mul_i32 s92, s92, 7168
    v_lshlrev_b32 v31, 7, v17
    """ % (TS0 * 128, TS0 * 458752))
    for _ in range(TPRE): ptouch(I, wd=False)
    for k in range(8): run(x_dma(c, 0, k))
    if PT:
        I('s_waitcnt lgkmcnt(0)')
        I('s_load_dword s81, s[82:83], s80')
    for n in range(4):
        I('''
        v_add_u32 v20, %d, v17
        v_mul_u32_u24 v21, s74, v20
        v_lshrrev_b32 v21, 16, v21
        v_mul_u32_u24 v22, 14, v21
        v_sub_u32 v22, v20, v22
        v_add_u32 v22, s73, v22
        v_subrev_u32 v23, 14, v22
        v_min_u32 v22, v22, v23
        v_lshrrev_b32 v23, 2, v21
        v_and_b32 v21, 3, v21
        v_lshl_add_u32 v21, v23, 3, v21
        v_mul_u32_u24 v21, s75, v21
        v_lshl_add_u32 v21, v22, 4, v21
        v_add_u32 v21, s72, v21
        v_subrev_u32 v%d, %d, v21
        ''' % (n * 64, 3 + n, n * 1024))
        if n == 3:
            I('v_mov_b32 v20, s77\nv_cmp_gt_u32 vcc, 32, v17\nv_cndmask_b32 v6, v20, v6, vcc')
        run(w_dma(c, 0, n))
    for n in range(2): run(b_dma(c, 0, n))
    for n in range(4): run(w_dma(c, 1, n))
    I('''
    v_and_b32 v24, 31, v0
    v_lshl_add_u32 v24, s5, 5, v24
    v_lshlrev_b32 v24, 1, v24
    ''')
    c.vmem('global_load_ushort v48, v24, s[38:39]', ('S',))
    c.vmem('global_load_ushort v49, v24, s[40:41]', ('S',))
    c.vmem('global_load_ushort v50, v24, s[50:51]', ('S',))
    if not DEFER:
        for k in range(8): run(x_dma(c, 1, k))
        for n in range(4): run(w_dma(c, 2, n))
        for n in range(2): run(b_dma(c, 1, n))
        for n in range(3): run(w_dma(c, 3, n))
    c_addr(I)
    I('''
    s_lshl_b32 s6, s5, 5
    s_lshl_b32 s7, s4, 2
    s_add_u32 s6, s6, s7
    s_add_u32 s6, s6, s3
    s_lshl_b32 s6, s6, 8
    s_add_u32 s6, s6, %d
    v_lshlrev_b32 v26, 4, v17
    v_mov_b32 v24, -1
    v_mov_b32 v25, -1
    v_mov_b32 v22, -1
    v_mov_b32 v23, -1
    s_mov_b64 exec, 0xffff
    ''' % WS_T)
    c.vmem('buffer_store_dwordx4 v[22:25], v26, s[20:23], s6 offen sc1', ('SV',))
    I('''
    s_mov_b64 exec, -1
    s_bfe_u32 s93, s2, 0x20005
    s_add_u32 s93, s93, 1
    s_cmp_eq_u32 s3, 0
    s_cselect_b32 s93, s93, 99
    ''')
    I('''
    v_lshrrev_b32 v26, 2, v18
    v_lshl_add_u32 v26, v19, 2, v26
    v_mul_u32_u24 v26, 224, v26
    v_and_b32 v27, 3, v17
    v_lshl_add_u32 v12, v27, 3, v26
    v_add_u32 v12, %d, v12
    v_and_b32 v26, 7, v17
    v_xor_b32 v26, v26, v19
    v_lshlrev_b32 v26, 4, v26
    v_lshl_add_u32 v26, v18, 7, v26
    v_add_u32 v13, %d, v26
    v_xor_b32 v14, 64, v13
    v_add_u32 v7, s34, v26
    v_xor_b32 v8, 64, v7
    s_mov_b32 s33, 0
    ''' % (WB, BB))
    stamp(I, 3)
    c.wait_vm(('d0',), lambda t: t in (('W', 0), ('B', 0), ('X', 0)))
    I('s_barrier')
    stamp(I, 4)
    for i in range(4): x_read(c, 0, 0, i)()
    for t in range(5): run(w_read(c, 0, t))
    for i in range(4): x_read(c, 0, 1, i)()
    for k in range(4): b_read(c, 0, 0, k)()


RR = lambda jt, i: acc_reg('R', jt, i)[1]
II = lambda jt, i: acc_reg('I', jt, i)[1]
BA, BBk, BC, BD = 32, 48, 64, 80

def ld16(R, base_v, off, dst, tag):
    R.ds('ds_read_b128 v[%d:%d], v%d offset:%d' % (dst, dst + 3, base_v, off), tag)
    R.ds('ds_read_b128 v[%d:%d], v%d offset:%d' % (dst + 4, dst + 7, base_v, off + 16), tag)
    R.ds('ds_read_b128 v[%d:%d], v%d offset:%d' % (dst + 8, dst + 11, base_v, off + 128), tag)
    R.ds('ds_read_b128 v[%d:%d], v%d offset:%d' % (dst + 12, dst + 15, base_v, off + 144), tag)

def s1_pre(c):
    R = Rec(c, 's1p')
    R('v_lshlrev_b32 v20, 5, v19')
    R('v_add_u32 v20, %d, v20' % TAB)
    ld16(R, 20, 0, BA, ('K', 0)); ld16(R, 20, 256, BBk, ('K', 1))
    R("""
    s_lshl_b32 s78, s4, 2
    s_add_u32 s78, s78, s3
    s_lshl_b32 s79, s5, 13
    s_add_u32 s79, s79, %d
    s_lshl_b32 s80, s78, 8
    s_add_u32 s80, s80, s79
    v_lshlrev_b32 v21, 6, v19
    s_sub_u32 s81, s78, 1
    v_sub_u32 v22, s81, v18
    v_subrev_u32 v23, 16, v22
    v_cmp_gt_u32 vcc, 32, v22
    v_lshl_add_u32 v22, v22, 8, v21
    v_mov_b32 v24, s77
    v_cndmask_b32 v22, v24, v22, vcc
    v_cmp_gt_u32 vcc, 32, v23
    v_lshl_add_u32 v23, v23, 8, v21
    s_lshl_b32 s7, s5, 2
    v_cndmask_b32 v23, v24, v23, vcc
    v_cmp_eq_u32 s[82:83], 15, v18
    """ % WS_T)
    R('v_and_b32 v26, 31, v17')
    R('v_lshlrev_b32 v26, 2, v26')
    R.vm('buffer_load_dword v25, v26, s[24:27], 0 offen offset:128 sc1', ('IF',))
    return R.th

def s1_work(c):
    R = Rec(c, 's1')
    LAM, CA, E, T = BA, BBk, BC, BD
    R.wl(('K', 0))
    cur = None; bufs = [E, T]
    for i in range(1, 4):
        d = bufs[i & 1]
        for jt in range(2):
            for h in range(2):
                o = jt * 4 + 2 * h
                if cur is None: br, bi = RR(jt, 0) + 2 * h, II(jt, 0) + 2 * h
                else: br, bi = cur + o, cur + 8 + o
                cmul_pk(R, d + o, d + 8 + o, LAM + o, LAM + 8 + o, br, bi, RR(jt, i) + 2 * h, II(jt, i) + 2 * h)
        cur = d
    S = E
    for k, sh in enumerate((1, 2, 4, 8)):
        for r in range(16):
            R('v_mov_b32_dpp v%d, v%d row_shr:%d row_mask:0xf bank_mask:0xf bound_ctrl:0' % (S + r, cur + r, sh))
        R.wl(('K', 1 + k))
        for o in range(0, 8, 2):
            cmul_pk(R, cur + o, cur + 8 + o, CA + o, CA + 8 + o, S + o, S + 8 + o, cur + o, cur + 8 + o)
        if k < 3: ld16(R, 20, (2 + k) * 256, CA, ('K', 2 + k))
    R.blk([('i', 's_mov_b64 exec, s[82:83]')] +
          [('vm', 'buffer_store_dwordx4 v[%d:%d], v21, s[20:23], s80 offen offset:%d sc1' % (cur + 4 * k, cur + 4 * k + 3, 16 * k)) for k in range(4)] +
          [('i', 's_mov_b64 exec, -1')])
    for r in range(16):
        R('v_mov_b32_dpp v%d, v%d row_shr:1 row_mask:0xf bank_mask:0xf bound_ctrl:0' % (S + r, cur + r))
    return R.th

def last_stage(c):
    s = 15
    order = [('S', 0, k) for k in range(4)] + [('S', 1, k) for k in range(4)] + [('F', 30, t) for t in range(14)] + [('F', 31, t) for t in range(14)]
    pre = s1_pre(c); work = s1_work(c)
    nF = 28
    per = -(-len(work) // (nF - 2))
    for n, (ty, a, b) in enumerate(order):
        fill = []
        site = ('Z', n)
        if ty == 'S':
            hh, k = a, b
            if hh == 0: fill.append(b_read(c, s, 1, k))
            for _ in range(min(5, len(pre))): fill.append(pre.pop(0))
            if k == 0: c.wait_lg((site, 'bf'), lambda t: t in (('BF', s, hh), ('XF', s, hh)))
            kind, jt = SSM[k]; areg = BH + hh * 16 + k * 4
        else:
            u, t = a, b; hh = u & 1
            if t <= 8: fill += w_read(c, u, t + 5)
            if u == 30 and t >= 10:
                for tt in {10: [], 11: [0], 12: [1, 2], 13: [3, 4]}[t]: fill += w_read(c, 31, tt)
            assert not pre
            if n >= 10:
                for _ in range(min(per, len(work))): fill.append(work.pop(0))
            c.wait_lg((site, 'f'), lambda tg: tg == ('F', u, t))
            kind, jt = FFN[t]; areg = RING + (t % 7) * 4
        nf = len(fill); k2 = 0
        for i in range(4):
            f, bb = acc_reg(kind, jt, i)
            c.I('v_mfma_f32_16x16x32_bf16 %s, %s, %s, %s' % (rr(f, bb), rr('a', areg), rr('a', XSET + 32 + hh * 16 + i * 4), rr(f, bb)))
            take = (nf * (i + 1) + 3) // 4 - k2
            for _ in range(take):
                fill[k2](); k2 += 1
        if ty == 'F' and a == 30 and b == 9:
            c.wait_vm((site, 'd'), lambda t: t == ('W', 31))
            c.I('s_barrier')
    assert not work


def cmul16(P, d, a, b, c=None):
    p = lambda r: 'v[%d:%d]' % (r, r + 1)
    G = range(0, 8, 2)
    for o in G:
        if c is None: P('v_pk_mul_f32 %s, %s, %s' % (p(d(o)[0]), p(a(o)[0]), p(b(o)[0])))
        else: P('v_pk_fma_f32 %s, %s, %s, %s' % (p(d(o)[0]), p(a(o)[0]), p(b(o)[0]), p(c(o)[0])))
    for o in G:
        if c is None: P('v_pk_mul_f32 %s, %s, %s' % (p(d(o)[1]), p(a(o)[0]), p(b(o)[1])))
        else: P('v_pk_fma_f32 %s, %s, %s, %s' % (p(d(o)[1]), p(a(o)[0]), p(b(o)[1]), p(c(o)[1])))
    for o in G:
        P('v_pk_fma_f32 %s, %s, %s, %s neg_lo:[1,0,0] neg_hi:[1,0,0]' % (p(d(o)[0]), p(a(o)[1]), p(b(o)[1]), p(d(o)[0])))
    for o in G:
        P('v_pk_fma_f32 %s, %s, %s, %s' % (p(d(o)[1]), p(a(o)[1]), p(b(o)[0]), p(d(o)[1])))
blk = lambda base: (lambda o: (base + o, base + 8 + o))
uacc = lambda i: (lambda o: (RR(o >> 2, i) + (o & 3), II(o >> 2, i) + (o & 3)))

def ffn_out2(P, items, dst, tmp):
    ch = []
    for n, (jt, i) in enumerate(items):
        for h in range(2):
            ta = tmp + (n * 2 + h) * 4; tb = ta + 2
            seq = []
            srcs = []
            for kind, t in (('G', ta), ('U', tb)):
                f, b = acc_reg(kind, jt, i)
                if f == 'a':
                    seq.append('v_accvgpr_read_b32 v%d, a%d' % (t, b + 2 * h))
                    seq.append('v_accvgpr_read_b32 v%d, a%d' % (t + 1, b + 2 * h + 1))
                    srcs.append(t)
                else: srcs.append(b + 2 * h)
            g0, u0 = srcs
            if k1.EMUL:
                seq += ['v_cvt_pk_bf16_f32 v%d, v%d, v%d' % (ta, g0, g0 + 1),
                        'v_cvt_pk_bf16_f32 v%d, v%d, v%d' % (tb, u0, u0 + 1),
                        'v_pk_max_i16 v%d, v%d, 0' % (ta, ta),
                        'v_and_b32 v%d, 0xffff0000, v%d' % (tb + 1, tb),
                        'v_lshlrev_b32 v%d, 16, v%d' % (tb, tb),
                        'v_and_b32 v%d, 0xffff0000, v%d' % (ta + 1, ta),
                        'v_lshlrev_b32 v%d, 16, v%d' % (ta, ta),
                        'v_pk_mul_f32 v[%d:%d], v[%d:%d], v[%d:%d]' % (ta, ta + 1, ta, ta + 1, tb, tb + 1)]
            else:
                seq += ['v_max_f32 v%d, 0, v%d' % (ta, g0), 'v_max_f32 v%d, 0, v%d' % (ta + 1, g0 + 1),
                        'v_pk_mul_f32 v[%d:%d], v[%d:%d], v[%d:%d]' % (ta, ta + 1, ta, ta + 1, u0, u0 + 1)]
            seq.append('v_cvt_pk_bf16_f32 v%d, v%d, v%d' % (dst + 2 * n + h, ta, ta + 1))
            ch.append(seq)
    m = max(len(x) for x in ch)
    for k in range(m):
        for x in ch:
            kk = k - (m - len(x))
            if kk >= 0: P(x[kk])

NS = 5
ACT = 96
WF = 32
FD = 3
def acc2(tau, jt): return (tau * 8 + jt) * 4
def a_setup(c):
    return [lambda: c.I('s_cmp_gt_i32 s32, 0'), lambda: c.I('s_cselect_b32 s86, s28, s77'),
            lambda: c.I('s_sub_u32 s32, s32, 1'), lambda: c.I('s_add_u32 s28, s28, 8192')]
def w_setup(c):
    return [lambda: c.I('s_cmp_gt_i32 s29, 0'), lambda: c.I('s_cselect_b32 s87, s30, s77'), lambda: c.I('s_cselect_b32 s88, s35, s77'),
            lambda: c.I('s_sub_u32 s29, s29, 1'), lambda: c.I('s_add_u32 s30, s30, s34'), lambda: c.I('s_add_u32 s35, s35, s34')]
def act_loads(c, n):
    return [lambda tau=tau: c.vmem('buffer_load_dwordx4 %s, v%d, s[20:23], s86 offen offset:%d sc1' % (rr('v', ACT + (n % NS) * 32 + tau * 4), 1 + (tau >> 2), (tau & 3) * 1024), ('A', n)) for tau in range(8)]
def w_loads(c, n, role):
    th = []
    for k in range(8):
        def f(k=k):
            if k & 3 == 0: c.I('s_add_u32 m0, s31, %d' % ((n % NS) * 8192 + (k >> 2) * 4096))
            c.vmem('buffer_load_dwordx4 v%d, s[16:19], s%d offen offset:%d %s lds' % (3 + (k & 3), 87 + (k >> 2), (k & 3) * 1024, 'sc1' if role == 'Y' else ''), ('W', n))
        th.append(f)
    return th
def frag_read(c, role, n, jt):
    reg = WF + jt * 4
    so = (n % NS) * 8192
    if role == 'Y':
        return [lambda: c.ds('ds_read_b128 %s, v7 offset:%d' % (rr('v', reg), so + jt * 1024), ('F', n, jt))]
    return [lambda e=e: c.ds('ds_read_b64_tr_b16 v[%d:%d], v%d offset:%d' % (reg + 2 * e, reg + 2 * e + 1, 7 + jt, so + e * 2048), ('F', n, jt)) for e in range(2)]

def step2(c, role, n, first=False):
    site = (role, 'first' if first else n % NS)
    a = act_loads(c, n + NS - 1); w = w_loads(c, n + NS - 1, role)
    vm = []
    for k in range(8): vm += [w[k], a[k]]
    setup = w_setup(c) + a_setup(c)
    c.wait_vm((site, 'a'), lambda t: t == ('A', n))
    for jt in range(8):
        slots = [[] for _ in range(8)]
        jn, nn = jt + FD, n
        if jn >= 8: jn -= 8; nn += 1
        fr = frag_read(c, role, nn, jn)
        if jt + FD == 8:
            slots[0].append(lambda: c.wait_vm((site, 'w'), lambda t: t == ('W', n + 1)))
        for k, f in enumerate(fr): slots[1 + k].append(f)
        if jt == 0:
            for k, f in enumerate(setup): slots[min(k // 2, 5)].append(f)
            slots[6].append(vm[0]); slots[7].append(vm[1])
        else:
            slots[3].append(vm[2 * jt]); slots[6].append(vm[2 * jt + 1])
        c.wait_lg((site, 'f', jt), lambda t: t == ('F', n, jt))
        for tau in range(8):
            b = acc2(tau, jt)
            c.I('v_mfma_f32_16x16x32_bf16 %s, %s, %s, %s' % (rr('a', b), rr('v', WF + jt * 4), rr('v', ACT + (n % NS) * 32 + tau * 4), '0' if first else rr('a', b)))
            for th in slots[tau]: th()

def p2_setup(P):
    k0 = [112, 134, 155, 0, 22, 45, 68, 90]
    cn = [22, 21, 21, 22, 23, 23, 22, 22]
    pk = lambda a: sum(v << (8 * i) for i, v in enumerate(a))
    P('''
    s_bfe_u32 s92, s2, 0x10002
    s_lshl_b32 s92, s92, 3
    s_bfe_u32 s6, s2, 0x30003
    s_add_u32 s92, s92, s6
    s_bfe_u32 s93, s2, 0x10001
    s_lshl_b32 s93, s93, 2
    s_lshr_b32 s6, s2, 6
    s_add_u32 s93, s93, s6
    s_and_b32 s94, s2, 1
    s_lshl_b32 s95, s94, 2
    s_add_u32 s95, s95, s3
    s_lshl_b32 s6, s95, 3
    s_mov_b32 s86, 0x%x
    s_mov_b32 s87, 0x%x
    s_lshr_b64 s[86:87], s[86:87], s6
    s_and_b32 s89, s86, 0xff
    s_mov_b32 s86, 0x%x
    s_mov_b32 s87, 0x%x
    s_lshr_b64 s[86:87], s[86:87], s6
    s_and_b32 s33, s86, 0xff
    s_mov_b32 s32, s33
    s_mov_b32 s29, s33
    s_mov_b32 s12, s64
    s_mov_b32 s13, s65
    s_mov_b32 s14, 0x800000
    v_lshlrev_b32 v84, 4, v17
    s_mul_i32 s6, s92, %d
    v_add_u32 v1, s6, v84
    v_add_u32 v2, 0x1000, v1
    s_lshl_b32 s28, s89, 13
    s_mul_i32 s31, s3, %d
    s_cmp_lt_u32 s95, 3
    s_cbranch_scc1 P2_setY
    ''' % (pk(k0[:4]), pk(k0[4:]), pk(cn[:4]), pk(cn[4:]), NKB * 8192, NS * 8192))
    P('''
    s_mov_b32 s16, s60
    s_mov_b32 s17, s61
    s_mov_b32 s18, 0x700000
    v_lshlrev_b32 v84, 1, v19
    v_xor_b32 v84, v84, v18
    v_xor_b32 v85, 8, v84
    s_lshl_b32 s6, s93, 8
    v_lshl_add_u32 v86, v19, 11, s6
    v_lshl_add_u32 v3, v84, 4, v86
    v_lshl_add_u32 v4, v85, 4, v86
    v_add_u32 v4, 7168, v4
    v_add_u32 v5, 14336, v3
    v_add_u32 v6, 14336, v4
    s_lshl_b32 s30, s89, 16
    s_add_u32 s35, s30, 32768
    s_mov_b32 s34, 65536
    ''')
    c = Ctx(P, {})
    for n in range(3):
        run(w_setup(c)); run(w_loads(c, n, 'B'))
    P('''
    v_lshrrev_b32 v84, 2, v18
    v_lshl_add_u32 v84, v19, 2, v84
    v_and_b32 v85, 7, v84
    v_and_b32 v86, 8, v84
    v_lshl_add_u32 v84, v86, 1, v85
    v_and_b32 v86, 3, v17
    v_lshlrev_b32 v84, 8, v84
    v_lshl_add_u32 v84, v86, 3, v84
    v_add_u32 v84, s31, v84
    v_lshl_add_u32 v7, v85, 5, v84
    s_lshl_b32 s7, s94, 7
    v_xor_b32 v7, s7, v7
    ''')
    for jt in range(1, 8): P('v_xor_b32 v%d, %d, v7' % (7 + jt, jt * 32))
    P('s_branch P2_setdone')
    P.label('P2_setY')
    P('''
    s_mov_b32 s16, s68
    s_mov_b32 s17, s69
    s_mov_b32 s18, 0x10000000
    s_lshl_b32 s6, s93, 19
    s_add_u32 s6, s6, %d
    v_add_u32 v3, s6, v84
    v_mov_b32 v4, v3
    v_mov_b32 v5, v3
    v_mov_b32 v6, v3
    s_sub_u32 s30, s89, 112
    s_lshl_b32 s30, s30, 13
    s_add_u32 s35, s30, 4096
    s_mov_b32 s34, 8192
    v_add_u32 v7, s31, v84
    ''' % WS_C2)
    P.label('P2_setdone')

def epilogue(P):
    LAM, CA, S, T = BA, BBk, BC, BD
    stamp(P, 5)
    P('s_waitcnt lgkmcnt(0)')
    P('s_barrier')
    p2_setup(P)
    P("""
    s_lshl_b32 s6, s4, 1
    s_lshr_b32 s7, s3, 1
    s_add_u32 s6, s6, s7
    s_mul_i32 s6, s6, %d
    s_and_b32 s7, s3, 1
    s_lshl_b32 s7, s7, 12
    s_add_u32 s6, s6, s7
    v_lshl_add_u32 v15, v17, 4, s6
    s_mul_i32 s70, s5, 7
    s_add_u32 s70, s70, 1
    s_lshr_b32 s70, s70, 1
    s_lshl_b32 s70, s70, 13
    s_add_u32 s71, s70, 8192
    s_add_u32 s72, s70, 16384
    s_add_u32 s73, s70, 24576
    s_sub_u32 s74, s70, 7680
    s_bitcmp1_b32 s5, 0
    s_cselect_b32 s73, s74, s73
    v_and_b32 v27, 31, v17
    v_lshrrev_b32 v24, 5, v17
    v_lshl_add_u32 v27, v27, 4, s6
    v_lshl_add_u32 v27, v24, 10, v27
    v_lshl_add_u32 v21, v18, 8, v20
    """ % (NKB * 8192))
    tmp = 80; n = 0
    def outreg():
        nonlocal n
        n += 1
        return 48 + (n % 4) * 4
    F = 160
    TA, TB, WA, WBk = F, F + 16, F + 32, F + 48
    def t_loads():
        for k in range(4):
            P('buffer_load_dwordx4 v[%d:%d], v22, s[20:23], s79 offen offset:%d sc1' % (TA + 4 * k, TA + 4 * k + 3, 16 * k))
        for k in range(4):
            P('buffer_load_dwordx4 v[%d:%d], v23, s[20:23], s79 offen offset:%d sc1' % (TB + 4 * k, TB + 4 * k + 3, 16 * k))
    def fin(dst, va, so, off):
        P('v_permlane32_swap_b32 v%d, v%d' % (dst, dst + 2))
        P('v_permlane32_swap_b32 v%d, v%d' % (dst + 1, dst + 3))
        P('buffer_store_dwordx4 v[%d:%d], v%d, s[20:23], s%d offen offset:%d sc1' % (dst, dst + 3, va, so, off))
    for pr in range(3):
        for i in range(4):
            dst = outreg()
            ffn_out2(P, [(2 * pr, i), (2 * pr + 1, i)], dst, tmp)
            fin(dst, 15, 70 + pr, i * 1024)
        if pr == 1:
            P('s_mov_b32 s75, 0')
            P('s_waitcnt vmcnt(8)')
            P.label('K1_ichk')
            P("""
            v_cmp_ne_u32 vcc, 0xff, v25
            s_add_u32 s75, s75, 1
            s_cmp_eq_u64 vcc, 0
            s_cbranch_scc1 K1_iok
            s_cmp_ge_u32 s75, 0x4000
            s_cbranch_scc1 K1_iok
            s_sleep 4
            buffer_load_dword v25, v26, s[24:27], 0 offen offset:128 sc1
            s_waitcnt vmcnt(0)
            s_branch K1_ichk
            """)
            P.label('K1_iok')
            t_loads()
            for off, dst in ((6144, WA), (6144 + 4096, WBk)):
                for k, o in enumerate((0, 16, 128, 144)):
                    P('ds_read_b128 v[%d:%d], v21 offset:%d' % (dst + 4 * k, dst + 4 * k + 3, off + o))
    for i in (0, 2):
        dst = outreg()
        ffn_out2(P, [(6, i), (6, i + 1)], dst, tmp)
        fin(dst, 27, 73, i * 1024)
    stamp(P, 7)
    PWr = F + 64; AC = F + 80
    S2 = BD
    for k, o in enumerate((0, 16, 128, 144)):
        P('ds_read_b128 v[%d:%d], v21 offset:%d' % (PWr + 4 * k, PWr + 4 * k + 3, 2048 + o))
        P('ds_read_b128 v[%d:%d], v20 offset:%d' % (S2 + 4 * k, S2 + 4 * k + 3, 5 * 256 + o))
    P('s_mov_b32 s75, 0')
    P('s_waitcnt vmcnt(6)')
    P.label('K1_tchk')
    P('v_max3_u32 v24, v%d, v%d, v%d' % (TA, TA + 1, TA + 2))
    P('v_max3_u32 v25, v%d, v%d, v%d' % (TB, TB + 1, TB + 2))
    for r in range(3, 15, 2):
        P('v_max3_u32 v24, v24, v%d, v%d' % (TA + r, TA + r + 1))
        P('v_max3_u32 v25, v25, v%d, v%d' % (TB + r, TB + r + 1))
    P('v_max3_u32 v24, v24, v%d, v%d' % (TA + 15, TB + 15))
    P('v_max_u32 v24, v24, v25')
    P("""
    v_cmp_eq_u32 vcc, -1, v24
    s_add_u32 s75, s75, 1
    s_cmp_eq_u64 vcc, 0
    s_cbranch_scc1 K1_tok
    s_cmp_ge_u32 s75, 0x4000
    s_cbranch_scc1 K1_tok
    s_sleep 2
    """)
    t_loads()
    P('s_waitcnt vmcnt(0)')
    P('s_branch K1_tchk')
    P.label('K1_tok')
    stamp(P, 8)
    P('s_waitcnt lgkmcnt(0)')
    cmul16(P, blk(AC), blk(WA), blk(TA))
    cmul16(P, blk(AC), blk(WBk), blk(TB), blk(AC))
    for sh in (8, 4, 2, 1):
        for r in range(16):
            P('v_add_f32_dpp v%d, v%d, v%d row_ror:%d row_mask:0xf bank_mask:0xf' % (AC + r, AC + r, AC + r, sh))
    cmul16(P, blk(S), blk(PWr), blk(AC), blk(S))
    P("""
    s_add_u32 s70, s5, 112
    s_lshl_b32 s70, s70, 13
    s_add_u32 s71, s70, 262144
    v_mov_b32 v24, 1
    """)
    for i in range(4):
        O = TA if (i & 1) else TB
        cmul16(P, uacc(i), blk(LAM), blk(S) if i == 0 else uacc(i - 1), uacc(i))
        cmul16(P, blk(O), blk(S2), uacc(i))
        d = WA if (i & 1) else WBk
        for k in range(4):
            P('v_cvt_pk_bf16_f32 v%d, v%d, v%d' % (d + k, O + 2 * k, O + 2 * k + 1))
        for k in range(4):
            P('v_cvt_pk_bf16_f32 v%d, -v%d, -v%d' % (d + 4 + k, O + 8 + 2 * k, O + 8 + 2 * k + 1))
        if i == 0:
            P('s_waitcnt vmcnt(0)\ns_mov_b64 exec, 1\nbuffer_store_dword v24, off, s[20:23], s76 sc1\ns_mov_b64 exec, -1')
        P('buffer_store_dwordx4 v[%d:%d], v15, s[20:23], s70 offen offset:%d sc1' % (d, d + 3, i * 1024))
        P('buffer_store_dwordx4 v[%d:%d], v15, s[20:23], s71 offen offset:%d sc1' % (d + 4, d + 7, i * 1024))
    stamp(P, 9)

def pk_bc(op, d, a, f, cc=None):
    base = f & ~1; hi = f & 1
    if cc is None:
        return 'v_pk_mul_f32 v[%d:%d], v[%d:%d], v[%d:%d] op_sel:[0,%d] op_sel_hi:[1,%d]' % (d, d + 1, a, a + 1, base, base + 1, hi, hi)
    return 'v_pk_fma_f32 v[%d:%d], v[%d:%d], v[%d:%d], v[%d:%d] op_sel:[0,%d,0] op_sel_hi:[1,%d,1]' % (d, d + 1, a, a + 1, base, base + 1, cc, cc + 1, hi, hi)
def FR(src, k): return 20 + src * 2 + k
XD = 64

def p2_enter(P):
    P('''
    s_lshl_b32 s6, s92, 7
    s_lshr_b32 s7, s3, 1
    s_lshl_b32 s7, s7, 6
    s_add_u32 s6, s6, s7
    s_and_b32 s7, s3, 1
    s_lshl_b32 s7, s7, 1
    s_add_u32 s6, s6, s7
    v_lshl_add_u32 v20, v18, 2, s6
    s_lshl_b32 s7, s93, 7
    s_lshl_b32 s6, s94, 6
    s_add_u32 s7, s7, s6
    v_lshl_add_u32 v21, v19, 2, s7
    v_lshlrev_b32 v28, 10, v20
    v_add_u32 v28, v28, v21
    v_lshlrev_b32 v23, 1, v28
    v_lshlrev_b32 v28, 2, v28
    v_add_u32 v29, 0x1000, v28
    v_lshlrev_b32 v22, 1, v21
    v_lshlrev_b32 v25, 2, v20
    s_mov_b32 s6, %d
    v_lshlrev_b32 v15, 4, v17
    v_lshlrev_b32 v26, 7, v17
    ''' % WS_G)
    P('buffer_load_dwordx2 v[30:31], v25, s[20:23], s6 offen sc1')
    for k in range(2):
        for jt in range(4):
            P('buffer_load_dwordx2 v[%d:%d], v23, s[8:11], 0 offen offset:%d' % (32 + (k * 4 + jt) * 2, 33 + (k * 4 + jt) * 2, k * 2048 + jt * 32))
    for jt in range(4):
        P('global_load_dwordx2 v[%d:%d], v22, s[52:53] offset:%d' % (48 + jt * 2, 49 + jt * 2, jt * 32))
    P('''
    s_lshl_b32 s70, s92, 13
    s_add_u32 s70, s70, %d
    s_lshl_b32 s71, s93, 14
    s_add_u32 s71, s71, %d
    s_add_u32 s72, s71, 8192
    s_add_u32 s73, s70, 0x20000
    s_cmp_lt_u32 s95, 3
    s_cselect_b32 s71, s71, s70
    s_cselect_b32 s72, s72, s70
    s_cselect_b32 s70, s73, s70
    s_add_u32 s7, s76, 0x20000
    s_waitcnt vmcnt(13)
    s_mov_b64 exec, 1
    buffer_store_dword v24, off, s[20:23], s7 sc1
    s_mov_b64 exec, -1
    s_mov_b32 s75, 0
    s_barrier
    ''' % (WS_FL, WS_FL))

def p2_poll(P, role):
    L = 'P2_poll' + role
    P.label(L)
    P('buffer_load_dword v56, v26, s[20:23], s70 offen sc1')
    if role == 'Y':
        P('buffer_load_dword v57, v26, s[20:23], s71 offen sc1')
        P('buffer_load_dword v58, v26, s[20:23], s72 offen sc1')
    P('s_waitcnt vmcnt(0)')
    if role == 'Y':
        P('v_and_b32 v56, v56, v57\nv_and_b32 v56, v56, v58')
    P('''
    v_cmp_ne_u32 vcc, 1, v56
    s_add_u32 s75, s75, 1
    s_cmp_eq_u64 vcc, 0
    s_cbranch_scc1 %sok
    s_cmp_ge_u32 s75, 0x4000
    s_cbranch_scc1 %sok
    s_sleep 2
    s_branch %s
    ''' % (L, L, L))
    P.label(L + 'ok')

def e0_math(I):
    I('''
    v_sub_f32 v56, 1.0, v30
    v_sub_f32 v57, 1.0, v31
    v_cvt_pk_bf16_f32 v56, v56, v57
    v_and_b32 v57, 0xffff0000, v56
    v_lshlrev_b32 v56, 16, v56
    ''')
    for src in range(4):
        if src == 0: I('s_mov_b32 s6, s95')
        else:
            sl = src - 1
            I('s_cmp_le_u32 s3, %d\ns_cselect_b32 s6, %d, %d\ns_lshl_b32 s7, s94, 2\ns_add_u32 s6, s6, s7' % (sl, sl + 1, sl))
        I('s_cmp_lt_u32 s6, 3\ns_cselect_b64 vcc, -1, 0')
        I('v_cndmask_b32 v%d, v56, v30, vcc\nv_cndmask_b32 v%d, v57, v31, vcc' % (FR(src, 0), FR(src, 1)))
    for jt in range(4):
        for h in range(2):
            I('v_and_b32 v59, 0xffff0000, v%d\nv_lshlrev_b32 v58, 16, v%d' % (48 + jt * 2 + h, 48 + jt * 2 + h))
            seqs = []
            for k in range(2):
                t = k * 4 + jt; xs = 32 + t * 2 + h; a = XD + t * 4 + 2 * h
                seqs.append(['v_lshlrev_b32 v%d, 16, v%d' % (a, xs), 'v_and_b32 v%d, 0xffff0000, v%d' % (a + 1, xs),
                             'v_pk_mul_f32 v[%d:%d], v[%d:%d], v[58:59]' % (a, a + 1, a, a + 1),
                             'v_cvt_pk_bf16_f32 v%d, v%d, v%d' % (a, a, a + 1),
                             'v_and_b32 v%d, 0xffff0000, v%d' % (a + 1, a), 'v_lshlrev_b32 v%d, 16, v%d' % (a, a),
                             pk_bc('mul', a, a, 30 + k)])
            for x, y in zip(*seqs): I(x); I(y)

def p2_prologue(c, role):
    if role == 'Y':
        for n in range(3):
            run(w_setup(c)); run(w_loads(c, n, role)); run(a_setup(c)); run(act_loads(c, n))
    else:
        for n in range(3):
            run(a_setup(c)); run(act_loads(c, n))
    run(w_setup(c)); run(w_loads(c, 3, role)); run(a_setup(c)); run(act_loads(c, 3))
    e0_math(c.I)
    c.wait_vm((role, 'w0'), lambda t: t == ('W', 0))
    for jt in range(FD): run(frag_read(c, role, 0, jt))

def slab_writes(P, jt0, tag, Qs, slot_of, own=None):
    pass

def p2_final(P):
    ZS, ZK, TMP = 96, XD, 160
    def wr(Q, jt0):
        for t in range(8):
            P('ds_write_b128 v61, %s offset:%d' % (rr('a', acc2(2 * Q + (t >> 2), jt0 + (t & 3))), t * 1024))
    def own(Q, jt0, dst, accum):
        for t in range(8):
            b = acc2(2 * Q + (t >> 2), jt0 + (t & 3))
            for r in range(4): P('v_accvgpr_read_b32 v%d, a%d' % (128 + t * 4 + r, b + r))
    P('s_waitcnt vmcnt(0) lgkmcnt(0)')
    P('v_add_u32 v60, s31, v15')
    for Q in range(4):
        P('s_cmp_eq_u32 s3, %d\ns_cbranch_scc1 P2_so%d' % (Q, Q))
        P('s_cmp_lt_u32 s3, %d\ns_cselect_b32 s6, %d, %d\ns_lshl_b32 s6, s6, 13' % (Q, max(Q - 1, 0), min(Q, 2)))
        P('v_add_u32 v61, s6, v60')
        wr(Q, 4)
        P('s_branch P2_sn%d' % Q)
        P.label('P2_so%d' % Q)
        own(Q, 4, ZS, False)
        P.label('P2_sn%d' % Q)
    for sl in range(3):
        P('''
        s_cmp_le_u32 s3, %d
        s_cselect_b32 s6, %d, %d
        s_cselect_b32 s7, 0, 1
        s_mul_i32 s6, s6, 40960
        s_sub_u32 s7, s3, s7
        s_lshl_b32 s%d, s7, 13
        s_add_u32 s%d, s%d, s6
        s_add_u32 s7, s7, 3
        s_cmp_eq_u32 s7, 5
        s_cselect_b32 s7, 0, s7
        s_lshl_b32 s%d, s7, 13
        s_add_u32 s%d, s%d, s6
        ''' % (sl, sl + 1, sl, 70 + sl, 70 + sl, 70 + sl, 73 + sl, 73 + sl, 73 + sl))
    for t in range(8):
        for h in range(2):
            r = t * 4 + 2 * h
            P(pk_bc('mul', ZS + r, 128 + r, FR(0, t >> 2)))
    P('''
    s_lshl_b32 s6, s2, 2
    s_add_u32 s6, s6, s3
    s_lshl_b32 s78, s6, 13
    s_add_u32 s78, s78, %d
    s_add_u32 s79, s78, 4096
    s_xor_b32 s80, s78, 0x8000
    s_add_u32 s81, s80, 4096
    s_lshl_b32 s82, s6, 7
    s_add_u32 s82, s82, %d
    s_xor_b32 s83, s82, 0x200
    s_waitcnt lgkmcnt(0)
    s_barrier
    ''' % (WS_XB, WS_FL + 0x40000))
    def rd(s0, dst):
        for sl in range(3):
            P('v_add_u32 v%d, s%d, v15' % (56 + sl, s0 + sl))
        for t in range(8):
            for sl in range(3):
                P('ds_read_b128 v[%d:%d], v%d offset:%d' % (TMP + sl * 32 + t * 4, TMP + sl * 32 + t * 4 + 3, 56 + sl, t * 1024))
        for t in range(8):
            n = 21 - 3 * t
            P('s_waitcnt lgkmcnt(%d)' % min(n, 14))
            for sl in range(3):
                for h in range(2):
                    r = t * 4 + 2 * h
                    P(pk_bc('fma', dst + r, TMP + sl * 32 + r, FR(1 + sl, t >> 2), dst + r))
            if dst == ZS:
                P('buffer_store_dwordx4 v[%d:%d], v15, s[20:23], s%d offen offset:%d sc1' % (ZS + t * 4, ZS + t * 4 + 3, 78 + (t >> 2), (t & 3) * 1024))
    rd(70, ZS)
    stamp(P, 16)
    for Q in range(4):
        P('s_cmp_eq_u32 s3, %d\ns_cbranch_scc1 P2_ko%d' % (Q, Q))
        if Q == 3:
            P('s_branch P2_kn3')
        else:
            if Q == 2: P('s_cmp_eq_u32 s3, 3\ns_cbranch_scc1 P2_kn2')
            P('s_cmp_lt_u32 s3, %d\ns_cselect_b32 s6, %d, %d\ns_lshl_b32 s6, s6, 13' % (Q, 3 + max(Q - 1, 0), 3 + min(Q, 1)))
            P('v_add_u32 v61, s6, v60')
            wr(Q, 0)
            P('s_branch P2_kn%d' % Q)
        P.label('P2_ko%d' % Q)
        own(Q, 0, ZK, True)
        P.label('P2_kn%d' % Q)
    P('v_mov_b32 v59, 1')
    P('s_waitcnt vmcnt(0)\ns_mov_b64 exec, 1\nbuffer_store_dword v59, off, s[20:23], s82 sc1\ns_mov_b64 exec, -1')
    P('s_barrier')
    P('v_mov_b32 v61, v60')
    P('s_cmp_eq_u32 s3, 3\ns_cbranch_scc1 P2_l2')
    wr(3, 0)
    P('s_branch P2_l3')
    P.label('P2_l2')
    wr(2, 0)
    P.label('P2_l3')
    def xb_loads():
        for t in range(8):
            P('buffer_load_dwordx4 v[%d:%d], v15, s[20:23], s%d offen offset:%d sc1' % (ZS + t * 4, ZS + t * 4 + 3, 80 + (t >> 2), (t & 3) * 1024))
    for t in range(8):
        for h in range(2):
            r = t * 4 + 2 * h
            P(pk_bc('fma', ZK + r, 128 + r, FR(0, t >> 2), ZK + r))
    P('s_waitcnt lgkmcnt(0)')
    P('s_barrier')
    P('buffer_load_dword v59, off, s[20:23], s83 sc1')
    rd(73, ZK)
    stamp(P, 17)
    P('s_mov_b32 s75, 0')
    P.label('P2_xchk')
    P('''
    s_waitcnt vmcnt(0)
    v_readfirstlane_b32 s6, v59
    s_add_u32 s75, s75, 1
    s_cmp_eq_u32 s6, 1
    s_cbranch_scc1 P2_xok
    s_cmp_ge_u32 s75, 0x4000
    s_cbranch_scc1 P2_xok
    s_sleep 1
    buffer_load_dword v59, off, s[20:23], s83 sc1
    s_branch P2_xchk
    ''')
    P.label('P2_xok')
    xb_loads()
    stamp(P, 18)
    for t in range(8):
        P('s_waitcnt vmcnt(7)')
        for h in range(2):
            r = t * 4 + 2 * h
            P('v_pk_add_f32 v[%d:%d], v[%d:%d], v[%d:%d]' % (ZK + r, ZK + r + 1, ZK + r, ZK + r + 1, ZS + r, ZS + r + 1))
        P('buffer_store_dwordx4 v[%d:%d], v%d, s[12:15], 0 offen offset:%d %s' % (ZK + t * 4, ZK + t * 4 + 3, 29 if t >= 4 else 28, (t & 3) * 64, os.environ.get('OMOD', '')))

def site_of(u):
    if u < 4: return ('F', u)
    if u >= 28: return ('E', u)
    return ('L', u % 4)

def body(c, emit):
    P = c.P
    prologue(c)
    extra = [lambda: c.wait_vm(('s',), lambda t: t == ('S',))] + as_fill(c, tables_text())
    g1, g2 = g_work(c)
    substep(c, 0, site_of(0), extra=extra, first=True)
    substep(c, 1, site_of(1), extra=extra)
    extra += g1
    substep(c, 2, site_of(2), extra=extra, room_extra=1)
    assert not extra, len(extra)
    extra += g2
    substep(c, 3, site_of(3), extra=extra, room_extra=6)
    assert not extra, len(extra)
    if emit:
        stamp(P, 1)
        P('.p2align 6')
        P.label('K1_loop')
        P('s_cmp_eq_u32 s33, s93\ns_cbranch_scc1 K1_t1')
        P.label('K1_tback')
        c_loads(P)
        if TOUCH: ptouch(P)
        for u in range(4, 8): substep(c, u, site_of(u))
        P("""
        s_add_u32 s33, s33, 1
        s_cmp_lt_u32 s33, 6
        s_cbranch_scc1 K1_loop
        """)
    else:
        for u in range(4, 28): substep(c, u, site_of(u))
    stamp(c.I, 2)
    substep(c, 28, site_of(28), last=1)
    substep(c, 29, site_of(29), last=2, extra=c_stores(c))
    stamp(c.I, 6)
    last_stage(c)

DIAG = int(os.environ.get('DIAG', '0'))
if DIAG:
    DMAP = {0: 0, 4: 1, 1: 2, 2: 3, 5: 4, 7: 5, 9: 6, 12: 7, 13: 8, 15: 9, 16: 10, 17: 11, 18: 12, 19: 13, 20: 14}
    def stamp(I, idx, vr=16):
        if idx in DMAP:
            I('s_memrealtime s[84:85]')
            I('s_waitcnt lgkmcnt(0)')
            if idx == 0:
                I('s_not_b32 s85, s84')
                I('v_writelane_b32 v16, s85, 15')
            I('v_writelane_b32 v16, s84, %d' % DMAP[idx])
    def stamp_rt(I, idx, vr=16): pass
    def stamp_out(I, kern, vr=16, va=23):
        I('v_lshlrev_b32 v23, 2, v17')
        I('s_mov_b64 exec, 0xffff')
        I('buffer_atomic_umax v16, v23, s[24:27], 0 offen sc1')
        I('s_mov_b64 exec, -1')
KNAME = 'gated_mix__ssm_conv_s5__glu_gated_reglu__prompt_kernel'
def gen():
    waits = {}
    body(Ctx(None, waits), False)
    for role in 'YB':
        c = Ctx(None, waits)
        p2_prologue(c, role)
        step2(c, role, 0, first=True)
        for n in range(1, 25): step2(c, role, n)
    P = Prog()
    c = Ctx(P, waits)
    P('.globl %s\n.p2align 8\n.type %s,@function' % (KNAME, KNAME))
    P.label(KNAME)
    body(c, True)
    epilogue(P)
    p2_enter(P)
    stamp(P, 12)
    P('s_cmp_lt_u32 s95, 3\ns_cbranch_scc1 P2_roleY')
    for role in 'BY':
        if role == 'Y': P.label('P2_roleY')
        p2_poll(P, role)
        stamp(P, 13)
        p2_prologue(c, role)
        step2(c, role, 0, first=True)
        P('s_sub_u32 s33, s33, 1')
        P('.p2align 6')
        P.label('P2_loop' + role)
        for n in range(1, NS + 1):
            step2(c, role, n)
            P('s_sub_u32 s33, s33, 1')
            P('s_cmp_eq_u32 s33, 0')
            if n < NS: P('s_cbranch_scc1 P2_end')
            else: P('s_cbranch_scc0 P2_loop' + role)
        if role == 'B': P('s_branch P2_end')
    P.label('P2_end')
    stamp(P, 15)
    P('s_nop 7')
    p2_final(P)
    stamp(P, 19); stamp_rt(P, 11)
    P('s_waitcnt vmcnt(0)')
    stamp(P, 20)
    stamp_out(P, 0)
    P.label('K1_done')
    P('s_endpgm')
    P.label('K1_t1')
    P("""
    s_lshl_b32 s6, 1, s4
    v_mov_b32 v26, s6
    s_lshl_b32 s7, s5, 2
    s_mov_b64 exec, 1
    buffer_atomic_add v26, off, s[24:27], s7 offset:128 sc1
    s_mov_b64 exec, -1
    s_branch K1_tback
    """)
    return P.text(), waits

if __name__ == '__main__':
    import sys
    NAME = 'gated_mix__ssm_conv_s5__glu_gated_reglu__prompt'
    ref = open('cdna_kernels/%s.s.ref' % NAME).read().splitlines()
    hdr = [l for l in ref if l.startswith(';') and '@launch' not in l]
    t, w = gen()
    out = '\n'.join(hdr) + '\n; @launch grid=(256,1,1) block=(256,1,1) lds=%d\n' % K1_LDS
    out += '.amdgcn_target "amdgcn-amd-amdhsa--gfx950"\n.text\n' + t
    out += '.section .rodata,"a"\n.p2align 6\n' + K1_DESC.replace('k1_kernel', KNAME)
    dst = sys.argv[1] if len(sys.argv) > 1 else 'cdna_kernels/%s.s' % NAME
    open(dst, 'w').write(out)
    print('wrote', dst, len(out))
```

```python
import os
from asmlib import Prog, Counter
import k1
from k1 import Ctx, rr, cmul_pk, ffn_out, acc_reg, ACC_V0, stamp, stamp_rt, stamp_out, NKB, WS_G, WS_T, WS_C2, WS_FL, WS_XB, K1_DESC

XB = 0
WB = 65536
BB = 131072
TAB = 147456
POW = TAB + 2048
WG64 = TAB + 6144
K1_LDS = 163840
assert TAB == k1.TAB
XSET = 128
RING = 192
BH = 220
OOB = 0x70000000
EXP = int(os.environ.get('EXP', '0'))
TS0 = int(os.environ.get('TS0', '4'))
TPRE = int(os.environ.get('TPRE', '1'))
DEFER = int(os.environ.get('DEFER', '1'))
NTW = 'nt' if int(os.environ.get('NTW', '1')) else ''
NTB = 'nt' if int(os.environ.get('NTB', '1')) else ''
NTC = 'nt' if int(os.environ.get('NTC', '1')) else ''
NTT = 'nt' if int(os.environ.get('NTT', os.environ.get('NTW', '1'))) else ''
NTX = 'nt' if int(os.environ.get('NTX', '0')) else ''
WDT = int(os.environ.get('WDT', '1'))
PT = int(os.environ.get('PT', '1'))
TOUCH = int(os.environ.get('TOUCH', '1'))

FFN = []
for jt in range(7): FFN += [('G', jt), ('U', jt)]
SSM = [('R', 0), ('I', 0), ('R', 1), ('I', 1)]

def w_read(c, u, t):
    kind, jt = FFN[t]
    slot = RING + (t % 7) * 4
    th = []
    for e in range(2):
        off = (u % 4) * 16384 + ((kind == 'U') * 2 + e) * 4096 + jt * 32
        th.append(lambda off=off, e=e: c.ds('ds_read_b64_tr_b16 a[%d:%d], v12 offset:%d' % (slot + 2 * e, slot + 2 * e + 1, off), ('F', u, t)))
    return th
def b_read(c, s, hh, k):
    kind, jt = SSM[k]
    off = (s % 2) * 8192 + ((kind == 'I') * 32 + jt * 16) * 128
    return lambda: c.ds('ds_read_b128 %s, v%d offset:%d' % (rr('a', BH + hh * 16 + k * 4), 13 + hh, off), ('BF', s, hh))
def x_read(c, s, hh, i):
    off = (s % 2) * 8192 + i * 2048
    return lambda: c.ds('ds_read_b128 %s, v%d offset:%d' % (rr('a', XSET + (s % 2) * 32 + hh * 16 + i * 4), 7 + hh, off), ('XF', s, hh))
def w_dma(c, u, n):
    th = []
    th.append(lambda: c.I('s_add_u32 m0, s32, %d' % ((u % 4) * 16384)))
    th.append(lambda: c.vmem('buffer_load_dwordx4 v%d, s[12:15], s30 offen offset:%d %s lds' % (3 + n, n * 1024, NTW), ('W', u)))
    if n == 3: th.append(lambda: c.I('s_add_u32 s30, s30, 229376'))
    return th
def x_dma(c, s, k):
    th = []
    th.append(lambda: c.I('s_add_u32 m0, s34, %d' % ((s % 2) * 8192 + (k >> 2) * 4096)))
    th.append(lambda: c.vmem('buffer_load_dwordx4 v%d, s[8:11], s%d offen offset:%d %s lds' % (1 + (k & 1), 28 + (k >> 2), (k & 3) * 1024, NTX), ('X', s)))
    if k == 7:
        th.append(lambda: c.I('s_add_u32 s28, s28, 128'))
        th.append(lambda: c.I('s_cmp_lt_u32 s28, 2048'))
        th.append(lambda: c.I('s_cselect_b32 s28, s28, s77'))
        th.append(lambda: c.I('s_add_u32 s29, s28, 4096'))
    return th
def b_dma(c, s, n):
    th = []
    th.append(lambda: c.I('s_add_u32 m0, s35, %d' % ((s % 2) * 8192)))
    th.append(lambda: c.vmem('buffer_load_dwordx4 v%d, s[16:19], s31 offen offset:%d %s lds' % (10 + n, n * 1024, NTB), ('B', s)))
    if n == 1:
        th.append(lambda: c.I('s_add_u32 s31, s31, 128'))
        th.append(lambda: c.I('s_cmp_lt_u32 s31, 2048'))
        th.append(lambda: c.I('s_cselect_b32 s31, s31, s77'))
    return th

def substep(c, u, site, extra=None, first=False, last=0, room_extra=0):
    hh = u & 1; s = u >> 1
    for j in range(18):
        fill = []
        if j <= 8: fill += w_read(c, u, j + 5)
        if 12 <= j <= 16 and u != 31: fill += w_read(c, u + 1, j - 12)
        if u == 31: pass
        elif hh == 1:
            if j == 9: fill.append(lambda: c.wait_vm((site, 'x'), lambda t: t == ('X', s + 1)))
            if j in (9, 10): fill += [x_read(c, s + 1, 0, (j - 9) * 2 + k) for k in range(2)]
            if j in (14, 15, 16, 17): fill.append(x_read(c, s + 1, 1, j - 14))
            if j in (12, 13): fill += [b_read(c, s + 1, 0, (j - 12) * 2 + k) for k in range(2)]
        else:
            if j in (0, 2, 4, 6): fill.append(b_read(c, s, 1, j // 2))
        d = []
        if j in (13, 15, 17): d = w_dma(c, u + 4, (j - 13) // 2)
        if j == 1: d = w_dma(c, u + 3, 3)
        if j in (3, 5, 7, 9): d = x_dma(c, s + 2, hh * 4 + (j - 3) // 2)
        if hh == 0 and j in (14, 16): d = b_dma(c, s + 2, (j - 14) // 2)
        if last == 2 or (last == 1 and j != 1): d = []
        if DEFER and u == 0:
            seq = [('x', 1, k) for k in range(8)] + [('w', 2, n) for n in range(4)] + [('b', 1, n) for n in range(2)] + [('w', 3, n) for n in range(4)] + [('x', 2, k) for k in range(4)]
            if j <= 10:
                d = []
                for ty, a, b in seq[2 * j:2 * j + 2]:
                    d += {'x': x_dma, 'w': w_dma, 'b': b_dma}[ty](c, a, b)
        fill = d[:1] + fill + d[1:]
        if extra:
            room = max(0, 8 - 1 - len(fill)) + room_extra
            for _ in range(min(room, len(extra))): fill.append(extra.pop(0))
        if j == 0: c.wait_lg((site, 'xf'), lambda t: t in (('XF', s, hh), ('F', u, 0)))
        elif j < 14: c.wait_lg((site, 'f', j), lambda t: t == ('F', u, j))
        elif j == 14: c.wait_lg((site, 'bf'), lambda t: t == ('BF', s, hh))
        if j < 14:
            kind, jt = FFN[j]; a = RING + (j % 7) * 4
        else:
            kind, jt = SSM[j - 14]; a = BH + hh * 16 + (j - 14) * 4
        nf = len(fill); k = 0
        for i in range(4):
            f, b = acc_reg(kind, jt, i)
            c.I('v_mfma_f32_16x16x32_bf16 %s, %s, %s, %s' % (rr(f, b), rr('a', a), rr('a', XSET + (s % 2) * 32 + hh * 16 + i * 4), '0' if first else rr(f, b)))
            take = (nf * (i + 1) + 3) // 4 - k
            for _ in range(take):
                fill[k](); k += 1
        if j == 11 and u != 31:
            if hh == 1: c.wait_vm((site, 'd'), lambda t: t in (('W', u + 1), ('B', s + 1)))
            else: c.wait_vm((site, 'd'), lambda t: t == ('W', u + 1))
            c.I('s_waitcnt lgkmcnt(0)')
            c.lg.q = []
            c.I('s_barrier')

def touch(I, batch):
    ks = 2 + 7 * batch
    I('''
    s_mov_b32 s6, %d
    s_mov_b32 s7, %d
    s_mov_b32 exec_hi, 0x1ffff
    buffer_load_dword a255, v28, s[12:15], s6 offen
    s_mov_b64 exec, 0x3fff
    buffer_load_dword a255, v29, s[16:19], s7 offen
    buffer_load_dword a255, v30, s[8:11], s7 offen
    s_mov_b64 exec, -1
    ''' % (ks * 64 * 7168, ks * 128))

def touch_wd(I):
    I('''
    s_lshl_b32 s6, s2, 2
    s_add_u32 s6, s6, s3
    s_mul_i32 s6, s6, 7168
    v_lshlrev_b32 v26, 7, v17
    s_mov_b32 exec_hi, 0xffffff
    buffer_load_dword a255, v26, s[88:91], s6 offen
    s_mov_b64 exec, -1
    ''')


def c_addr(I):
    I("""
    s_and_b32 s7, s3, 1
    s_lshl_b32 s6, s4, 7
    s_lshl_b32 s70, s7, 6
    s_add_u32 s6, s6, s70
    v_add_u32 v9, s6, v18
    v_lshlrev_b32 v9, 11, v9
    v_lshl_add_u32 v9, v19, 4, v9
    s_lshl_b32 s6, s5, 6
    v_add_u32 v9, s6, v9
    """)

def c_loads(P):
    for k in range(4):
        P('s_cmp_lg_u32 s33, %d' % (k + 1))
        P('s_cbranch_scc1 K1_c%d' % k)
        P('global_load_dwordx4 v[%d:%d], v9, s[86:87] %s' % (32 + 4 * k, 35 + 4 * k, NTC))
        P('v_add_u32 v9, 0x8000, v9')
        P.label('K1_c%d' % k)

def c_stores(c):
    R = Rec(c, 'cs')
    R("""
    s_lshl_b32 s6, s4, 6
    s_lshr_b32 s7, s3, 1
    s_lshl_b32 s7, s7, 5
    s_add_u32 s6, s6, s7
    s_add_u32 s6, s6, s5
    s_lshl_b32 s6, s6, 13
    s_and_b32 s7, s3, 1
    s_lshl_b32 s7, s7, 12
    s_add_u32 s6, s6, s7
    s_add_u32 s6, s6, %d
    v_lshlrev_b32 v20, 4, v17
    """ % WS_C2)
    for k in range(4):
        R.vm('buffer_store_dwordx4 v[%d:%d], v20, s[20:23], s6 offen offset:%d sc1' % (32 + 4 * k, 35 + 4 * k, k * 1024), ('SV',))
    return R.th

def ptouch(I, wd=True):
    I("""
    s_mov_b64 exec, 0x3fff
    buffer_load_dword a255, v28, s[12:15], s95 offen %s
    s_mov_b64 exec, 0xf
    buffer_load_dword a255, v29, s[16:19], s94 offen %s
    buffer_load_dword a255, v30, s[8:11], s94 offen
    """ % (NTT, NTB))
    if wd and WDT: I("""
    s_mov_b64 exec, 0x3ff
    buffer_load_dword a255, v31, s[88:91], s92 offen
    s_add_u32 s92, s92, 1280
    """)
    I("""
    s_mov_b64 exec, -1
    s_add_u32 s95, s95, 917504
    s_add_u32 s94, s94, 256
    s_cmp_lt_u32 s94, 2048
    s_cselect_b32 s94, s94, s77
    """)

def tables_text():
    t = """
    v_lshlrev_b32 v48, 16, v48
    v_lshlrev_b32 v49, 16, v49
    v_lshlrev_b32 v50, 16, v50
    v_mul_f32 v50, 0x3fb8aa3b, v50
    v_exp_f32 v50, v50
    v_cvt_pk_bf16_f32 v50, v50, v50
    v_lshlrev_b32 v50, 16, v50
    v_mul_f32 v51, v50, v48
    v_mul_f32 v52, v50, v49
    v_mul_f32 v51, 0x3fb8aa3b, v51
    v_exp_f32 v51, v51
    v_mul_f32 v52, 0.15915494, v52
    v_fract_f32 v52, v52
    v_cos_f32 v53, v52
    v_sin_f32 v54, v52
    v_mul_f32 v64, v51, v53
    v_mul_f32 v65, v51, v54
    v_add_f32 v51, -1.0, v64
    v_mul_f32 v52, v48, v48
    v_fmac_f32 v52, v49, v49
    v_rcp_f32 v53, v52
    v_mul_f32 v54, v51, v48
    v_fmac_f32 v54, v65, v49
    v_mul_f32 v55, v65, v48
    v_fma_f32 v55, -v51, v49, v55
    v_fma_f32 v52, -v52, v53, 2.0
    v_mul_f32 v53, v53, v52
    v_add_f32 v53, v53, v53
    v_mul_f32 v88, v54, v53
    v_mul_f32 v89, v55, v53
    """
    for k in range(9):
        a = 64 + 2 * k; d = a + 2
        t += """
        v_mul_f32 v%d, v%d, v%d
        v_fma_f32 v%d, -v%d, v%d, v%d
        v_mul_f32 v%d, v%d, v%d
        v_add_f32 v%d, v%d, v%d
        """ % (d, a, a, d, a + 1, a + 1, d, d + 1, a, a + 1, d + 1, d + 1, d + 1)
    t += """
    v_lshrrev_b32 v51, 5, v0
    v_mov_b32 v56, 1.0
    v_mov_b32 v57, 0
    v_mov_b32 v60, 1.0
    v_mov_b32 v61, 0
    """
    def cm(dr, di, ar, ai, br, bi):
        return """
        v_mul_f32 v%d, v%d, v%d
        v_fma_f32 v%d, -v%d, v%d, v%d
        v_mul_f32 v%d, v%d, v%d
        v_fmac_f32 v%d, v%d, v%d
        """ % (dr, ar, br, dr, ai, bi, dr, di, ar, bi, di, ai, br)
    for b in range(3):
        a = 68 + 2 * b; a2 = 76 + 2 * b
        t += 'v_and_b32 v54, %d, v51\nv_cmp_ne_u32 vcc, 0, v54\n' % (1 << b)
        t += cm(52, 53, 56, 57, a, a + 1) + cm(62, 63, 60, 61, a2, a2 + 1)
        t += """
        v_cndmask_b32 v56, v56, v52, vcc
        v_cndmask_b32 v57, v57, v53, vcc
        v_cndmask_b32 v60, v60, v62, vcc
        v_cndmask_b32 v61, v61, v63, vcc
        """
    t += cm(58, 59, 56, 57, 74, 75)
    t += cm(62, 63, 60, 61, 82, 83) + cm(84, 85, 62, 63, 82, 83) + cm(86, 87, 84, 85, 82, 83)
    t += """
    v_and_b32 v52, 31, v0
    v_lshlrev_b32 v52, 2, v52
    v_lshl_add_u32 v53, v51, 8, v52
    v_add_u32 v53, %d, v53
    v_add_u32 v52, %d, v52
    ds_write2_b32 v53, v56, v57 offset0:0 offset1:32
    ds_write_b32 v53, v58 offset:2048
    ds_write_b32 v53, v59 offset:2176
    """ % (POW, TAB)
    for k, r in enumerate((60, 62, 84, 86)):
        t += 'ds_write_b32 v53, v%d offset:%d\nds_write_b32 v53, v%d offset:%d\n' % (r, 4096 + k * 2048, r + 1, 4096 + k * 2048 + 128)
    for idx, r in enumerate([64, 68, 70, 72]):
        t += 'ds_write2_b32 v52, v%d, v%d offset0:%d offset1:%d\n' % (r, r + 1, idx * 64, idx * 64 + 32)
    for idx, r in ((4, 74), (5, 88)):
        t += 'ds_write_b32 v52, v%d offset:%d\nds_write_b32 v52, v%d offset:%d\n' % (r, idx * 256, r + 1, idx * 256 + 128)
    return [l.strip() for l in t.splitlines() if l.strip()]

class Rec:
    def __init__(self, c, name):
        self.c = c; self.th = []; self.name = name; self.n = 0
    def __call__(self, text):
        for l in text.strip('\n').split('\n'):
            l = l.strip()
            if l: self.th.append(lambda l=l: self.c.I(l))
    def blk(self, items):
        def f():
            for k, t in items:
                if k == 'vm': self.c.vmem(t, ('SV',))
                else: self.c.I(t)
        self.th.append(f)
    def ds(self, text, tag): self.th.append(lambda: self.c.ds(text, tag))
    def vm(self, text, tag): self.th.append(lambda: self.c.vmem(text, tag))
    def wl(self, tag):
        self.n += 1; site = (self.name, 'l', self.n)
        self.th.append(lambda: self.c.wait_lg(site, lambda t: t == tag))
    def wv(self, tag):
        self.n += 1; site = (self.name, 'v', self.n)
        self.th.append(lambda: self.c.wait_vm(site, lambda t: t == tag))

def g_work(c):
    R = Rec(c, 'g')
    R("""
    s_lshl_b32 s6, s4, 1
    s_lshr_b32 s7, s3, 1
    s_add_u32 s6, s6, s7
    s_lshl_b32 s6, s6, 6
    s_lshl_b32 s7, s5, 1
    s_add_u32 s6, s6, s7
    s_and_b32 s7, s3, 1
    s_add_u32 s6, s6, s7
    s_lshl_b32 s76, s6, 7
    s_add_u32 s76, s76, %d
    s_add_u32 s7, s76, 0x20000
    v_mov_b32 v21, 0
    s_lshl_b32 s70, s71, 11
    v_lshlrev_b32 v25, 5, v17
    s_lshl_b32 s6, s2, 2
    s_add_u32 s6, s6, s3
    s_lshl_b32 s6, s6, 7
    s_add_u32 s6, s6, %d
    """ % (WS_FL, WS_FL + 0x40000))
    R.vm('buffer_load_dwordx4 v[64:67], v25, s[8:11], s70 offen', ('GL',))
    R.vm('buffer_load_dwordx4 v[68:71], v25, s[8:11], s70 offen offset:16', ('GL',))
    R.vm('buffer_load_dwordx4 v[72:75], v25, s[8:11], s70 offen offset:2048', ('GL',))
    R.vm('buffer_load_dwordx4 v[76:79], v25, s[8:11], s70 offen offset:2064', ('GL',))
    R.vm('global_load_dwordx4 v[80:83], v25, s[62:63]', ('GL',))
    R.vm('global_load_dwordx4 v[84:87], v25, s[62:63] offset:16', ('GL',))
    R.blk([('i', 's_mov_b64 exec, 1'), ('vm', 'buffer_store_dword v21, off, s[20:23], s76 sc1'), ('vm', 'buffer_store_dword v21, off, s[20:23], s7 sc1'), ('vm', 'buffer_store_dword v21, off, s[20:23], s6 sc1'), ('i', 's_mov_b64 exec, -1')])
    first = len(R.th)
    R.wv(('GL',))
    G = 48
    for d in range(8):
        R('v_and_b32 v%d, 0xffff0000, v%d\nv_lshlrev_b32 v%d, 16, v%d' % (G + 3, 80 + d, G + 2, 80 + d))
        for row in range(2):
            xr = 64 + row * 8 + d; a = G + 4 + row * 2; t = G + 8 + row * 2
            R("""
            v_and_b32 v%d, 0xffff0000, v%d
            v_lshlrev_b32 v%d, 16, v%d
            v_pk_mul_f32 v[%d:%d], v[%d:%d], v[%d:%d]
            v_cvt_pk_bf16_f32 v%d, v%d, v%d
            v_and_b32 v%d, 0xffff0000, v%d
            v_lshlrev_b32 v%d, 16, v%d
            """ % (t + 1, xr, t, xr, t, t + 1, t, t + 1, G + 2, G + 3, t, t, t + 1, t + 1, t, t, t))
            if d == 0: R('v_mov_b64 v[%d:%d], v[%d:%d]' % (a, a + 1, t, t + 1))
            else: R('v_pk_add_f32 v[%d:%d], v[%d:%d], v[%d:%d]' % (a, a + 1, a, a + 1, t, t + 1))
    for row in range(2):
        a = G + 4 + row * 2
        R('v_add_f32 v%d, v%d, v%d' % (a, a, a + 1))
    for sh in (1, 2, 4, 8):
        for row in range(2):
            a = G + 4 + row * 2
            R('v_add_f32_dpp v%d, v%d, v%d row_shr:%d row_mask:0xf bank_mask:0xf bound_ctrl:0' % (a, a, a, sh))
    for row in range(2):
        for k in range(4):
            R('v_readlane_b32 s%d, v%d, %d' % (78 + row * 4 + k, G + 4 + row * 2, 15 + 16 * k))
    R("""
    v_mov_b32 v48, s78
    v_add_f32 v48, s79, v48
    v_add_f32 v48, s80, v48
    v_add_f32 v48, s81, v48
    v_mov_b32 v49, s82
    v_add_f32 v49, s83, v49
    v_add_f32 v49, s84, v49
    v_add_f32 v49, s85, v49
    v_cvt_pk_bf16_f32 v48, v48, v49
    v_lshlrev_b32 v49, 16, v48
    v_and_b32 v50, 0xffff0000, v48
    v_mul_f32 v49, 0xbfb8aa3b, v49
    v_mul_f32 v50, 0xbfb8aa3b, v50
    v_exp_f32 v49, v49
    v_exp_f32 v50, v50
    v_add_f32 v49, 1.0, v49
    v_add_f32 v50, 1.0, v50
    v_rcp_f32 v49, v49
    v_rcp_f32 v50, v50
    v_cvt_pk_bf16_f32 v48, v49, v50
    v_lshlrev_b32 v50, 16, v48
    v_and_b32 v51, 0xffff0000, v48
    s_lshl_b32 s6, s71, 2
    s_add_u32 s6, s6, %d
    """ % WS_G)
    R.blk([('i', 's_mov_b64 exec, 1'), ('vm', 'buffer_store_dwordx2 v[50:51], off, s[20:23], s6 sc1'), ('i', 's_mov_b64 exec, -1')])
    return R.th[:first], R.th[first:]
def as_fill(c, lines):
    out = []
    for l in lines:
        if l.startswith('ds_'): out.append(lambda l=l: c.ds(l, ('T',)))
        else: out.append(lambda l=l: c.I(l))
    return out

def run(ths):
    for t in ths: t()

def prologue(c):
    I = c.I
    I('''
    s_cmp_ge_u32 s2, 256
    s_cbranch_scc1 K1_done
    s_load_dwordx16 s[36:51], s[0:1], 0
    s_load_dwordx16 s[52:67], s[0:1], 64
    s_load_dwordx2 s[68:69], s[0:1], 128
    v_lshrrev_b32 v16, 6, v0
    v_and_b32 v17, 63, v0
    v_readfirstlane_b32 s3, v16
    s_lshr_b32 s4, s2, 5
    s_and_b32 s5, s2, 7
    s_lshl_b32 s5, s5, 2
    s_bfe_u32 s6, s2, 0x20003
    s_add_u32 s5, s5, s6
    v_and_b32 v18, 15, v0
    v_bfe_u32 v19, v0, 4, 2
    v_lshrrev_b32 v20, 3, v17
    v_and_b32 v21, 7, v17
    v_xor_b32 v21, v21, v20
    s_lshl_b32 s6, s4, 8
    s_lshl_b32 s7, s3, 6
    s_add_u32 s6, s6, s7
    v_lshl_add_u32 v1, v20, 2, s6
    v_lshlrev_b32 v1, 11, v1
    v_lshl_add_u32 v1, v21, 4, v1
    v_add_u32 v2, 0xfc00, v1
    s_mov_b32 s10, 0x400000
    s_mov_b32 s11, 0x00020000
    s_mov_b32 s14, 0x700000
    s_mov_b32 s15, 0x00020000
    s_mov_b32 s18, 0x200000
    s_mov_b32 s19, 0x00020000
    s_mov_b32 s22, 0x10000000
    s_mov_b32 s23, 0x00020000
    s_mov_b32 s26, 256
    s_mov_b32 s27, 0x00020000
    s_mov_b32 s90, 0x700000
    s_mov_b32 s91, 0x00020000
    s_mov_b32 s28, 0
    s_mov_b32 s29, 4096
    s_mov_b32 s30, 0
    s_mov_b32 s31, 0
    s_mov_b32 s77, 0x%x
    s_lshl_b32 s32, s3, 12
    s_add_u32 s32, s32, %d
    s_lshl_b32 s34, s3, 14
    s_lshl_b32 s35, s3, 11
    s_add_u32 s35, s35, %d
    v_lshrrev_b32 v22, 2, v20
    v_and_b32 v23, 3, v20
    v_lshl_add_u32 v22, v22, 3, v23
    s_and_b32 s7, s3, 1
    s_lshl_b32 s6, s5, 5
    s_lshl_b32 s70, s7, 2
    s_add_u32 s6, s6, s70
    v_add_u32 v22, s6, v22
    v_lshlrev_b32 v22, 11, v22
    v_lshl_add_u32 v10, v21, 4, v22
    v_add_u32 v11, 0x7c00, v10
    s_mul_i32 s72, s5, 224
    s_mul_i32 s70, s7, 28672
    s_add_u32 s72, s72, s70
    s_and_b32 s73, s5, 1
    s_lshl_b32 s73, s73, 1
    s_movk_i32 s74, 4682
    s_movk_i32 s75, 7168
    s_waitcnt lgkmcnt(0)
    s_mov_b32 s8, s36
    s_mov_b32 s9, s37
    s_cmp_ge_u32 s3, 2
    s_cselect_b32 s12, s58, s56
    s_cselect_b32 s13, s59, s57
    s_cselect_b32 s16, s44, s42
    s_cselect_b32 s17, s45, s43
    s_cselect_b32 s86, s48, s46
    s_cselect_b32 s87, s49, s47
    s_mov_b32 s20, s68
    s_mov_b32 s21, s69
    s_mov_b32 s24, s66
    s_mov_b32 s25, s67
    s_mov_b32 s88, s60
    s_mov_b32 s89, s61
    ''' % (OOB, WB, BB))
    stamp(I, 0); stamp_rt(I, 10)
    if PT:
        I('''
        s_lshr_b32 s78, s2, 3
        s_lshl_b32 s78, s78, 2
        s_add_u32 s78, s78, s3
        s_and_b32 s79, s78, 15
        s_lshr_b32 s80, s78, 4
        s_mov_b32 s82, 0x11111112
        s_mov_b32 s83, 0x14144401
        s_lshl_b32 s81, s79, 2
        s_lshr_b64 s[82:83], s[82:83], s81
        s_and_b32 s82, s82, 15
        s_cmp_lt_u32 s80, s82
        s_cselect_b32 s79, s79, 0
        s_cselect_b32 s80, s80, 0
        s_sub_u32 s81, s78, 64
        s_cmp_lt_u32 s81, 20
        s_cselect_b32 s79, 16, s79
        s_cselect_b32 s80, s81, s80
        s_lshl_b32 s79, s79, 3
        s_lshl_b32 s80, s80, 21
        s_load_dwordx2 s[82:83], s[0:1], s79
        ''')
    for l in range(64): assert (l * 37) >> 8 == l // 7
    I("""
    v_mul_u32_u24 v26, 37, v17
    v_lshrrev_b32 v26, 8, v26
    v_mul_u32_u24 v27, 7, v26
    v_sub_u32 v27, v17, v27
    v_lshlrev_b32 v27, 7, v27
    s_lshr_b32 s6, s2, 3
    s_lshl_b32 s6, s6, 1
    s_add_u32 s6, s6, s7
    s_lshl_b32 s6, s6, 1
    s_and_b32 s70, s2, 7
    v_add_u32 v28, s6, v26
    v_mul_u32_u24 v28, s75, v28
    v_add_u32 v28, v28, v27
    s_mul_i32 s71, s70, 896
    v_add_u32 v28, s71, v28
    v_lshrrev_b32 v26, 1, v17
    v_and_b32 v27, 1, v17
    v_lshlrev_b32 v27, 7, v27
    s_lshl_b32 s71, s70, 7
    s_add_u32 s71, s71, s6
    v_add_u32 v29, s71, v26
    v_lshl_add_u32 v29, v29, 11, v27
    s_lshl_b32 s6, s4, 8
    s_lshl_b32 s70, s5, 3
    s_add_u32 s6, s6, s70
    s_lshl_b32 s70, s3, 1
    s_add_u32 s71, s6, s70
    v_add_u32 v30, s71, v26
    v_lshl_add_u32 v30, v30, 11, v27
    s_mov_b32 s94, %d
    s_mov_b32 s95, %d
    s_lshl_b32 s92, s2, 2
    s_add_u32 s92, s92, s3
    s_mul_i32 s92, s92, 7168
    v_lshlrev_b32 v31, 7, v17
    """ % (TS0 * 128, TS0 * 458752))
    for _ in range(TPRE): ptouch(I, wd=False)
    for k in range(8): run(x_dma(c, 0, k))
    if PT:
        I('s_waitcnt lgkmcnt(0)')
        I('s_load_dword s81, s[82:83], s80')
    for n in range(4):
        I('''
        v_add_u32 v20, %d, v17
        v_mul_u32_u24 v21, s74, v20
        v_lshrrev_b32 v21, 16, v21
        v_mul_u32_u24 v22, 14, v21
        v_sub_u32 v22, v20, v22
        v_add_u32 v22, s73, v22
        v_subrev_u32 v23, 14, v22
        v_min_u32 v22, v22, v23
        v_lshrrev_b32 v23, 2, v21
        v_and_b32 v21, 3, v21
        v_lshl_add_u32 v21, v23, 3, v21
        v_mul_u32_u24 v21, s75, v21
        v_lshl_add_u32 v21, v22, 4, v21
        v_add_u32 v21, s72, v21
        v_subrev_u32 v%d, %d, v21
        ''' % (n * 64, 3 + n, n * 1024))
        if n == 3:
            I('v_mov_b32 v20, s77\nv_cmp_gt_u32 vcc, 32, v17\nv_cndmask_b32 v6, v20, v6, vcc')
        run(w_dma(c, 0, n))
    for n in range(2): run(b_dma(c, 0, n))
    for n in range(4): run(w_dma(c, 1, n))
    I('''
    v_and_b32 v24, 31, v0
    v_lshl_add_u32 v24, s5, 5, v24
    v_lshlrev_b32 v24, 1, v24
    ''')
    c.vmem('global_load_ushort v48, v24, s[38:39]', ('S',))
    c.vmem('global_load_ushort v49, v24, s[40:41]', ('S',))
    c.vmem('global_load_ushort v50, v24, s[50:51]', ('S',))
    if not DEFER:
        for k in range(8): run(x_dma(c, 1, k))
        for n in range(4): run(w_dma(c, 2, n))
        for n in range(2): run(b_dma(c, 1, n))
        for n in range(3): run(w_dma(c, 3, n))
    c_addr(I)
    I('''
    s_lshl_b32 s6, s5, 5
    s_lshl_b32 s7, s4, 2
    s_add_u32 s6, s6, s7
    s_add_u32 s6, s6, s3
    s_lshl_b32 s6, s6, 8
    s_add_u32 s6, s6, %d
    v_lshlrev_b32 v26, 4, v17
    v_mov_b32 v24, -1
    v_mov_b32 v25, -1
    v_mov_b32 v22, -1
    v_mov_b32 v23, -1
    s_mov_b64 exec, 0xffff
    ''' % WS_T)
    c.vmem('buffer_store_dwordx4 v[22:25], v26, s[20:23], s6 offen sc1', ('SV',))
    I('''
    s_mov_b64 exec, -1
    s_bfe_u32 s93, s2, 0x20005
    s_add_u32 s93, s93, 1
    s_cmp_eq_u32 s3, 0
    s_cselect_b32 s93, s93, 99
    ''')
    I('''
    v_lshrrev_b32 v26, 2, v18
    v_lshl_add_u32 v26, v19, 2, v26
    v_mul_u32_u24 v26, 224, v26
    v_and_b32 v27, 3, v17
    v_lshl_add_u32 v12, v27, 3, v26
    v_add_u32 v12, %d, v12
    v_and_b32 v26, 7, v17
    v_xor_b32 v26, v26, v19
    v_lshlrev_b32 v26, 4, v26
    v_lshl_add_u32 v26, v18, 7, v26
    v_add_u32 v13, %d, v26
    v_xor_b32 v14, 64, v13
    v_add_u32 v7, s34, v26
    v_xor_b32 v8, 64, v7
    s_mov_b32 s33, 0
    ''' % (WB, BB))
    stamp(I, 3)
    c.wait_vm(('d0',), lambda t: t in (('W', 0), ('B', 0), ('X', 0)))
    I('s_barrier')
    stamp(I, 4)
    for i in range(4): x_read(c, 0, 0, i)()
    for t in range(5): run(w_read(c, 0, t))
    for i in range(4): x_read(c, 0, 1, i)()
    for k in range(4): b_read(c, 0, 0, k)()


RR = lambda jt, i: acc_reg('R', jt, i)[1]
II = lambda jt, i: acc_reg('I', jt, i)[1]
BA, BBk, BC, BD = 32, 48, 64, 80

def ld16(R, base_v, off, dst, tag):
    R.ds('ds_read_b128 v[%d:%d], v%d offset:%d' % (dst, dst + 3, base_v, off), tag)
    R.ds('ds_read_b128 v[%d:%d], v%d offset:%d' % (dst + 4, dst + 7, base_v, off + 16), tag)
    R.ds('ds_read_b128 v[%d:%d], v%d offset:%d' % (dst + 8, dst + 11, base_v, off + 128), tag)
    R.ds('ds_read_b128 v[%d:%d], v%d offset:%d' % (dst + 12, dst + 15, base_v, off + 144), tag)

def s1_pre(c):
    R = Rec(c, 's1p')
    R('v_lshlrev_b32 v20, 5, v19')
    R('v_add_u32 v20, %d, v20' % TAB)
    ld16(R, 20, 0, BA, ('K', 0)); ld16(R, 20, 256, BBk, ('K', 1))
    R("""
    s_lshl_b32 s78, s4, 2
    s_add_u32 s78, s78, s3
    s_lshl_b32 s79, s5, 13
    s_add_u32 s79, s79, %d
    s_lshl_b32 s80, s78, 8
    s_add_u32 s80, s80, s79
    v_lshlrev_b32 v21, 6, v19
    s_sub_u32 s81, s78, 1
    v_sub_u32 v22, s81, v18
    v_subrev_u32 v23, 16, v22
    v_cmp_gt_u32 vcc, 32, v22
    v_lshl_add_u32 v22, v22, 8, v21
    v_mov_b32 v24, s77
    v_cndmask_b32 v22, v24, v22, vcc
    v_cmp_gt_u32 vcc, 32, v23
    v_lshl_add_u32 v23, v23, 8, v21
    s_lshl_b32 s7, s5, 2
    v_cndmask_b32 v23, v24, v23, vcc
    v_cmp_eq_u32 s[82:83], 15, v18
    """ % WS_T)
    R('v_and_b32 v26, 31, v17')
    R('v_lshlrev_b32 v26, 2, v26')
    R.vm('buffer_load_dword v25, v26, s[24:27], 0 offen offset:128 sc1', ('IF',))
    return R.th

def s1_work(c):
    R = Rec(c, 's1')
    LAM, CA, E, T = BA, BBk, BC, BD
    R.wl(('K', 0))
    cur = None; bufs = [E, T]
    for i in range(1, 4):
        d = bufs[i & 1]
        for jt in range(2):
            for h in range(2):
                o = jt * 4 + 2 * h
                if cur is None: br, bi = RR(jt, 0) + 2 * h, II(jt, 0) + 2 * h
                else: br, bi = cur + o, cur + 8 + o
                cmul_pk(R, d + o, d + 8 + o, LAM + o, LAM + 8 + o, br, bi, RR(jt, i) + 2 * h, II(jt, i) + 2 * h)
        cur = d
    S = E
    for k, sh in enumerate((1, 2, 4, 8)):
        for r in range(16):
            R('v_mov_b32_dpp v%d, v%d row_shr:%d row_mask:0xf bank_mask:0xf bound_ctrl:0' % (S + r, cur + r, sh))
        R.wl(('K', 1 + k))
        for o in range(0, 8, 2):
            cmul_pk(R, cur + o, cur + 8 + o, CA + o, CA + 8 + o, S + o, S + 8 + o, cur + o, cur + 8 + o)
        if k < 3: ld16(R, 20, (2 + k) * 256, CA, ('K', 2 + k))
    R.blk([('i', 's_mov_b64 exec, s[82:83]')] +
          [('vm', 'buffer_store_dwordx4 v[%d:%d], v21, s[20:23], s80 offen offset:%d sc1' % (cur + 4 * k, cur + 4 * k + 3, 16 * k)) for k in range(4)] +
          [('i', 's_mov_b64 exec, -1')])
    for r in range(16):
        R('v_mov_b32_dpp v%d, v%d row_shr:1 row_mask:0xf bank_mask:0xf bound_ctrl:0' % (S + r, cur + r))
    return R.th

def last_stage(c):
    s = 15
    order = [('S', 0, k) for k in range(4)] + [('S', 1, k) for k in range(4)] + [('F', 30, t) for t in range(14)] + [('F', 31, t) for t in range(14)]
    pre = s1_pre(c); work = s1_work(c)
    nF = 28
    per = -(-len(work) // (nF - 2))
    for n, (ty, a, b) in enumerate(order):
        fill = []
        site = ('Z', n)
        if ty == 'S':
            hh, k = a, b
            if hh == 0: fill.append(b_read(c, s, 1, k))
            for _ in range(min(5, len(pre))): fill.append(pre.pop(0))
            if k == 0: c.wait_lg((site, 'bf'), lambda t: t in (('BF', s, hh), ('XF', s, hh)))
            kind, jt = SSM[k]; areg = BH + hh * 16 + k * 4
        else:
            u, t = a, b; hh = u & 1
            if t <= 8: fill += w_read(c, u, t + 5)
            if u == 30 and t >= 10:
                for tt in {10: [], 11: [0], 12: [1, 2], 13: [3, 4]}[t]: fill += w_read(c, 31, tt)
            assert not pre
            if n >= 10:
                for _ in range(min(per, len(work))): fill.append(work.pop(0))
            c.wait_lg((site, 'f'), lambda tg: tg == ('F', u, t))
            kind, jt = FFN[t]; areg = RING + (t % 7) * 4
        nf = len(fill); k2 = 0
        for i in range(4):
            f, bb = acc_reg(kind, jt, i)
            c.I('v_mfma_f32_16x16x32_bf16 %s, %s, %s, %s' % (rr(f, bb), rr('a', areg), rr('a', XSET + 32 + hh * 16 + i * 4), rr(f, bb)))
            take = (nf * (i + 1) + 3) // 4 - k2
            for _ in range(take):
                fill[k2](); k2 += 1
        if ty == 'F' and a == 30 and b == 9:
            c.wait_vm((site, 'd'), lambda t: t == ('W', 31))
            c.I('s_barrier')
    assert not work


def cmul16(P, d, a, b, c=None):
    p = lambda r: 'v[%d:%d]' % (r, r + 1)
    G = range(0, 8, 2)
    for o in G:
        if c is None: P('v_pk_mul_f32 %s, %s, %s' % (p(d(o)[0]), p(a(o)[0]), p(b(o)[0])))
        else: P('v_pk_fma_f32 %s, %s, %s, %s' % (p(d(o)[0]), p(a(o)[0]), p(b(o)[0]), p(c(o)[0])))
    for o in G:
        if c is None: P('v_pk_mul_f32 %s, %s, %s' % (p(d(o)[1]), p(a(o)[0]), p(b(o)[1])))
        else: P('v_pk_fma_f32 %s, %s, %s, %s' % (p(d(o)[1]), p(a(o)[0]), p(b(o)[1]), p(c(o)[1])))
    for o in G:
        P('v_pk_fma_f32 %s, %s, %s, %s neg_lo:[1,0,0] neg_hi:[1,0,0]' % (p(d(o)[0]), p(a(o)[1]), p(b(o)[1]), p(d(o)[0])))
    for o in G:
        P('v_pk_fma_f32 %s, %s, %s, %s' % (p(d(o)[1]), p(a(o)[1]), p(b(o)[0]), p(d(o)[1])))
blk = lambda base: (lambda o: (base + o, base + 8 + o))
uacc = lambda i: (lambda o: (RR(o >> 2, i) + (o & 3), II(o >> 2, i) + (o & 3)))

def ffn_out2(P, items, dst, tmp):
    ch = []
    for n, (jt, i) in enumerate(items):
        for h in range(2):
            ta = tmp + (n * 2 + h) * 4; tb = ta + 2
            seq = []
            srcs = []
            for kind, t in (('G', ta), ('U', tb)):
                f, b = acc_reg(kind, jt, i)
                if f == 'a':
                    seq.append('v_accvgpr_read_b32 v%d, a%d' % (t, b + 2 * h))
                    seq.append('v_accvgpr_read_b32 v%d, a%d' % (t + 1, b + 2 * h + 1))
                    srcs.append(t)
                else: srcs.append(b + 2 * h)
            g0, u0 = srcs
            if k1.EMUL:
                seq += ['v_cvt_pk_bf16_f32 v%d, v%d, v%d' % (ta, g0, g0 + 1),
                        'v_cvt_pk_bf16_f32 v%d, v%d, v%d' % (tb, u0, u0 + 1),
                        'v_pk_max_i16 v%d, v%d, 0' % (ta, ta),
                        'v_and_b32 v%d, 0xffff0000, v%d' % (tb + 1, tb),
                        'v_lshlrev_b32 v%d, 16, v%d' % (tb, tb),
                        'v_and_b32 v%d, 0xffff0000, v%d' % (ta + 1, ta),
                        'v_lshlrev_b32 v%d, 16, v%d' % (ta, ta),
                        'v_pk_mul_f32 v[%d:%d], v[%d:%d], v[%d:%d]' % (ta, ta + 1, ta, ta + 1, tb, tb + 1)]
            else:
                seq += ['v_max_f32 v%d, 0, v%d' % (ta, g0), 'v_max_f32 v%d, 0, v%d' % (ta + 1, g0 + 1),
                        'v_pk_mul_f32 v[%d:%d], v[%d:%d], v[%d:%d]' % (ta, ta + 1, ta, ta + 1, u0, u0 + 1)]
            seq.append('v_cvt_pk_bf16_f32 v%d, v%d, v%d' % (dst + 2 * n + h, ta, ta + 1))
            ch.append(seq)
    m = max(len(x) for x in ch)
    for k in range(m):
        for x in ch:
            kk = k - (m - len(x))
            if kk >= 0: P(x[kk])

NS = 5
ACT = 96
WF = 32
FD = 3
def acc2(tau, jt): return (tau * 8 + jt) * 4
def a_setup(c):
    return [lambda: c.I('s_cmp_gt_i32 s32, 0'), lambda: c.I('s_cselect_b32 s86, s28, s77'),
            lambda: c.I('s_sub_u32 s32, s32, 1'), lambda: c.I('s_add_u32 s28, s28, 8192')]
def w_setup(c):
    return [lambda: c.I('s_cmp_gt_i32 s29, 0'), lambda: c.I('s_cselect_b32 s87, s30, s77'), lambda: c.I('s_cselect_b32 s88, s35, s77'),
            lambda: c.I('s_sub_u32 s29, s29, 1'), lambda: c.I('s_add_u32 s30, s30, s34'), lambda: c.I('s_add_u32 s35, s35, s34')]
def act_loads(c, n):
    return [lambda tau=tau: c.vmem('buffer_load_dwordx4 %s, v%d, s[20:23], s86 offen offset:%d sc1' % (rr('v', ACT + (n % NS) * 32 + tau * 4), 1 + (tau >> 2), (tau & 3) * 1024), ('A', n)) for tau in range(8)]
def w_loads(c, n, role):
    th = []
    for k in range(8):
        def f(k=k):
            if k & 3 == 0: c.I('s_add_u32 m0, s31, %d' % ((n % NS) * 8192 + (k >> 2) * 4096))
            c.vmem('buffer_load_dwordx4 v%d, s[16:19], s%d offen offset:%d %s lds' % (3 + (k & 3), 87 + (k >> 2), (k & 3) * 1024, 'sc1' if role == 'Y' else ''), ('W', n))
        th.append(f)
    return th
def frag_read(c, role, n, jt):
    reg = WF + jt * 4
    so = (n % NS) * 8192
    if role == 'Y':
        return [lambda: c.ds('ds_read_b128 %s, v7 offset:%d' % (rr('v', reg), so + jt * 1024), ('F', n, jt))]
    return [lambda e=e: c.ds('ds_read_b64_tr_b16 v[%d:%d], v%d offset:%d' % (reg + 2 * e, reg + 2 * e + 1, 7 + jt, so + e * 2048), ('F', n, jt)) for e in range(2)]

def step2(c, role, n, first=False):
    site = (role, 'first' if first else n % NS)
    a = act_loads(c, n + NS - 1); w = w_loads(c, n + NS - 1, role)
    vm = []
    for k in range(8): vm += [w[k], a[k]]
    setup = w_setup(c) + a_setup(c)
    c.wait_vm((site, 'a'), lambda t: t == ('A', n))
    for jt in range(8):
        slots = [[] for _ in range(8)]
        jn, nn = jt + FD, n
        if jn >= 8: jn -= 8; nn += 1
        fr = frag_read(c, role, nn, jn)
        if jt + FD == 8:
            slots[0].append(lambda: c.wait_vm((site, 'w'), lambda t: t == ('W', n + 1)))
        for k, f in enumerate(fr): slots[1 + k].append(f)
        if jt == 0:
            for k, f in enumerate(setup): slots[min(k // 2, 5)].append(f)
            slots[6].append(vm[0]); slots[7].append(vm[1])
        else:
            slots[3].append(vm[2 * jt]); slots[6].append(vm[2 * jt + 1])
        c.wait_lg((site, 'f', jt), lambda t: t == ('F', n, jt))
        for tau in range(8):
            b = acc2(tau, jt)
            c.I('v_mfma_f32_16x16x32_bf16 %s, %s, %s, %s' % (rr('a', b), rr('v', WF + jt * 4), rr('v', ACT + (n % NS) * 32 + tau * 4), '0' if first else rr('a', b)))
            for th in slots[tau]: th()

def p2_setup(P):
    k0 = [112, 134, 155, 0, 22, 45, 68, 90]
    cn = [22, 21, 21, 22, 23, 23, 22, 22]
    pk = lambda a: sum(v << (8 * i) for i, v in enumerate(a))
    P('''
    s_bfe_u32 s92, s2, 0x10002
    s_lshl_b32 s92, s92, 3
    s_bfe_u32 s6, s2, 0x30003
    s_add_u32 s92, s92, s6
    s_bfe_u32 s93, s2, 0x10001
    s_lshl_b32 s93, s93, 2
    s_lshr_b32 s6, s2, 6
    s_add_u32 s93, s93, s6
    s_and_b32 s94, s2, 1
    s_lshl_b32 s95, s94, 2
    s_add_u32 s95, s95, s3
    s_lshl_b32 s6, s95, 3
    s_mov_b32 s86, 0x%x
    s_mov_b32 s87, 0x%x
    s_lshr_b64 s[86:87], s[86:87], s6
    s_and_b32 s89, s86, 0xff
    s_mov_b32 s86, 0x%x
    s_mov_b32 s87, 0x%x
    s_lshr_b64 s[86:87], s[86:87], s6
    s_and_b32 s33, s86, 0xff
    s_mov_b32 s32, s33
    s_mov_b32 s29, s33
    s_mov_b32 s12, s64
    s_mov_b32 s13, s65
    s_mov_b32 s14, 0x800000
    v_lshlrev_b32 v84, 4, v17
    s_mul_i32 s6, s92, %d
    v_add_u32 v1, s6, v84
    v_add_u32 v2, 0x1000, v1
    s_lshl_b32 s28, s89, 13
    s_mul_i32 s31, s3, %d
    s_cmp_lt_u32 s95, 3
    s_cbranch_scc1 P2_setY
    ''' % (pk(k0[:4]), pk(k0[4:]), pk(cn[:4]), pk(cn[4:]), NKB * 8192, NS * 8192))
    P('''
    s_mov_b32 s16, s60
    s_mov_b32 s17, s61
    s_mov_b32 s18, 0x700000
    v_lshlrev_b32 v84, 1, v19
    v_xor_b32 v84, v84, v18
    v_xor_b32 v85, 8, v84
    s_lshl_b32 s6, s93, 8
    v_lshl_add_u32 v86, v19, 11, s6
    v_lshl_add_u32 v3, v84, 4, v86
    v_lshl_add_u32 v4, v85, 4, v86
    v_add_u32 v4, 7168, v4
    v_add_u32 v5, 14336, v3
    v_add_u32 v6, 14336, v4
    s_lshl_b32 s30, s89, 16
    s_add_u32 s35, s30, 32768
    s_mov_b32 s34, 65536
    ''')
    c = Ctx(P, {})
    for n in range(3):
        run(w_setup(c)); run(w_loads(c, n, 'B'))
    P('''
    v_lshrrev_b32 v84, 2, v18
    v_lshl_add_u32 v84, v19, 2, v84
    v_and_b32 v85, 7, v84
    v_and_b32 v86, 8, v84
    v_lshl_add_u32 v84, v86, 1, v85
    v_and_b32 v86, 3, v17
    v_lshlrev_b32 v84, 8, v84
    v_lshl_add_u32 v84, v86, 3, v84
    v_add_u32 v84, s31, v84
    v_lshl_add_u32 v7, v85, 5, v84
    s_lshl_b32 s7, s94, 7
    v_xor_b32 v7, s7, v7
    ''')
    for jt in range(1, 8): P('v_xor_b32 v%d, %d, v7' % (7 + jt, jt * 32))
    P('s_branch P2_setdone')
    P.label('P2_setY')
    P('''
    s_mov_b32 s16, s68
    s_mov_b32 s17, s69
    s_mov_b32 s18, 0x10000000
    s_lshl_b32 s6, s93, 19
    s_add_u32 s6, s6, %d
    v_add_u32 v3, s6, v84
    v_mov_b32 v4, v3
    v_mov_b32 v5, v3
    v_mov_b32 v6, v3
    s_sub_u32 s30, s89, 112
    s_lshl_b32 s30, s30, 13
    s_add_u32 s35, s30, 4096
    s_mov_b32 s34, 8192
    v_add_u32 v7, s31, v84
    ''' % WS_C2)
    P.label('P2_setdone')

def epilogue(P):
    LAM, CA, S, T = BA, BBk, BC, BD
    stamp(P, 5)
    if int(os.environ.get('BURN', '0')):
        P('s_mov_b32 s6, 0')
        P('v_accvgpr_write_b32 a252, 0\nv_accvgpr_write_b32 a253, 0\nv_accvgpr_write_b32 a254, 0\nv_accvgpr_write_b32 a255, 0\ns_nop 4')
        P.label('BURN_l')
        for k in range(16): P('v_mfma_f32_16x16x32_bf16 a[252:255], a[%d:%d], a[%d:%d], a[252:255]' % (192 + (k % 7) * 4, 195 + (k % 7) * 4, 128 + k * 4, 131 + k * 4))
        P('s_add_u32 s6, s6, 1\ns_cmp_lt_u32 s6, %d\ns_cbranch_scc1 BURN_l' % int(os.environ['BURN']))
    P('s_waitcnt lgkmcnt(0)')
    P('s_barrier')
    p2_setup(P)
    P("""
    s_lshl_b32 s6, s4, 1
    s_lshr_b32 s7, s3, 1
    s_add_u32 s6, s6, s7
    s_mul_i32 s6, s6, %d
    s_and_b32 s7, s3, 1
    s_lshl_b32 s7, s7, 12
    s_add_u32 s6, s6, s7
    v_lshl_add_u32 v15, v17, 4, s6
    s_mul_i32 s70, s5, 7
    s_add_u32 s70, s70, 1
    s_lshr_b32 s70, s70, 1
    s_lshl_b32 s70, s70, 13
    s_add_u32 s71, s70, 8192
    s_add_u32 s72, s70, 16384
    s_add_u32 s73, s70, 24576
    s_sub_u32 s74, s70, 7680
    s_bitcmp1_b32 s5, 0
    s_cselect_b32 s73, s74, s73
    v_and_b32 v27, 31, v17
    v_lshrrev_b32 v24, 5, v17
    v_lshl_add_u32 v27, v27, 4, s6
    v_lshl_add_u32 v27, v24, 10, v27
    v_lshl_add_u32 v21, v18, 8, v20
    """ % (NKB * 8192))
    tmp = 80; n = 0
    def outreg():
        nonlocal n
        n += 1
        return 48 + (n % 4) * 4
    F = 160
    TA, TB, WA, WBk = F, F + 16, F + 32, F + 48
    def t_loads():
        for k in range(4):
            P('buffer_load_dwordx4 v[%d:%d], v22, s[20:23], s79 offen offset:%d sc1' % (TA + 4 * k, TA + 4 * k + 3, 16 * k))
        for k in range(4):
            P('buffer_load_dwordx4 v[%d:%d], v23, s[20:23], s79 offen offset:%d sc1' % (TB + 4 * k, TB + 4 * k + 3, 16 * k))
    def fin(dst, va, so, off):
        P('v_permlane32_swap_b32 v%d, v%d' % (dst, dst + 2))
        P('v_permlane32_swap_b32 v%d, v%d' % (dst + 1, dst + 3))
        P('buffer_store_dwordx4 v[%d:%d], v%d, s[20:23], s%d offen offset:%d sc1' % (dst, dst + 3, va, so, off))
    for pr in range(3):
        for i in range(4):
            dst = outreg()
            ffn_out2(P, [(2 * pr, i), (2 * pr + 1, i)], dst, tmp)
            fin(dst, 15, 70 + pr, i * 1024)
        if pr == 1:
            P('s_mov_b32 s75, 0')
            P('s_waitcnt vmcnt(8)')
            P.label('K1_ichk')
            P("""
            v_cmp_ne_u32 vcc, 0xff, v25
            s_add_u32 s75, s75, 1
            s_cmp_eq_u64 vcc, 0
            s_cbranch_scc1 K1_iok
            s_cmp_ge_u32 s75, 0x4000
            s_cbranch_scc1 K1_iok
            s_sleep 4
            buffer_load_dword v25, v26, s[24:27], 0 offen offset:128 sc1
            s_waitcnt vmcnt(0)
            s_branch K1_ichk
            """)
            P.label('K1_iok')
            t_loads()
            for off, dst in ((6144, WA), (6144 + 4096, WBk)):
                for k, o in enumerate((0, 16, 128, 144)):
                    P('ds_read_b128 v[%d:%d], v21 offset:%d' % (dst + 4 * k, dst + 4 * k + 3, off + o))
    for i in (0, 2):
        dst = outreg()
        ffn_out2(P, [(6, i), (6, i + 1)], dst, tmp)
        fin(dst, 27, 73, i * 1024)
    stamp(P, 7)
    PWr = F + 64; AC = F + 80
    S2 = BD
    for k, o in enumerate((0, 16, 128, 144)):
        P('ds_read_b128 v[%d:%d], v21 offset:%d' % (PWr + 4 * k, PWr + 4 * k + 3, 2048 + o))
        P('ds_read_b128 v[%d:%d], v20 offset:%d' % (S2 + 4 * k, S2 + 4 * k + 3, 5 * 256 + o))
    P('s_mov_b32 s75, 0')
    P('s_waitcnt vmcnt(6)')
    P.label('K1_tchk')
    P('v_max3_u32 v24, v%d, v%d, v%d' % (TA, TA + 1, TA + 2))
    P('v_max3_u32 v25, v%d, v%d, v%d' % (TB, TB + 1, TB + 2))
    for r in range(3, 15, 2):
        P('v_max3_u32 v24, v24, v%d, v%d' % (TA + r, TA + r + 1))
        P('v_max3_u32 v25, v25, v%d, v%d' % (TB + r, TB + r + 1))
    P('v_max3_u32 v24, v24, v%d, v%d' % (TA + 15, TB + 15))
    P('v_max_u32 v24, v24, v25')
    P("""
    v_cmp_eq_u32 vcc, -1, v24
    s_add_u32 s75, s75, 1
    s_cmp_eq_u64 vcc, 0
    s_cbranch_scc1 K1_tok
    s_cmp_ge_u32 s75, 0x4000
    s_cbranch_scc1 K1_tok
    s_sleep 2
    """)
    t_loads()
    P('s_waitcnt vmcnt(0)')
    P('s_branch K1_tchk')
    P.label('K1_tok')
    stamp(P, 8)
    P('s_waitcnt lgkmcnt(0)')
    cmul16(P, blk(AC), blk(WA), blk(TA))
    cmul16(P, blk(AC), blk(WBk), blk(TB), blk(AC))
    for sh in (8, 4, 2, 1):
        for r in range(16):
            P('v_add_f32_dpp v%d, v%d, v%d row_ror:%d row_mask:0xf bank_mask:0xf' % (AC + r, AC + r, AC + r, sh))
    cmul16(P, blk(S), blk(PWr), blk(AC), blk(S))
    P("""
    s_add_u32 s70, s5, 112
    s_lshl_b32 s70, s70, 13
    s_add_u32 s71, s70, 262144
    v_mov_b32 v24, 1
    """)
    for i in range(4):
        O = TA if (i & 1) else TB
        cmul16(P, uacc(i), blk(LAM), blk(S) if i == 0 else uacc(i - 1), uacc(i))
        cmul16(P, blk(O), blk(S2), uacc(i))
        d = WA if (i & 1) else WBk
        for k in range(4):
            P('v_cvt_pk_bf16_f32 v%d, v%d, v%d' % (d + k, O + 2 * k, O + 2 * k + 1))
        for k in range(4):
            P('v_cvt_pk_bf16_f32 v%d, -v%d, -v%d' % (d + 4 + k, O + 8 + 2 * k, O + 8 + 2 * k + 1))
        if i == 0:
            P('s_waitcnt vmcnt(0)\ns_mov_b64 exec, 1\nbuffer_store_dword v24, off, s[20:23], s76 sc1\ns_mov_b64 exec, -1')
        P('buffer_store_dwordx4 v[%d:%d], v15, s[20:23], s70 offen offset:%d sc1' % (d, d + 3, i * 1024))
        P('buffer_store_dwordx4 v[%d:%d], v15, s[20:23], s71 offen offset:%d sc1' % (d + 4, d + 7, i * 1024))
    stamp(P, 9)

def pk_bc(op, d, a, f, cc=None):
    base = f & ~1; hi = f & 1
    if cc is None:
        return 'v_pk_mul_f32 v[%d:%d], v[%d:%d], v[%d:%d] op_sel:[0,%d] op_sel_hi:[1,%d]' % (d, d + 1, a, a + 1, base, base + 1, hi, hi)
    return 'v_pk_fma_f32 v[%d:%d], v[%d:%d], v[%d:%d], v[%d:%d] op_sel:[0,%d,0] op_sel_hi:[1,%d,1]' % (d, d + 1, a, a + 1, base, base + 1, cc, cc + 1, hi, hi)
def FR(src, k): return 20 + src * 2 + k
XD = 64

def p2_enter(P):
    P('''
    s_lshl_b32 s6, s92, 7
    s_lshr_b32 s7, s3, 1
    s_lshl_b32 s7, s7, 6
    s_add_u32 s6, s6, s7
    s_and_b32 s7, s3, 1
    s_lshl_b32 s7, s7, 1
    s_add_u32 s6, s6, s7
    v_lshl_add_u32 v20, v18, 2, s6
    s_lshl_b32 s7, s93, 7
    s_lshl_b32 s6, s94, 6
    s_add_u32 s7, s7, s6
    v_lshl_add_u32 v21, v19, 2, s7
    v_lshlrev_b32 v28, 10, v20
    v_add_u32 v28, v28, v21
    v_lshlrev_b32 v23, 1, v28
    v_lshlrev_b32 v28, 2, v28
    v_add_u32 v29, 0x1000, v28
    v_lshlrev_b32 v22, 1, v21
    v_lshlrev_b32 v25, 2, v20
    s_mov_b32 s6, %d
    v_lshlrev_b32 v15, 4, v17
    v_lshlrev_b32 v26, 7, v17
    ''' % WS_G)
    P('buffer_load_dwordx2 v[30:31], v25, s[20:23], s6 offen sc1')
    for k in range(2):
        for jt in range(4):
            P('buffer_load_dwordx2 v[%d:%d], v23, s[8:11], 0 offen offset:%d' % (32 + (k * 4 + jt) * 2, 33 + (k * 4 + jt) * 2, k * 2048 + jt * 32))
    for jt in range(4):
        P('global_load_dwordx2 v[%d:%d], v22, s[52:53] offset:%d' % (48 + jt * 2, 49 + jt * 2, jt * 32))
    P('''
    s_lshl_b32 s70, s92, 13
    s_add_u32 s70, s70, %d
    s_lshl_b32 s71, s93, 14
    s_add_u32 s71, s71, %d
    s_add_u32 s72, s71, 8192
    s_add_u32 s73, s70, 0x20000
    s_cmp_lt_u32 s95, 3
    s_cselect_b32 s71, s71, s70
    s_cselect_b32 s72, s72, s70
    s_cselect_b32 s70, s73, s70
    s_add_u32 s7, s76, 0x20000
    s_waitcnt vmcnt(13)
    s_mov_b64 exec, 1
    buffer_store_dword v24, off, s[20:23], s7 sc1
    s_mov_b64 exec, -1
    s_mov_b32 s75, 0
    s_barrier
    ''' % (WS_FL, WS_FL))

def p2_poll(P, role):
    L = 'P2_poll' + role
    P.label(L)
    P('buffer_load_dword v56, v26, s[20:23], s70 offen sc1')
    if role == 'Y':
        P('buffer_load_dword v57, v26, s[20:23], s71 offen sc1')
        P('buffer_load_dword v58, v26, s[20:23], s72 offen sc1')
    P('s_waitcnt vmcnt(0)')
    if role == 'Y':
        P('v_and_b32 v56, v56, v57\nv_and_b32 v56, v56, v58')
    P('''
    v_cmp_ne_u32 vcc, 1, v56
    s_add_u32 s75, s75, 1
    s_cmp_eq_u64 vcc, 0
    s_cbranch_scc1 %sok
    s_cmp_ge_u32 s75, 0x4000
    s_cbranch_scc1 %sok
    s_sleep 2
    s_branch %s
    ''' % (L, L, L))
    P.label(L + 'ok')

def e0_math(I):
    I('''
    v_sub_f32 v56, 1.0, v30
    v_sub_f32 v57, 1.0, v31
    v_cvt_pk_bf16_f32 v56, v56, v57
    v_and_b32 v57, 0xffff0000, v56
    v_lshlrev_b32 v56, 16, v56
    ''')
    for src in range(4):
        if src == 0: I('s_mov_b32 s6, s95')
        else:
            sl = src - 1
            I('s_cmp_le_u32 s3, %d\ns_cselect_b32 s6, %d, %d\ns_lshl_b32 s7, s94, 2\ns_add_u32 s6, s6, s7' % (sl, sl + 1, sl))
        I('s_cmp_lt_u32 s6, 3\ns_cselect_b64 vcc, -1, 0')
        I('v_cndmask_b32 v%d, v56, v30, vcc\nv_cndmask_b32 v%d, v57, v31, vcc' % (FR(src, 0), FR(src, 1)))
    for jt in range(4):
        for h in range(2):
            I('v_and_b32 v59, 0xffff0000, v%d\nv_lshlrev_b32 v58, 16, v%d' % (48 + jt * 2 + h, 48 + jt * 2 + h))
            seqs = []
            for k in range(2):
                t = k * 4 + jt; xs = 32 + t * 2 + h; a = XD + t * 4 + 2 * h
                seqs.append(['v_lshlrev_b32 v%d, 16, v%d' % (a, xs), 'v_and_b32 v%d, 0xffff0000, v%d' % (a + 1, xs),
                             'v_pk_mul_f32 v[%d:%d], v[%d:%d], v[58:59]' % (a, a + 1, a, a + 1),
                             'v_cvt_pk_bf16_f32 v%d, v%d, v%d' % (a, a, a + 1),
                             'v_and_b32 v%d, 0xffff0000, v%d' % (a + 1, a), 'v_lshlrev_b32 v%d, 16, v%d' % (a, a),
                             pk_bc('mul', a, a, 30 + k)])
            for x, y in zip(*seqs): I(x); I(y)

def p2_prologue(c, role):
    if role == 'Y':
        for n in range(3):
            run(w_setup(c)); run(w_loads(c, n, role)); run(a_setup(c)); run(act_loads(c, n))
    else:
        for n in range(3):
            run(a_setup(c)); run(act_loads(c, n))
    run(w_setup(c)); run(w_loads(c, 3, role)); run(a_setup(c)); run(act_loads(c, 3))
    e0_math(c.I)
    c.wait_vm((role, 'w0'), lambda t: t == ('W', 0))
    for jt in range(FD): run(frag_read(c, role, 0, jt))

def slab_writes(P, jt0, tag, Qs, slot_of, own=None):
    pass

def p2_final(P):
    ZS, ZK, TMP = 96, XD, 160
    def wr(Q, jt0):
        for t in range(8):
            P('ds_write_b128 v61, %s offset:%d' % (rr('a', acc2(2 * Q + (t >> 2), jt0 + (t & 3))), t * 1024))
    def own(Q, jt0, dst, accum):
        for t in range(8):
            b = acc2(2 * Q + (t >> 2), jt0 + (t & 3))
            for r in range(4): P('v_accvgpr_read_b32 v%d, a%d' % (128 + t * 4 + r, b + r))
    P('s_waitcnt vmcnt(0) lgkmcnt(0)')
    P('v_add_u32 v60, s31, v15')
    for Q in range(4):
        P('s_cmp_eq_u32 s3, %d\ns_cbranch_scc1 P2_so%d' % (Q, Q))
        P('s_cmp_lt_u32 s3, %d\ns_cselect_b32 s6, %d, %d\ns_lshl_b32 s6, s6, 13' % (Q, max(Q - 1, 0), min(Q, 2)))
        P('v_add_u32 v61, s6, v60')
        wr(Q, 4)
        P('s_branch P2_sn%d' % Q)
        P.label('P2_so%d' % Q)
        own(Q, 4, ZS, False)
        P.label('P2_sn%d' % Q)
    for sl in range(3):
        P('''
        s_cmp_le_u32 s3, %d
        s_cselect_b32 s6, %d, %d
        s_cselect_b32 s7, 0, 1
        s_mul_i32 s6, s6, 40960
        s_sub_u32 s7, s3, s7
        s_lshl_b32 s%d, s7, 13
        s_add_u32 s%d, s%d, s6
        s_add_u32 s7, s7, 3
        s_cmp_eq_u32 s7, 5
        s_cselect_b32 s7, 0, s7
        s_lshl_b32 s%d, s7, 13
        s_add_u32 s%d, s%d, s6
        ''' % (sl, sl + 1, sl, 70 + sl, 70 + sl, 70 + sl, 73 + sl, 73 + sl, 73 + sl))
    for t in range(8):
        for h in range(2):
            r = t * 4 + 2 * h
            P(pk_bc('mul', ZS + r, 128 + r, FR(0, t >> 2)))
    P('''
    s_lshl_b32 s6, s2, 2
    s_add_u32 s6, s6, s3
    s_lshl_b32 s78, s6, 13
    s_add_u32 s78, s78, %d
    s_add_u32 s79, s78, 4096
    s_xor_b32 s80, s78, 0x8000
    s_add_u32 s81, s80, 4096
    s_lshl_b32 s82, s6, 7
    s_add_u32 s82, s82, %d
    s_xor_b32 s83, s82, 0x200
    s_waitcnt lgkmcnt(0)
    s_barrier
    ''' % (WS_XB, WS_FL + 0x40000))
    def rd(s0, dst):
        for sl in range(3):
            P('v_add_u32 v%d, s%d, v15' % (56 + sl, s0 + sl))
        for t in range(8):
            for sl in range(3):
                P('ds_read_b128 v[%d:%d], v%d offset:%d' % (TMP + sl * 32 + t * 4, TMP + sl * 32 + t * 4 + 3, 56 + sl, t * 1024))
        for t in range(8):
            n = 21 - 3 * t
            P('s_waitcnt lgkmcnt(%d)' % min(n, 14))
            for sl in range(3):
                for h in range(2):
                    r = t * 4 + 2 * h
                    P(pk_bc('fma', dst + r, TMP + sl * 32 + r, FR(1 + sl, t >> 2), dst + r))
            if dst == ZS:
                P('buffer_store_dwordx4 v[%d:%d], v15, s[20:23], s%d offen offset:%d sc1' % (ZS + t * 4, ZS + t * 4 + 3, 78 + (t >> 2), (t & 3) * 1024))
    rd(70, ZS)
    stamp(P, 16)
    for Q in range(4):
        P('s_cmp_eq_u32 s3, %d\ns_cbranch_scc1 P2_ko%d' % (Q, Q))
        if Q == 3:
            P('s_branch P2_kn3')
        else:
            if Q == 2: P('s_cmp_eq_u32 s3, 3\ns_cbranch_scc1 P2_kn2')
            P('s_cmp_lt_u32 s3, %d\ns_cselect_b32 s6, %d, %d\ns_lshl_b32 s6, s6, 13' % (Q, 3 + max(Q - 1, 0), 3 + min(Q, 1)))
            P('v_add_u32 v61, s6, v60')
            wr(Q, 0)
            P('s_branch P2_kn%d' % Q)
        P.label('P2_ko%d' % Q)
        own(Q, 0, ZK, True)
        P.label('P2_kn%d' % Q)
    P('v_mov_b32 v59, 1')
    P('s_waitcnt vmcnt(0)\ns_mov_b64 exec, 1\nbuffer_store_dword v59, off, s[20:23], s82 sc1\ns_mov_b64 exec, -1')
    P('s_barrier')
    P('v_mov_b32 v61, v60')
    P('s_cmp_eq_u32 s3, 3\ns_cbranch_scc1 P2_l2')
    wr(3, 0)
    P('s_branch P2_l3')
    P.label('P2_l2')
    wr(2, 0)
    P.label('P2_l3')
    def xb_loads():
        for t in range(8):
            P('buffer_load_dwordx4 v[%d:%d], v15, s[20:23], s%d offen offset:%d sc1' % (ZS + t * 4, ZS + t * 4 + 3, 80 + (t >> 2), (t & 3) * 1024))
    for t in range(8):
        for h in range(2):
            r = t * 4 + 2 * h
            P(pk_bc('fma', ZK + r, 128 + r, FR(0, t >> 2), ZK + r))
    P('s_waitcnt lgkmcnt(0)')
    P('s_barrier')
    P('buffer_load_dword v59, off, s[20:23], s83 sc1')
    rd(73, ZK)
    stamp(P, 17)
    P('s_mov_b32 s75, 0')
    P.label('P2_xchk')
    P('''
    s_waitcnt vmcnt(0)
    v_readfirstlane_b32 s6, v59
    s_add_u32 s75, s75, 1
    s_cmp_eq_u32 s6, 1
    s_cbranch_scc1 P2_xok
    s_cmp_ge_u32 s75, 0x4000
    s_cbranch_scc1 P2_xok
    s_sleep 1
    buffer_load_dword v59, off, s[20:23], s83 sc1
    s_branch P2_xchk
    ''')
    P.label('P2_xok')
    xb_loads()
    stamp(P, 18)
    for t in range(8):
        P('s_waitcnt vmcnt(7)')
        for h in range(2):
            r = t * 4 + 2 * h
            P('v_pk_add_f32 v[%d:%d], v[%d:%d], v[%d:%d]' % (ZK + r, ZK + r + 1, ZK + r, ZK + r + 1, ZS + r, ZS + r + 1))
        P('buffer_store_dwordx4 v[%d:%d], v%d, s[12:15], 0 offen offset:%d %s' % (ZK + t * 4, ZK + t * 4 + 3, 29 if t >= 4 else 28, (t & 3) * 64, os.environ.get('OMOD', '')))

def site_of(u):
    if u < 4: return ('F', u)
    if u >= 28: return ('E', u)
    return ('L', u % 4)

def body(c, emit):
    P = c.P
    prologue(c)
    extra = [lambda: c.wait_vm(('s',), lambda t: t == ('S',))] + as_fill(c, tables_text())
    g1, g2 = g_work(c)
    substep(c, 0, site_of(0), extra=extra, first=True)
    substep(c, 1, site_of(1), extra=extra)
    extra += g1
    substep(c, 2, site_of(2), extra=extra, room_extra=1)
    assert not extra, len(extra)
    extra += g2
    substep(c, 3, site_of(3), extra=extra, room_extra=6)
    assert not extra, len(extra)
    if emit:
        stamp(P, 1); stamp_rt(P, 21)
        P('.p2align 6')
        P.label('K1_loop')
        P('s_cmp_eq_u32 s33, s93\ns_cbranch_scc1 K1_t1')
        P.label('K1_tback')
        c_loads(P)
        if TOUCH: ptouch(P)
        for u in range(4, 8): substep(c, u, site_of(u))
        P("""
        s_add_u32 s33, s33, 1
        s_cmp_lt_u32 s33, 6
        s_cbranch_scc1 K1_loop
        """)
    else:
        for u in range(4, 28): substep(c, u, site_of(u))
    stamp(c.I, 2); stamp_rt(c.I, 22)
    substep(c, 28, site_of(28), last=1)
    substep(c, 29, site_of(29), last=2, extra=c_stores(c))
    stamp(c.I, 6)
    last_stage(c)

DIAG = int(os.environ.get('DIAG', '0'))
if DIAG:
    DMAP = {0: 0, 4: 1, 1: 2, 2: 3, 5: 4, 7: 5, 9: 6, 12: 7, 13: 8, 15: 9, 16: 10, 17: 11, 18: 12, 19: 13, 20: 14}
    def stamp(I, idx, vr=16):
        if idx in DMAP:
            I('s_memrealtime s[84:85]')
            I('s_waitcnt lgkmcnt(0)')
            if idx == 0:
                I('s_not_b32 s85, s84')
                I('v_writelane_b32 v16, s85, 15')
            I('v_writelane_b32 v16, s84, %d' % DMAP[idx])
    def stamp_rt(I, idx, vr=16): pass
    def stamp_out(I, kern, vr=16, va=23):
        I('v_lshlrev_b32 v23, 2, v17')
        I('s_mov_b64 exec, 0xffff')
        I('buffer_atomic_umax v16, v23, s[24:27], 0 offen sc1')
        I('s_mov_b64 exec, -1')
PROBE = os.environ.get('PROBE', '')
if PROBE:
    PA, PB = [int(x) for x in PROBE.split(',')]
    def stamp(I, idx, vr=16):
        if idx == PA or idx == PB:
            I('s_memrealtime s[84:85]')
            I('s_waitcnt lgkmcnt(0)')
            I('v_writelane_b32 v16, s84, %d' % (0 if idx == PA else 1))
    def stamp_rt(I, idx, vr=16): pass
    def stamp_out(I, kern, vr=16, va=23):
        I('v_readlane_b32 s6, v16, 0')
        I('v_readlane_b32 s7, v16, 1')
        I('s_memrealtime s[84:85]')
        I('s_waitcnt lgkmcnt(0)')
        I('s_sub_u32 s6, s7, s6')
        I('s_add_u32 s6, s6, s84')
        I('PROBE_l:')
        I('s_memrealtime s[84:85]')
        I('s_waitcnt lgkmcnt(0)')
        I('s_sub_u32 s7, s84, s6')
        I('s_cmp_lt_i32 s7, 0')
        I('s_cbranch_scc1 PROBE_l')
KNAME = 'gated_mix__ssm_conv_s5__glu_gated_reglu__prompt_kernel'
def gen():
    waits = {}
    body(Ctx(None, waits), False)
    for role in 'YB':
        c = Ctx(None, waits)
        p2_prologue(c, role)
        step2(c, role, 0, first=True)
        for n in range(1, 25): step2(c, role, n)
    P = Prog()
    c = Ctx(P, waits)
    P('.globl %s\n.p2align 8\n.type %s,@function' % (KNAME, KNAME))
    P.label(KNAME)
    body(c, True)
    epilogue(P)
    p2_enter(P)
    stamp(P, 12)
    P('s_cmp_lt_u32 s95, 3\ns_cbranch_scc1 P2_roleY')
    for role in 'BY':
        if role == 'Y': P.label('P2_roleY')
        p2_poll(P, role)
        stamp(P, 13); stamp_rt(P, 23)
        p2_prologue(c, role)
        step2(c, role, 0, first=True)
        P('s_sub_u32 s33, s33, 1')
        P('.p2align 6')
        P.label('P2_loop' + role)
        for n in range(1, NS + 1):
            step2(c, role, n)
            P('s_sub_u32 s33, s33, 1')
            P('s_cmp_eq_u32 s33, 0')
            if n < NS: P('s_cbranch_scc1 P2_end')
            else: P('s_cbranch_scc0 P2_loop' + role)
        if role == 'B': P('s_branch P2_end')
    P.label('P2_end')
    stamp(P, 15); stamp_rt(P, 24)
    P('s_nop 7')
    p2_final(P)
    stamp(P, 19); stamp_rt(P, 11)
    P('s_waitcnt vmcnt(0)')
    stamp(P, 20)
    stamp_out(P, 0)
    P.label('K1_done')
    P('s_endpgm')
    P.label('K1_t1')
    P("""
    s_lshl_b32 s6, 1, s4
    v_mov_b32 v26, s6
    s_lshl_b32 s7, s5, 2
    s_mov_b64 exec, 1
    buffer_atomic_add v26, off, s[24:27], s7 offset:128 sc1
    s_mov_b64 exec, -1
    s_branch K1_tback
    """)
    txt = P.text()
    X = os.environ.get('XP', '')
    if X:
        a = txt.index('K1_tback:'); b = txt.index('s_cbranch_scc1 K1_loop')
        L = txt[a:b].split('\n')
        if 'r' in X: L = [l for l in L if 'ds_read' not in l]
        if 'd' in X: L = [l for l in L if ' lds' not in l]
        if 't' in X: L = [l for l in L if 'ds_read_b64_tr' not in l]
        if 'h' in X: L = [l for k, l in enumerate(L) if not ('ds_read_b64_tr' in l and (int(l.split('offset:')[1]) // 4096) % 2)]
        if 'b' in X: L = [l for l in L if 's_barrier' not in l]
        txt = txt[:a] + '\n'.join(L) + txt[b:]
    return txt, waits

if __name__ == '__main__':
    import sys
    NAME = 'gated_mix__ssm_conv_s5__glu_gated_reglu__prompt'
    ref = open('cdna_kernels/%s.s.ref' % NAME).read().splitlines()
    hdr = [l for l in ref if l.startswith(';') and '@launch' not in l]
    t, w = gen()
    out = '\n'.join(hdr) + '\n; @launch grid=(256,1,1) block=(256,1,1) lds=%d\n' % K1_LDS
    out += '.amdgcn_target "amdgcn-amd-amdhsa--gfx950"\n.text\n' + t
    out += '.section .rodata,"a"\n.p2align 6\n' + K1_DESC.replace('k1_kernel', KNAME)
    dst = sys.argv[1] if len(sys.argv) > 1 else 'cdna_kernels/%s.s' % NAME
    open(dst, 'w').write(out)
    print('wrote', dst, len(out))
```

```python
import os
from asmlib import Prog, Counter
import k1
from k1 import Ctx, rr, cmul_pk, ffn_out, acc_reg, ACC_V0, stamp, stamp_rt, stamp_out, NKB, WS_G, WS_T, WS_C2, WS_FL, WS_XB, K1_DESC

XB = 0
WB = 65536
BB = 131072
TAB = 147456
POW = TAB + 2048
WG64 = TAB + 6144
K1_LDS = 163840
assert TAB == k1.TAB
XSET = 128
RING = 192
BH = 220
OOB = 0x70000000
EXP = int(os.environ.get('EXP', '0'))
TS0 = int(os.environ.get('TS0', '4'))
TPRE = int(os.environ.get('TPRE', '1'))
DEFER = int(os.environ.get('DEFER', '1'))
NTW = 'nt' if int(os.environ.get('NTW', '1')) else ''
NTB = 'nt' if int(os.environ.get('NTB', '1')) else ''
NTC = 'nt' if int(os.environ.get('NTC', '1')) else ''
NTT = 'nt' if int(os.environ.get('NTT', os.environ.get('NTW', '1'))) else ''
NTX = 'nt' if int(os.environ.get('NTX', '0')) else ''
WDT = int(os.environ.get('WDT', '1'))
PT = int(os.environ.get('PT', '1'))
TOUCH = int(os.environ.get('TOUCH', '1'))

FFN = []
for jt in range(7): FFN += [('G', jt), ('U', jt)]
SSM = [('R', 0), ('I', 0), ('R', 1), ('I', 1)]

def w_read(c, u, t):
    kind, jt = FFN[t]
    slot = RING + (t % 7) * 4
    th = []
    for e in range(2):
        off = (u % 4) * 16384 + ((kind == 'U') * 2 + e) * 4096 + jt * 32
        th.append(lambda off=off, e=e: c.ds('ds_read_b64_tr_b16 a[%d:%d], v12 offset:%d' % (slot + 2 * e, slot + 2 * e + 1, off), ('F', u, t)))
    return th
def b_read(c, s, hh, k):
    kind, jt = SSM[k]
    off = (s % 2) * 8192 + ((kind == 'I') * 32 + jt * 16) * 128
    return lambda: c.ds('ds_read_b128 %s, v%d offset:%d' % (rr('a', BH + hh * 16 + k * 4), 13 + hh, off), ('BF', s, hh))
def x_read(c, s, hh, i):
    off = (s % 2) * 8192 + i * 2048
    return lambda: c.ds('ds_read_b128 %s, v%d offset:%d' % (rr('a', XSET + (s % 2) * 32 + hh * 16 + i * 4), 7 + hh, off), ('XF', s, hh))
def w_dma(c, u, n):
    th = []
    th.append(lambda: c.I('s_add_u32 m0, s32, %d' % ((u % 4) * 16384)))
    th.append(lambda: c.vmem('buffer_load_dwordx4 v%d, s[12:15], s30 offen offset:%d %s lds' % (3 + n, n * 1024, NTW), ('W', u)))
    if n == 3: th.append(lambda: c.I('s_add_u32 s30, s30, 229376'))
    return th
def x_dma(c, s, k):
    th = []
    th.append(lambda: c.I('s_add_u32 m0, s34, %d' % ((s % 2) * 8192 + (k >> 2) * 4096)))
    th.append(lambda: c.vmem('buffer_load_dwordx4 v%d, s[8:11], s%d offen offset:%d %s lds' % (1 + (k & 1), 28 + (k >> 2), (k & 3) * 1024, NTX), ('X', s)))
    if k == 7:
        th.append(lambda: c.I('s_add_u32 s28, s28, 128'))
        th.append(lambda: c.I('s_cmp_lt_u32 s28, 2048'))
        th.append(lambda: c.I('s_cselect_b32 s28, s28, s77'))
        th.append(lambda: c.I('s_add_u32 s29, s28, 4096'))
    return th
def b_dma(c, s, n):
    th = []
    th.append(lambda: c.I('s_add_u32 m0, s35, %d' % ((s % 2) * 8192)))
    th.append(lambda: c.vmem('buffer_load_dwordx4 v%d, s[16:19], s31 offen offset:%d %s lds' % (10 + n, n * 1024, NTB), ('B', s)))
    if n == 1:
        th.append(lambda: c.I('s_add_u32 s31, s31, 128'))
        th.append(lambda: c.I('s_cmp_lt_u32 s31, 2048'))
        th.append(lambda: c.I('s_cselect_b32 s31, s31, s77'))
    return th

def substep(c, u, site, extra=None, first=False, last=0, room_extra=0):
    hh = u & 1; s = u >> 1
    for j in range(18):
        fill = []
        if j <= 8: fill += w_read(c, u, j + 5)
        if 12 <= j <= 16 and u != 31: fill += w_read(c, u + 1, j - 12)
        if u == 31: pass
        elif hh == 1:
            if j == 9: fill.append(lambda: c.wait_vm((site, 'x'), lambda t: t == ('X', s + 1)))
            if j in (9, 10): fill += [x_read(c, s + 1, 0, (j - 9) * 2 + k) for k in range(2)]
            if j in (14, 15, 16, 17): fill.append(x_read(c, s + 1, 1, j - 14))
            if j in (12, 13): fill += [b_read(c, s + 1, 0, (j - 12) * 2 + k) for k in range(2)]
        else:
            if j in (0, 2, 4, 6): fill.append(b_read(c, s, 1, j // 2))
        d = []
        if j in (13, 15, 17): d = w_dma(c, u + 4, (j - 13) // 2)
        if j == 1: d = w_dma(c, u + 3, 3)
        if j in (3, 5, 7, 9): d = x_dma(c, s + 2, hh * 4 + (j - 3) // 2)
        if hh == 0 and j in (14, 16): d = b_dma(c, s + 2, (j - 14) // 2)
        if last == 2 or (last == 1 and j != 1): d = []
        if DEFER and u == 0:
            seq = [('x', 1, k) for k in range(8)] + [('w', 2, n) for n in range(4)] + [('b', 1, n) for n in range(2)] + [('w', 3, n) for n in range(4)] + [('x', 2, k) for k in range(4)]
            if j <= 10:
                d = []
                for ty, a, b in seq[2 * j:2 * j + 2]:
                    d += {'x': x_dma, 'w': w_dma, 'b': b_dma}[ty](c, a, b)
        fill = d[:1] + fill + d[1:]
        if extra:
            room = max(0, 8 - 1 - len(fill)) + room_extra
            for _ in range(min(room, len(extra))): fill.append(extra.pop(0))
        if j == 0: c.wait_lg((site, 'xf'), lambda t: t in (('XF', s, hh), ('F', u, 0)))
        elif j < 14: c.wait_lg((site, 'f', j), lambda t: t == ('F', u, j))
        elif j == 14: c.wait_lg((site, 'bf'), lambda t: t == ('BF', s, hh))
        if j < 14:
            kind, jt = FFN[j]; a = RING + (j % 7) * 4
        else:
            kind, jt = SSM[j - 14]; a = BH + hh * 16 + (j - 14) * 4
        nf = len(fill); k = 0
        for i in range(4):
            f, b = acc_reg(kind, jt, i)
            c.I('v_mfma_f32_16x16x32_bf16 %s, %s, %s, %s' % (rr(f, b), rr('a', a), rr('a', XSET + (s % 2) * 32 + hh * 16 + i * 4), '0' if first else rr(f, b)))
            take = (nf * (i + 1) + 3) // 4 - k
            for _ in range(take):
                fill[k](); k += 1
        if j == 11 and u != 31:
            if hh == 1: c.wait_vm((site, 'd'), lambda t: t in (('W', u + 1), ('B', s + 1)))
            else: c.wait_vm((site, 'd'), lambda t: t == ('W', u + 1))
            c.I('s_waitcnt lgkmcnt(0)')
            c.lg.q = []
            c.I('s_barrier')

def touch(I, batch):
    ks = 2 + 7 * batch
    I('''
    s_mov_b32 s6, %d
    s_mov_b32 s7, %d
    s_mov_b32 exec_hi, 0x1ffff
    buffer_load_dword a255, v28, s[12:15], s6 offen
    s_mov_b64 exec, 0x3fff
    buffer_load_dword a255, v29, s[16:19], s7 offen
    buffer_load_dword a255, v30, s[8:11], s7 offen
    s_mov_b64 exec, -1
    ''' % (ks * 64 * 7168, ks * 128))

def touch_wd(I):
    I('''
    s_lshl_b32 s6, s2, 2
    s_add_u32 s6, s6, s3
    s_mul_i32 s6, s6, 7168
    v_lshlrev_b32 v26, 7, v17
    s_mov_b32 exec_hi, 0xffffff
    buffer_load_dword a255, v26, s[88:91], s6 offen
    s_mov_b64 exec, -1
    ''')


def c_addr(I):
    I("""
    s_and_b32 s7, s3, 1
    s_lshl_b32 s6, s4, 7
    s_lshl_b32 s70, s7, 6
    s_add_u32 s6, s6, s70
    v_add_u32 v9, s6, v18
    v_lshlrev_b32 v9, 11, v9
    v_lshl_add_u32 v9, v19, 4, v9
    s_lshl_b32 s6, s5, 6
    v_add_u32 v9, s6, v9
    """)

def c_loads(P):
    for k in range(4):
        P('s_cmp_lg_u32 s33, %d' % (k + 1))
        P('s_cbranch_scc1 K1_c%d' % k)
        P('global_load_dwordx4 v[%d:%d], v9, s[86:87] %s' % (32 + 4 * k, 35 + 4 * k, NTC))
        P('v_add_u32 v9, 0x8000, v9')
        if k == 3: code_touch(P, 'CP_b', 'CP_c')
        P.label('K1_c%d' % k)

def c_stores(c):
    R = Rec(c, 'cs')
    R("""
    s_lshl_b32 s6, s4, 6
    s_lshr_b32 s7, s3, 1
    s_lshl_b32 s7, s7, 5
    s_add_u32 s6, s6, s7
    s_add_u32 s6, s6, s5
    s_lshl_b32 s6, s6, 13
    s_and_b32 s7, s3, 1
    s_lshl_b32 s7, s7, 12
    s_add_u32 s6, s6, s7
    s_add_u32 s6, s6, %d
    v_lshlrev_b32 v20, 4, v17
    """ % WS_C2)
    for k in range(4):
        R.vm('buffer_store_dwordx4 v[%d:%d], v20, s[20:23], s6 offen offset:%d sc1' % (32 + 4 * k, 35 + 4 * k, k * 1024), ('SV',))
    return R.th

def ptouch(I, wd=True):
    I("""
    s_mov_b64 exec, 0x3fff
    buffer_load_dword a255, v28, s[12:15], s95 offen %s
    s_mov_b64 exec, 0xf
    buffer_load_dword a255, v29, s[16:19], s94 offen %s
    buffer_load_dword a255, v30, s[8:11], s94 offen
    """ % (NTT, NTB))
    if wd and WDT: I("""
    s_mov_b64 exec, 0x3ff
    buffer_load_dword a255, v31, s[88:91], s92 offen
    s_add_u32 s92, s92, 1280
    """)
    I("""
    s_mov_b64 exec, -1
    s_add_u32 s95, s95, 917504
    s_add_u32 s94, s94, 256
    s_cmp_lt_u32 s94, 2048
    s_cselect_b32 s94, s94, s77
    """)

def tables_text():
    t = """
    v_lshlrev_b32 v48, 16, v48
    v_lshlrev_b32 v49, 16, v49
    v_lshlrev_b32 v50, 16, v50
    v_mul_f32 v50, 0x3fb8aa3b, v50
    v_exp_f32 v50, v50
    v_cvt_pk_bf16_f32 v50, v50, v50
    v_lshlrev_b32 v50, 16, v50
    v_mul_f32 v51, v50, v48
    v_mul_f32 v52, v50, v49
    v_mul_f32 v51, 0x3fb8aa3b, v51
    v_exp_f32 v51, v51
    v_mul_f32 v52, 0.15915494, v52
    v_fract_f32 v52, v52
    v_cos_f32 v53, v52
    v_sin_f32 v54, v52
    v_mul_f32 v64, v51, v53
    v_mul_f32 v65, v51, v54
    v_add_f32 v51, -1.0, v64
    v_mul_f32 v52, v48, v48
    v_fmac_f32 v52, v49, v49
    v_rcp_f32 v53, v52
    v_mul_f32 v54, v51, v48
    v_fmac_f32 v54, v65, v49
    v_mul_f32 v55, v65, v48
    v_fma_f32 v55, -v51, v49, v55
    v_fma_f32 v52, -v52, v53, 2.0
    v_mul_f32 v53, v53, v52
    v_add_f32 v53, v53, v53
    v_mul_f32 v88, v54, v53
    v_mul_f32 v89, v55, v53
    """
    for k in range(9):
        a = 64 + 2 * k; d = a + 2
        t += """
        v_mul_f32 v%d, v%d, v%d
        v_fma_f32 v%d, -v%d, v%d, v%d
        v_mul_f32 v%d, v%d, v%d
        v_add_f32 v%d, v%d, v%d
        """ % (d, a, a, d, a + 1, a + 1, d, d + 1, a, a + 1, d + 1, d + 1, d + 1)
    t += """
    v_lshrrev_b32 v51, 5, v0
    v_mov_b32 v56, 1.0
    v_mov_b32 v57, 0
    v_mov_b32 v60, 1.0
    v_mov_b32 v61, 0
    """
    def cm(dr, di, ar, ai, br, bi):
        return """
        v_mul_f32 v%d, v%d, v%d
        v_fma_f32 v%d, -v%d, v%d, v%d
        v_mul_f32 v%d, v%d, v%d
        v_fmac_f32 v%d, v%d, v%d
        """ % (dr, ar, br, dr, ai, bi, dr, di, ar, bi, di, ai, br)
    for b in range(3):
        a = 68 + 2 * b; a2 = 76 + 2 * b
        t += 'v_and_b32 v54, %d, v51\nv_cmp_ne_u32 vcc, 0, v54\n' % (1 << b)
        t += cm(52, 53, 56, 57, a, a + 1) + cm(62, 63, 60, 61, a2, a2 + 1)
        t += """
        v_cndmask_b32 v56, v56, v52, vcc
        v_cndmask_b32 v57, v57, v53, vcc
        v_cndmask_b32 v60, v60, v62, vcc
        v_cndmask_b32 v61, v61, v63, vcc
        """
    t += cm(58, 59, 56, 57, 74, 75)
    t += cm(62, 63, 60, 61, 82, 83) + cm(84, 85, 62, 63, 82, 83) + cm(86, 87, 84, 85, 82, 83)
    t += """
    v_and_b32 v52, 31, v0
    v_lshlrev_b32 v52, 2, v52
    v_lshl_add_u32 v53, v51, 8, v52
    v_add_u32 v53, %d, v53
    v_add_u32 v52, %d, v52
    ds_write2_b32 v53, v56, v57 offset0:0 offset1:32
    ds_write_b32 v53, v58 offset:2048
    ds_write_b32 v53, v59 offset:2176
    """ % (POW, TAB)
    for k, r in enumerate((60, 62, 84, 86)):
        t += 'ds_write_b32 v53, v%d offset:%d\nds_write_b32 v53, v%d offset:%d\n' % (r, 4096 + k * 2048, r + 1, 4096 + k * 2048 + 128)
    for idx, r in enumerate([64, 68, 70, 72]):
        t += 'ds_write2_b32 v52, v%d, v%d offset0:%d offset1:%d\n' % (r, r + 1, idx * 64, idx * 64 + 32)
    for idx, r in ((4, 74), (5, 88)):
        t += 'ds_write_b32 v52, v%d offset:%d\nds_write_b32 v52, v%d offset:%d\n' % (r, idx * 256, r + 1, idx * 256 + 128)
    return [l.strip() for l in t.splitlines() if l.strip()]

class Rec:
    def __init__(self, c, name):
        self.c = c; self.th = []; self.name = name; self.n = 0
    def __call__(self, text):
        for l in text.strip('\n').split('\n'):
            l = l.strip()
            if l: self.th.append(lambda l=l: self.c.I(l))
    def blk(self, items):
        def f():
            for k, t in items:
                if k == 'vm': self.c.vmem(t, ('SV',))
                else: self.c.I(t)
        self.th.append(f)
    def ds(self, text, tag): self.th.append(lambda: self.c.ds(text, tag))
    def vm(self, text, tag): self.th.append(lambda: self.c.vmem(text, tag))
    def wl(self, tag):
        self.n += 1; site = (self.name, 'l', self.n)
        self.th.append(lambda: self.c.wait_lg(site, lambda t: t == tag))
    def wv(self, tag):
        self.n += 1; site = (self.name, 'v', self.n)
        self.th.append(lambda: self.c.wait_vm(site, lambda t: t == tag))

def g_work(c):
    R = Rec(c, 'g')
    R("""
    s_lshl_b32 s6, s4, 1
    s_lshr_b32 s7, s3, 1
    s_add_u32 s6, s6, s7
    s_lshl_b32 s6, s6, 6
    s_lshl_b32 s7, s5, 1
    s_add_u32 s6, s6, s7
    s_and_b32 s7, s3, 1
    s_add_u32 s6, s6, s7
    s_lshl_b32 s76, s6, 7
    s_add_u32 s76, s76, %d
    s_add_u32 s7, s76, 0x20000
    v_mov_b32 v21, 0
    s_lshl_b32 s70, s71, 11
    v_lshlrev_b32 v25, 5, v17
    s_lshl_b32 s6, s2, 2
    s_add_u32 s6, s6, s3
    s_lshl_b32 s6, s6, 7
    s_add_u32 s6, s6, %d
    """ % (WS_FL, WS_FL + 0x40000))
    R.vm('buffer_load_dwordx4 v[64:67], v25, s[8:11], s70 offen', ('GL',))
    R.vm('buffer_load_dwordx4 v[68:71], v25, s[8:11], s70 offen offset:16', ('GL',))
    R.vm('buffer_load_dwordx4 v[72:75], v25, s[8:11], s70 offen offset:2048', ('GL',))
    R.vm('buffer_load_dwordx4 v[76:79], v25, s[8:11], s70 offen offset:2064', ('GL',))
    R.vm('global_load_dwordx4 v[80:83], v25, s[62:63]', ('GL',))
    R.vm('global_load_dwordx4 v[84:87], v25, s[62:63] offset:16', ('GL',))
    R.blk([('i', 's_mov_b64 exec, 1'), ('vm', 'buffer_store_dword v21, off, s[20:23], s76 sc1'), ('vm', 'buffer_store_dword v21, off, s[20:23], s7 sc1'), ('vm', 'buffer_store_dword v21, off, s[20:23], s6 sc1'), ('i', 's_mov_b64 exec, -1')])
    first = len(R.th)
    R.wv(('GL',))
    G = 48
    for d in range(8):
        R('v_and_b32 v%d, 0xffff0000, v%d\nv_lshlrev_b32 v%d, 16, v%d' % (G + 3, 80 + d, G + 2, 80 + d))
        for row in range(2):
            xr = 64 + row * 8 + d; a = G + 4 + row * 2; t = G + 8 + row * 2
            R("""
            v_and_b32 v%d, 0xffff0000, v%d
            v_lshlrev_b32 v%d, 16, v%d
            v_pk_mul_f32 v[%d:%d], v[%d:%d], v[%d:%d]
            v_cvt_pk_bf16_f32 v%d, v%d, v%d
            v_and_b32 v%d, 0xffff0000, v%d
            v_lshlrev_b32 v%d, 16, v%d
            """ % (t + 1, xr, t, xr, t, t + 1, t, t + 1, G + 2, G + 3, t, t, t + 1, t + 1, t, t, t))
            if d == 0: R('v_mov_b64 v[%d:%d], v[%d:%d]' % (a, a + 1, t, t + 1))
            else: R('v_pk_add_f32 v[%d:%d], v[%d:%d], v[%d:%d]' % (a, a + 1, a, a + 1, t, t + 1))
    for row in range(2):
        a = G + 4 + row * 2
        R('v_add_f32 v%d, v%d, v%d' % (a, a, a + 1))
    for sh in (1, 2, 4, 8):
        for row in range(2):
            a = G + 4 + row * 2
            R('v_add_f32_dpp v%d, v%d, v%d row_shr:%d row_mask:0xf bank_mask:0xf bound_ctrl:0' % (a, a, a, sh))
    for row in range(2):
        for k in range(4):
            R('v_readlane_b32 s%d, v%d, %d' % (78 + row * 4 + k, G + 4 + row * 2, 15 + 16 * k))
    R("""
    v_mov_b32 v48, s78
    v_add_f32 v48, s79, v48
    v_add_f32 v48, s80, v48
    v_add_f32 v48, s81, v48
    v_mov_b32 v49, s82
    v_add_f32 v49, s83, v49
    v_add_f32 v49, s84, v49
    v_add_f32 v49, s85, v49
    v_cvt_pk_bf16_f32 v48, v48, v49
    v_lshlrev_b32 v49, 16, v48
    v_and_b32 v50, 0xffff0000, v48
    v_mul_f32 v49, 0xbfb8aa3b, v49
    v_mul_f32 v50, 0xbfb8aa3b, v50
    v_exp_f32 v49, v49
    v_exp_f32 v50, v50
    v_add_f32 v49, 1.0, v49
    v_add_f32 v50, 1.0, v50
    v_rcp_f32 v49, v49
    v_rcp_f32 v50, v50
    v_cvt_pk_bf16_f32 v48, v49, v50
    v_lshlrev_b32 v50, 16, v48
    v_and_b32 v51, 0xffff0000, v48
    s_lshl_b32 s6, s71, 2
    s_add_u32 s6, s6, %d
    """ % WS_G)
    R.blk([('i', 's_mov_b64 exec, 1'), ('vm', 'buffer_store_dwordx2 v[50:51], off, s[20:23], s6 sc1'), ('i', 's_mov_b64 exec, -1')])
    return R.th[:first], R.th[first:]
def as_fill(c, lines):
    out = []
    for l in lines:
        if l.startswith('ds_'): out.append(lambda l=l: c.ds(l, ('T',)))
        else: out.append(lambda l=l: c.I(l))
    return out

def run(ths):
    for t in ths: t()

def prologue(c):
    I = c.I
    I('''
    s_cmp_ge_u32 s2, 256
    s_cbranch_scc1 K1_done
    s_load_dwordx16 s[36:51], s[0:1], 0
    s_load_dwordx16 s[52:67], s[0:1], 64
    s_load_dwordx2 s[68:69], s[0:1], 128
    ''')
    if c.emit: code_touch(I, 'CP_a', 'CP_b')
    I('''
    CP_a:
    v_lshrrev_b32 v16, 6, v0
    v_and_b32 v17, 63, v0
    v_readfirstlane_b32 s3, v16
    s_lshr_b32 s4, s2, 5
    s_and_b32 s5, s2, 7
    s_lshl_b32 s5, s5, 2
    s_bfe_u32 s6, s2, 0x20003
    s_add_u32 s5, s5, s6
    v_and_b32 v18, 15, v0
    v_bfe_u32 v19, v0, 4, 2
    v_lshrrev_b32 v20, 3, v17
    v_and_b32 v21, 7, v17
    v_xor_b32 v21, v21, v20
    s_lshl_b32 s6, s4, 8
    s_lshl_b32 s7, s3, 6
    s_add_u32 s6, s6, s7
    v_lshl_add_u32 v1, v20, 2, s6
    v_lshlrev_b32 v1, 11, v1
    v_lshl_add_u32 v1, v21, 4, v1
    v_add_u32 v2, 0xfc00, v1
    s_mov_b32 s10, 0x400000
    s_mov_b32 s11, 0x00020000
    s_mov_b32 s14, 0x700000
    s_mov_b32 s15, 0x00020000
    s_mov_b32 s18, 0x200000
    s_mov_b32 s19, 0x00020000
    s_mov_b32 s22, 0x10000000
    s_mov_b32 s23, 0x00020000
    s_mov_b32 s26, 256
    s_mov_b32 s27, 0x00020000
    s_mov_b32 s90, 0x700000
    s_mov_b32 s91, 0x00020000
    s_mov_b32 s28, 0
    s_mov_b32 s29, 4096
    s_mov_b32 s30, 0
    s_mov_b32 s31, 0
    s_mov_b32 s77, 0x%x
    s_lshl_b32 s32, s3, 12
    s_add_u32 s32, s32, %d
    s_lshl_b32 s34, s3, 14
    s_lshl_b32 s35, s3, 11
    s_add_u32 s35, s35, %d
    v_lshrrev_b32 v22, 2, v20
    v_and_b32 v23, 3, v20
    v_lshl_add_u32 v22, v22, 3, v23
    s_and_b32 s7, s3, 1
    s_lshl_b32 s6, s5, 5
    s_lshl_b32 s70, s7, 2
    s_add_u32 s6, s6, s70
    v_add_u32 v22, s6, v22
    v_lshlrev_b32 v22, 11, v22
    v_lshl_add_u32 v10, v21, 4, v22
    v_add_u32 v11, 0x7c00, v10
    s_mul_i32 s72, s5, 224
    s_mul_i32 s70, s7, 28672
    s_add_u32 s72, s72, s70
    s_and_b32 s73, s5, 1
    s_lshl_b32 s73, s73, 1
    s_movk_i32 s74, 4682
    s_movk_i32 s75, 7168
    s_waitcnt lgkmcnt(0)
    s_mov_b32 s8, s36
    s_mov_b32 s9, s37
    s_cmp_ge_u32 s3, 2
    s_cselect_b32 s12, s58, s56
    s_cselect_b32 s13, s59, s57
    s_cselect_b32 s16, s44, s42
    s_cselect_b32 s17, s45, s43
    s_cselect_b32 s86, s48, s46
    s_cselect_b32 s87, s49, s47
    s_mov_b32 s20, s68
    s_mov_b32 s21, s69
    s_mov_b32 s24, s66
    s_mov_b32 s25, s67
    s_mov_b32 s88, s60
    s_mov_b32 s89, s61
    ''' % (OOB, WB, BB))
    stamp(I, 0); stamp_rt(I, 10)
    if PT:
        I('''
        s_lshr_b32 s78, s2, 3
        s_lshl_b32 s78, s78, 2
        s_add_u32 s78, s78, s3
        s_and_b32 s79, s78, 15
        s_lshr_b32 s80, s78, 4
        s_mov_b32 s82, 0x11111112
        s_mov_b32 s83, 0x14144401
        s_lshl_b32 s81, s79, 2
        s_lshr_b64 s[82:83], s[82:83], s81
        s_and_b32 s82, s82, 15
        s_cmp_lt_u32 s80, s82
        s_cselect_b32 s79, s79, 0
        s_cselect_b32 s80, s80, 0
        s_sub_u32 s81, s78, 64
        s_cmp_lt_u32 s81, 20
        s_cselect_b32 s79, 16, s79
        s_cselect_b32 s80, s81, s80
        s_lshl_b32 s79, s79, 3
        s_lshl_b32 s80, s80, 21
        s_load_dwordx2 s[82:83], s[0:1], s79
        ''')
    for l in range(64): assert (l * 37) >> 8 == l // 7
    I("""
    v_mul_u32_u24 v26, 37, v17
    v_lshrrev_b32 v26, 8, v26
    v_mul_u32_u24 v27, 7, v26
    v_sub_u32 v27, v17, v27
    v_lshlrev_b32 v27, 7, v27
    s_lshr_b32 s6, s2, 3
    s_lshl_b32 s6, s6, 1
    s_add_u32 s6, s6, s7
    s_lshl_b32 s6, s6, 1
    s_and_b32 s70, s2, 7
    v_add_u32 v28, s6, v26
    v_mul_u32_u24 v28, s75, v28
    v_add_u32 v28, v28, v27
    s_mul_i32 s71, s70, 896
    v_add_u32 v28, s71, v28
    v_lshrrev_b32 v26, 1, v17
    v_and_b32 v27, 1, v17
    v_lshlrev_b32 v27, 7, v27
    s_lshl_b32 s71, s70, 7
    s_add_u32 s71, s71, s6
    v_add_u32 v29, s71, v26
    v_lshl_add_u32 v29, v29, 11, v27
    s_lshl_b32 s6, s4, 8
    s_lshl_b32 s70, s5, 3
    s_add_u32 s6, s6, s70
    s_lshl_b32 s70, s3, 1
    s_add_u32 s71, s6, s70
    v_add_u32 v30, s71, v26
    v_lshl_add_u32 v30, v30, 11, v27
    s_mov_b32 s94, %d
    s_mov_b32 s95, %d
    s_lshl_b32 s92, s2, 2
    s_add_u32 s92, s92, s3
    s_mul_i32 s92, s92, 7168
    v_lshlrev_b32 v31, 7, v17
    """ % (TS0 * 128, TS0 * 458752))
    for _ in range(TPRE): ptouch(I, wd=False)
    for k in range(8): run(x_dma(c, 0, k))
    if PT:
        I('s_waitcnt lgkmcnt(0)')
        I('s_load_dword s81, s[82:83], s80')
    for n in range(4):
        I('''
        v_add_u32 v20, %d, v17
        v_mul_u32_u24 v21, s74, v20
        v_lshrrev_b32 v21, 16, v21
        v_mul_u32_u24 v22, 14, v21
        v_sub_u32 v22, v20, v22
        v_add_u32 v22, s73, v22
        v_subrev_u32 v23, 14, v22
        v_min_u32 v22, v22, v23
        v_lshrrev_b32 v23, 2, v21
        v_and_b32 v21, 3, v21
        v_lshl_add_u32 v21, v23, 3, v21
        v_mul_u32_u24 v21, s75, v21
        v_lshl_add_u32 v21, v22, 4, v21
        v_add_u32 v21, s72, v21
        v_subrev_u32 v%d, %d, v21
        ''' % (n * 64, 3 + n, n * 1024))
        if n == 3:
            I('v_mov_b32 v20, s77\nv_cmp_gt_u32 vcc, 32, v17\nv_cndmask_b32 v6, v20, v6, vcc')
        run(w_dma(c, 0, n))
    for n in range(2): run(b_dma(c, 0, n))
    for n in range(4): run(w_dma(c, 1, n))
    I('''
    v_and_b32 v24, 31, v0
    v_lshl_add_u32 v24, s5, 5, v24
    v_lshlrev_b32 v24, 1, v24
    ''')
    c.vmem('global_load_ushort v48, v24, s[38:39]', ('S',))
    c.vmem('global_load_ushort v49, v24, s[40:41]', ('S',))
    c.vmem('global_load_ushort v50, v24, s[50:51]', ('S',))
    if not DEFER:
        for k in range(8): run(x_dma(c, 1, k))
        for n in range(4): run(w_dma(c, 2, n))
        for n in range(2): run(b_dma(c, 1, n))
        for n in range(3): run(w_dma(c, 3, n))
    c_addr(I)
    I('''
    s_lshl_b32 s6, s5, 5
    s_lshl_b32 s7, s4, 2
    s_add_u32 s6, s6, s7
    s_add_u32 s6, s6, s3
    s_lshl_b32 s6, s6, 8
    s_add_u32 s6, s6, %d
    v_lshlrev_b32 v26, 4, v17
    v_mov_b32 v24, -1
    v_mov_b32 v25, -1
    v_mov_b32 v22, -1
    v_mov_b32 v23, -1
    s_mov_b64 exec, 0xffff
    ''' % WS_T)
    c.vmem('buffer_store_dwordx4 v[22:25], v26, s[20:23], s6 offen sc1', ('SV',))
    I('''
    s_mov_b64 exec, -1
    s_bfe_u32 s93, s2, 0x20005
    s_add_u32 s93, s93, 1
    s_cmp_eq_u32 s3, 0
    s_cselect_b32 s93, s93, 99
    ''')
    I('''
    v_lshrrev_b32 v26, 2, v18
    v_lshl_add_u32 v26, v19, 2, v26
    v_mul_u32_u24 v26, 224, v26
    v_and_b32 v27, 3, v17
    v_lshl_add_u32 v12, v27, 3, v26
    v_add_u32 v12, %d, v12
    v_and_b32 v26, 7, v17
    v_xor_b32 v26, v26, v19
    v_lshlrev_b32 v26, 4, v26
    v_lshl_add_u32 v26, v18, 7, v26
    v_add_u32 v13, %d, v26
    v_xor_b32 v14, 64, v13
    v_add_u32 v7, s34, v26
    v_xor_b32 v8, 64, v7
    s_mov_b32 s33, 0
    ''' % (WB, BB))
    stamp(I, 3)
    c.wait_vm(('d0',), lambda t: t in (('W', 0), ('B', 0), ('X', 0)))
    I('s_barrier')
    stamp(I, 4)
    for i in range(4): x_read(c, 0, 0, i)()
    for t in range(5): run(w_read(c, 0, t))
    for i in range(4): x_read(c, 0, 1, i)()
    for k in range(4): b_read(c, 0, 0, k)()


RR = lambda jt, i: acc_reg('R', jt, i)[1]
II = lambda jt, i: acc_reg('I', jt, i)[1]
BA, BBk, BC, BD = 32, 48, 64, 80

def ld16(R, base_v, off, dst, tag):
    R.ds('ds_read_b128 v[%d:%d], v%d offset:%d' % (dst, dst + 3, base_v, off), tag)
    R.ds('ds_read_b128 v[%d:%d], v%d offset:%d' % (dst + 4, dst + 7, base_v, off + 16), tag)
    R.ds('ds_read_b128 v[%d:%d], v%d offset:%d' % (dst + 8, dst + 11, base_v, off + 128), tag)
    R.ds('ds_read_b128 v[%d:%d], v%d offset:%d' % (dst + 12, dst + 15, base_v, off + 144), tag)

def s1_pre(c):
    R = Rec(c, 's1p')
    R('v_lshlrev_b32 v20, 5, v19')
    R('v_add_u32 v20, %d, v20' % TAB)
    ld16(R, 20, 0, BA, ('K', 0)); ld16(R, 20, 256, BBk, ('K', 1))
    R("""
    s_lshl_b32 s78, s4, 2
    s_add_u32 s78, s78, s3
    s_lshl_b32 s79, s5, 13
    s_add_u32 s79, s79, %d
    s_lshl_b32 s80, s78, 8
    s_add_u32 s80, s80, s79
    v_lshlrev_b32 v21, 6, v19
    s_sub_u32 s81, s78, 1
    v_sub_u32 v22, s81, v18
    v_subrev_u32 v23, 16, v22
    v_cmp_gt_u32 vcc, 32, v22
    v_lshl_add_u32 v22, v22, 8, v21
    v_mov_b32 v24, s77
    v_cndmask_b32 v22, v24, v22, vcc
    v_cmp_gt_u32 vcc, 32, v23
    v_lshl_add_u32 v23, v23, 8, v21
    s_lshl_b32 s7, s5, 2
    v_cndmask_b32 v23, v24, v23, vcc
    v_cmp_eq_u32 s[82:83], 15, v18
    """ % WS_T)

    return R.th

def s1_work(c):
    R = Rec(c, 's1')
    LAM, CA, E, T = BA, BBk, BC, BD
    R.wl(('K', 0))
    cur = None; bufs = [E, T]
    for i in range(1, 4):
        d = bufs[i & 1]
        for jt in range(2):
            for h in range(2):
                o = jt * 4 + 2 * h
                if cur is None: br, bi = RR(jt, 0) + 2 * h, II(jt, 0) + 2 * h
                else: br, bi = cur + o, cur + 8 + o
                cmul_pk(R, d + o, d + 8 + o, LAM + o, LAM + 8 + o, br, bi, RR(jt, i) + 2 * h, II(jt, i) + 2 * h)
        cur = d
    S = E
    for k, sh in enumerate((1, 2, 4, 8)):
        for r in range(16):
            R('v_mov_b32_dpp v%d, v%d row_shr:%d row_mask:0xf bank_mask:0xf bound_ctrl:0' % (S + r, cur + r, sh))
        R.wl(('K', 1 + k))
        for o in range(0, 8, 2):
            cmul_pk(R, cur + o, cur + 8 + o, CA + o, CA + 8 + o, S + o, S + 8 + o, cur + o, cur + 8 + o)
        if k < 3: ld16(R, 20, (2 + k) * 256, CA, ('K', 2 + k))
    R.blk([('i', 's_mov_b64 exec, s[82:83]')] +
          [('vm', 'buffer_store_dwordx4 v[%d:%d], v21, s[20:23], s80 offen offset:%d sc1' % (cur + 4 * k, cur + 4 * k + 3, 16 * k)) for k in range(4)] +
          [('i', 's_mov_b64 exec, -1')])
    for r in range(16):
        R('v_mov_b32_dpp v%d, v%d row_shr:1 row_mask:0xf bank_mask:0xf bound_ctrl:0' % (S + r, cur + r))
    return R.th

def last_stage(c):
    s = 15
    order = [('S', 0, k) for k in range(4)] + [('S', 1, k) for k in range(4)] + [('F', 30, t) for t in range(14)] + [('F', 31, t) for t in range(14)]
    pre = s1_pre(c); work = s1_work(c)
    nF = 28
    per = -(-len(work) // (nF - 2))
    for n, (ty, a, b) in enumerate(order):
        fill = []
        site = ('Z', n)
        if ty == 'S':
            hh, k = a, b
            if hh == 0: fill.append(b_read(c, s, 1, k))
            for _ in range(min(5, len(pre))): fill.append(pre.pop(0))
            if k == 0: c.wait_lg((site, 'bf'), lambda t: t in (('BF', s, hh), ('XF', s, hh)))
            kind, jt = SSM[k]; areg = BH + hh * 16 + k * 4
        else:
            u, t = a, b; hh = u & 1
            if t <= 8: fill += w_read(c, u, t + 5)
            if u == 30 and t >= 10:
                for tt in {10: [], 11: [0], 12: [1, 2], 13: [3, 4]}[t]: fill += w_read(c, 31, tt)
            assert not pre
            if n >= 10:
                for _ in range(min(per, len(work))): fill.append(work.pop(0))
            c.wait_lg((site, 'f'), lambda tg: tg == ('F', u, t))
            kind, jt = FFN[t]; areg = RING + (t % 7) * 4
        nf = len(fill); k2 = 0
        for i in range(4):
            f, bb = acc_reg(kind, jt, i)
            c.I('v_mfma_f32_16x16x32_bf16 %s, %s, %s, %s' % (rr(f, bb), rr('a', areg), rr('a', XSET + 32 + hh * 16 + i * 4), rr(f, bb)))
            take = (nf * (i + 1) + 3) // 4 - k2
            for _ in range(take):
                fill[k2](); k2 += 1
        if ty == 'F' and a == 30 and b == 9:
            c.wait_vm((site, 'd'), lambda t: t == ('W', 31))
            c.I('s_barrier')
    assert not work


def pk_bc(op, d, a, f, cc=None):
    base = f & ~1; hi = f & 1
    if cc is None:
        return 'v_pk_mul_f32 v[%d:%d], v[%d:%d], v[%d:%d] op_sel:[0,%d] op_sel_hi:[1,%d]' % (d, d + 1, a, a + 1, base, base + 1, hi, hi)
    return 'v_pk_fma_f32 v[%d:%d], v[%d:%d], v[%d:%d], v[%d:%d] op_sel:[0,%d,0] op_sel_hi:[1,%d,1]' % (d, d + 1, a, a + 1, base, base + 1, cc, cc + 1, hi, hi)
def cmul16(P, d, a, b, c=None):
    p = lambda r: 'v[%d:%d]' % (r, r + 1)
    G = range(0, 8, 2)
    for o in G:
        if c is None: P('v_pk_mul_f32 %s, %s, %s' % (p(d(o)[0]), p(a(o)[0]), p(b(o)[0])))
        else: P('v_pk_fma_f32 %s, %s, %s, %s' % (p(d(o)[0]), p(a(o)[0]), p(b(o)[0]), p(c(o)[0])))
    for o in G:
        if c is None: P('v_pk_mul_f32 %s, %s, %s' % (p(d(o)[1]), p(a(o)[0]), p(b(o)[1])))
        else: P('v_pk_fma_f32 %s, %s, %s, %s' % (p(d(o)[1]), p(a(o)[0]), p(b(o)[1]), p(c(o)[1])))
    for o in G:
        P('v_pk_fma_f32 %s, %s, %s, %s neg_lo:[1,0,0] neg_hi:[1,0,0]' % (p(d(o)[0]), p(a(o)[1]), p(b(o)[1]), p(d(o)[0])))
    for o in G:
        P('v_pk_fma_f32 %s, %s, %s, %s' % (p(d(o)[1]), p(a(o)[1]), p(b(o)[0]), p(d(o)[1])))
blk = lambda base: (lambda o: (base + o, base + 8 + o))
uacc = lambda i: (lambda o: (RR(o >> 2, i) + (o & 3), II(o >> 2, i) + (o & 3)))

def ffn_out2(P, items, dst, tmp, om):
    ch = []
    for n, (jt, i) in enumerate(items):
        for h in range(2):
            ta = tmp + (n * 2 + h) * 4; tb = ta + 2
            seq = []
            srcs = []
            for kind, t in (('G', ta), ('U', tb)):
                f, b = acc_reg(kind, jt, i)
                if f == 'a':
                    seq.append('v_accvgpr_read_b32 v%d, a%d' % (t, b + 2 * h))
                    seq.append('v_accvgpr_read_b32 v%d, a%d' % (t + 1, b + 2 * h + 1))
                    srcs.append(t)
                else: srcs.append(b + 2 * h)
            g0, u0 = srcs
            if k1.EMUL:
                seq += ['v_cvt_pk_bf16_f32 v%d, v%d, v%d' % (ta, g0, g0 + 1),
                        'v_cvt_pk_bf16_f32 v%d, v%d, v%d' % (tb, u0, u0 + 1),
                        'v_pk_max_i16 v%d, v%d, 0' % (ta, ta),
                        'v_and_b32 v%d, 0xffff0000, v%d' % (tb + 1, tb),
                        'v_lshlrev_b32 v%d, 16, v%d' % (tb, tb),
                        'v_and_b32 v%d, 0xffff0000, v%d' % (ta + 1, ta),
                        'v_lshlrev_b32 v%d, 16, v%d' % (ta, ta),
                        'v_pk_mul_f32 v[%d:%d], v[%d:%d], v[%d:%d]' % (ta, ta + 1, ta, ta + 1, tb, tb + 1)]
            else:
                seq += ['v_max_f32 v%d, 0, v%d' % (ta, g0), 'v_max_f32 v%d, 0, v%d' % (ta + 1, g0 + 1),
                        'v_pk_mul_f32 v[%d:%d], v[%d:%d], v[%d:%d]' % (ta, ta + 1, ta, ta + 1, u0, u0 + 1)]
            seq.append(pk_bc('mul', ta, ta, om + i))
            seq.append('v_cvt_pk_bf16_f32 v%d, v%d, v%d' % (dst + 2 * n + h, ta, ta + 1))
            ch.append(seq)
    m = max(len(x) for x in ch)
    for k in range(m):
        for x in ch:
            kk = k - (m - len(x))
            if kk >= 0: P(x[kk])


NS = 5
ACT = 96
WF = 32
FD = 3
NB, NT = 14, 22
XD = 64
def acc2(tau, jt): return (tau * 8 + jt) * 4
def role_of(n): return 'B' if n < NB else 'Y'
def act_loads(c, n):
    if n >= NT: return []
    th = []
    if n == NB: th.append(lambda: c.I('s_mov_b32 s28, s29'))
    th += [lambda tau=tau: c.vmem('buffer_load_dwordx4 %s, v%d, s[20:23], s28 offen offset:%d sc1' % (rr('v', ACT + (n % NS) * 32 + tau * 4), 1 + (tau >> 2), (tau & 3) * 1024), ('A', n)) for tau in range(8)]
    th.append(lambda: c.I('s_add_u32 s28, s28, 8192'))
    return th
def w_loads(c, n):
    if n >= NT: return []
    th = []
    if n == NB:
        th.append(lambda: c.I('s_mov_b32 s30, s32')); th.append(lambda: c.I('s_xor_b32 s35, s32, 4096'))
    for k in range(8):
        if k & 3 == 0: th.append(lambda k=k: c.I('s_add_u32 m0, s31, %d' % ((n % NS) * 8192 + (k >> 2) * 4096)))
        if n < NB: th.append(lambda k=k: c.vmem('buffer_load_dwordx4 v%d, s[16:19], s%d offen offset:%d lds' % (3 + (k & 3), 35 if k >> 2 else 30, (k & 3) * 1024), ('W', n)))
        else: th.append(lambda k=k: c.vmem('buffer_load_dwordx4 v24, s[20:23], s%d offen offset:%d sc1 lds' % (35 if k >> 2 else 30, (k & 3) * 1024), ('W', n)))
    st = 65536 if n < NB else 8192
    th.append(lambda: c.I('s_add_u32 s30, s30, %d' % st)); th.append(lambda: c.I('s_add_u32 s35, s35, %d' % st))
    return th
def frag_read(c, n, jt):
    if n >= NT: return []
    reg = WF + jt * 4
    so = (n % NS) * 8192
    if role_of(n) == 'Y':
        return [lambda: c.ds('ds_read_b128 %s, v25 offset:%d' % (rr('v', reg), so + jt * 1024), ('F', n, jt))]
    return [lambda e=e: c.ds('ds_read_b64_tr_b16 v[%d:%d], v%d offset:%d' % (reg + 2 * e, reg + 2 * e + 1, 7 + jt, so + e * 2048), ('F', n, jt)) for e in range(2)]

def step2(c, n, pre=None):
    site = ('P2', n)
    a = act_loads(c, n + NS - 1); w = w_loads(c, n + NS - 1)
    vm = []
    while a or w:
        for _ in range(2):
            if w: vm.append(w.pop(0))
        for _ in range(1):
            if a: vm.append(a.pop(0))
        if len(a) > len(w) and a: vm.append(a.pop(0))
    c.wait_vm((site, 'a'), lambda t: t == ('A', n))
    if pre: pre()
    per = -(-len(vm) // 8) if vm else 0
    for jt in range(8):
        slots = [[] for _ in range(8)]
        jn, nn = jt + FD, n
        if jn >= 8: jn -= 8; nn += 1
        fr = frag_read(c, nn, jn)
        if jt + FD == 8 and n + 1 < NT:
            slots[0].append(lambda: c.wait_vm((site, 'w'), lambda t: t == ('W', n + 1)))
        for k, f in enumerate(fr): slots[1 + k].append(f)
        for k, f in enumerate(vm[jt * per:(jt + 1) * per]): slots[3 + min(k * 2, 4)].append(f)
        c.wait_lg((site, 'f', jt), lambda t: t == ('F', n, jt))
        for tau in range(8):
            b = acc2(tau, jt)
            c.I('v_mfma_f32_16x16x32_bf16 %s, %s, %s, %s' % (rr('a', b), rr('v', WF + jt * 4), rr('v', ACT + (n % NS) * 32 + tau * 4), '0' if n == 0 else rr('a', b)))
            for th in slots[tau]: th()

def p2_setup(P):
    P("""
    s_bfe_u32 s92, s2, 0x10002
    s_lshl_b32 s92, s92, 3
    s_bfe_u32 s6, s2, 0x30003
    s_add_u32 s92, s92, s6
    s_bfe_u32 s93, s2, 0x10001
    s_lshl_b32 s93, s93, 2
    s_lshr_b32 s6, s2, 6
    s_add_u32 s93, s93, s6
    s_and_b32 s94, s2, 1
    s_lshl_b32 s95, s94, 2
    s_add_u32 s95, s95, s3
    s_mov_b32 s12, s64
    s_mov_b32 s13, s65
    s_mov_b32 s14, 0x800000
    s_mov_b32 s16, s60
    s_mov_b32 s17, s61
    s_mov_b32 s18, 0x700000
    s_mul_i32 s31, s3, %d
    v_lshlrev_b32 v84, 1, v19
    v_xor_b32 v84, v84, v18
    v_xor_b32 v85, 8, v84
    s_lshl_b32 s6, s93, 8
    v_lshl_add_u32 v86, v19, 11, s6
    v_lshl_add_u32 v3, v84, 4, v86
    v_lshl_add_u32 v4, v85, 4, v86
    v_add_u32 v4, 7168, v4
    v_add_u32 v5, 14336, v3
    v_add_u32 v6, 14336, v4
    s_mul_i32 s30, s95, %d
    s_add_u32 s35, s30, 32768
    """ % (NS * 8192, NB * 65536))
    c = Ctx(P, {})
    for n in range(3): run(w_loads(c, n))
    P("""
    v_lshlrev_b32 v87, 4, v17
    s_mul_i32 s6, s92, %d
    v_add_u32 v1, s6, v87
    v_add_u32 v2, 0x1000, v1
    s_mul_i32 s28, s95, %d
    s_lshl_b32 s32, s95, 16
    s_add_u32 s29, s32, %d
    v_lshrrev_b32 v84, 2, v18
    v_lshl_add_u32 v84, v19, 2, v84
    v_and_b32 v85, 7, v84
    v_and_b32 v86, 8, v84
    v_lshl_add_u32 v84, v86, 1, v85
    v_and_b32 v86, 3, v17
    v_lshlrev_b32 v84, 8, v84
    v_lshl_add_u32 v84, v86, 3, v84
    v_add_u32 v84, s31, v84
    v_lshl_add_u32 v7, v85, 5, v84
    s_lshl_b32 s7, s94, 7
    v_xor_b32 v7, s7, v7
    """ % (NKB * 8192, NB * 8192, 112 * 8192))
    for jt in range(1, 8): P('v_xor_b32 v%d, %d, v7' % (7 + jt, jt * 32))

def spin(P, L, cond_text, reload_text, sleep=2):
    P('s_mov_b32 s75, 0')
    P.label(L)
    P(cond_text)
    P("""
    s_add_u32 s75, s75, 1
    s_cmp_eq_u64 vcc, 0
    s_cbranch_scc1 %sok
    s_cmp_ge_u32 s75, 0x4000
    s_cbranch_scc1 %sok
    s_sleep %d
    """ % (L, L, sleep))
    P(reload_text)
    P('s_waitcnt vmcnt(0)')
    P('s_branch %s' % L)
    P.label(L + 'ok')

def init_load(c):
    c.I('v_and_b32 v26, 31, v17\nv_lshlrev_b32 v26, 2, v26')
    c.vmem('buffer_load_dword v25, v26, s[24:27], 0 offen offset:128 sc1', ('IF',))
def init_check(c):
    c.wait_vm(('ifw',), lambda t: t == ('IF',))
    if c.emit:
        spin(c.P, 'K1_ichk', 'v_cmp_ne_u32 vcc, 0xff, v25', 'buffer_load_dword v25, v26, s[24:27], 0 offen offset:128 sc1', 4)
    c.I("""
    s_lshl_b32 s6, s4, 8
    s_lshl_b32 s7, s3, 6
    s_add_u32 s6, s6, s7
    s_lshl_b32 s6, s6, 2
    s_add_u32 s6, s6, %d
    v_lshlrev_b32 v24, 4, v18
    """ % WS_G)
    c.vmem('buffer_load_dwordx4 v[28:31], v24, s[20:23], s6 offen sc1', ('G4',))

RES = 224
def epilogue(P):
    LAM, S = BA, BC
    stamp(P, 5)
    P('s_waitcnt lgkmcnt(0)')
    P('s_barrier')
    P('s_waitcnt vmcnt(4)')
    P("""
    v_sub_f32 v60, 1.0, v28
    v_sub_f32 v61, 1.0, v29
    v_sub_f32 v62, 1.0, v30
    v_sub_f32 v63, 1.0, v31
    v_cvt_pk_bf16_f32 v60, v60, v61
    v_cvt_pk_bf16_f32 v62, v62, v63
    v_and_b32 v61, 0xffff0000, v60
    v_and_b32 v63, 0xffff0000, v62
    v_lshlrev_b32 v60, 16, v60
    v_lshlrev_b32 v62, 16, v62
    """)
    code_touch(P, 'CP_c', 'CP_end', 84)
    p2_setup(P)
    P("""
    s_lshl_b32 s6, s4, 1
    s_lshr_b32 s7, s3, 1
    s_add_u32 s6, s6, s7
    s_mul_i32 s6, s6, %d
    s_and_b32 s7, s3, 1
    s_lshl_b32 s7, s7, 12
    s_add_u32 s6, s6, s7
    v_lshl_add_u32 v15, v17, 4, s6
    s_mul_i32 s70, s5, 7
    s_add_u32 s70, s70, 1
    s_lshr_b32 s70, s70, 1
    s_lshl_b32 s70, s70, 13
    s_add_u32 s71, s70, 8192
    s_add_u32 s72, s70, 16384
    s_add_u32 s73, s70, 24576
    s_sub_u32 s74, s70, 7680
    s_bitcmp1_b32 s5, 0
    s_cselect_b32 s73, s74, s73
    v_and_b32 v27, 31, v17
    v_lshrrev_b32 v24, 5, v17
    v_lshl_add_u32 v27, v27, 4, s6
    v_lshl_add_u32 v27, v24, 10, v27
    v_lshl_add_u32 v21, v18, 8, v20
    """ % (NKB * 8192))
    tmp = 80; n = 0
    def outreg():
        nonlocal n
        n += 1
        return 48 + (n % 3) * 4
    F = 160
    TA, TB, WA, WBk = F, F + 16, F + 32, F + 48
    tl = ''
    for k in range(4): tl += 'buffer_load_dwordx4 v[%d:%d], v22, s[20:23], s79 offen offset:%d sc1\n' % (TA + 4 * k, TA + 4 * k + 3, 16 * k)
    for k in range(4): tl += 'buffer_load_dwordx4 v[%d:%d], v23, s[20:23], s79 offen offset:%d sc1\n' % (TB + 4 * k, TB + 4 * k + 3, 16 * k)
    def fin(dst, va, so, off):
        P('v_permlane32_swap_b32 v%d, v%d' % (dst, dst + 2))
        P('v_permlane32_swap_b32 v%d, v%d' % (dst + 1, dst + 3))
        P('buffer_store_dwordx4 v[%d:%d], v%d, s[20:23], s%d offen offset:%d sc1' % (dst, dst + 3, va, so, off))
    for pr in range(3):
        for i in range(4):
            dst = outreg()
            ffn_out2(P, [(2 * pr, i), (2 * pr + 1, i)], dst, tmp, 60)
            fin(dst, 15, 70 + pr, i * 1024)
        if pr == 1:
            P(tl)
            for off, dst in ((6144, WA), (6144 + 4096, WBk)):
                for k, o in enumerate((0, 16, 128, 144)):
                    P('ds_read_b128 v[%d:%d], v21 offset:%d' % (dst + 4 * k, dst + 4 * k + 3, off + o))
    for i in (0, 2):
        dst = outreg()
        ffn_out2(P, [(6, i), (6, i + 1)], dst, tmp, 60)
        fin(dst, 27, 73, i * 1024)
    stamp(P, 7)
    PWr = F + 64; AC = F + 80
    S2 = BD
    for k, o in enumerate((0, 16, 128, 144)):
        P('ds_read_b128 v[%d:%d], v21 offset:%d' % (PWr + 4 * k, PWr + 4 * k + 3, 2048 + o))
        P('ds_read_b128 v[%d:%d], v20 offset:%d' % (S2 + 4 * k, S2 + 4 * k + 3, 5 * 256 + o))
    P('s_waitcnt vmcnt(6)')
    cond = 'v_max3_u32 v24, v%d, v%d, v%d\nv_max3_u32 v25, v%d, v%d, v%d\n' % (TA, TA + 1, TA + 2, TB, TB + 1, TB + 2)
    for r in range(3, 15, 2):
        cond += 'v_max3_u32 v24, v24, v%d, v%d\nv_max3_u32 v25, v25, v%d, v%d\n' % (TA + r, TA + r + 1, TB + r, TB + r + 1)
    cond += 'v_max3_u32 v24, v24, v%d, v%d\nv_max_u32 v24, v24, v25\nv_cmp_eq_u32 vcc, -1, v24\n' % (TA + 15, TB + 15)
    spin(P, 'K1_tchk', cond, tl)
    stamp(P, 8)
    P('s_waitcnt lgkmcnt(0)')
    P('s_barrier')
    cmul16(P, blk(AC), blk(WA), blk(TA))
    cmul16(P, blk(AC), blk(WBk), blk(TB), blk(AC))
    for sh in (8, 4, 2, 1):
        for r in range(16):
            P('v_add_f32_dpp v%d, v%d, v%d row_ror:%d row_mask:0xf bank_mask:0xf' % (AC + r, AC + r, AC + r, sh))
    cmul16(P, blk(S), blk(PWr), blk(AC), blk(S))
    for i in range(4):
        O = TA if (i & 1) else TB
        cmul16(P, uacc(i), blk(LAM), blk(S) if i == 0 else uacc(i - 1), uacc(i))
        cmul16(P, blk(O), blk(S2), uacc(i))
        for k in range(8): P(pk_bc('mul', O + 2 * k, O + 2 * k, 28 + i))
        d = RES + i * 8
        for k in range(4):
            P('v_cvt_pk_bf16_f32 v%d, v%d, v%d' % (d + k, O + 2 * k, O + 2 * k + 1))
        for k in range(4):
            P('v_cvt_pk_bf16_f32 v%d, -v%d, -v%d' % (d + 4 + k, O + 8 + 2 * k, O + 8 + 2 * k + 1))
        if i == 1:
            P('v_mov_b32 v26, 1\ns_waitcnt vmcnt(0)\ns_mov_b64 exec, 1\nbuffer_store_dword v26, off, s[20:23], s76 sc1\ns_mov_b64 exec, -1')
    stamp(P, 9)

def p2_enter(c):
    I = c.I
    I("""
    v_mov_b32 v27, v15
    s_lshl_b32 s6, s92, 7
    s_lshr_b32 s7, s3, 1
    s_lshl_b32 s7, s7, 6
    s_add_u32 s6, s6, s7
    s_and_b32 s7, s3, 1
    s_lshl_b32 s7, s7, 1
    s_add_u32 s6, s6, s7
    v_lshl_add_u32 v20, v18, 2, s6
    s_lshl_b32 s7, s93, 7
    s_lshl_b32 s6, s94, 6
    s_add_u32 s7, s7, s6
    v_lshl_add_u32 v21, v19, 2, s7
    v_lshlrev_b32 v28, 10, v20
    v_add_u32 v28, v28, v21
    v_lshlrev_b32 v23, 1, v28
    v_lshlrev_b32 v28, 2, v28
    v_add_u32 v29, 0x1000, v28
    v_lshlrev_b32 v22, 1, v21
    v_lshlrev_b32 v21, 2, v20
    s_mov_b32 s6, %d
    v_lshlrev_b32 v15, 4, v17
    v_and_b32 v20, 7, v17
    v_lshlrev_b32 v20, 7, v20
    s_lshl_b32 s72, s92, 13
    s_lshl_b32 s7, s95, 10
    s_add_u32 s72, s72, s7
    s_add_u32 s72, s72, %d
    buffer_load_dword v56, v20, s[20:23], s72 offen sc1
    buffer_load_dwordx2 v[30:31], v21, s[20:23], s6 offen sc1
    """ % (WS_G, WS_FL))
    for k in range(2):
        for jt in range(4):
            I('buffer_load_dwordx2 v[%d:%d], v23, s[8:11], 0 offen offset:%d' % (32 + (k * 4 + jt) * 2, 33 + (k * 4 + jt) * 2, k * 2048 + jt * 32))
    for jt in range(4):
        I('global_load_dwordx2 v[%d:%d], v22, s[52:53] offset:%d' % (48 + jt * 2, 49 + jt * 2, jt * 32))
    run(w_loads(Ctx(c.P, {}) if c.emit else Ctx(None, {}), 3))
    I("""
    s_lshl_b32 s6, s93, 19
    s_add_u32 s6, s6, %d
    v_add_u32 v24, s6, v15
    v_add_u32 v25, s31, v15
    s_lshl_b32 s7, s94, 12
    s_add_u32 s32, s32, s7
    s_add_u32 s70, s5, 112
    s_lshl_b32 s70, s70, 13
    s_add_u32 s71, s70, 262144
    s_lshl_b32 s6, s92, 13
    s_add_u32 s6, s6, 0x20000
    s_lshl_b32 s7, s93, 1
    s_add_u32 s7, s7, s94
    s_lshl_b32 s7, s7, 13
    v_mov_b32 v22, s6
    v_mov_b32 v23, s7
    v_and_b32 v21, 16, v17
    v_cmp_eq_u32 vcc, 0, v21
    v_cndmask_b32 v22, v23, v22, vcc
    v_lshl_add_u32 v22, v18, 7, v22
    s_lshl_b32 s73, s3, 11
    s_add_u32 s73, s73, %d
    s_waitcnt vmcnt(21)
    """ % (WS_C2, WS_FL))
    stamp(I, 12)
    if c.emit:
        spin(c.P, 'P2_pf', 'v_cmp_ne_u32 vcc, 1, v56', 'buffer_load_dword v56, v20, s[20:23], s72 offen sc1', 1)
    stamp(I, 13); stamp_rt(I, 23)
    for t in ('W', 3), : c.vm.issue(t)
    run(act_loads(c, 0)); run(act_loads(c, 1))
    for i in range(4):
        d = RES + i * 8
        c.vmem('buffer_store_dwordx4 v[%d:%d], v27, s[20:23], s70 offen offset:%d sc1' % (d, d + 3, i * 1024), ('SS',))
        c.vmem('buffer_store_dwordx4 v[%d:%d], v27, s[20:23], s71 offen offset:%d sc1' % (d + 4, d + 7, i * 1024), ('SS',))
    run(act_loads(c, 2)); run(act_loads(c, 3))
    c.wait_vm(('e0',), lambda t: t == ('W', 3))
    for jt in range(4):
        for h in range(2):
            I('v_and_b32 v59, 0xffff0000, v%d\nv_lshlrev_b32 v58, 16, v%d' % (48 + jt * 2 + h, 48 + jt * 2 + h))
            seqs = []
            for k in range(2):
                t = k * 4 + jt; xs = 32 + t * 2 + h; a = XD + t * 4 + 2 * h
                seqs.append(['v_lshlrev_b32 v%d, 16, v%d' % (a, xs), 'v_and_b32 v%d, 0xffff0000, v%d' % (a + 1, xs),
                             'v_pk_mul_f32 v[%d:%d], v[%d:%d], v[58:59]' % (a, a + 1, a, a + 1),
                             'v_cvt_pk_bf16_f32 v%d, v%d, v%d' % (a, a, a + 1),
                             'v_and_b32 v%d, 0xffff0000, v%d' % (a + 1, a), 'v_lshlrev_b32 v%d, 16, v%d' % (a, a),
                             pk_bc('mul', a, a, 30 + k)])
            for x, y in zip(*seqs): I(x); I(y)
    for jt in range(FD): run(frag_read(c, 0, jt))

CPC = int(os.environ.get('CPC', '4'))
def p2_main(c):
    def flagS():
        c.I('s_add_u32 s7, s76, 0x20000\ns_mov_b64 exec, 1')
        c.vmem('buffer_store_dword v26, off, s[20:23], s7 sc1', ('SV',))
        c.I('s_mov_b64 exec, -1')
    def pollS():
        c.vmem('buffer_load_dword v23, v22, s[20:23], s73 offen sc1', ('PS',))
    def chkS():
        c.wait_vm(('psw',), lambda t: t == ('PS',))
        if c.emit:
            spin(c.P, 'P2_ps', 'v_cmp_ne_u32 vcc, 1, v23', 'buffer_load_dword v23, v22, s[20:23], s73 offen sc1', 2)
    for n in range(NT):
        if n == CPC: c.I('CP_c:')
        step2(c, n, pre={2: flagS, 8: pollS, NB - NS + 1: chkS}.get(n))

def p2_final(P):
    ZS, ZK, TMP = 96, XD, 160
    def wr(Q, jt0):
        for t in range(8):
            P('ds_write_b128 v61, %s offset:%d' % (rr('a', acc2(2 * Q + (t >> 2), jt0 + (t & 3))), t * 1024))
    def own(Q, jt0, dst):
        for t in range(8):
            b = acc2(2 * Q + (t >> 2), jt0 + (t & 3))
            for r in range(4): P('v_accvgpr_read_b32 v%d, a%d' % (dst + t * 4 + r, b + r))
    P('v_add_u32 v60, s31, v15')
    for Q in range(4):
        P('s_cmp_eq_u32 s3, %d\ns_cbranch_scc1 P2_so%d' % (Q, Q))
        P('s_cmp_lt_u32 s3, %d\ns_cselect_b32 s6, %d, %d\ns_lshl_b32 s6, s6, 13' % (Q, max(Q - 1, 0), min(Q, 2)))
        P('v_add_u32 v61, s6, v60')
        wr(Q, 4)
        P('s_branch P2_sn%d' % Q)
        P.label('P2_so%d' % Q)
        own(Q, 4, ZS)
        P.label('P2_sn%d' % Q)
    for sl in range(3):
        P("""
        s_cmp_le_u32 s3, %d
        s_cselect_b32 s6, %d, %d
        s_cselect_b32 s7, 0, 1
        s_mul_i32 s6, s6, 40960
        s_sub_u32 s7, s3, s7
        s_lshl_b32 s%d, s7, 13
        s_add_u32 s%d, s%d, s6
        s_add_u32 s7, s7, 3
        s_cmp_eq_u32 s7, 5
        s_cselect_b32 s7, 0, s7
        s_lshl_b32 s%d, s7, 13
        s_add_u32 s%d, s%d, s6
        """ % (sl, sl + 1, sl, 70 + sl, 70 + sl, 70 + sl, 86 + sl, 86 + sl, 86 + sl))
    P("""
    s_lshl_b32 s6, s2, 2
    s_add_u32 s6, s6, s3
    s_lshl_b32 s78, s6, 13
    s_add_u32 s78, s78, %d
    s_add_u32 s79, s78, 4096
    s_xor_b32 s80, s78, 0x8000
    s_add_u32 s81, s80, 4096
    s_lshl_b32 s82, s6, 7
    s_add_u32 s82, s82, %d
    s_xor_b32 s83, s82, 0x200
    s_waitcnt lgkmcnt(0)
    s_barrier
    """ % (WS_XB, WS_FL + 0x40000))
    add = lambda d, a, b: 'v_pk_add_f32 v[%d:%d], v[%d:%d], v[%d:%d]' % (d, d + 1, a, a + 1, b, b + 1)
    def rd(s0, dst):
        for sl in range(3):
            P('v_add_u32 v%d, s%d, v15' % (56 + sl, s0 + sl))
        for t in range(8):
            for sl in range(3):
                P('ds_read_b128 v[%d:%d], v%d offset:%d' % (TMP + sl * 32 + t * 4, TMP + sl * 32 + t * 4 + 3, 56 + sl, t * 1024))
        for t in range(8):
            P('s_waitcnt lgkmcnt(%d)' % min(21 - 3 * t, 14))
            for h in range(2):
                r = t * 4 + 2 * h
                P(add(TMP + r, TMP + r, TMP + 32 + r)); P(add(dst + r, dst + r, TMP + 64 + r))
            for h in range(2):
                r = t * 4 + 2 * h
                P(add(dst + r, dst + r, TMP + r))
            if dst == ZS:
                P('buffer_store_dwordx4 v[%d:%d], v15, s[20:23], s%d offen offset:%d sc1' % (ZS + t * 4, ZS + t * 4 + 3, 78 + (t >> 2), (t & 3) * 1024))
    rd(70, ZS)
    stamp(P, 16)
    for Q in range(4):
        P('s_cmp_eq_u32 s3, %d\ns_cbranch_scc1 P2_ko%d' % (Q, Q))
        if Q == 3:
            P('s_branch P2_kn3')
        else:
            if Q == 2: P('s_cmp_eq_u32 s3, 3\ns_cbranch_scc1 P2_kn2')
            P('s_cmp_lt_u32 s3, %d\ns_cselect_b32 s6, %d, %d\ns_lshl_b32 s6, s6, 13' % (Q, 3 + max(Q - 1, 0), 3 + min(Q, 1)))
            P('v_add_u32 v61, s6, v60')
            wr(Q, 0)
            P('s_branch P2_kn%d' % Q)
        P.label('P2_ko%d' % Q)
        own(Q, 0, 128)
        P.label('P2_kn%d' % Q)
    P('s_barrier')
    P('v_mov_b32 v61, v60')
    P('s_cmp_eq_u32 s3, 3\ns_cbranch_scc1 P2_l2')
    wr(3, 0)
    P('s_branch P2_l3')
    P.label('P2_l2')
    wr(2, 0)
    P.label('P2_l3')
    for r in range(0, 32, 2): P(add(ZK + r, ZK + r, 128 + r))
    P('s_waitcnt vmcnt(0)\ns_mov_b64 exec, 1\nbuffer_store_dword v26, off, s[20:23], s82 sc1\ns_mov_b64 exec, -1')
    P('s_waitcnt lgkmcnt(0)')
    P('s_barrier')
    rd(86, ZK)
    stamp(P, 17)
    P('buffer_load_dword v59, off, s[20:23], s83 sc1')
    P('s_waitcnt vmcnt(0)')
    spin(P, 'P2_x', 'v_cmp_ne_u32 vcc, 1, v59', 'buffer_load_dword v59, off, s[20:23], s83 sc1', 1)
    stamp(P, 18)
    for t in range(8):
        P('buffer_load_dwordx4 v[%d:%d], v15, s[20:23], s%d offen offset:%d sc1' % (ZS + t * 4, ZS + t * 4 + 3, 80 + (t >> 2), (t & 3) * 1024))
    for t in range(8):
        P('s_waitcnt vmcnt(7)')
        for h in range(2):
            r = t * 4 + 2 * h
            P(add(ZK + r, ZK + r, ZS + r))
        P('buffer_store_dwordx4 v[%d:%d], v%d, s[12:15], 0 offen offset:%d' % (ZK + t * 4, ZK + t * 4 + 3, 29 if t >= 4 else 28, (t & 3) * 64))

CPF = int(os.environ.get('CPF', '1'))
_cpn = [0]
def code_touch(I, start, end, vt=26, sp=84):
    if not CPF: return
    _cpn[0] += 1
    L = 'CT%d' % _cpn[0]
    I('s_getpc_b64 s[%d:%d]' % (sp, sp + 1))
    I(L + ':')
    I('s_add_u32 s%d, s%d, %s-%s' % (sp, sp, start, L))
    I('s_addc_u32 s%d, s%d, 0' % (sp + 1, sp + 1))
    I('v_lshlrev_b32 v%d, 7, v0' % vt)
    I('v_min_u32 v%d, %s-%s-4, v%d' % (vt, end, start, vt))
    I('global_load_dword a255, v%d, s[%d:%d]' % (vt, sp, sp + 1))

def site_of(u):
    if u < 4: return ('F', u)
    if u >= 28: return ('E', u)
    return ('L', u % 4)

def body(c, emit):
    P = c.P
    prologue(c)
    extra = [lambda: c.wait_vm(('s',), lambda t: t == ('S',))] + as_fill(c, tables_text())
    g1, g2 = g_work(c)
    substep(c, 0, site_of(0), extra=extra, first=True)
    substep(c, 1, site_of(1), extra=extra)
    extra += g1
    substep(c, 2, site_of(2), extra=extra, room_extra=1)
    assert not extra, len(extra)
    extra += g2
    substep(c, 3, site_of(3), extra=extra, room_extra=6)
    assert not extra, len(extra)
    if emit:
        stamp(P, 1); stamp_rt(P, 21)
        P('.p2align 6')
        P.label('K1_loop')
        P('s_cmp_eq_u32 s33, s93\ns_cbranch_scc1 K1_t1')
        P.label('K1_tback')
        c_loads(P)
        if TOUCH: ptouch(P)
        for u in range(4, 8): substep(c, u, site_of(u))
        P("""
        s_add_u32 s33, s33, 1
        s_cmp_lt_u32 s33, 6
        s_cbranch_scc1 K1_loop
        """)
    else:
        for u in range(4, 28): substep(c, u, site_of(u))
    c.I('CP_b:')
    stamp(c.I, 2); stamp_rt(c.I, 22)
    init_load(c)
    substep(c, 28, site_of(28), last=1)
    substep(c, 29, site_of(29), last=2, extra=c_stores(c))
    stamp(c.I, 6)
    init_check(c)
    last_stage(c)

DIAG = int(os.environ.get('DIAG', '0'))
if DIAG:
    DMAP = {0: 0, 4: 1, 1: 2, 2: 3, 5: 4, 7: 5, 9: 6, 12: 7, 13: 8, 15: 9, 16: 10, 17: 11, 18: 12, 19: 13, 20: 14}
    def stamp(I, idx, vr=16):
        if idx in DMAP:
            I('s_memrealtime s[84:85]')
            I('s_waitcnt lgkmcnt(0)')
            if idx == 0:
                I('s_not_b32 s85, s84')
                I('v_writelane_b32 v16, s85, 15')
            I('v_writelane_b32 v16, s84, %d' % DMAP[idx])
    def stamp_rt(I, idx, vr=16): pass
    def stamp_out(I, kern, vr=16, va=23):
        I('v_lshlrev_b32 v23, 2, v17')
        I('s_mov_b64 exec, 0xffff')
        I('buffer_atomic_umax v16, v23, s[24:27], 0 offen sc1')
        I('s_mov_b64 exec, -1')
PROBE = os.environ.get('PROBE', '')
if PROBE:
    PA, PB = [int(x) for x in PROBE.split(',')]
    def stamp(I, idx, vr=16):
        if idx == PA or idx == PB:
            I('s_memrealtime s[84:85]')
            I('s_waitcnt lgkmcnt(0)')
            I('v_writelane_b32 v16, s84, %d' % (0 if idx == PA else 1))
    def stamp_rt(I, idx, vr=16): pass
    def stamp_out(I, kern, vr=16, va=23):
        I('v_readlane_b32 s6, v16, 0')
        I('v_readlane_b32 s7, v16, 1')
        I('s_memrealtime s[84:85]')
        I('s_waitcnt lgkmcnt(0)')
        I('s_sub_u32 s6, s7, s6')
        I('s_add_u32 s6, s6, s84')
        I('PROBE_l:')
        I('s_memrealtime s[84:85]')
        I('s_waitcnt lgkmcnt(0)')
        I('s_sub_u32 s7, s84, s6')
        I('s_cmp_lt_i32 s7, 0')
        I('s_cbranch_scc1 PROBE_l')
KNAME = 'gated_mix__ssm_conv_s5__glu_gated_reglu__prompt_kernel'
def gen():
    waits = {}
    body(Ctx(None, waits), False)
    c = Ctx(None, waits)
    p2_enter(c); p2_main(c)
    P = Prog()
    c = Ctx(P, waits)
    P('.globl %s\n.p2align 8\n.type %s,@function' % (KNAME, KNAME))
    P.label(KNAME)
    body(c, True)
    epilogue(P)
    p2_enter(c)
    p2_main(c)
    stamp(P, 15); stamp_rt(P, 24)
    P('s_nop 7')
    p2_final(P)
    stamp(P, 19); stamp_rt(P, 11)
    P('s_waitcnt vmcnt(0)')
    stamp(P, 20)
    stamp_out(P, 0)
    P.label('K1_done')
    P('s_endpgm')
    P.label('K1_t1')
    P("""
    s_lshl_b32 s6, 1, s4
    v_mov_b32 v26, s6
    s_lshl_b32 s7, s5, 2
    s_mov_b64 exec, 1
    buffer_atomic_add v26, off, s[24:27], s7 offset:128 sc1
    s_mov_b64 exec, -1
    s_branch K1_tback
    """)
    P.label('CP_end')
    txt = P.text()
    X = os.environ.get('XP', '')
    if X:
        a = txt.index('K1_tback:'); b = txt.index('s_cbranch_scc1 K1_loop')
        L = txt[a:b].split('\n')
        if 'r' in X: L = [l for l in L if 'ds_read' not in l]
        if 'd' in X: L = [l for l in L if ' lds' not in l]
        if 't' in X: L = [l for l in L if 'ds_read_b64_tr' not in l]
        if 'h' in X: L = [l for k, l in enumerate(L) if not ('ds_read_b64_tr' in l and (int(l.split('offset:')[1]) // 4096) % 2)]
        if 'b' in X: L = [l for l in L if 's_barrier' not in l]
        txt = txt[:a] + '\n'.join(L) + txt[b:]
    return txt, waits

if __name__ == '__main__':
    import sys
    NAME = 'gated_mix__ssm_conv_s5__glu_gated_reglu__prompt'
    ref = open('cdna_kernels/%s.s.ref' % NAME).read().splitlines()
    hdr = [l for l in ref if l.startswith(';') and '@launch' not in l]
    t, w = gen()
    out = '\n'.join(hdr) + '\n; @launch grid=(256,1,1) block=(256,1,1) lds=%d\n' % K1_LDS
    out += '.amdgcn_target "amdgcn-amd-amdhsa--gfx950"\n.text\n' + t
    out += '.section .rodata,"a"\n.p2align 6\n' + K1_DESC.replace('k1_kernel', KNAME)
    dst = sys.argv[1] if len(sys.argv) > 1 else 'cdna_kernels/%s.s' % NAME
    open(dst, 'w').write(out)
    print('wrote', dst, len(out))
```

```python
import os
from asmlib import Prog, Counter
import k1
from k1 import Ctx, rr, cmul_pk, ffn_out, acc_reg, ACC_V0, stamp, stamp_rt, stamp_out, NKB, WS_G, WS_T, WS_C2, WS_FL, WS_XB, K1_DESC

XB = 0
WB = 65536
BB = 131072
TAB = 147456
POW = TAB + 2048
WG64 = TAB + 6144
K1_LDS = 163840
assert TAB == k1.TAB
XSET = 128
RING = 192
BH = 220
OOB = 0x70000000
EXP = int(os.environ.get('EXP', '0'))
TS0 = int(os.environ.get('TS0', '4'))
TPRE = int(os.environ.get('TPRE', '1'))
DEFER = int(os.environ.get('DEFER', '1'))
NTW = 'nt' if int(os.environ.get('NTW', '1')) else ''
NTB = 'nt' if int(os.environ.get('NTB', '1')) else ''
NTC = 'nt' if int(os.environ.get('NTC', '1')) else ''
NTT = 'nt' if int(os.environ.get('NTT', os.environ.get('NTW', '1'))) else ''
NTX = 'nt' if int(os.environ.get('NTX', '0')) else ''
WDT = int(os.environ.get('WDT', '1'))
PRE = int(os.environ.get('PRE', '1'))
TPOS = int(os.environ.get('TPOS', '0'))
PT = int(os.environ.get('PT', '1'))
TOUCH = int(os.environ.get('TOUCH', '1'))

FFN = []
for jt in range(7): FFN += [('G', jt), ('U', jt)]
SSM = [('R', 0), ('I', 0), ('R', 1), ('I', 1)]

def w_read(c, u, t):
    kind, jt = FFN[t]
    slot = RING + (t % 7) * 4
    th = []
    for e in range(2):
        off = (u % 4) * 16384 + ((kind == 'U') * 2 + e) * 4096 + jt * 32
        th.append(lambda off=off, e=e: c.ds('ds_read_b64_tr_b16 a[%d:%d], v12 offset:%d' % (slot + 2 * e, slot + 2 * e + 1, off), ('F', u, t)))
    return th
def b_read(c, s, hh, k):
    kind, jt = SSM[k]
    off = (s % 2) * 8192 + ((kind == 'I') * 32 + jt * 16) * 128
    return lambda: c.ds('ds_read_b128 %s, v%d offset:%d' % (rr('a', BH + hh * 16 + k * 4), 13 + hh, off), ('BF', s, hh))
def x_read(c, s, hh, i):
    off = (s % 2) * 8192 + i * 2048
    return lambda: c.ds('ds_read_b128 %s, v%d offset:%d' % (rr('a', XSET + (s % 2) * 32 + hh * 16 + i * 4), 7 + hh, off), ('XF', s, hh))
def w_dma(c, u, n):
    th = []
    th.append(lambda: c.I('s_add_u32 m0, s32, %d' % ((u % 4) * 16384)))
    th.append(lambda: c.vmem('buffer_load_dwordx4 v%d, s[12:15], s30 offen offset:%d %s lds' % (3 + n, n * 1024, NTW), ('W', u)))
    if n == 3: th.append(lambda: c.I('s_add_u32 s30, s30, 229376'))
    return th
def x_dma(c, s, k):
    th = []
    th.append(lambda: c.I('s_add_u32 m0, s34, %d' % ((s % 2) * 8192 + (k >> 2) * 4096)))
    th.append(lambda: c.vmem('buffer_load_dwordx4 v%d, s[8:11], s%d offen offset:%d %s lds' % (1 + (k & 1), 28 + (k >> 2), (k & 3) * 1024, NTX), ('X', s)))
    if k == 7:
        th.append(lambda: c.I('s_add_u32 s28, s28, 128'))
        th.append(lambda: c.I('s_cmp_lt_u32 s28, 2048'))
        th.append(lambda: c.I('s_cselect_b32 s28, s28, s77'))
        th.append(lambda: c.I('s_add_u32 s29, s28, 4096'))
    return th
def b_dma(c, s, n):
    th = []
    th.append(lambda: c.I('s_add_u32 m0, s35, %d' % ((s % 2) * 8192)))
    th.append(lambda: c.vmem('buffer_load_dwordx4 v%d, s[16:19], s31 offen offset:%d %s lds' % (10 + n, n * 1024, NTB), ('B', s)))
    if n == 1:
        th.append(lambda: c.I('s_add_u32 s31, s31, 128'))
        th.append(lambda: c.I('s_cmp_lt_u32 s31, 2048'))
        th.append(lambda: c.I('s_cselect_b32 s31, s31, s77'))
    return th

def substep(c, u, site, extra=None, first=False, last=0, room_extra=0, tch=False):
    tq = ptouch(c) if (tch and TOUCH) else []
    hh = u & 1; s = u >> 1
    for j in range(18):
        fill = []
        if j <= 8: fill += w_read(c, u, j + 5)
        if 12 <= j <= 16 and u != 31: fill += w_read(c, u + 1, j - 12)
        if u == 31: pass
        elif hh == 1:
            if j == 9: fill.append(lambda: c.wait_vm((site, 'x'), lambda t: t == ('X', s + 1)))
            if j in (9, 10): fill += [x_read(c, s + 1, 0, (j - 9) * 2 + k) for k in range(2)]
            if j in (14, 15, 16, 17): fill.append(x_read(c, s + 1, 1, j - 14))
            if j in (12, 13): fill += [b_read(c, s + 1, 0, (j - 12) * 2 + k) for k in range(2)]
        else:
            if j in (0, 2, 4, 6): fill.append(b_read(c, s, 1, j // 2))
        d = []
        if j in (13, 15, 17): d = w_dma(c, u + 4, (j - 13) // 2)
        if j == 1: d = w_dma(c, u + 3, 3)
        if j in (3, 5, 7, 9): d = x_dma(c, s + 2, hh * 4 + (j - 3) // 2)
        if hh == 0 and j in (14, 16): d = b_dma(c, s + 2, (j - 14) // 2)
        if last == 2 or (last == 1 and j != 1): d = []
        if DEFER and u == 0:
            seq = [('x', 1, k) for k in range(8)] + [('w', 2, n) for n in range(4)] + [('b', 1, n) for n in range(2)] + [('w', 3, n) for n in range(4)] + [('x', 2, k) for k in range(4)]
            if j <= 10:
                d = []
                for ty, a, b in seq[2 * j:2 * j + 2]:
                    d += {'x': x_dma, 'w': w_dma, 'b': b_dma}[ty](c, a, b)
        fill = d[:1] + fill + d[1:]
        if tq and j in (10, 11): fill += tq[:2]; tq = tq[2:]
        if tq and j == 12: fill += tq; tq = []
        if extra:
            room = max(0, 8 - 1 - len(fill)) + room_extra
            for _ in range(min(room, len(extra))): fill.append(extra.pop(0))
        if j == 0: c.wait_lg((site, 'xf'), lambda t: t in (('XF', s, hh), ('F', u, 0)))
        elif j < 14: c.wait_lg((site, 'f', j), lambda t: t == ('F', u, j))
        elif j == 14: c.wait_lg((site, 'bf'), lambda t: t == ('BF', s, hh))
        if j < 14:
            kind, jt = FFN[j]; a = RING + (j % 7) * 4
        else:
            kind, jt = SSM[j - 14]; a = BH + hh * 16 + (j - 14) * 4
        nf = len(fill); k = 0
        for i in range(4):
            f, b = acc_reg(kind, jt, i)
            c.I('v_mfma_f32_16x16x32_bf16 %s, %s, %s, %s' % (rr(f, b), rr('a', a), rr('a', XSET + (s % 2) * 32 + hh * 16 + i * 4), '0' if first else rr(f, b)))
            take = (nf * (i + 1) + 3) // 4 - k
            for _ in range(take):
                fill[k](); k += 1
        if j == 11 and u != 31:
            if hh == 1: c.wait_vm((site, 'd'), lambda t: t in (('W', u + 1), ('B', s + 1)))
            else: c.wait_vm((site, 'd'), lambda t: t == ('W', u + 1))
            c.I('s_waitcnt lgkmcnt(0)')
            c.lg.q = []
            c.I('s_barrier')

def touch(I, batch):
    ks = 2 + 7 * batch
    I('''
    s_mov_b32 s6, %d
    s_mov_b32 s7, %d
    s_mov_b32 exec_hi, 0x1ffff
    buffer_load_dword a255, v28, s[12:15], s6 offen
    s_mov_b64 exec, 0x3fff
    buffer_load_dword a255, v29, s[16:19], s7 offen
    buffer_load_dword a255, v30, s[8:11], s7 offen
    s_mov_b64 exec, -1
    ''' % (ks * 64 * 7168, ks * 128))

def touch_wd(I):
    I('''
    s_lshl_b32 s6, s2, 2
    s_add_u32 s6, s6, s3
    s_mul_i32 s6, s6, 7168
    v_lshlrev_b32 v26, 7, v17
    s_mov_b32 exec_hi, 0xffffff
    buffer_load_dword a255, v26, s[88:91], s6 offen
    s_mov_b64 exec, -1
    ''')


def c_addr(I):
    I("""
    s_and_b32 s7, s3, 1
    s_lshl_b32 s6, s4, 7
    s_lshl_b32 s70, s7, 6
    s_add_u32 s6, s6, s70
    v_add_u32 v9, s6, v18
    v_lshlrev_b32 v9, 11, v9
    v_lshl_add_u32 v9, v19, 4, v9
    s_lshl_b32 s6, s5, 6
    v_add_u32 v9, s6, v9
    """)

def c_loads(P):
    for k in range(4):
        P('s_cmp_lg_u32 s33, %d' % (k + 1))
        P('s_cbranch_scc1 K1_c%d' % k)
        P('global_load_dwordx4 v[%d:%d], v9, s[86:87] %s' % (32 + 4 * k, 35 + 4 * k, NTC))
        P('v_add_u32 v9, 0x8000, v9')
        if k == 3: code_touch(P, 'CP_b', 'CP_c')
        P.label('K1_c%d' % k)

def c_stores(c):
    R = Rec(c, 'cs')
    R("""
    s_lshl_b32 s6, s4, 6
    s_lshr_b32 s7, s3, 1
    s_lshl_b32 s7, s7, 5
    s_add_u32 s6, s6, s7
    s_add_u32 s6, s6, s5
    s_lshl_b32 s6, s6, 13
    s_and_b32 s7, s3, 1
    s_lshl_b32 s7, s7, 12
    s_add_u32 s6, s6, s7
    s_add_u32 s6, s6, %d
    v_lshlrev_b32 v20, 4, v17
    """ % WS_C2)
    for k in range(4):
        R.vm('buffer_store_dwordx4 v[%d:%d], v20, s[20:23], s6 offen offset:%d sc1' % (32 + 4 * k, 35 + 4 * k, k * 1024), ('SV',))
    return R.th

def ptouch(c):
    def mk(mask, txt):
        def f():
            c.I('s_mov_b64 exec, %s' % mask); c.vmem(txt, ('TC',)); c.I('s_mov_b64 exec, -1')
        return f
    th = [mk('0x3fff', 'buffer_load_dword a255, v28, s[12:15], s95 offen %s' % NTT),
          mk('0xf', 'buffer_load_dword a255, v29, s[16:19], s94 offen %s' % NTB),
          mk('0xf', 'buffer_load_dword a255, v30, s[8:11], s94 offen'),
          mk('0x7ffff', 'buffer_load_dword a255, v31, s[88:91], s92 offen')]
    for t in ('s_add_u32 s92, s92, 2432', 's_add_u32 s95, s95, 917504'):
        th.append(lambda t=t: c.I(t))
    th.append(lambda: c.I('s_add_u32 s94, s94, 256\ns_cmp_lt_u32 s94, 2048\ns_cselect_b32 s94, s94, s77'))
    return th

def tables_text():
    t = """
    v_lshlrev_b32 v48, 16, v48
    v_lshlrev_b32 v49, 16, v49
    v_lshlrev_b32 v50, 16, v50
    v_mul_f32 v50, 0x3fb8aa3b, v50
    v_exp_f32 v50, v50
    v_cvt_pk_bf16_f32 v50, v50, v50
    v_lshlrev_b32 v50, 16, v50
    v_mul_f32 v51, v50, v48
    v_mul_f32 v52, v50, v49
    v_mul_f32 v51, 0x3fb8aa3b, v51
    v_exp_f32 v51, v51
    v_mul_f32 v52, 0.15915494, v52
    v_fract_f32 v52, v52
    v_cos_f32 v53, v52
    v_sin_f32 v54, v52
    v_mul_f32 v64, v51, v53
    v_mul_f32 v65, v51, v54
    v_add_f32 v51, -1.0, v64
    v_mul_f32 v52, v48, v48
    v_fmac_f32 v52, v49, v49
    v_rcp_f32 v53, v52
    v_mul_f32 v54, v51, v48
    v_fmac_f32 v54, v65, v49
    v_mul_f32 v55, v65, v48
    v_fma_f32 v55, -v51, v49, v55
    v_fma_f32 v52, -v52, v53, 2.0
    v_mul_f32 v53, v53, v52
    v_add_f32 v53, v53, v53
    v_mul_f32 v88, v54, v53
    v_mul_f32 v89, v55, v53
    """
    for k in range(9):
        a = 64 + 2 * k; d = a + 2
        t += """
        v_mul_f32 v%d, v%d, v%d
        v_fma_f32 v%d, -v%d, v%d, v%d
        v_mul_f32 v%d, v%d, v%d
        v_add_f32 v%d, v%d, v%d
        """ % (d, a, a, d, a + 1, a + 1, d, d + 1, a, a + 1, d + 1, d + 1, d + 1)
    t += """
    v_lshrrev_b32 v51, 5, v0
    v_mov_b32 v56, 1.0
    v_mov_b32 v57, 0
    v_mov_b32 v60, 1.0
    v_mov_b32 v61, 0
    """
    def cm(dr, di, ar, ai, br, bi):
        return """
        v_mul_f32 v%d, v%d, v%d
        v_fma_f32 v%d, -v%d, v%d, v%d
        v_mul_f32 v%d, v%d, v%d
        v_fmac_f32 v%d, v%d, v%d
        """ % (dr, ar, br, dr, ai, bi, dr, di, ar, bi, di, ai, br)
    for b in range(3):
        a = 68 + 2 * b; a2 = 76 + 2 * b
        t += 'v_and_b32 v54, %d, v51\nv_cmp_ne_u32 vcc, 0, v54\n' % (1 << b)
        t += cm(52, 53, 56, 57, a, a + 1) + cm(62, 63, 60, 61, a2, a2 + 1)
        t += """
        v_cndmask_b32 v56, v56, v52, vcc
        v_cndmask_b32 v57, v57, v53, vcc
        v_cndmask_b32 v60, v60, v62, vcc
        v_cndmask_b32 v61, v61, v63, vcc
        """
    t += cm(58, 59, 56, 57, 74, 75)
    t += cm(62, 63, 60, 61, 82, 83) + cm(84, 85, 62, 63, 82, 83) + cm(86, 87, 84, 85, 82, 83)
    t += """
    v_and_b32 v52, 31, v0
    v_lshlrev_b32 v52, 2, v52
    v_lshl_add_u32 v53, v51, 8, v52
    v_add_u32 v53, %d, v53
    v_add_u32 v52, %d, v52
    ds_write2_b32 v53, v56, v57 offset0:0 offset1:32
    ds_write_b32 v53, v58 offset:2048
    ds_write_b32 v53, v59 offset:2176
    """ % (POW, TAB)
    for k, r in enumerate((60, 62, 84, 86)):
        t += 'ds_write_b32 v53, v%d offset:%d\nds_write_b32 v53, v%d offset:%d\n' % (r, 4096 + k * 2048, r + 1, 4096 + k * 2048 + 128)
    for idx, r in enumerate([64, 68, 70, 72]):
        t += 'ds_write2_b32 v52, v%d, v%d offset0:%d offset1:%d\n' % (r, r + 1, idx * 64, idx * 64 + 32)
    for idx, r in ((4, 74), (5, 88)):
        t += 'ds_write_b32 v52, v%d offset:%d\nds_write_b32 v52, v%d offset:%d\n' % (r, idx * 256, r + 1, idx * 256 + 128)
    return [l.strip() for l in t.splitlines() if l.strip()]

class Rec:
    def __init__(self, c, name):
        self.c = c; self.th = []; self.name = name; self.n = 0
    def __call__(self, text):
        for l in text.strip('\n').split('\n'):
            l = l.strip()
            if l: self.th.append(lambda l=l: self.c.I(l))
    def blk(self, items):
        def f():
            for k, t in items:
                if k == 'vm': self.c.vmem(t, ('SV',))
                else: self.c.I(t)
        self.th.append(f)
    def ds(self, text, tag): self.th.append(lambda: self.c.ds(text, tag))
    def vm(self, text, tag): self.th.append(lambda: self.c.vmem(text, tag))
    def wl(self, tag):
        self.n += 1; site = (self.name, 'l', self.n)
        self.th.append(lambda: self.c.wait_lg(site, lambda t: t == tag))
    def wv(self, tag):
        self.n += 1; site = (self.name, 'v', self.n)
        self.th.append(lambda: self.c.wait_vm(site, lambda t: t == tag))

def g_work(c, GI=64, G=48):
    R = Rec(c, 'g')
    R("""
    s_lshl_b32 s6, s4, 1
    s_lshr_b32 s7, s3, 1
    s_add_u32 s6, s6, s7
    s_lshl_b32 s6, s6, 6
    s_lshl_b32 s7, s5, 1
    s_add_u32 s6, s6, s7
    s_and_b32 s7, s3, 1
    s_add_u32 s6, s6, s7
    s_lshl_b32 s76, s6, 7
    s_add_u32 s76, s76, %d
    s_add_u32 s7, s76, 0x20000
    v_mov_b32 v21, 0
    s_lshl_b32 s70, s71, 11
    v_lshlrev_b32 v25, 5, v17
    s_lshl_b32 s6, s2, 2
    s_add_u32 s6, s6, s3
    s_lshl_b32 s6, s6, 7
    s_add_u32 s6, s6, %d
    """ % (WS_FL, WS_FL + 0x40000))
    R.vm('buffer_load_dwordx4 v[%d:%d], v25, s[8:11], s70 offen' % (GI + 0, GI + 3), ('GL',))
    R.vm('buffer_load_dwordx4 v[%d:%d], v25, s[8:11], s70 offen offset:16' % (GI + 4, GI + 7), ('GL',))
    R.vm('buffer_load_dwordx4 v[%d:%d], v25, s[8:11], s70 offen offset:2048' % (GI + 8, GI + 11), ('GL',))
    R.vm('buffer_load_dwordx4 v[%d:%d], v25, s[8:11], s70 offen offset:2064' % (GI + 12, GI + 15), ('GL',))
    R.vm('global_load_dwordx4 v[%d:%d], v25, s[62:63]' % (GI + 16, GI + 19), ('GL',))
    R.vm('global_load_dwordx4 v[%d:%d], v25, s[62:63] offset:16' % (GI + 20, GI + 23), ('GL',))
    R.blk([('i', 's_mov_b64 exec, 1'), ('vm', 'buffer_store_dword v21, off, s[20:23], s76 sc1'), ('vm', 'buffer_store_dword v21, off, s[20:23], s7 sc1'), ('vm', 'buffer_store_dword v21, off, s[20:23], s6 sc1'), ('i', 's_mov_b64 exec, -1')])
    first = len(R.th)
    R.wv(('GL',))
    for d in range(8):
        R('v_and_b32 v%d, 0xffff0000, v%d\nv_lshlrev_b32 v%d, 16, v%d' % (G + 3, GI + 16 + d, G + 2, GI + 16 + d))
        for row in range(2):
            xr = GI + row * 8 + d; a = G + 4 + row * 2; t = G + 8 + row * 2
            R("""
            v_and_b32 v%d, 0xffff0000, v%d
            v_lshlrev_b32 v%d, 16, v%d
            v_pk_mul_f32 v[%d:%d], v[%d:%d], v[%d:%d]
            v_cvt_pk_bf16_f32 v%d, v%d, v%d
            v_and_b32 v%d, 0xffff0000, v%d
            v_lshlrev_b32 v%d, 16, v%d
            """ % (t + 1, xr, t, xr, t, t + 1, t, t + 1, G + 2, G + 3, t, t, t + 1, t + 1, t, t, t))
            if d == 0: R('v_mov_b64 v[%d:%d], v[%d:%d]' % (a, a + 1, t, t + 1))
            else: R('v_pk_add_f32 v[%d:%d], v[%d:%d], v[%d:%d]' % (a, a + 1, a, a + 1, t, t + 1))
    for row in range(2):
        a = G + 4 + row * 2
        R('v_add_f32 v%d, v%d, v%d' % (a, a, a + 1))
    for sh in (1, 2, 4, 8):
        for row in range(2):
            a = G + 4 + row * 2
            R('v_add_f32_dpp v%d, v%d, v%d row_shr:%d row_mask:0xf bank_mask:0xf bound_ctrl:0' % (a, a, a, sh))
    for row in range(2):
        for k in range(4):
            R('v_readlane_b32 s%d, v%d, %d' % (78 + row * 4 + k, G + 4 + row * 2, 15 + 16 * k))
    R("""
    v_mov_b32 v48, s78
    v_add_f32 v48, s79, v48
    v_add_f32 v48, s80, v48
    v_add_f32 v48, s81, v48
    v_mov_b32 v49, s82
    v_add_f32 v49, s83, v49
    v_add_f32 v49, s84, v49
    v_add_f32 v49, s85, v49
    v_cvt_pk_bf16_f32 v48, v48, v49
    v_lshlrev_b32 v49, 16, v48
    v_and_b32 v50, 0xffff0000, v48
    v_mul_f32 v49, 0xbfb8aa3b, v49
    v_mul_f32 v50, 0xbfb8aa3b, v50
    v_exp_f32 v49, v49
    v_exp_f32 v50, v50
    v_add_f32 v49, 1.0, v49
    v_add_f32 v50, 1.0, v50
    v_rcp_f32 v49, v49
    v_rcp_f32 v50, v50
    v_cvt_pk_bf16_f32 v48, v49, v50
    v_lshlrev_b32 v50, 16, v48
    v_and_b32 v51, 0xffff0000, v48
    s_lshl_b32 s6, s71, 2
    s_add_u32 s6, s6, %d
    """.replace('v48', 'v%d' % G).replace('v49', 'v%d' % (G + 1)).replace('v50', 'v%d' % (G + 2)).replace('v51', 'v%d' % (G + 3)) % WS_G)
    R.blk([('i', 's_mov_b64 exec, 1'), ('vm', 'buffer_store_dwordx2 v[%d:%d], off, s[20:23], s6 sc1' % (G + 2, G + 3)), ('i', 's_mov_b64 exec, -1')])
    return R.th[:first], R.th[first:]
def as_fill(c, lines):
    out = []
    for l in lines:
        if l.startswith('ds_'): out.append(lambda l=l: c.ds(l, ('T',)))
        else: out.append(lambda l=l: c.I(l))
    return out

def run(ths):
    for t in ths: t()

def prologue(c):
    I = c.I
    if k1.STAMP: I('s_memrealtime s[82:83]')
    I('''
    s_cmp_ge_u32 s2, 256
    s_cbranch_scc1 K1_done
    s_load_dwordx16 s[36:51], s[0:1], 0
    s_load_dwordx16 s[52:67], s[0:1], 64
    s_load_dwordx2 s[68:69], s[0:1], 128
    ''')
    if c.emit: code_touch(I, 'CP_a', 'CP_b')
    I('''
    CP_a:
    v_lshrrev_b32 v16, 6, v0
    v_and_b32 v17, 63, v0
    v_readfirstlane_b32 s3, v16
    s_lshr_b32 s4, s2, 5
    s_and_b32 s5, s2, 7
    s_lshl_b32 s5, s5, 2
    s_bfe_u32 s6, s2, 0x20003
    s_add_u32 s5, s5, s6
    v_and_b32 v18, 15, v0
    v_bfe_u32 v19, v0, 4, 2
    v_lshrrev_b32 v20, 3, v17
    v_and_b32 v21, 7, v17
    v_xor_b32 v21, v21, v20
    s_lshl_b32 s6, s4, 8
    s_lshl_b32 s7, s3, 6
    s_add_u32 s6, s6, s7
    v_lshl_add_u32 v1, v20, 2, s6
    v_lshlrev_b32 v1, 11, v1
    v_lshl_add_u32 v1, v21, 4, v1
    v_add_u32 v2, 0xfc00, v1
    s_mov_b32 s10, 0x400000
    s_mov_b32 s11, 0x00020000
    s_mov_b32 s14, 0x700000
    s_mov_b32 s15, 0x00020000
    s_mov_b32 s18, 0x200000
    s_mov_b32 s19, 0x00020000
    s_mov_b32 s22, 0x10000000
    s_mov_b32 s23, 0x00020000
    s_mov_b32 s26, 256
    s_mov_b32 s27, 0x00020000
    s_mov_b32 s90, 0x700000
    s_mov_b32 s91, 0x00020000
    s_mov_b32 s28, 0
    s_mov_b32 s29, 4096
    s_mov_b32 s30, 0
    s_mov_b32 s31, 0
    s_mov_b32 s77, 0x%x
    s_lshl_b32 s32, s3, 12
    s_add_u32 s32, s32, %d
    s_lshl_b32 s34, s3, 14
    s_lshl_b32 s35, s3, 11
    s_add_u32 s35, s35, %d
    v_lshrrev_b32 v22, 2, v20
    v_and_b32 v23, 3, v20
    v_lshl_add_u32 v22, v22, 3, v23
    s_and_b32 s7, s3, 1
    s_lshl_b32 s6, s5, 5
    s_lshl_b32 s70, s7, 2
    s_add_u32 s6, s6, s70
    v_add_u32 v22, s6, v22
    v_lshlrev_b32 v22, 11, v22
    v_lshl_add_u32 v10, v21, 4, v22
    v_add_u32 v11, 0x7c00, v10
    s_mul_i32 s72, s5, 224
    s_mul_i32 s70, s7, 28672
    s_add_u32 s72, s72, s70
    s_and_b32 s73, s5, 1
    s_lshl_b32 s73, s73, 1
    s_movk_i32 s74, 4682
    s_movk_i32 s75, 7168
    s_waitcnt lgkmcnt(0)
    s_mov_b32 s8, s36
    s_mov_b32 s9, s37
    s_cmp_ge_u32 s3, 2
    s_cselect_b32 s12, s58, s56
    s_cselect_b32 s13, s59, s57
    s_cselect_b32 s16, s44, s42
    s_cselect_b32 s17, s45, s43
    s_cselect_b32 s86, s48, s46
    s_cselect_b32 s87, s49, s47
    s_mov_b32 s20, s68
    s_mov_b32 s21, s69
    s_mov_b32 s24, s66
    s_mov_b32 s25, s67
    s_mov_b32 s88, s60
    s_mov_b32 s89, s61
    ''' % (OOB, WB, BB))
    stamp(I, 0); stamp_rt(I, 10)
    if k1.STAMP: I('v_writelane_b32 v16, s82, 25')
    if PT:
        I('''
        s_lshr_b32 s78, s2, 3
        s_lshl_b32 s78, s78, 2
        s_add_u32 s78, s78, s3
        s_and_b32 s79, s78, 15
        s_lshr_b32 s80, s78, 4
        s_mov_b32 s82, 0x11111112
        s_mov_b32 s83, 0x14144401
        s_lshl_b32 s81, s79, 2
        s_lshr_b64 s[82:83], s[82:83], s81
        s_and_b32 s82, s82, 15
        s_cmp_lt_u32 s80, s82
        s_cselect_b32 s79, s79, 0
        s_cselect_b32 s80, s80, 0
        s_sub_u32 s81, s78, 64
        s_cmp_lt_u32 s81, 20
        s_cselect_b32 s79, 16, s79
        s_cselect_b32 s80, s81, s80
        s_lshl_b32 s79, s79, 3
        s_lshl_b32 s80, s80, 21
        s_load_dwordx2 s[82:83], s[0:1], s79
        ''')
    small = """
    v_and_b32 v24, 31, v0
    v_lshl_add_u32 v24, s5, 5, v24
    v_lshlrev_b32 v24, 1, v24
    """
    def small_loads():
        I(small)
        c.vmem('global_load_ushort v48, v24, s[38:39]', ('S',))
        c.vmem('global_load_ushort v49, v24, s[40:41]', ('S',))
        c.vmem('global_load_ushort v50, v24, s[50:51]', ('S',))
    I("""
    s_lshl_b32 s6, s4, 8
    s_lshl_b32 s70, s5, 3
    s_add_u32 s6, s6, s70
    s_lshl_b32 s70, s3, 1
    s_add_u32 s71, s6, s70
    """)
    if PRE:
        small_loads()
        g1, g2 = g_work(c, 96, 120)
        run(g1)
        I('s_and_b32 s7, s3, 1')
    for k in range(8): run(x_dma(c, 0, k))
    if PT:
        I('s_waitcnt lgkmcnt(0)')
        I('s_load_dword s81, s[82:83], s80')
    for n in range(4):
        I('''
        v_add_u32 v20, %d, v17
        v_mul_u32_u24 v21, s74, v20
        v_lshrrev_b32 v21, 16, v21
        v_mul_u32_u24 v22, 14, v21
        v_sub_u32 v22, v20, v22
        v_add_u32 v22, s73, v22
        v_subrev_u32 v23, 14, v22
        v_min_u32 v22, v22, v23
        v_lshrrev_b32 v23, 2, v21
        v_and_b32 v21, 3, v21
        v_lshl_add_u32 v21, v23, 3, v21
        v_mul_u32_u24 v21, s75, v21
        v_lshl_add_u32 v21, v22, 4, v21
        v_add_u32 v21, s72, v21
        v_subrev_u32 v%d, %d, v21
        ''' % (n * 64, 3 + n, n * 1024))
        if n == 3:
            I('v_mov_b32 v20, s77\nv_cmp_gt_u32 vcc, 32, v17\nv_cndmask_b32 v6, v20, v6, vcc')
        run(w_dma(c, 0, n))
    for n in range(2): run(b_dma(c, 0, n))
    for n in range(4): run(w_dma(c, 1, n))
    if PRE:
        c.wait_vm(('s',), lambda t: t == ('S',))
        run(as_fill(c, tables_text()))
        run(g2)
        I('s_and_b32 s7, s3, 1')
    else:
        small_loads()
    if not DEFER:
        for k in range(8): run(x_dma(c, 1, k))
        for n in range(4): run(w_dma(c, 2, n))
        for n in range(2): run(b_dma(c, 1, n))
        for n in range(3): run(w_dma(c, 3, n))
    for l in range(64): assert (l * 37) >> 8 == l // 7
    I("""
    v_mul_u32_u24 v26, 37, v17
    v_lshrrev_b32 v26, 8, v26
    v_mul_u32_u24 v27, 7, v26
    v_sub_u32 v27, v17, v27
    v_lshlrev_b32 v27, 7, v27
    s_lshr_b32 s6, s2, 3
    s_lshl_b32 s6, s6, 1
    s_add_u32 s6, s6, s7
    s_lshl_b32 s6, s6, 1
    s_and_b32 s70, s2, 7
    v_add_u32 v28, s6, v26
    v_mul_u32_u24 v28, s75, v28
    v_add_u32 v28, v28, v27
    s_mul_i32 s71, s70, 896
    v_add_u32 v28, s71, v28
    v_lshrrev_b32 v26, 1, v17
    v_and_b32 v27, 1, v17
    v_lshlrev_b32 v27, 7, v27
    s_lshl_b32 s71, s70, 7
    s_add_u32 s71, s71, s6
    v_add_u32 v29, s71, v26
    v_lshl_add_u32 v29, v29, 11, v27
    s_lshl_b32 s6, s4, 8
    s_lshl_b32 s70, s5, 3
    s_add_u32 s6, s6, s70
    s_lshl_b32 s70, s3, 1
    s_add_u32 s71, s6, s70
    v_add_u32 v30, s71, v26
    v_lshl_add_u32 v30, v30, 11, v27
    s_mov_b32 s94, %d
    s_mov_b32 s95, %d
    s_bfe_u32 s78, s2, 0x10004
    s_bfe_u32 s79, s2, 0x10003
    s_and_b32 s70, s2, 7
    s_lshl_b32 s6, s4, 4
    s_lshl_b32 s70, s70, 1
    s_add_u32 s6, s6, s70
    s_add_u32 s6, s6, s78
    s_lshl_b32 s6, s6, 2
    s_add_u32 s6, s6, s3
    s_mul_i32 s92, s6, 14336
    s_cmp_eq_u32 s78, s79
    s_cselect_b32 s92, s92, s77
    v_lshlrev_b32 v31, 7, v17
    """ % (TS0 * 128, TS0 * 458752))
    c_addr(I)
    I('''
    s_lshl_b32 s6, s5, 5
    s_lshl_b32 s7, s4, 2
    s_add_u32 s6, s6, s7
    s_add_u32 s6, s6, s3
    s_lshl_b32 s6, s6, 8
    s_add_u32 s6, s6, %d
    v_lshlrev_b32 v26, 4, v17
    v_mov_b32 v24, -1
    v_mov_b32 v25, -1
    v_mov_b32 v22, -1
    v_mov_b32 v23, -1
    s_mov_b64 exec, 0xffff
    ''' % WS_T)
    c.vmem('buffer_store_dwordx4 v[22:25], v26, s[20:23], s6 offen sc1', ('SV',))
    I('''
    s_mov_b64 exec, -1
    s_bfe_u32 s93, s2, 0x20005
    s_add_u32 s93, s93, 1
    s_cmp_eq_u32 s3, 0
    s_cselect_b32 s93, s93, 99
    ''')
    I('''
    v_lshrrev_b32 v26, 2, v18
    v_lshl_add_u32 v26, v19, 2, v26
    v_mul_u32_u24 v26, 224, v26
    v_and_b32 v27, 3, v17
    v_lshl_add_u32 v12, v27, 3, v26
    v_add_u32 v12, %d, v12
    v_and_b32 v26, 7, v17
    v_xor_b32 v26, v26, v19
    v_lshlrev_b32 v26, 4, v26
    v_lshl_add_u32 v26, v18, 7, v26
    v_add_u32 v13, %d, v26
    v_xor_b32 v14, 64, v13
    v_add_u32 v7, s34, v26
    v_xor_b32 v8, 64, v7
    s_mov_b32 s33, 0
    ''' % (WB, BB))
    stamp(I, 3)
    c.wait_vm(('d0',), lambda t: t in (('W', 0), ('B', 0), ('X', 0)))
    I('s_barrier')
    stamp(I, 4)
    for i in range(4): x_read(c, 0, 0, i)()
    for t in range(5): run(w_read(c, 0, t))
    for i in range(4): x_read(c, 0, 1, i)()
    for k in range(4): b_read(c, 0, 0, k)()


RR = lambda jt, i: acc_reg('R', jt, i)[1]
II = lambda jt, i: acc_reg('I', jt, i)[1]
BA, BBk, BC, BD = 32, 48, 64, 80

def ld16(R, base_v, off, dst, tag):
    R.ds('ds_read_b128 v[%d:%d], v%d offset:%d' % (dst, dst + 3, base_v, off), tag)
    R.ds('ds_read_b128 v[%d:%d], v%d offset:%d' % (dst + 4, dst + 7, base_v, off + 16), tag)
    R.ds('ds_read_b128 v[%d:%d], v%d offset:%d' % (dst + 8, dst + 11, base_v, off + 128), tag)
    R.ds('ds_read_b128 v[%d:%d], v%d offset:%d' % (dst + 12, dst + 15, base_v, off + 144), tag)

def s1_pre(c):
    R = Rec(c, 's1p')
    R('v_lshlrev_b32 v20, 5, v19')
    R('v_add_u32 v20, %d, v20' % TAB)
    ld16(R, 20, 0, BA, ('K', 0)); ld16(R, 20, 256, BBk, ('K', 1))
    R("""
    s_lshl_b32 s78, s4, 2
    s_add_u32 s78, s78, s3
    s_lshl_b32 s79, s5, 13
    s_add_u32 s79, s79, %d
    s_lshl_b32 s80, s78, 8
    s_add_u32 s80, s80, s79
    v_lshlrev_b32 v21, 6, v19
    s_sub_u32 s81, s78, 1
    v_sub_u32 v22, s81, v18
    v_subrev_u32 v23, 16, v22
    v_cmp_gt_u32 vcc, 32, v22
    v_lshl_add_u32 v22, v22, 8, v21
    v_mov_b32 v24, s77
    v_cndmask_b32 v22, v24, v22, vcc
    v_cmp_gt_u32 vcc, 32, v23
    v_lshl_add_u32 v23, v23, 8, v21
    s_lshl_b32 s7, s5, 2
    v_cndmask_b32 v23, v24, v23, vcc
    v_cmp_eq_u32 s[82:83], 15, v18
    """ % WS_T)

    return R.th

def s1_work(c):
    R = Rec(c, 's1')
    LAM, CA, E, T = BA, BBk, BC, BD
    R.wl(('K', 0))
    cur = None; bufs = [E, T]
    for i in range(1, 4):
        d = bufs[i & 1]
        for jt in range(2):
            for h in range(2):
                o = jt * 4 + 2 * h
                if cur is None: br, bi = RR(jt, 0) + 2 * h, II(jt, 0) + 2 * h
                else: br, bi = cur + o, cur + 8 + o
                cmul_pk(R, d + o, d + 8 + o, LAM + o, LAM + 8 + o, br, bi, RR(jt, i) + 2 * h, II(jt, i) + 2 * h)
        cur = d
    S = E
    for k, sh in enumerate((1, 2, 4, 8)):
        for r in range(16):
            R('v_mov_b32_dpp v%d, v%d row_shr:%d row_mask:0xf bank_mask:0xf bound_ctrl:0' % (S + r, cur + r, sh))
        R.wl(('K', 1 + k))
        for o in range(0, 8, 2):
            cmul_pk(R, cur + o, cur + 8 + o, CA + o, CA + 8 + o, S + o, S + 8 + o, cur + o, cur + 8 + o)
        if k < 3: ld16(R, 20, (2 + k) * 256, CA, ('K', 2 + k))
    R.blk([('i', 's_mov_b64 exec, s[82:83]')] +
          [('vm', 'buffer_store_dwordx4 v[%d:%d], v21, s[20:23], s80 offen offset:%d sc1' % (cur + 4 * k, cur + 4 * k + 3, 16 * k)) for k in range(4)] +
          [('i', 's_mov_b64 exec, -1')])
    for r in range(16):
        R('v_mov_b32_dpp v%d, v%d row_shr:1 row_mask:0xf bank_mask:0xf bound_ctrl:0' % (S + r, cur + r))
    return R.th

def last_stage(c):
    s = 15
    order = [('S', 0, k) for k in range(4)] + [('S', 1, k) for k in range(4)] + [('F', 30, t) for t in range(14)] + [('F', 31, t) for t in range(14)]
    pre = s1_pre(c); work = s1_work(c)
    nF = 28
    per = -(-len(work) // (nF - 2))
    for n, (ty, a, b) in enumerate(order):
        fill = []
        site = ('Z', n)
        if ty == 'S':
            hh, k = a, b
            if hh == 0: fill.append(b_read(c, s, 1, k))
            for _ in range(min(5, len(pre))): fill.append(pre.pop(0))
            if k == 0: c.wait_lg((site, 'bf'), lambda t: t in (('BF', s, hh), ('XF', s, hh)))
            kind, jt = SSM[k]; areg = BH + hh * 16 + k * 4
        else:
            u, t = a, b; hh = u & 1
            if t <= 8: fill += w_read(c, u, t + 5)
            if u == 30 and t >= 10:
                for tt in {10: [], 11: [0], 12: [1, 2], 13: [3, 4]}[t]: fill += w_read(c, 31, tt)
            assert not pre
            if n >= 10:
                for _ in range(min(per, len(work))): fill.append(work.pop(0))
            c.wait_lg((site, 'f'), lambda tg: tg == ('F', u, t))
            kind, jt = FFN[t]; areg = RING + (t % 7) * 4
        nf = len(fill); k2 = 0
        for i in range(4):
            f, bb = acc_reg(kind, jt, i)
            c.I('v_mfma_f32_16x16x32_bf16 %s, %s, %s, %s' % (rr(f, bb), rr('a', areg), rr('a', XSET + 32 + hh * 16 + i * 4), rr(f, bb)))
            take = (nf * (i + 1) + 3) // 4 - k2
            for _ in range(take):
                fill[k2](); k2 += 1
        if ty == 'F' and a == 30 and b == 9:
            c.wait_vm((site, 'd'), lambda t: t == ('W', 31))
            c.I('s_barrier')
    assert not work


def pk_bc(op, d, a, f, cc=None):
    base = f & ~1; hi = f & 1
    if cc is None:
        return 'v_pk_mul_f32 v[%d:%d], v[%d:%d], v[%d:%d] op_sel:[0,%d] op_sel_hi:[1,%d]' % (d, d + 1, a, a + 1, base, base + 1, hi, hi)
    return 'v_pk_fma_f32 v[%d:%d], v[%d:%d], v[%d:%d], v[%d:%d] op_sel:[0,%d,0] op_sel_hi:[1,%d,1]' % (d, d + 1, a, a + 1, base, base + 1, cc, cc + 1, hi, hi)
def cmul16(P, d, a, b, c=None):
    p = lambda r: 'v[%d:%d]' % (r, r + 1)
    G = range(0, 8, 2)
    for o in G:
        if c is None: P('v_pk_mul_f32 %s, %s, %s' % (p(d(o)[0]), p(a(o)[0]), p(b(o)[0])))
        else: P('v_pk_fma_f32 %s, %s, %s, %s' % (p(d(o)[0]), p(a(o)[0]), p(b(o)[0]), p(c(o)[0])))
    for o in G:
        if c is None: P('v_pk_mul_f32 %s, %s, %s' % (p(d(o)[1]), p(a(o)[0]), p(b(o)[1])))
        else: P('v_pk_fma_f32 %s, %s, %s, %s' % (p(d(o)[1]), p(a(o)[0]), p(b(o)[1]), p(c(o)[1])))
    for o in G:
        P('v_pk_fma_f32 %s, %s, %s, %s neg_lo:[1,0,0] neg_hi:[1,0,0]' % (p(d(o)[0]), p(a(o)[1]), p(b(o)[1]), p(d(o)[0])))
    for o in G:
        P('v_pk_fma_f32 %s, %s, %s, %s' % (p(d(o)[1]), p(a(o)[1]), p(b(o)[0]), p(d(o)[1])))
blk = lambda base: (lambda o: (base + o, base + 8 + o))
uacc = lambda i: (lambda o: (RR(o >> 2, i) + (o & 3), II(o >> 2, i) + (o & 3)))

def ffn_out2(P, items, dst, tmp, om):
    ch = []
    for n, (jt, i) in enumerate(items):
        for h in range(2):
            ta = tmp + (n * 2 + h) * 4; tb = ta + 2
            seq = []
            srcs = []
            for kind, t in (('G', ta), ('U', tb)):
                f, b = acc_reg(kind, jt, i)
                if f == 'a':
                    seq.append('v_accvgpr_read_b32 v%d, a%d' % (t, b + 2 * h))
                    seq.append('v_accvgpr_read_b32 v%d, a%d' % (t + 1, b + 2 * h + 1))
                    srcs.append(t)
                else: srcs.append(b + 2 * h)
            g0, u0 = srcs
            if k1.EMUL:
                seq += ['v_cvt_pk_bf16_f32 v%d, v%d, v%d' % (ta, g0, g0 + 1),
                        'v_cvt_pk_bf16_f32 v%d, v%d, v%d' % (tb, u0, u0 + 1),
                        'v_pk_max_i16 v%d, v%d, 0' % (ta, ta),
                        'v_and_b32 v%d, 0xffff0000, v%d' % (tb + 1, tb),
                        'v_lshlrev_b32 v%d, 16, v%d' % (tb, tb),
                        'v_and_b32 v%d, 0xffff0000, v%d' % (ta + 1, ta),
                        'v_lshlrev_b32 v%d, 16, v%d' % (ta, ta),
                        'v_pk_mul_f32 v[%d:%d], v[%d:%d], v[%d:%d]' % (ta, ta + 1, ta, ta + 1, tb, tb + 1)]
            else:
                seq += ['v_max_f32 v%d, 0, v%d' % (ta, g0), 'v_max_f32 v%d, 0, v%d' % (ta + 1, g0 + 1),
                        'v_pk_mul_f32 v[%d:%d], v[%d:%d], v[%d:%d]' % (ta, ta + 1, ta, ta + 1, u0, u0 + 1)]
            seq.append(pk_bc('mul', ta, ta, om + i))
            seq.append('v_cvt_pk_bf16_f32 v%d, v%d, v%d' % (dst + 2 * n + h, ta, ta + 1))
            ch.append(seq)
    m = max(len(x) for x in ch)
    for k in range(m):
        for x in ch:
            kk = k - (m - len(x))
            if kk >= 0: P(x[kk])


NS = 5
ACT = 96
WF = 32
FD = 3
NB, NT = 14, 22
XD = 64
def acc2(tau, jt): return (tau * 8 + jt) * 4
def role_of(n): return 'B' if n < NB else 'Y'
def act_loads(c, n):
    if n >= NT: return []
    th = []
    if n == NB: th.append(lambda: c.I('s_mov_b32 s28, s29'))
    th += [lambda tau=tau: c.vmem('buffer_load_dwordx4 %s, v%d, s[20:23], s28 offen offset:%d sc1' % (rr('v', ACT + (n % NS) * 32 + tau * 4), 1 + (tau >> 2), (tau & 3) * 1024), ('A', n)) for tau in range(8)]
    th.append(lambda: c.I('s_add_u32 s28, s28, 8192'))
    return th
def w_loads(c, n):
    if n >= NT: return []
    th = []
    if n == NB:
        th.append(lambda: c.I('s_mov_b32 s30, s32')); th.append(lambda: c.I('s_xor_b32 s35, s32, 4096'))
    for k in range(8):
        if k & 3 == 0: th.append(lambda k=k: c.I('s_add_u32 m0, s31, %d' % ((n % NS) * 8192 + (k >> 2) * 4096)))
        if n < NB: th.append(lambda k=k: c.vmem('buffer_load_dwordx4 v%d, s[16:19], s%d offen offset:%d lds' % (3 + (k & 3), 35 if k >> 2 else 30, (k & 3) * 1024), ('W', n)))
        else: th.append(lambda k=k: c.vmem('buffer_load_dwordx4 v24, s[20:23], s%d offen offset:%d sc1 lds' % (35 if k >> 2 else 30, (k & 3) * 1024), ('W', n)))
    st = 65536 if n < NB else 8192
    th.append(lambda: c.I('s_add_u32 s30, s30, %d' % st)); th.append(lambda: c.I('s_add_u32 s35, s35, %d' % st))
    return th
def frag_read(c, n, jt):
    if n >= NT: return []
    reg = WF + jt * 4
    so = (n % NS) * 8192
    if role_of(n) == 'Y':
        return [lambda: c.ds('ds_read_b128 %s, v25 offset:%d' % (rr('v', reg), so + jt * 1024), ('F', n, jt))]
    return [lambda e=e: c.ds('ds_read_b64_tr_b16 v[%d:%d], v%d offset:%d' % (reg + 2 * e, reg + 2 * e + 1, 7 + jt, so + e * 2048), ('F', n, jt)) for e in range(2)]

def step2(c, n, pre=None, xvm=None):
    site = ('P2', n)
    a = act_loads(c, n + NS - 1); w = w_loads(c, n + NS - 1)
    vm = []
    while a or w:
        for _ in range(2):
            if w: vm.append(w.pop(0))
        for _ in range(1):
            if a: vm.append(a.pop(0))
        if len(a) > len(w) and a: vm.append(a.pop(0))
    if xvm: vm += xvm
    c.wait_vm((site, 'a'), lambda t: t == ('A', n))
    if pre: pre()
    per = -(-len(vm) // 8) if vm else 0
    for jt in range(8):
        slots = [[] for _ in range(8)]
        jn, nn = jt + FD, n
        if jn >= 8: jn -= 8; nn += 1
        fr = frag_read(c, nn, jn)
        if jt + FD == 8 and n + 1 < NT:
            slots[0].append(lambda: c.wait_vm((site, 'w'), lambda t: t == ('W', n + 1)))
        for k, f in enumerate(fr): slots[1 + k].append(f)
        for k, f in enumerate(vm[jt * per:(jt + 1) * per]): slots[3 + min(k * 2, 4)].append(f)
        c.wait_lg((site, 'f', jt), lambda t: t == ('F', n, jt))
        for tau in range(8):
            b = acc2(tau, jt)
            c.I('v_mfma_f32_16x16x32_bf16 %s, %s, %s, %s' % (rr('a', b), rr('v', WF + jt * 4), rr('v', ACT + (n % NS) * 32 + tau * 4), '0' if n == 0 else rr('a', b)))
            for th in slots[tau]: th()

def p2_setup(P):
    P("""
    s_bfe_u32 s92, s2, 0x10002
    s_lshl_b32 s92, s92, 3
    s_bfe_u32 s6, s2, 0x30003
    s_add_u32 s92, s92, s6
    s_bfe_u32 s93, s2, 0x10001
    s_lshl_b32 s93, s93, 2
    s_lshr_b32 s6, s2, 6
    s_add_u32 s93, s93, s6
    s_and_b32 s94, s2, 1
    s_lshl_b32 s95, s94, 2
    s_add_u32 s95, s95, s3
    s_mov_b32 s12, s64
    s_mov_b32 s13, s65
    s_mov_b32 s14, 0x800000
    s_mov_b32 s16, s60
    s_mov_b32 s17, s61
    s_mov_b32 s18, 0x700000
    s_mul_i32 s31, s3, %d
    v_lshlrev_b32 v84, 1, v19
    v_xor_b32 v84, v84, v18
    v_xor_b32 v85, 8, v84
    s_lshl_b32 s6, s93, 8
    v_lshl_add_u32 v86, v19, 11, s6
    v_lshl_add_u32 v3, v84, 4, v86
    v_lshl_add_u32 v4, v85, 4, v86
    v_add_u32 v4, 7168, v4
    v_add_u32 v5, 14336, v3
    v_add_u32 v6, 14336, v4
    s_mul_i32 s30, s95, %d
    s_add_u32 s35, s30, 32768
    """ % (NS * 8192, NB * 65536))
    P("""
    v_lshlrev_b32 v87, 4, v17
    s_mul_i32 s6, s92, %d
    v_add_u32 v1, s6, v87
    v_add_u32 v2, 0x1000, v1
    s_mul_i32 s28, s95, %d
    s_lshl_b32 s32, s95, 16
    s_add_u32 s29, s32, %d
    v_lshrrev_b32 v84, 2, v18
    v_lshl_add_u32 v84, v19, 2, v84
    v_and_b32 v85, 7, v84
    v_and_b32 v86, 8, v84
    v_lshl_add_u32 v84, v86, 1, v85
    v_and_b32 v86, 3, v17
    v_lshlrev_b32 v84, 8, v84
    v_lshl_add_u32 v84, v86, 3, v84
    v_add_u32 v84, s31, v84
    v_lshl_add_u32 v7, v85, 5, v84
    s_lshl_b32 s7, s94, 7
    v_xor_b32 v7, s7, v7
    """ % (NKB * 8192, NB * 8192, 112 * 8192))
    for jt in range(1, 8): P('v_xor_b32 v%d, %d, v7' % (7 + jt, jt * 32))

def spin(P, L, cond_text, reload_text, sleep=2):
    P('s_mov_b32 s75, 0')
    P.label(L)
    P(cond_text)
    P("""
    s_add_u32 s75, s75, 1
    s_cmp_eq_u64 vcc, 0
    s_cbranch_scc1 %sok
    s_cmp_ge_u32 s75, 0x4000
    s_cbranch_scc1 %sok
    s_sleep %d
    """ % (L, L, sleep))
    P(reload_text)
    P('s_waitcnt vmcnt(0)')
    P('s_branch %s' % L)
    P.label(L + 'ok')

def init_load(c):
    c.I('v_and_b32 v26, 31, v17\nv_lshlrev_b32 v26, 2, v26')
    c.vmem('buffer_load_dword v25, v26, s[24:27], 0 offen offset:128 sc1', ('IF',))
def init_check(c):
    c.wait_vm(('ifw',), lambda t: t == ('IF',))
    if c.emit:
        spin(c.P, 'K1_ichk', 'v_cmp_ne_u32 vcc, 0xff, v25', 'buffer_load_dword v25, v26, s[24:27], 0 offen offset:128 sc1', 4)
    c.I("""
    s_lshl_b32 s6, s4, 8
    s_lshl_b32 s7, s3, 6
    s_add_u32 s6, s6, s7
    s_lshl_b32 s6, s6, 2
    s_add_u32 s6, s6, %d
    v_lshlrev_b32 v24, 4, v18
    """ % WS_G)
    c.vmem('buffer_load_dwordx4 v[28:31], v24, s[20:23], s6 offen sc1', ('G4',))

FLI = int(os.environ.get('FLI', '0'))
RES = 224
def epilogue(P):
    LAM, S = BA, BC
    stamp(P, 5)
    P('s_waitcnt lgkmcnt(0)')
    P('s_barrier')
    P('s_waitcnt vmcnt(4)')
    P("""
    v_sub_f32 v60, 1.0, v28
    v_sub_f32 v61, 1.0, v29
    v_sub_f32 v62, 1.0, v30
    v_sub_f32 v63, 1.0, v31
    v_cvt_pk_bf16_f32 v60, v60, v61
    v_cvt_pk_bf16_f32 v62, v62, v63
    v_and_b32 v61, 0xffff0000, v60
    v_and_b32 v63, 0xffff0000, v62
    v_lshlrev_b32 v60, 16, v60
    v_lshlrev_b32 v62, 16, v62
    """)
    code_touch(P, 'CP_c', 'CP_end', 84)
    p2_setup(P)
    P("""
    s_lshl_b32 s6, s4, 1
    s_lshr_b32 s7, s3, 1
    s_add_u32 s6, s6, s7
    s_mul_i32 s6, s6, %d
    s_and_b32 s7, s3, 1
    s_lshl_b32 s7, s7, 12
    s_add_u32 s6, s6, s7
    v_lshl_add_u32 v15, v17, 4, s6
    s_mul_i32 s70, s5, 7
    s_add_u32 s70, s70, 1
    s_lshr_b32 s70, s70, 1
    s_lshl_b32 s70, s70, 13
    s_add_u32 s71, s70, 8192
    s_add_u32 s72, s70, 16384
    s_add_u32 s73, s70, 24576
    s_sub_u32 s74, s70, 7680
    s_bitcmp1_b32 s5, 0
    s_cselect_b32 s73, s74, s73
    v_and_b32 v27, 31, v17
    v_lshrrev_b32 v24, 5, v17
    v_lshl_add_u32 v27, v27, 4, s6
    v_lshl_add_u32 v27, v24, 10, v27
    v_lshl_add_u32 v21, v18, 8, v20
    """ % (NKB * 8192))
    stamp(P, 14)
    tmp = 80; n = 0
    def outreg():
        nonlocal n
        n += 1
        return 48 + (n % 3) * 4
    F = 160
    TA, TB, WA, WBk = F, F + 16, F + 32, F + 48
    tl = ''
    for k in range(4): tl += 'buffer_load_dwordx4 v[%d:%d], v22, s[20:23], s79 offen offset:%d sc1\n' % (TA + 4 * k, TA + 4 * k + 3, 16 * k)
    for k in range(4): tl += 'buffer_load_dwordx4 v[%d:%d], v23, s[20:23], s79 offen offset:%d sc1\n' % (TB + 4 * k, TB + 4 * k + 3, 16 * k)
    cw = Ctx(P, {})
    wq = w_loads(cw, 0) + w_loads(cw, 1) + w_loads(cw, 2)
    def fin(dst, va, so, off):
        for _ in range(5):
            if wq: wq.pop(0)()
        P('v_permlane32_swap_b32 v%d, v%d' % (dst, dst + 2))
        P('v_permlane32_swap_b32 v%d, v%d' % (dst + 1, dst + 3))
        P('buffer_store_dwordx4 v[%d:%d], v%d, s[20:23], s%d offen offset:%d %s' % (dst, dst + 3, va, so, off, os.environ.get('AMOD', 'sc1')))
    for pr in range(3):
        for i in range(4):
            dst = outreg()
            ffn_out2(P, [(2 * pr, i), (2 * pr + 1, i)], dst, tmp, 60)
            fin(dst, 15, 70 + pr, i * 1024)
        if pr == 1:
            P(tl)
            for off, dst in ((6144, WA), (6144 + 4096, WBk)):
                for k, o in enumerate((0, 16, 128, 144)):
                    P('ds_read_b128 v[%d:%d], v21 offset:%d' % (dst + 4 * k, dst + 4 * k + 3, off + o))
    for i in (0, 2):
        dst = outreg()
        ffn_out2(P, [(6, i), (6, i + 1)], dst, tmp, 60)
        fin(dst, 27, 73, i * 1024)
    stamp(P, 7)
    PWr = F + 64; AC = F + 80
    S2 = BD
    for k, o in enumerate((0, 16, 128, 144)):
        P('ds_read_b128 v[%d:%d], v21 offset:%d' % (PWr + 4 * k, PWr + 4 * k + 3, 2048 + o))
        P('ds_read_b128 v[%d:%d], v20 offset:%d' % (S2 + 4 * k, S2 + 4 * k + 3, 5 * 256 + o))
    P('s_waitcnt vmcnt(6)')
    cond = 'v_max3_u32 v24, v%d, v%d, v%d\nv_max3_u32 v25, v%d, v%d, v%d\n' % (TA, TA + 1, TA + 2, TB, TB + 1, TB + 2)
    for r in range(3, 15, 2):
        cond += 'v_max3_u32 v24, v24, v%d, v%d\nv_max3_u32 v25, v25, v%d, v%d\n' % (TA + r, TA + r + 1, TB + r, TB + r + 1)
    cond += 'v_max3_u32 v24, v24, v%d, v%d\nv_max_u32 v24, v24, v25\nv_cmp_eq_u32 vcc, -1, v24\n' % (TA + 15, TB + 15)
    spin(P, 'K1_tchk', cond, tl)
    stamp(P, 8)
    P('s_waitcnt lgkmcnt(0)')
    P('s_barrier')
    cmul16(P, blk(AC), blk(WA), blk(TA))
    cmul16(P, blk(AC), blk(WBk), blk(TB), blk(AC))
    for sh in (8, 4, 2, 1):
        for r in range(16):
            P('v_add_f32_dpp v%d, v%d, v%d row_ror:%d row_mask:0xf bank_mask:0xf' % (AC + r, AC + r, AC + r, sh))
    cmul16(P, blk(S), blk(PWr), blk(AC), blk(S))
    p2_pre(P)
    for i in range(4):
        O = TA if (i & 1) else TB
        cmul16(P, uacc(i), blk(LAM), blk(S) if i == 0 else uacc(i - 1), uacc(i))
        cmul16(P, blk(O), blk(S2), uacc(i))
        for k in range(8): P(pk_bc('mul', O + 2 * k, O + 2 * k, 28 + i))
        d = RES + i * 8
        for k in range(4):
            P('v_cvt_pk_bf16_f32 v%d, v%d, v%d' % (d + k, O + 2 * k, O + 2 * k + 1))
        for k in range(4):
            P('v_cvt_pk_bf16_f32 v%d, -v%d, -v%d' % (d + 4 + k, O + 8 + 2 * k, O + 8 + 2 * k + 1))
        if i == FLI:
            P('v_mov_b32 v26, 1\ns_waitcnt vmcnt(8)\ns_mov_b64 exec, 1\nbuffer_store_dword v26, off, s[20:23], s76 sc1\ns_mov_b64 exec, -1')
        if i == 2:
            P('buffer_load_dword v56, v20, s[20:23], s72 offen sc1')
    stamp(P, 9)

def p2_pre(P):
    run(w_loads(Ctx(P, {}), 3))
    P("""
    v_mov_b32 v27, v15
    v_lshlrev_b32 v15, 4, v17
    v_and_b32 v20, 7, v17
    v_lshlrev_b32 v20, 7, v20
    s_lshl_b32 s72, s92, 13
    s_lshl_b32 s7, s95, 10
    s_add_u32 s72, s72, s7
    s_add_u32 s72, s72, %d
    s_lshl_b32 s6, s93, 19
    s_add_u32 s6, s6, %d
    v_add_u32 v24, s6, v15
    v_add_u32 v25, s31, v15
    s_lshl_b32 s7, s94, 12
    s_add_u32 s32, s32, s7
    s_add_u32 s70, s5, 112
    s_lshl_b32 s70, s70, 13
    s_add_u32 s71, s70, 262144
    s_lshl_b32 s6, s92, 13
    s_add_u32 s6, s6, 0x20000
    s_lshl_b32 s7, s93, 1
    s_add_u32 s7, s7, s94
    s_lshl_b32 s7, s7, 13
    v_mov_b32 v22, s6
    v_mov_b32 v23, s7
    v_and_b32 v21, 16, v17
    v_cmp_eq_u32 vcc, 0, v21
    v_cndmask_b32 v22, v23, v22, vcc
    v_lshl_add_u32 v22, v18, 7, v22
    s_lshl_b32 s73, s3, 11
    s_add_u32 s73, s73, %d
    """ % (WS_FL, WS_C2, WS_FL))

def p2_enter(c):
    I = c.I
    I('s_waitcnt vmcnt(0)')
    stamp(I, 12)
    if c.emit:
        spin(c.P, 'P2_pf', 'v_cmp_ne_u32 vcc, 1, v56', 'buffer_load_dword v56, v20, s[20:23], s72 offen sc1', 1)
    stamp(I, 13); stamp_rt(I, 23)
    run(act_loads(c, 0)); run(act_loads(c, 1))
    for i in range(4):
        d = RES + i * 8
        c.vmem('buffer_store_dwordx4 v[%d:%d], v27, s[20:23], s70 offen offset:%d sc1' % (d, d + 3, i * 1024), ('SS',))
        c.vmem('buffer_store_dwordx4 v[%d:%d], v27, s[20:23], s71 offen offset:%d sc1' % (d + 4, d + 7, i * 1024), ('SS',))
    run(act_loads(c, 2)); run(act_loads(c, 3))
    for jt in range(FD): run(frag_read(c, 0, jt))

def e0_loads(c):
    c.I("""
    s_lshl_b32 s6, s92, 7
    s_lshr_b32 s7, s3, 1
    s_lshl_b32 s7, s7, 6
    s_add_u32 s6, s6, s7
    s_and_b32 s7, s3, 1
    s_lshl_b32 s7, s7, 1
    s_add_u32 s6, s6, s7
    v_lshl_add_u32 v20, v18, 2, s6
    s_lshl_b32 s7, s93, 7
    s_lshl_b32 s6, s94, 6
    s_add_u32 s7, s7, s6
    v_lshl_add_u32 v21, v19, 2, s7
    v_lshlrev_b32 v28, 10, v20
    v_add_u32 v28, v28, v21
    v_lshlrev_b32 v23, 1, v28
    v_lshlrev_b32 v28, 2, v28
    v_add_u32 v29, 0x1000, v28
    v_lshlrev_b32 v22, 1, v21
    v_lshlrev_b32 v21, 2, v20
    s_mov_b32 s74, %d
    """ % WS_G)
    th = [lambda: c.vmem('buffer_load_dwordx2 v[30:31], v21, s[20:23], s74 offen sc1', ('E0',))]
    for k in range(2):
        for jt in range(4):
            th.append(lambda k=k, jt=jt: c.vmem('buffer_load_dwordx2 v[%d:%d], v23, s[8:11], 0 offen offset:%d' % (64 + (k * 4 + jt) * 2, 65 + (k * 4 + jt) * 2, k * 2048 + jt * 32), ('E0',)))
    for jt in range(4):
        th.append(lambda jt=jt: c.vmem('global_load_dwordx2 v[%d:%d], v22, s[52:53] offset:%d' % (80 + jt * 2, 81 + jt * 2, jt * 32), ('E0',)))
    return th

def xd_math(I, Z):
    for jt in range(4):
        for h in range(2):
            I('v_and_b32 v89, 0xffff0000, v%d\nv_lshlrev_b32 v88, 16, v%d' % (80 + jt * 2 + h, 80 + jt * 2 + h))
            seqs = []
            for k in range(2):
                t = k * 4 + jt; xs = 64 + t * 2 + h; a = 90 + 2 * k; z = Z + t * 4 + 2 * h
                seqs.append(['v_lshlrev_b32 v%d, 16, v%d' % (a, xs), 'v_and_b32 v%d, 0xffff0000, v%d' % (a + 1, xs),
                             'v_pk_mul_f32 v[%d:%d], v[%d:%d], v[88:89]' % (a, a + 1, a, a + 1),
                             'v_cvt_pk_bf16_f32 v%d, v%d, v%d' % (a, a, a + 1),
                             'v_and_b32 v%d, 0xffff0000, v%d' % (a + 1, a), 'v_lshlrev_b32 v%d, 16, v%d' % (a, a),
                             pk_bc('fma', z, a, 30 + k, z)])
            for x, y in zip(*seqs): I(x); I(y)

CPC = int(os.environ.get('CPC', '4'))
def p2_main(c):
    def flagS():
        c.I('s_add_u32 s7, s76, 0x20000\ns_mov_b64 exec, 1')
        c.vmem('buffer_store_dword v26, off, s[20:23], s7 sc1', ('SV',))
        c.I('s_mov_b64 exec, -1')
    def pollS():
        c.vmem('buffer_load_dword v23, v22, s[20:23], s73 offen sc1', ('PS',))
    def chkS():
        c.wait_vm(('psw',), lambda t: t == ('PS',))
        if c.emit:
            spin(c.P, 'P2_ps', 'v_cmp_ne_u32 vcc, 1, v23', 'buffer_load_dword v23, v22, s[20:23], s73 offen sc1', 2)
    for n in range(NT):
        if n == CPC: c.I('CP_c:')
        step2(c, n, pre={2: flagS, 8: pollS, NB - NS + 1: chkS}.get(n), xvm=e0_loads(c) if n == NT - 3 else None)

def p2_final(P):
    ZS, ZK, TMP = 96, 128, 160
    def wr(Q, jt0):
        for t in range(8):
            P('ds_write_b128 v61, %s offset:%d' % (rr('a', acc2(2 * Q + (t >> 2), jt0 + (t & 3))), t * 1024))
    def own(Q, jt0, dst):
        for t in range(8):
            b = acc2(2 * Q + (t >> 2), jt0 + (t & 3))
            for r in range(4): P('v_accvgpr_read_b32 v%d, a%d' % (dst + t * 4 + r, b + r))
    P('v_add_u32 v60, s31, v15')
    for Q in range(4):
        P('s_cmp_eq_u32 s3, %d\ns_cbranch_scc1 P2_so%d' % (Q, Q))
        P('s_cmp_lt_u32 s3, %d\ns_cselect_b32 s6, %d, %d\ns_lshl_b32 s6, s6, 13' % (Q, max(Q - 1, 0), min(Q, 2)))
        P('v_add_u32 v61, s6, v60')
        wr(Q, 4)
        P('s_branch P2_sn%d' % Q)
        P.label('P2_so%d' % Q)
        own(Q, 4, ZS)
        P.label('P2_sn%d' % Q)
    for sl in range(3):
        P("""
        s_cmp_le_u32 s3, %d
        s_cselect_b32 s6, %d, %d
        s_cselect_b32 s7, 0, 1
        s_mul_i32 s6, s6, 40960
        s_sub_u32 s7, s3, s7
        s_lshl_b32 s%d, s7, 13
        s_add_u32 s%d, s%d, s6
        s_add_u32 s7, s7, 3
        s_cmp_eq_u32 s7, 5
        s_cselect_b32 s7, 0, s7
        s_lshl_b32 s%d, s7, 13
        s_add_u32 s%d, s%d, s6
        """ % (sl, sl + 1, sl, 70 + sl, 70 + sl, 70 + sl, 86 + sl, 86 + sl, 86 + sl))
    P("""
    s_lshl_b32 s6, s2, 2
    s_add_u32 s6, s6, s3
    s_lshl_b32 s78, s6, 13
    s_add_u32 s78, s78, %d
    s_add_u32 s79, s78, 4096
    s_xor_b32 s80, s78, 0x8000
    s_add_u32 s81, s80, 4096
    s_lshl_b32 s82, s6, 7
    s_add_u32 s82, s82, %d
    s_xor_b32 s83, s82, 0x200
    s_waitcnt lgkmcnt(0)
    s_barrier
    """ % (WS_XB, WS_FL + 0x40000))
    add = lambda d, a, b: 'v_pk_add_f32 v[%d:%d], v[%d:%d], v[%d:%d]' % (d, d + 1, a, a + 1, b, b + 1)
    def rd(s0, dst):
        for sl in range(3):
            P('v_add_u32 v%d, s%d, v15' % (56 + sl, s0 + sl))
        for t in range(8):
            for sl in range(3):
                P('ds_read_b128 v[%d:%d], v%d offset:%d' % (TMP + sl * 32 + t * 4, TMP + sl * 32 + t * 4 + 3, 56 + sl, t * 1024))
        for t in range(8):
            P('s_waitcnt lgkmcnt(%d)' % min(21 - 3 * t, 14))
            for h in range(2):
                r = t * 4 + 2 * h
                P(add(TMP + r, TMP + r, TMP + 32 + r)); P(add(dst + r, dst + r, TMP + 64 + r))
            for h in range(2):
                r = t * 4 + 2 * h
                P(add(dst + r, dst + r, TMP + r))
            if dst == ZS:
                P('buffer_store_dwordx4 v[%d:%d], v15, s[20:23], s%d offen offset:%d sc1' % (ZS + t * 4, ZS + t * 4 + 3, 78 + (t >> 2), (t & 3) * 1024))
    rd(70, ZS)
    stamp(P, 16)
    for Q in range(4):
        P('s_cmp_eq_u32 s3, %d\ns_cbranch_scc1 P2_ko%d' % (Q, Q))
        if Q == 3:
            P('s_branch P2_kn3')
        else:
            if Q == 2: P('s_cmp_eq_u32 s3, 3\ns_cbranch_scc1 P2_kn2')
            P('s_cmp_lt_u32 s3, %d\ns_cselect_b32 s6, %d, %d\ns_lshl_b32 s6, s6, 13' % (Q, 3 + max(Q - 1, 0), 3 + min(Q, 1)))
            P('v_add_u32 v61, s6, v60')
            wr(Q, 0)
            P('s_branch P2_kn%d' % Q)
        P.label('P2_ko%d' % Q)
        own(Q, 0, 128)
        P.label('P2_kn%d' % Q)
    P('s_barrier')
    P('v_mov_b32 v61, v60')
    P('s_cmp_eq_u32 s3, 3\ns_cbranch_scc1 P2_l2')
    wr(3, 0)
    P('s_branch P2_l3')
    P.label('P2_l2')
    wr(2, 0)
    P.label('P2_l3')
    P('s_waitcnt vmcnt(0)\ns_mov_b64 exec, 1\nbuffer_store_dword v26, off, s[20:23], s82 sc1\ns_mov_b64 exec, -1')
    P('s_waitcnt lgkmcnt(0)')
    P('s_barrier')
    rd(86, ZK)
    stamp(P, 17)
    P('buffer_load_dword v59, off, s[20:23], s83 sc1')
    xd_math(P, ZK)
    P('s_waitcnt vmcnt(0)')
    spin(P, 'P2_x', 'v_cmp_ne_u32 vcc, 1, v59', 'buffer_load_dword v59, off, s[20:23], s83 sc1', 1)
    stamp(P, 18)
    for t in range(8):
        P('buffer_load_dwordx4 v[%d:%d], v15, s[20:23], s%d offen offset:%d sc1' % (ZS + t * 4, ZS + t * 4 + 3, 80 + (t >> 2), (t & 3) * 1024))
    for t in range(8):
        P('s_waitcnt vmcnt(7)')
        for h in range(2):
            r = t * 4 + 2 * h
            P(add(ZK + r, ZK + r, ZS + r))
        P('buffer_store_dwordx4 v[%d:%d], v%d, s[12:15], 0 offen offset:%d' % (ZK + t * 4, ZK + t * 4 + 3, 29 if t >= 4 else 28, (t & 3) * 64))

CPF = int(os.environ.get('CPF', '1'))
_cpn = [0]
def code_touch(I, start, end, vt=26, sp=84):
    if not CPF: return
    _cpn[0] += 1
    L = 'CT%d' % _cpn[0]
    I('s_getpc_b64 s[%d:%d]' % (sp, sp + 1))
    I(L + ':')
    I('s_add_u32 s%d, s%d, %s-%s' % (sp, sp, start, L))
    I('s_addc_u32 s%d, s%d, 0' % (sp + 1, sp + 1))
    I('v_lshlrev_b32 v%d, 7, v0' % vt)
    I('v_min_u32 v%d, %s-%s-4, v%d' % (vt, end, start, vt))
    I('global_load_dword a255, v%d, s[%d:%d]' % (vt, sp, sp + 1))

def site_of(u):
    if u < 4: return ('F', u)
    if u >= 28: return ('E', u)
    return ('L', u % 4)

def body(c, emit):
    P = c.P
    prologue(c)
    if PRE:
        for u in range(4): substep(c, u, site_of(u), first=(u == 0))
    else:
        extra = [lambda: c.wait_vm(('s',), lambda t: t == ('S',))] + as_fill(c, tables_text())
        g1, g2 = g_work(c)
        substep(c, 0, site_of(0), extra=extra, first=True)
        substep(c, 1, site_of(1), extra=extra)
        extra += g1
        substep(c, 2, site_of(2), extra=extra, room_extra=1)
        assert not extra, len(extra)
        extra += g2
        substep(c, 3, site_of(3), extra=extra, room_extra=6)
        assert not extra, len(extra)
    if emit:
        stamp(P, 1); stamp_rt(P, 21)
        P('.p2align 6')
        P.label('K1_loop')
        P('s_cmp_eq_u32 s33, s93\ns_cbranch_scc1 K1_t1')
        P.label('K1_tback')
        c_loads(P)
        for u in range(4, 8): substep(c, u, site_of(u), tch=(u % 4 == TPOS))
        P("""
        s_add_u32 s33, s33, 1
        s_cmp_lt_u32 s33, 6
        s_cbranch_scc1 K1_loop
        """)
    else:
        for u in range(4, 28): substep(c, u, site_of(u), tch=(u % 4 == TPOS))
    c.I('CP_b:')
    stamp(c.I, 2); stamp_rt(c.I, 22)
    init_load(c)
    substep(c, 28, site_of(28), last=1)
    substep(c, 29, site_of(29), last=2, extra=c_stores(c))
    stamp(c.I, 6)
    init_check(c)
    last_stage(c)

DIAG = int(os.environ.get('DIAG', '0'))
if DIAG:
    DMAP = {0: 0, 4: 1, 1: 2, 2: 3, 5: 4, 7: 5, 9: 6, 12: 7, 13: 8, 15: 9, 16: 10, 17: 11, 18: 12, 19: 13, 20: 14}
    def stamp(I, idx, vr=16):
        if idx in DMAP:
            I('s_memrealtime s[84:85]')
            I('s_waitcnt lgkmcnt(0)')
            if idx == 0:
                I('s_not_b32 s85, s84')
                I('v_writelane_b32 v16, s85, 15')
            I('v_writelane_b32 v16, s84, %d' % DMAP[idx])
    def stamp_rt(I, idx, vr=16): pass
    def stamp_out(I, kern, vr=16, va=23):
        I('v_lshlrev_b32 v23, 2, v17')
        I('s_mov_b64 exec, 0xffff')
        I('buffer_atomic_umax v16, v23, s[24:27], 0 offen sc1')
        I('s_mov_b64 exec, -1')
PROBE = os.environ.get('PROBE', '')
if PROBE:
    PA, PB = [int(x) for x in PROBE.split(',')]
    def stamp(I, idx, vr=16):
        if idx == PA or idx == PB:
            I('s_memrealtime s[84:85]')
            I('s_waitcnt lgkmcnt(0)')
            I('v_writelane_b32 v16, s84, %d' % (0 if idx == PA else 1))
    def stamp_rt(I, idx, vr=16): pass
    def stamp_out(I, kern, vr=16, va=23):
        I('v_readlane_b32 s6, v16, 0')
        I('v_readlane_b32 s7, v16, 1')
        I('s_memrealtime s[84:85]')
        I('s_waitcnt lgkmcnt(0)')
        I('s_sub_u32 s6, s7, s6')
        I('s_add_u32 s6, s6, s84')
        I('PROBE_l:')
        I('s_memrealtime s[84:85]')
        I('s_waitcnt lgkmcnt(0)')
        I('s_sub_u32 s7, s84, s6')
        I('s_cmp_lt_i32 s7, 0')
        I('s_cbranch_scc1 PROBE_l')
KNAME = 'gated_mix__ssm_conv_s5__glu_gated_reglu__prompt_kernel'
def gen():
    waits = {}
    body(Ctx(None, waits), False)
    c = Ctx(None, waits)
    p2_enter(c); p2_main(c)
    P = Prog()
    c = Ctx(P, waits)
    P('.globl %s\n.p2align 8\n.type %s,@function' % (KNAME, KNAME))
    P.label(KNAME)
    body(c, True)
    epilogue(P)
    p2_enter(c)
    p2_main(c)
    stamp(P, 15); stamp_rt(P, 24)
    P('s_nop 7')
    p2_final(P)
    stamp(P, 19); stamp_rt(P, 11)
    P('s_waitcnt vmcnt(0)')
    stamp(P, 20)
    stamp_out(P, 0)
    P.label('K1_done')
    P('s_endpgm')
    P.label('K1_t1')
    P("""
    s_lshl_b32 s6, 1, s4
    v_mov_b32 v26, s6
    s_lshl_b32 s7, s5, 2
    s_mov_b64 exec, 1
    buffer_atomic_add v26, off, s[24:27], s7 offset:128 sc1
    s_mov_b64 exec, -1
    s_branch K1_tback
    """)
    P.label('CP_end')
    txt = P.text()
    X = os.environ.get('XP', '')
    if X:
        a = txt.index('K1_tback:'); b = txt.index('s_cbranch_scc1 K1_loop')
        L = txt[a:b].split('\n')
        if 'r' in X: L = [l for l in L if 'ds_read' not in l]
        if 'd' in X: L = [l for l in L if ' lds' not in l]
        if 't' in X: L = [l for l in L if 'ds_read_b64_tr' not in l]
        if 'h' in X: L = [l for k, l in enumerate(L) if not ('ds_read_b64_tr' in l and (int(l.split('offset:')[1]) // 4096) % 2)]
        if 'b' in X: L = [l for l in L if 's_barrier' not in l]
        txt = txt[:a] + '\n'.join(L) + txt[b:]
    return txt, waits

if __name__ == '__main__':
    import sys
    NAME = 'gated_mix__ssm_conv_s5__glu_gated_reglu__prompt'
    ref = open('cdna_kernels/%s.s.ref' % NAME).read().splitlines()
    hdr = [l for l in ref if l.startswith(';') and '@launch' not in l]
    t, w = gen()
    out = '\n'.join(hdr) + '\n; @launch grid=(256,1,1) block=(256,1,1) lds=%d\n' % K1_LDS
    out += '.amdgcn_target "amdgcn-amd-amdhsa--gfx950"\n.text\n' + t
    out += '.section .rodata,"a"\n.p2align 6\n' + K1_DESC.replace('k1_kernel', KNAME)
    dst = sys.argv[1] if len(sys.argv) > 1 else 'cdna_kernels/%s.s' % NAME
    open(dst, 'w').write(out)
    print('wrote', dst, len(out))
```

```python
import os
from asmlib import Prog, Counter
import k1
from k1 import Ctx, rr, cmul_pk, ffn_out, acc_reg, ACC_V0, stamp, stamp_rt, stamp_out, NKB, WS_G, WS_T, WS_C2, WS_FL, WS_XB, K1_DESC

XB = 0
WB = 65536
BB = 131072
TAB = 147456
POW = TAB + 2048
WG64 = TAB + 6144
K1_LDS = 163840
assert TAB == k1.TAB
XSET = 128
RING = 192
BH = 220
OOB = 0x70000000
EXP = int(os.environ.get('EXP', '0'))
TS0 = int(os.environ.get('TS0', '4'))
TPRE = int(os.environ.get('TPRE', '1'))
DEFER = int(os.environ.get('DEFER', '1'))
NTW = 'nt' if int(os.environ.get('NTW', '1')) else ''
NTB = 'nt' if int(os.environ.get('NTB', '1')) else ''
NTC = 'nt' if int(os.environ.get('NTC', '1')) else ''
NTT = 'nt' if int(os.environ.get('NTT', os.environ.get('NTW', '1'))) else ''
NTX = 'nt' if int(os.environ.get('NTX', '0')) else ''
WDT = int(os.environ.get('WDT', '1'))
PRE = int(os.environ.get('PRE', '1'))
TPOS = int(os.environ.get('TPOS', '0'))
PT = int(os.environ.get('PT', '1'))
TOUCH = int(os.environ.get('TOUCH', '1'))

FFN = []
for jt in range(7): FFN += [('G', jt), ('U', jt)]
SSM = [('R', 0), ('I', 0), ('R', 1), ('I', 1)]

def w_read(c, u, t):
    kind, jt = FFN[t]
    slot = RING + (t % 7) * 4
    th = []
    for e in range(2):
        off = (u % 4) * 16384 + ((kind == 'U') * 2 + e) * 4096 + jt * 32
        th.append(lambda off=off, e=e: c.ds('ds_read_b64_tr_b16 a[%d:%d], v12 offset:%d' % (slot + 2 * e, slot + 2 * e + 1, off), ('F', u, t)))
    return th
def b_read(c, s, hh, k):
    kind, jt = SSM[k]
    off = (s % 2) * 8192 + ((kind == 'I') * 32 + jt * 16) * 128
    return lambda: c.ds('ds_read_b128 %s, v%d offset:%d' % (rr('a', BH + hh * 16 + k * 4), 13 + hh, off), ('BF', s, hh))
def x_read(c, s, hh, i):
    off = (s % 2) * 8192 + i * 2048
    return lambda: c.ds('ds_read_b128 %s, v%d offset:%d' % (rr('a', XSET + (s % 2) * 32 + hh * 16 + i * 4), 7 + hh, off), ('XF', s, hh))
def w_dma(c, u, n):
    th = []
    th.append(lambda: c.I('s_add_u32 m0, s32, %d' % ((u % 4) * 16384)))
    th.append(lambda: c.vmem('buffer_load_dwordx4 v%d, s[12:15], s30 offen offset:%d %s lds' % (3 + n, n * 1024, NTW), ('W', u)))
    if n == 3: th.append(lambda: c.I('s_add_u32 s30, s30, 229376'))
    return th
def x_dma(c, s, k):
    th = []
    th.append(lambda: c.I('s_add_u32 m0, s34, %d' % ((s % 2) * 8192 + (k >> 2) * 4096)))
    th.append(lambda: c.vmem('buffer_load_dwordx4 v%d, s[8:11], s%d offen offset:%d %s lds' % (1 + (k & 1), 28 + (k >> 2), (k & 3) * 1024, NTX), ('X', s)))
    if k == 7:
        th.append(lambda: c.I('s_add_u32 s28, s28, 128'))
        th.append(lambda: c.I('s_cmp_lt_u32 s28, 2048'))
        th.append(lambda: c.I('s_cselect_b32 s28, s28, s77'))
        th.append(lambda: c.I('s_add_u32 s29, s28, 4096'))
    return th
def b_dma(c, s, n):
    th = []
    th.append(lambda: c.I('s_add_u32 m0, s35, %d' % ((s % 2) * 8192)))
    th.append(lambda: c.vmem('buffer_load_dwordx4 v%d, s[16:19], s31 offen offset:%d %s lds' % (10 + n, n * 1024, NTB), ('B', s)))
    if n == 1:
        th.append(lambda: c.I('s_add_u32 s31, s31, 128'))
        th.append(lambda: c.I('s_cmp_lt_u32 s31, 2048'))
        th.append(lambda: c.I('s_cselect_b32 s31, s31, s77'))
    return th

def substep(c, u, site, extra=None, first=False, last=0, room_extra=0, tch=False):
    tq = ptouch(c) if (tch and TOUCH) else []
    hh = u & 1; s = u >> 1
    for j in range(18):
        fill = []
        if j <= 8: fill += w_read(c, u, j + 5)
        if 12 <= j <= 16 and u != 31: fill += w_read(c, u + 1, j - 12)
        if u == 31: pass
        elif hh == 1:
            if j == 9: fill.append(lambda: c.wait_vm((site, 'x'), lambda t: t == ('X', s + 1)))
            if j in (9, 10): fill += [x_read(c, s + 1, 0, (j - 9) * 2 + k) for k in range(2)]
            if j in (14, 15, 16, 17): fill.append(x_read(c, s + 1, 1, j - 14))
            if j in (12, 13): fill += [b_read(c, s + 1, 0, (j - 12) * 2 + k) for k in range(2)]
        else:
            if j in (0, 2, 4, 6): fill.append(b_read(c, s, 1, j // 2))
        d = []
        if j in (13, 15, 17): d = w_dma(c, u + 4, (j - 13) // 2)
        if j == 1: d = w_dma(c, u + 3, 3)
        if j in (3, 5, 7, 9): d = x_dma(c, s + 2, hh * 4 + (j - 3) // 2)
        if hh == 0 and j in (14, 16): d = b_dma(c, s + 2, (j - 14) // 2)
        if last == 2 or (last == 1 and j != 1): d = []
        if DEFER and u == 0:
            seq = [('x', 1, k) for k in range(8)] + [('w', 2, n) for n in range(4)] + [('b', 1, n) for n in range(2)] + [('w', 3, n) for n in range(4)] + [('x', 2, k) for k in range(4)]
            if j <= 10:
                d = []
                for ty, a, b in seq[2 * j:2 * j + 2]:
                    d += {'x': x_dma, 'w': w_dma, 'b': b_dma}[ty](c, a, b)
        fill = d[:1] + fill + d[1:]
        if tq and j in (10, 11): fill += tq[:2]; tq = tq[2:]
        if tq and j == 12: fill += tq; tq = []
        if extra:
            room = max(0, 8 - 1 - len(fill)) + room_extra
            for _ in range(min(room, len(extra))): fill.append(extra.pop(0))
        if j == 0: c.wait_lg((site, 'xf'), lambda t: t in (('XF', s, hh), ('F', u, 0)))
        elif j < 14: c.wait_lg((site, 'f', j), lambda t: t == ('F', u, j))
        elif j == 14: c.wait_lg((site, 'bf'), lambda t: t == ('BF', s, hh))
        if j < 14:
            kind, jt = FFN[j]; a = RING + (j % 7) * 4
        else:
            kind, jt = SSM[j - 14]; a = BH + hh * 16 + (j - 14) * 4
        nf = len(fill); k = 0
        for i in range(4):
            f, b = acc_reg(kind, jt, i)
            c.I('v_mfma_f32_16x16x32_bf16 %s, %s, %s, %s' % (rr(f, b), rr('a', a), rr('a', XSET + (s % 2) * 32 + hh * 16 + i * 4), '0' if first else rr(f, b)))
            take = (nf * (i + 1) + 3) // 4 - k
            for _ in range(take):
                fill[k](); k += 1
        if j == 11 and u != 31:
            if hh == 1: c.wait_vm((site, 'd'), lambda t: t in (('W', u + 1), ('B', s + 1)))
            else: c.wait_vm((site, 'd'), lambda t: t == ('W', u + 1))
            c.I('s_waitcnt lgkmcnt(0)')
            c.lg.q = []
            c.I('s_barrier')

def touch(I, batch):
    ks = 2 + 7 * batch
    I('''
    s_mov_b32 s6, %d
    s_mov_b32 s7, %d
    s_mov_b32 exec_hi, 0x1ffff
    buffer_load_dword a255, v28, s[12:15], s6 offen
    s_mov_b64 exec, 0x3fff
    buffer_load_dword a255, v29, s[16:19], s7 offen
    buffer_load_dword a255, v30, s[8:11], s7 offen
    s_mov_b64 exec, -1
    ''' % (ks * 64 * 7168, ks * 128))

def touch_wd(I):
    I('''
    s_lshl_b32 s6, s2, 2
    s_add_u32 s6, s6, s3
    s_mul_i32 s6, s6, 7168
    v_lshlrev_b32 v26, 7, v17
    s_mov_b32 exec_hi, 0xffffff
    buffer_load_dword a255, v26, s[88:91], s6 offen
    s_mov_b64 exec, -1
    ''')


def c_addr(I):
    I("""
    s_and_b32 s7, s3, 1
    s_lshl_b32 s6, s4, 7
    s_lshl_b32 s70, s7, 6
    s_add_u32 s6, s6, s70
    v_add_u32 v9, s6, v18
    v_lshlrev_b32 v9, 11, v9
    v_lshl_add_u32 v9, v19, 4, v9
    s_lshl_b32 s6, s5, 6
    v_add_u32 v9, s6, v9
    """)

def c_loads(P):
    for k in range(4):
        P('s_cmp_lg_u32 s33, %d' % (k + 1))
        P('s_cbranch_scc1 K1_c%d' % k)
        P('global_load_dwordx4 v[%d:%d], v9, s[86:87] %s' % (32 + 4 * k, 35 + 4 * k, NTC))
        P('v_add_u32 v9, 0x8000, v9')
        if k == 3: code_touch(P, 'CP_b', 'CP_c')
        P.label('K1_c%d' % k)

def c_stores(c):
    R = Rec(c, 'cs')
    R("""
    s_lshl_b32 s6, s4, 6
    s_lshr_b32 s7, s3, 1
    s_lshl_b32 s7, s7, 5
    s_add_u32 s6, s6, s7
    s_add_u32 s6, s6, s5
    s_lshl_b32 s6, s6, 13
    s_and_b32 s7, s3, 1
    s_lshl_b32 s7, s7, 12
    s_add_u32 s6, s6, s7
    s_add_u32 s6, s6, %d
    v_lshlrev_b32 v20, 4, v17
    """ % WS_C2)
    for k in range(4):
        R.vm('buffer_store_dwordx4 v[%d:%d], v20, s[20:23], s6 offen offset:%d sc1' % (32 + 4 * k, 35 + 4 * k, k * 1024), ('SV',))
    return R.th

def ptouch(c):
    def mk(mask, txt):
        def f():
            c.I('s_mov_b64 exec, %s' % mask); c.vmem(txt, ('TC',)); c.I('s_mov_b64 exec, -1')
        return f
    th = [mk('0x3fff', 'buffer_load_dword a255, v28, s[12:15], s95 offen %s' % NTT),
          mk('0xf', 'buffer_load_dword a255, v29, s[16:19], s94 offen %s' % NTB),
          mk('0xf', 'buffer_load_dword a255, v30, s[8:11], s94 offen'),
          mk('0x7ffff', 'buffer_load_dword a255, v31, s[88:91], s92 offen')]
    for t in ('s_add_u32 s92, s92, 2432', 's_add_u32 s95, s95, 917504'):
        th.append(lambda t=t: c.I(t))
    th.append(lambda: c.I('s_add_u32 s94, s94, 256\ns_cmp_lt_u32 s94, 2048\ns_cselect_b32 s94, s94, s77'))
    return th

def tables_text():
    t = """
    v_lshlrev_b32 v48, 16, v48
    v_lshlrev_b32 v49, 16, v49
    v_lshlrev_b32 v50, 16, v50
    v_mul_f32 v50, 0x3fb8aa3b, v50
    v_exp_f32 v50, v50
    v_cvt_pk_bf16_f32 v50, v50, v50
    v_lshlrev_b32 v50, 16, v50
    v_mul_f32 v51, v50, v48
    v_mul_f32 v52, v50, v49
    v_mul_f32 v51, 0x3fb8aa3b, v51
    v_exp_f32 v51, v51
    v_mul_f32 v52, 0.15915494, v52
    v_fract_f32 v52, v52
    v_cos_f32 v53, v52
    v_sin_f32 v54, v52
    v_mul_f32 v64, v51, v53
    v_mul_f32 v65, v51, v54
    v_add_f32 v51, -1.0, v64
    v_mul_f32 v52, v48, v48
    v_fmac_f32 v52, v49, v49
    v_rcp_f32 v53, v52
    v_mul_f32 v54, v51, v48
    v_fmac_f32 v54, v65, v49
    v_mul_f32 v55, v65, v48
    v_fma_f32 v55, -v51, v49, v55
    v_fma_f32 v52, -v52, v53, 2.0
    v_mul_f32 v53, v53, v52
    v_add_f32 v53, v53, v53
    v_mul_f32 v88, v54, v53
    v_mul_f32 v89, v55, v53
    """
    for k in range(9):
        a = 64 + 2 * k; d = a + 2
        t += """
        v_mul_f32 v%d, v%d, v%d
        v_fma_f32 v%d, -v%d, v%d, v%d
        v_mul_f32 v%d, v%d, v%d
        v_add_f32 v%d, v%d, v%d
        """ % (d, a, a, d, a + 1, a + 1, d, d + 1, a, a + 1, d + 1, d + 1, d + 1)
    t += """
    v_lshrrev_b32 v51, 5, v0
    v_mov_b32 v56, 1.0
    v_mov_b32 v57, 0
    v_mov_b32 v60, 1.0
    v_mov_b32 v61, 0
    """
    def cm(dr, di, ar, ai, br, bi):
        return """
        v_mul_f32 v%d, v%d, v%d
        v_fma_f32 v%d, -v%d, v%d, v%d
        v_mul_f32 v%d, v%d, v%d
        v_fmac_f32 v%d, v%d, v%d
        """ % (dr, ar, br, dr, ai, bi, dr, di, ar, bi, di, ai, br)
    for b in range(3):
        a = 68 + 2 * b; a2 = 76 + 2 * b
        t += 'v_and_b32 v54, %d, v51\nv_cmp_ne_u32 vcc, 0, v54\n' % (1 << b)
        t += cm(52, 53, 56, 57, a, a + 1) + cm(62, 63, 60, 61, a2, a2 + 1)
        t += """
        v_cndmask_b32 v56, v56, v52, vcc
        v_cndmask_b32 v57, v57, v53, vcc
        v_cndmask_b32 v60, v60, v62, vcc
        v_cndmask_b32 v61, v61, v63, vcc
        """
    t += cm(58, 59, 56, 57, 74, 75)
    t += cm(62, 63, 60, 61, 82, 83) + cm(84, 85, 62, 63, 82, 83) + cm(86, 87, 84, 85, 82, 83)
    t += """
    v_and_b32 v52, 31, v0
    v_lshlrev_b32 v52, 2, v52
    v_lshl_add_u32 v53, v51, 8, v52
    v_add_u32 v53, %d, v53
    v_add_u32 v52, %d, v52
    ds_write2_b32 v53, v56, v57 offset0:0 offset1:32
    ds_write_b32 v53, v58 offset:2048
    ds_write_b32 v53, v59 offset:2176
    """ % (POW, TAB)
    for k, r in enumerate((60, 62, 84, 86)):
        t += 'ds_write_b32 v53, v%d offset:%d\nds_write_b32 v53, v%d offset:%d\n' % (r, 4096 + k * 2048, r + 1, 4096 + k * 2048 + 128)
    for idx, r in enumerate([64, 68, 70, 72]):
        t += 'ds_write2_b32 v52, v%d, v%d offset0:%d offset1:%d\n' % (r, r + 1, idx * 64, idx * 64 + 32)
    for idx, r in ((4, 74), (5, 88)):
        t += 'ds_write_b32 v52, v%d offset:%d\nds_write_b32 v52, v%d offset:%d\n' % (r, idx * 256, r + 1, idx * 256 + 128)
    return [l.strip() for l in t.splitlines() if l.strip()]

class Rec:
    def __init__(self, c, name):
        self.c = c; self.th = []; self.name = name; self.n = 0
    def __call__(self, text):
        for l in text.strip('\n').split('\n'):
            l = l.strip()
            if l: self.th.append(lambda l=l: self.c.I(l))
    def blk(self, items):
        def f():
            for k, t in items:
                if k == 'vm': self.c.vmem(t, ('SV',))
                else: self.c.I(t)
        self.th.append(f)
    def ds(self, text, tag): self.th.append(lambda: self.c.ds(text, tag))
    def vm(self, text, tag): self.th.append(lambda: self.c.vmem(text, tag))
    def wl(self, tag):
        self.n += 1; site = (self.name, 'l', self.n)
        self.th.append(lambda: self.c.wait_lg(site, lambda t: t == tag))
    def wv(self, tag):
        self.n += 1; site = (self.name, 'v', self.n)
        self.th.append(lambda: self.c.wait_vm(site, lambda t: t == tag))

def g_work(c, GI=64, G=48):
    R = Rec(c, 'g')
    R("""
    s_lshl_b32 s6, s4, 1
    s_lshr_b32 s7, s3, 1
    s_add_u32 s6, s6, s7
    s_lshl_b32 s6, s6, 6
    s_lshl_b32 s7, s5, 1
    s_add_u32 s6, s6, s7
    s_and_b32 s7, s3, 1
    s_add_u32 s6, s6, s7
    s_lshl_b32 s76, s6, 7
    s_add_u32 s76, s76, %d
    s_add_u32 s7, s76, 0x20000
    v_mov_b32 v21, 0
    s_lshl_b32 s70, s71, 11
    v_lshlrev_b32 v25, 5, v17
    s_lshl_b32 s6, s2, 2
    s_add_u32 s6, s6, s3
    s_lshl_b32 s6, s6, 7
    s_add_u32 s6, s6, %d
    """ % (WS_FL, WS_FL + 0x40000))
    R.vm('buffer_load_dwordx4 v[%d:%d], v25, s[8:11], s70 offen' % (GI + 0, GI + 3), ('GL',))
    R.vm('buffer_load_dwordx4 v[%d:%d], v25, s[8:11], s70 offen offset:16' % (GI + 4, GI + 7), ('GL',))
    R.vm('buffer_load_dwordx4 v[%d:%d], v25, s[8:11], s70 offen offset:2048' % (GI + 8, GI + 11), ('GL',))
    R.vm('buffer_load_dwordx4 v[%d:%d], v25, s[8:11], s70 offen offset:2064' % (GI + 12, GI + 15), ('GL',))
    R.vm('global_load_dwordx4 v[%d:%d], v25, s[62:63]' % (GI + 16, GI + 19), ('GL',))
    R.vm('global_load_dwordx4 v[%d:%d], v25, s[62:63] offset:16' % (GI + 20, GI + 23), ('GL',))
    R.blk([('i', 's_mov_b64 exec, 1'), ('vm', 'buffer_store_dword v21, off, s[20:23], s76 sc1'), ('vm', 'buffer_store_dword v21, off, s[20:23], s7 sc1'), ('vm', 'buffer_store_dword v21, off, s[20:23], s6 sc1'), ('i', 's_mov_b64 exec, -1')])
    first = len(R.th)
    R.wv(('GL',))
    for d in range(8):
        R('v_and_b32 v%d, 0xffff0000, v%d\nv_lshlrev_b32 v%d, 16, v%d' % (G + 3, GI + 16 + d, G + 2, GI + 16 + d))
        for row in range(2):
            xr = GI + row * 8 + d; a = G + 4 + row * 2; t = G + 8 + row * 2
            R("""
            v_and_b32 v%d, 0xffff0000, v%d
            v_lshlrev_b32 v%d, 16, v%d
            v_pk_mul_f32 v[%d:%d], v[%d:%d], v[%d:%d]
            v_cvt_pk_bf16_f32 v%d, v%d, v%d
            v_and_b32 v%d, 0xffff0000, v%d
            v_lshlrev_b32 v%d, 16, v%d
            """ % (t + 1, xr, t, xr, t, t + 1, t, t + 1, G + 2, G + 3, t, t, t + 1, t + 1, t, t, t))
            if d == 0: R('v_mov_b64 v[%d:%d], v[%d:%d]' % (a, a + 1, t, t + 1))
            else: R('v_pk_add_f32 v[%d:%d], v[%d:%d], v[%d:%d]' % (a, a + 1, a, a + 1, t, t + 1))
    for row in range(2):
        a = G + 4 + row * 2
        R('v_add_f32 v%d, v%d, v%d' % (a, a, a + 1))
    for sh in (1, 2, 4, 8):
        for row in range(2):
            a = G + 4 + row * 2
            R('v_add_f32_dpp v%d, v%d, v%d row_shr:%d row_mask:0xf bank_mask:0xf bound_ctrl:0' % (a, a, a, sh))
    for row in range(2):
        for k in range(4):
            R('v_readlane_b32 s%d, v%d, %d' % (78 + row * 4 + k, G + 4 + row * 2, 15 + 16 * k))
    R("""
    v_mov_b32 v48, s78
    v_add_f32 v48, s79, v48
    v_add_f32 v48, s80, v48
    v_add_f32 v48, s81, v48
    v_mov_b32 v49, s82
    v_add_f32 v49, s83, v49
    v_add_f32 v49, s84, v49
    v_add_f32 v49, s85, v49
    v_cvt_pk_bf16_f32 v48, v48, v49
    v_lshlrev_b32 v49, 16, v48
    v_and_b32 v50, 0xffff0000, v48
    v_mul_f32 v49, 0xbfb8aa3b, v49
    v_mul_f32 v50, 0xbfb8aa3b, v50
    v_exp_f32 v49, v49
    v_exp_f32 v50, v50
    v_add_f32 v49, 1.0, v49
    v_add_f32 v50, 1.0, v50
    v_rcp_f32 v49, v49
    v_rcp_f32 v50, v50
    v_cvt_pk_bf16_f32 v48, v49, v50
    v_lshlrev_b32 v50, 16, v48
    v_and_b32 v51, 0xffff0000, v48
    s_lshl_b32 s6, s71, 2
    s_add_u32 s6, s6, %d
    """.replace('v48', 'v%d' % G).replace('v49', 'v%d' % (G + 1)).replace('v50', 'v%d' % (G + 2)).replace('v51', 'v%d' % (G + 3)) % WS_G)
    R.blk([('i', 's_mov_b64 exec, 1'), ('vm', 'buffer_store_dwordx2 v[%d:%d], off, s[20:23], s6 sc1' % (G + 2, G + 3)), ('i', 's_mov_b64 exec, -1')])
    return R.th[:first], R.th[first:]
def as_fill(c, lines):
    out = []
    for l in lines:
        if l.startswith('ds_'): out.append(lambda l=l: c.ds(l, ('T',)))
        else: out.append(lambda l=l: c.I(l))
    return out

def run(ths):
    for t in ths: t()

def prologue(c):
    I = c.I
    if k1.STAMP: I('s_memrealtime s[82:83]')
    I('''
    s_cmp_ge_u32 s2, 256
    s_cbranch_scc1 K1_done
    s_load_dwordx16 s[36:51], s[0:1], 0
    s_load_dwordx16 s[52:67], s[0:1], 64
    s_load_dwordx2 s[68:69], s[0:1], 128
    ''')
    if c.emit: code_touch(I, 'CP_a', 'CP_b')
    I('''
    CP_a:
    v_lshrrev_b32 v16, 6, v0
    v_and_b32 v17, 63, v0
    v_readfirstlane_b32 s3, v16
    s_lshr_b32 s4, s2, 5
    s_and_b32 s5, s2, 7
    s_lshl_b32 s5, s5, 2
    s_bfe_u32 s6, s2, 0x20003
    s_add_u32 s5, s5, s6
    v_and_b32 v18, 15, v0
    v_bfe_u32 v19, v0, 4, 2
    v_lshrrev_b32 v20, 3, v17
    v_and_b32 v21, 7, v17
    v_xor_b32 v21, v21, v20
    s_lshl_b32 s6, s4, 8
    s_lshl_b32 s7, s3, 6
    s_add_u32 s6, s6, s7
    v_lshl_add_u32 v1, v20, 2, s6
    v_lshlrev_b32 v1, 11, v1
    v_lshl_add_u32 v1, v21, 4, v1
    v_add_u32 v2, 0xfc00, v1
    s_mov_b32 s10, 0x400000
    s_mov_b32 s11, 0x00020000
    s_mov_b32 s14, 0x700000
    s_mov_b32 s15, 0x00020000
    s_mov_b32 s18, 0x200000
    s_mov_b32 s19, 0x00020000
    s_mov_b32 s22, 0x10000000
    s_mov_b32 s23, 0x00020000
    s_mov_b32 s26, 256
    s_mov_b32 s27, 0x00020000
    s_mov_b32 s90, 0x700000
    s_mov_b32 s91, 0x00020000
    s_mov_b32 s28, 0
    s_mov_b32 s29, 4096
    s_mov_b32 s30, 0
    s_mov_b32 s31, 0
    s_mov_b32 s77, 0x%x
    s_lshl_b32 s32, s3, 12
    s_add_u32 s32, s32, %d
    s_lshl_b32 s34, s3, 14
    s_lshl_b32 s35, s3, 11
    s_add_u32 s35, s35, %d
    v_lshrrev_b32 v22, 2, v20
    v_and_b32 v23, 3, v20
    v_lshl_add_u32 v22, v22, 3, v23
    s_and_b32 s7, s3, 1
    s_lshl_b32 s6, s5, 5
    s_lshl_b32 s70, s7, 2
    s_add_u32 s6, s6, s70
    v_add_u32 v22, s6, v22
    v_lshlrev_b32 v22, 11, v22
    v_lshl_add_u32 v10, v21, 4, v22
    v_add_u32 v11, 0x7c00, v10
    s_mul_i32 s72, s5, 224
    s_mul_i32 s70, s7, 28672
    s_add_u32 s72, s72, s70
    s_and_b32 s73, s5, 1
    s_lshl_b32 s73, s73, 1
    s_movk_i32 s74, 4682
    s_movk_i32 s75, 7168
    s_waitcnt lgkmcnt(0)
    s_mov_b32 s8, s36
    s_mov_b32 s9, s37
    s_cmp_ge_u32 s3, 2
    s_cselect_b32 s12, s58, s56
    s_cselect_b32 s13, s59, s57
    s_cselect_b32 s16, s44, s42
    s_cselect_b32 s17, s45, s43
    s_cselect_b32 s86, s48, s46
    s_cselect_b32 s87, s49, s47
    s_mov_b32 s20, s68
    s_mov_b32 s21, s69
    s_mov_b32 s24, s66
    s_mov_b32 s25, s67
    s_mov_b32 s88, s60
    s_mov_b32 s89, s61
    ''' % (OOB, WB, BB))
    stamp(I, 0); stamp_rt(I, 10)
    if k1.STAMP: I('v_writelane_b32 v16, s82, 25')
    if PT:
        I('''
        s_lshr_b32 s78, s2, 3
        s_lshl_b32 s78, s78, 2
        s_add_u32 s78, s78, s3
        s_and_b32 s79, s78, 15
        s_lshr_b32 s80, s78, 4
        s_mov_b32 s82, 0x11111112
        s_mov_b32 s83, 0x14144401
        s_lshl_b32 s81, s79, 2
        s_lshr_b64 s[82:83], s[82:83], s81
        s_and_b32 s82, s82, 15
        s_cmp_lt_u32 s80, s82
        s_cselect_b32 s79, s79, 0
        s_cselect_b32 s80, s80, 0
        s_sub_u32 s81, s78, 64
        s_cmp_lt_u32 s81, 20
        s_cselect_b32 s79, 16, s79
        s_cselect_b32 s80, s81, s80
        s_lshl_b32 s79, s79, 3
        s_lshl_b32 s80, s80, 21
        s_load_dwordx2 s[82:83], s[0:1], s79
        ''')
    small = """
    v_and_b32 v24, 31, v0
    v_lshl_add_u32 v24, s5, 5, v24
    v_lshlrev_b32 v24, 1, v24
    """
    def small_loads():
        I(small)
        c.vmem('global_load_ushort v48, v24, s[38:39]', ('S',))
        c.vmem('global_load_ushort v49, v24, s[40:41]', ('S',))
        c.vmem('global_load_ushort v50, v24, s[50:51]', ('S',))
    I("""
    s_lshl_b32 s6, s4, 8
    s_lshl_b32 s70, s5, 3
    s_add_u32 s6, s6, s70
    s_lshl_b32 s70, s3, 1
    s_add_u32 s71, s6, s70
    """)
    if PRE:
        small_loads()
        g1, g2 = g_work(c, 96, 120)
        run(g1)
        I('s_and_b32 s7, s3, 1')
    for k in range(8): run(x_dma(c, 0, k))
    if PT:
        I('s_waitcnt lgkmcnt(0)')
        I('s_load_dword s81, s[82:83], s80')
    for n in range(4):
        I('''
        v_add_u32 v20, %d, v17
        v_mul_u32_u24 v21, s74, v20
        v_lshrrev_b32 v21, 16, v21
        v_mul_u32_u24 v22, 14, v21
        v_sub_u32 v22, v20, v22
        v_add_u32 v22, s73, v22
        v_subrev_u32 v23, 14, v22
        v_min_u32 v22, v22, v23
        v_lshrrev_b32 v23, 2, v21
        v_and_b32 v21, 3, v21
        v_lshl_add_u32 v21, v23, 3, v21
        v_mul_u32_u24 v21, s75, v21
        v_lshl_add_u32 v21, v22, 4, v21
        v_add_u32 v21, s72, v21
        v_subrev_u32 v%d, %d, v21
        ''' % (n * 64, 3 + n, n * 1024))
        if n == 3:
            I('v_mov_b32 v20, s77\nv_cmp_gt_u32 vcc, 32, v17\nv_cndmask_b32 v6, v20, v6, vcc')
        run(w_dma(c, 0, n))
    for n in range(2): run(b_dma(c, 0, n))
    for n in range(4): run(w_dma(c, 1, n))
    if PRE:
        c.wait_vm(('s',), lambda t: t == ('S',))
        run(as_fill(c, tables_text()))
        run(g2)
        I('s_and_b32 s7, s3, 1')
    else:
        small_loads()
    if not DEFER:
        for k in range(8): run(x_dma(c, 1, k))
        for n in range(4): run(w_dma(c, 2, n))
        for n in range(2): run(b_dma(c, 1, n))
        for n in range(3): run(w_dma(c, 3, n))
    for l in range(64): assert (l * 37) >> 8 == l // 7
    I("""
    v_mul_u32_u24 v26, 37, v17
    v_lshrrev_b32 v26, 8, v26
    v_mul_u32_u24 v27, 7, v26
    v_sub_u32 v27, v17, v27
    v_lshlrev_b32 v27, 7, v27
    s_lshr_b32 s6, s2, 3
    s_lshl_b32 s6, s6, 1
    s_add_u32 s6, s6, s7
    s_lshl_b32 s6, s6, 1
    s_and_b32 s70, s2, 7
    v_add_u32 v28, s6, v26
    v_mul_u32_u24 v28, s75, v28
    v_add_u32 v28, v28, v27
    s_mul_i32 s71, s70, 896
    v_add_u32 v28, s71, v28
    v_lshrrev_b32 v26, 1, v17
    v_and_b32 v27, 1, v17
    v_lshlrev_b32 v27, 7, v27
    s_lshl_b32 s71, s70, 7
    s_add_u32 s71, s71, s6
    v_add_u32 v29, s71, v26
    v_lshl_add_u32 v29, v29, 11, v27
    s_lshl_b32 s6, s4, 8
    s_lshl_b32 s70, s5, 3
    s_add_u32 s6, s6, s70
    s_lshl_b32 s70, s3, 1
    s_add_u32 s71, s6, s70
    v_add_u32 v30, s71, v26
    v_lshl_add_u32 v30, v30, 11, v27
    s_mov_b32 s94, %d
    s_mov_b32 s95, %d
    s_bfe_u32 s78, s2, 0x10004
    s_bfe_u32 s79, s2, 0x10003
    s_and_b32 s70, s2, 7
    s_lshl_b32 s6, s4, 4
    s_lshl_b32 s70, s70, 1
    s_add_u32 s6, s6, s70
    s_add_u32 s6, s6, s78
    s_lshl_b32 s6, s6, 2
    s_add_u32 s6, s6, s3
    s_mul_i32 s92, s6, 14336
    s_cmp_eq_u32 s78, s79
    s_cselect_b32 s92, s92, s77
    v_lshlrev_b32 v31, 7, v17
    """ % (TS0 * 128, TS0 * 458752))
    c_addr(I)
    I('''
    s_lshl_b32 s6, s5, 5
    s_lshl_b32 s7, s4, 2
    s_add_u32 s6, s6, s7
    s_add_u32 s6, s6, s3
    s_lshl_b32 s6, s6, 8
    s_add_u32 s6, s6, %d
    v_lshlrev_b32 v26, 4, v17
    v_mov_b32 v24, -1
    v_mov_b32 v25, -1
    v_mov_b32 v22, -1
    v_mov_b32 v23, -1
    s_mov_b64 exec, 0xffff
    ''' % WS_T)
    c.vmem('buffer_store_dwordx4 v[22:25], v26, s[20:23], s6 offen sc1', ('SV',))
    I('''
    s_mov_b64 exec, -1
    s_bfe_u32 s93, s2, 0x20005
    s_add_u32 s93, s93, 1
    s_cmp_eq_u32 s3, 0
    s_cselect_b32 s93, s93, 99
    ''')
    I('''
    v_lshrrev_b32 v26, 2, v18
    v_lshl_add_u32 v26, v19, 2, v26
    v_mul_u32_u24 v26, 224, v26
    v_and_b32 v27, 3, v17
    v_lshl_add_u32 v12, v27, 3, v26
    v_add_u32 v12, %d, v12
    v_and_b32 v26, 7, v17
    v_xor_b32 v26, v26, v19
    v_lshlrev_b32 v26, 4, v26
    v_lshl_add_u32 v26, v18, 7, v26
    v_add_u32 v13, %d, v26
    v_xor_b32 v14, 64, v13
    v_add_u32 v7, s34, v26
    v_xor_b32 v8, 64, v7
    s_mov_b32 s33, 0
    ''' % (WB, BB))
    stamp(I, 3)
    c.wait_vm(('d0',), lambda t: t in (('W', 0), ('B', 0), ('X', 0)))
    I('s_barrier')
    stamp(I, 4)
    for i in range(4): x_read(c, 0, 0, i)()
    for t in range(5): run(w_read(c, 0, t))
    for i in range(4): x_read(c, 0, 1, i)()
    for k in range(4): b_read(c, 0, 0, k)()


RR = lambda jt, i: acc_reg('R', jt, i)[1]
II = lambda jt, i: acc_reg('I', jt, i)[1]
BA, BBk, BC, BD = 32, 48, 64, 80

def ld16(R, base_v, off, dst, tag):
    R.ds('ds_read_b128 v[%d:%d], v%d offset:%d' % (dst, dst + 3, base_v, off), tag)
    R.ds('ds_read_b128 v[%d:%d], v%d offset:%d' % (dst + 4, dst + 7, base_v, off + 16), tag)
    R.ds('ds_read_b128 v[%d:%d], v%d offset:%d' % (dst + 8, dst + 11, base_v, off + 128), tag)
    R.ds('ds_read_b128 v[%d:%d], v%d offset:%d' % (dst + 12, dst + 15, base_v, off + 144), tag)

def s1_pre(c):
    R = Rec(c, 's1p')
    R('v_lshlrev_b32 v20, 5, v19')
    R('v_add_u32 v20, %d, v20' % TAB)
    ld16(R, 20, 0, BA, ('K', 0)); ld16(R, 20, 256, BBk, ('K', 1))
    R("""
    s_lshl_b32 s78, s4, 2
    s_add_u32 s78, s78, s3
    s_lshl_b32 s79, s5, 13
    s_add_u32 s79, s79, %d
    s_lshl_b32 s80, s78, 8
    s_add_u32 s80, s80, s79
    v_lshlrev_b32 v21, 6, v19
    s_sub_u32 s81, s78, 1
    v_sub_u32 v22, s81, v18
    v_subrev_u32 v23, 16, v22
    v_cmp_gt_u32 vcc, 32, v22
    v_lshl_add_u32 v22, v22, 8, v21
    v_mov_b32 v24, s77
    v_cndmask_b32 v22, v24, v22, vcc
    v_cmp_gt_u32 vcc, 32, v23
    v_lshl_add_u32 v23, v23, 8, v21
    s_lshl_b32 s7, s5, 2
    v_cndmask_b32 v23, v24, v23, vcc
    v_cmp_eq_u32 s[82:83], 15, v18
    """ % WS_T)

    return R.th

def s1_work(c):
    R = Rec(c, 's1')
    LAM, CA, E, T = BA, BBk, BC, BD
    R.wl(('K', 0))
    cur = None; bufs = [E, T]
    for i in range(1, 4):
        d = bufs[i & 1]
        for jt in range(2):
            for h in range(2):
                o = jt * 4 + 2 * h
                if cur is None: br, bi = RR(jt, 0) + 2 * h, II(jt, 0) + 2 * h
                else: br, bi = cur + o, cur + 8 + o
                cmul_pk(R, d + o, d + 8 + o, LAM + o, LAM + 8 + o, br, bi, RR(jt, i) + 2 * h, II(jt, i) + 2 * h)
        cur = d
    S = E
    for k, sh in enumerate((1, 2, 4, 8)):
        for r in range(16):
            R('v_mov_b32_dpp v%d, v%d row_shr:%d row_mask:0xf bank_mask:0xf bound_ctrl:0' % (S + r, cur + r, sh))
        R.wl(('K', 1 + k))
        for o in range(0, 8, 2):
            cmul_pk(R, cur + o, cur + 8 + o, CA + o, CA + 8 + o, S + o, S + 8 + o, cur + o, cur + 8 + o)
        if k < 3: ld16(R, 20, (2 + k) * 256, CA, ('K', 2 + k))
    R.blk([('i', 's_mov_b64 exec, s[82:83]')] +
          [('vm', 'buffer_store_dwordx4 v[%d:%d], v21, s[20:23], s80 offen offset:%d sc1' % (cur + 4 * k, cur + 4 * k + 3, 16 * k)) for k in range(4)] +
          [('i', 's_mov_b64 exec, -1')])
    for r in range(16):
        R('v_mov_b32_dpp v%d, v%d row_shr:1 row_mask:0xf bank_mask:0xf bound_ctrl:0' % (S + r, cur + r))
    return R.th

def last_stage(c):
    s = 15
    order = [('S', 0, k) for k in range(4)] + [('S', 1, k) for k in range(4)] + [('F', 30, t) for t in range(14)] + [('F', 31, t) for t in range(14)]
    pre = s1_pre(c); work = s1_work(c)
    nF = 28
    per = -(-len(work) // (nF - 2))
    for n, (ty, a, b) in enumerate(order):
        fill = []
        site = ('Z', n)
        if ty == 'S':
            hh, k = a, b
            if hh == 0: fill.append(b_read(c, s, 1, k))
            for _ in range(min(5, len(pre))): fill.append(pre.pop(0))
            if k == 0: c.wait_lg((site, 'bf'), lambda t: t in (('BF', s, hh), ('XF', s, hh)))
            kind, jt = SSM[k]; areg = BH + hh * 16 + k * 4
        else:
            u, t = a, b; hh = u & 1
            if t <= 8: fill += w_read(c, u, t + 5)
            if u == 30 and t >= 10:
                for tt in {10: [], 11: [0], 12: [1, 2], 13: [3, 4]}[t]: fill += w_read(c, 31, tt)
            assert not pre
            if n >= 10:
                for _ in range(min(per, len(work))): fill.append(work.pop(0))
            c.wait_lg((site, 'f'), lambda tg: tg == ('F', u, t))
            kind, jt = FFN[t]; areg = RING + (t % 7) * 4
        nf = len(fill); k2 = 0
        for i in range(4):
            f, bb = acc_reg(kind, jt, i)
            c.I('v_mfma_f32_16x16x32_bf16 %s, %s, %s, %s' % (rr(f, bb), rr('a', areg), rr('a', XSET + 32 + hh * 16 + i * 4), rr(f, bb)))
            take = (nf * (i + 1) + 3) // 4 - k2
            for _ in range(take):
                fill[k2](); k2 += 1
        if ty == 'F' and a == 30 and b == 9:
            c.wait_vm((site, 'd'), lambda t: t == ('W', 31))
            c.I('s_barrier')
    assert not work


def pk_bc(op, d, a, f, cc=None):
    base = f & ~1; hi = f & 1
    if cc is None:
        return 'v_pk_mul_f32 v[%d:%d], v[%d:%d], v[%d:%d] op_sel:[0,%d] op_sel_hi:[1,%d]' % (d, d + 1, a, a + 1, base, base + 1, hi, hi)
    return 'v_pk_fma_f32 v[%d:%d], v[%d:%d], v[%d:%d], v[%d:%d] op_sel:[0,%d,0] op_sel_hi:[1,%d,1]' % (d, d + 1, a, a + 1, base, base + 1, cc, cc + 1, hi, hi)
def cmul16(P, d, a, b, c=None):
    p = lambda r: 'v[%d:%d]' % (r, r + 1)
    G = range(0, 8, 2)
    for o in G:
        if c is None: P('v_pk_mul_f32 %s, %s, %s' % (p(d(o)[0]), p(a(o)[0]), p(b(o)[0])))
        else: P('v_pk_fma_f32 %s, %s, %s, %s' % (p(d(o)[0]), p(a(o)[0]), p(b(o)[0]), p(c(o)[0])))
    for o in G:
        if c is None: P('v_pk_mul_f32 %s, %s, %s' % (p(d(o)[1]), p(a(o)[0]), p(b(o)[1])))
        else: P('v_pk_fma_f32 %s, %s, %s, %s' % (p(d(o)[1]), p(a(o)[0]), p(b(o)[1]), p(c(o)[1])))
    for o in G:
        P('v_pk_fma_f32 %s, %s, %s, %s neg_lo:[1,0,0] neg_hi:[1,0,0]' % (p(d(o)[0]), p(a(o)[1]), p(b(o)[1]), p(d(o)[0])))
    for o in G:
        P('v_pk_fma_f32 %s, %s, %s, %s' % (p(d(o)[1]), p(a(o)[1]), p(b(o)[0]), p(d(o)[1])))
blk = lambda base: (lambda o: (base + o, base + 8 + o))
uacc = lambda i: (lambda o: (RR(o >> 2, i) + (o & 3), II(o >> 2, i) + (o & 3)))

def ffn_out2(P, items, dst, tmp, om):
    ch = []
    for n, (jt, i) in enumerate(items):
        for h in range(2):
            ta = tmp + (n * 2 + h) * 4; tb = ta + 2
            seq = []
            srcs = []
            for kind, t in (('G', ta), ('U', tb)):
                f, b = acc_reg(kind, jt, i)
                if f == 'a':
                    seq.append('v_accvgpr_read_b32 v%d, a%d' % (t, b + 2 * h))
                    seq.append('v_accvgpr_read_b32 v%d, a%d' % (t + 1, b + 2 * h + 1))
                    srcs.append(t)
                else: srcs.append(b + 2 * h)
            g0, u0 = srcs
            if k1.EMUL:
                seq += ['v_cvt_pk_bf16_f32 v%d, v%d, v%d' % (ta, g0, g0 + 1),
                        'v_cvt_pk_bf16_f32 v%d, v%d, v%d' % (tb, u0, u0 + 1),
                        'v_pk_max_i16 v%d, v%d, 0' % (ta, ta),
                        'v_and_b32 v%d, 0xffff0000, v%d' % (tb + 1, tb),
                        'v_lshlrev_b32 v%d, 16, v%d' % (tb, tb),
                        'v_and_b32 v%d, 0xffff0000, v%d' % (ta + 1, ta),
                        'v_lshlrev_b32 v%d, 16, v%d' % (ta, ta),
                        'v_pk_mul_f32 v[%d:%d], v[%d:%d], v[%d:%d]' % (ta, ta + 1, ta, ta + 1, tb, tb + 1)]
            else:
                seq += ['v_max_f32 v%d, 0, v%d' % (ta, g0), 'v_max_f32 v%d, 0, v%d' % (ta + 1, g0 + 1),
                        'v_pk_mul_f32 v[%d:%d], v[%d:%d], v[%d:%d]' % (ta, ta + 1, ta, ta + 1, u0, u0 + 1)]
            seq.append(pk_bc('mul', ta, ta, om + i))
            seq.append('v_cvt_pk_bf16_f32 v%d, v%d, v%d' % (dst + 2 * n + h, ta, ta + 1))
            ch.append(seq)
    m = max(len(x) for x in ch)
    for k in range(m):
        for x in ch:
            kk = k - (m - len(x))
            if kk >= 0: P(x[kk])


NS = 5
ACT = 96
WF = 32
FD = 3
NB, NT = 14, 22
XD = 64
def acc2(tau, jt): return (tau * 8 + jt) * 4
def role_of(n): return 'B' if n < NB else 'Y'
ORD = [0, 1, 4, 5, 7, 8, 11, 12, 2, 6, 9, 13, 3, 10]
def act_loads(c, n):
    if n >= NT: return []
    th = []
    if n < NB: th.append(lambda: c.I('s_add_u32 s28, s33, %d' % (ORD[n] * 8192)))
    else: th.append(lambda: c.I('s_add_u32 s28, s29, %d' % ((n - NB) * 8192)))
    th += [lambda tau=tau: c.vmem('buffer_load_dwordx4 %s, v%d, s[20:23], s28 offen offset:%d sc1' % (rr('v', ACT + (n % NS) * 32 + tau * 4), 1 + (tau >> 2), (tau & 3) * 1024), ('A', n)) for tau in range(8)]
    return th
def w_loads(c, n):
    if n >= NT: return []
    th = []
    if n < NB:
        th.append(lambda: c.I('s_add_u32 s30, s34, %d' % (ORD[n] * 65536))); th.append(lambda: c.I('s_add_u32 s35, s30, 32768'))
    else:
        th.append(lambda: c.I('s_add_u32 s30, s32, %d' % ((n - NB) * 8192))); th.append(lambda: c.I('s_xor_b32 s35, s30, 4096'))
    for k in range(8):
        if k & 3 == 0: th.append(lambda k=k: c.I('s_add_u32 m0, s31, %d' % ((n % NS) * 8192 + (k >> 2) * 4096)))
        if n < NB: th.append(lambda k=k: c.vmem('buffer_load_dwordx4 v%d, s[16:19], s%d offen offset:%d lds' % (3 + (k & 3), 35 if k >> 2 else 30, (k & 3) * 1024), ('W', n)))
        else: th.append(lambda k=k: c.vmem('buffer_load_dwordx4 v24, s[20:23], s%d offen offset:%d sc1 lds' % (35 if k >> 2 else 30, (k & 3) * 1024), ('W', n)))
    return th
NTL = 18
GROUPS = [(n, jt) for n in range(NTL) for jt in range(8)] + [(n, jt) for n in range(NTL, NT) for jt in range(4, 8)] + [(n, jt) for n in range(NTL, NT) for jt in range(4)]
KP0 = NTL * 8 + 16
def frag_read(c, k):
    if k >= len(GROUPS): return []
    n, jt = GROUPS[k]
    reg = WF + (k % 8) * 4
    so = (n % NS) * 8192
    th = []
    if k == 0 or GROUPS[k - 1][0] != n:
        th.append(lambda: c.wait_vm(('P2w', k), lambda t: t == ('W', n)))
    if role_of(n) == 'Y':
        th.append(lambda: c.ds('ds_read_b128 %s, v25 offset:%d' % (rr('v', reg), so + jt * 1024), ('F', k)))
    else:
        th += [lambda e=e: c.ds('ds_read_b64_tr_b16 v[%d:%d], v%d offset:%d' % (reg + 2 * e, reg + 2 * e + 1, 7 + jt, so + e * 2048), ('F', k)) for e in range(2)]
    return th

def group(c, k, side, pre=None, post=None):
    n, jt = GROUPS[k]
    if k == 0 or GROUPS[k - 1][0] != n:
        c.wait_vm(('P2a', k), lambda t: t == ('A', n))
    if pre: pre()
    slots = [[] for _ in range(8)]
    fr = frag_read(c, k + FD)
    for i, f in enumerate(fr): slots[i].append(f)
    lo = len(fr)
    for i, f in enumerate(side):
        slots[lo + (i * (8 - lo)) // len(side)].append(f)
    c.wait_lg(('P2f', k), lambda t: t == ('F', k))
    for tau in range(8):
        b = acc2(tau, jt)
        c.I('v_mfma_f32_16x16x32_bf16 %s, %s, %s, %s' % (rr('a', b), rr('v', WF + (k % 8) * 4), rr('v', ACT + (n % NS) * 32 + tau * 4), '0' if n == 0 else rr('a', b)))
        for th in slots[tau]: th()
    if post: post()

def step_vm(c, n):
    a = act_loads(c, n + NS - 1); w = w_loads(c, n + NS - 1)
    vm = []
    while a or w:
        for _ in range(2):
            if w: vm.append(w.pop(0))
        if a: vm.append(a.pop(0))
        if len(a) > len(w) and a: vm.append(a.pop(0))
    return vm

def p2_setup(P):
    P("""
    s_bfe_u32 s92, s2, 0x10002
    s_lshl_b32 s92, s92, 3
    s_bfe_u32 s6, s2, 0x30003
    s_add_u32 s92, s92, s6
    s_bfe_u32 s93, s2, 0x10001
    s_lshl_b32 s93, s93, 2
    s_lshr_b32 s6, s2, 6
    s_add_u32 s93, s93, s6
    s_and_b32 s94, s2, 1
    s_lshl_b32 s95, s94, 2
    s_add_u32 s95, s95, s3
    s_mov_b32 s12, s64
    s_mov_b32 s13, s65
    s_mov_b32 s14, 0x800000
    s_mov_b32 s16, s60
    s_mov_b32 s17, s61
    s_mov_b32 s18, 0x700000
    s_mul_i32 s31, s3, %d
    v_lshlrev_b32 v84, 1, v19
    v_xor_b32 v84, v84, v18
    v_xor_b32 v85, 8, v84
    s_lshl_b32 s6, s93, 8
    v_lshl_add_u32 v86, v19, 11, s6
    v_lshl_add_u32 v3, v84, 4, v86
    v_lshl_add_u32 v4, v85, 4, v86
    v_add_u32 v4, 7168, v4
    v_add_u32 v5, 14336, v3
    v_add_u32 v6, 14336, v4
    s_mul_i32 s34, s95, %d
    """ % (NS * 8192, NB * 65536))
    P("""
    v_lshlrev_b32 v87, 4, v17
    s_mul_i32 s6, s92, %d
    v_add_u32 v1, s6, v87
    v_add_u32 v2, 0x1000, v1
    s_mul_i32 s33, s95, %d
    s_lshl_b32 s32, s95, 16
    s_add_u32 s29, s32, %d
    v_lshrrev_b32 v84, 2, v18
    v_lshl_add_u32 v84, v19, 2, v84
    v_and_b32 v85, 7, v84
    v_and_b32 v86, 8, v84
    v_lshl_add_u32 v84, v86, 1, v85
    v_and_b32 v86, 3, v17
    v_lshlrev_b32 v84, 8, v84
    v_lshl_add_u32 v84, v86, 3, v84
    v_add_u32 v84, s31, v84
    v_lshl_add_u32 v7, v85, 5, v84
    s_lshl_b32 s7, s94, 7
    v_xor_b32 v7, s7, v7
    """ % (NKB * 8192, NB * 8192, 112 * 8192))
    for jt in range(1, 8): P('v_xor_b32 v%d, %d, v7' % (7 + jt, jt * 32))

def spin(P, L, cond_text, reload_text, sleep=2):
    P('s_mov_b32 s75, 0')
    P.label(L)
    P(cond_text)
    P("""
    s_add_u32 s75, s75, 1
    s_cmp_eq_u64 vcc, 0
    s_cbranch_scc1 %sok
    s_cmp_ge_u32 s75, 0x4000
    s_cbranch_scc1 %sok
    s_sleep %d
    """ % (L, L, sleep))
    P(reload_text)
    P('s_waitcnt vmcnt(0)')
    P('s_branch %s' % L)
    P.label(L + 'ok')

def init_load(c):
    c.I('v_and_b32 v26, 31, v17\nv_lshlrev_b32 v26, 2, v26')
    c.vmem('buffer_load_dword v25, v26, s[24:27], 0 offen offset:128 sc1', ('IF',))
def init_check(c):
    c.wait_vm(('ifw',), lambda t: t == ('IF',))
    if c.emit:
        spin(c.P, 'K1_ichk', 'v_cmp_ne_u32 vcc, 0xff, v25', 'buffer_load_dword v25, v26, s[24:27], 0 offen offset:128 sc1', 4)
    c.I("""
    s_lshl_b32 s6, s4, 8
    s_lshl_b32 s7, s3, 6
    s_add_u32 s6, s6, s7
    s_lshl_b32 s6, s6, 2
    s_add_u32 s6, s6, %d
    v_lshlrev_b32 v24, 4, v18
    """ % WS_G)
    c.vmem('buffer_load_dwordx4 v[28:31], v24, s[20:23], s6 offen sc1', ('G4',))

PLI = int(os.environ.get('PLI', '1'))
WLATE = int(os.environ.get('WLATE', '1'))
RES = 224
def epilogue(P):
    LAM, S = BA, BC
    stamp(P, 5)
    P('s_waitcnt lgkmcnt(0)')
    P('s_barrier')
    P('s_waitcnt vmcnt(4)')
    P("""
    v_sub_f32 v60, 1.0, v28
    v_sub_f32 v61, 1.0, v29
    v_sub_f32 v62, 1.0, v30
    v_sub_f32 v63, 1.0, v31
    v_cvt_pk_bf16_f32 v60, v60, v61
    v_cvt_pk_bf16_f32 v62, v62, v63
    v_and_b32 v61, 0xffff0000, v60
    v_and_b32 v63, 0xffff0000, v62
    v_lshlrev_b32 v60, 16, v60
    v_lshlrev_b32 v62, 16, v62
    """)
    code_touch(P, 'CP_c', 'CP_end', 84)
    p2_setup(P)
    P("""
    s_lshl_b32 s6, s4, 1
    s_lshr_b32 s7, s3, 1
    s_add_u32 s6, s6, s7
    s_mul_i32 s6, s6, %d
    s_and_b32 s7, s3, 1
    s_lshl_b32 s7, s7, 12
    s_add_u32 s6, s6, s7
    v_lshl_add_u32 v15, v17, 4, s6
    s_mul_i32 s70, s5, 7
    s_add_u32 s70, s70, 1
    s_lshr_b32 s70, s70, 1
    s_lshl_b32 s70, s70, 13
    s_add_u32 s71, s70, 8192
    s_add_u32 s72, s70, 16384
    s_add_u32 s73, s70, 24576
    s_sub_u32 s74, s70, 7680
    s_bitcmp1_b32 s5, 0
    s_cselect_b32 s73, s74, s73
    v_and_b32 v27, 31, v17
    v_lshrrev_b32 v24, 5, v17
    v_lshl_add_u32 v27, v27, 4, s6
    v_lshl_add_u32 v27, v24, 10, v27
    v_lshl_add_u32 v21, v18, 8, v20
    """ % (NKB * 8192))
    stamp(P, 14)
    tmp = 80; n = 0
    def outreg():
        nonlocal n
        n += 1
        return 48 + (n % 3) * 4
    F = 160
    TA, TB, WA, WBk = F, F + 16, F + 32, F + 48
    tl = ''
    for k in range(4): tl += 'buffer_load_dwordx4 v[%d:%d], v22, s[20:23], s79 offen offset:%d sc1\n' % (TA + 4 * k, TA + 4 * k + 3, 16 * k)
    for k in range(4): tl += 'buffer_load_dwordx4 v[%d:%d], v23, s[20:23], s79 offen offset:%d sc1\n' % (TB + 4 * k, TB + 4 * k + 3, 16 * k)
    cw = Ctx(P, {})
    wq = w_loads(cw, 0) + w_loads(cw, 1)
    def fin(dst, va, so, off):
        for _ in range(5):
            if wq and not WLATE: wq.pop(0)()
        P('v_permlane32_swap_b32 v%d, v%d' % (dst, dst + 2))
        P('v_permlane32_swap_b32 v%d, v%d' % (dst + 1, dst + 3))
        P('buffer_store_dwordx4 v[%d:%d], v%d, s[20:23], s%d offen offset:%d %s' % (dst, dst + 3, va, so, off, os.environ.get('AMOD', 'sc1')))
    for pr in range(3):
        for i in range(4):
            dst = outreg()
            ffn_out2(P, [(2 * pr, i), (2 * pr + 1, i)], dst, tmp, 60)
            fin(dst, 15, 70 + pr, i * 1024)
        if pr == 1:
            P(tl)
            for off, dst in ((6144, WA), (6144 + 4096, WBk)):
                for k, o in enumerate((0, 16, 128, 144)):
                    P('ds_read_b128 v[%d:%d], v21 offset:%d' % (dst + 4 * k, dst + 4 * k + 3, off + o))
    for i in (0, 2):
        dst = outreg()
        ffn_out2(P, [(6, i), (6, i + 1)], dst, tmp, 60)
        fin(dst, 27, 73, i * 1024)
    P('v_mov_b32 v26, 1\ns_waitcnt vmcnt(14)\ns_mov_b64 exec, 1\nbuffer_store_dword v26, off, s[20:23], s76 sc1\ns_mov_b64 exec, -1')
    stamp(P, 7)
    PWr = F + 64; AC = F + 80
    S2 = BD
    for k, o in enumerate((0, 16, 128, 144)):
        P('ds_read_b128 v[%d:%d], v21 offset:%d' % (PWr + 4 * k, PWr + 4 * k + 3, 2048 + o))
        P('ds_read_b128 v[%d:%d], v20 offset:%d' % (S2 + 4 * k, S2 + 4 * k + 3, 5 * 256 + o))
    P('s_waitcnt vmcnt(7)')
    cond = 'v_max3_u32 v24, v%d, v%d, v%d\nv_max3_u32 v25, v%d, v%d, v%d\n' % (TA, TA + 1, TA + 2, TB, TB + 1, TB + 2)
    for r in range(3, 15, 2):
        cond += 'v_max3_u32 v24, v24, v%d, v%d\nv_max3_u32 v25, v25, v%d, v%d\n' % (TA + r, TA + r + 1, TB + r, TB + r + 1)
    cond += 'v_max3_u32 v24, v24, v%d, v%d\nv_max_u32 v24, v24, v25\nv_cmp_eq_u32 vcc, -1, v24\n' % (TA + 15, TB + 15)
    spin(P, 'K1_tchk', cond, tl)
    stamp(P, 8)
    P('s_waitcnt lgkmcnt(0)')
    P('s_barrier')
    def wsome(n):
        for _ in range(n):
            if wq: wq.pop(0)()
    wsome(6)
    cmul16(P, blk(AC), blk(WA), blk(TA))
    wsome(6)
    cmul16(P, blk(AC), blk(WBk), blk(TB), blk(AC))
    for sh in (8, 4, 2, 1):
        wsome(6)
        for r in range(16):
            P('v_add_f32_dpp v%d, v%d, v%d row_ror:%d row_mask:0xf bank_mask:0xf' % (AC + r, AC + r, AC + r, sh))
    cmul16(P, blk(S), blk(PWr), blk(AC), blk(S))
    assert not wq
    p2_pre(P)
    for i in range(4):
        O = TA if (i & 1) else TB
        cmul16(P, uacc(i), blk(LAM), blk(S) if i == 0 else uacc(i - 1), uacc(i))
        cmul16(P, blk(O), blk(S2), uacc(i))
        for k in range(8): P(pk_bc('mul', O + 2 * k, O + 2 * k, 28 + i))
        d = RES + i * 8
        for k in range(4):
            P('v_cvt_pk_bf16_f32 v%d, v%d, v%d' % (d + k, O + 2 * k, O + 2 * k + 1))
        for k in range(4):
            P('v_cvt_pk_bf16_f32 v%d, -v%d, -v%d' % (d + 4 + k, O + 8 + 2 * k, O + 8 + 2 * k + 1))
        if i == PLI:
            P('buffer_load_dword v56, v20, s[20:23], s72 offen sc1')
    stamp(P, 9)

def p2_pre(P):
    P("""
    v_mov_b32 v27, v15
    v_lshlrev_b32 v15, 4, v17
    v_and_b32 v20, 7, v17
    v_lshlrev_b32 v20, 7, v20
    s_lshl_b32 s72, s92, 13
    s_lshl_b32 s7, s95, 10
    s_add_u32 s72, s72, s7
    s_add_u32 s72, s72, %d
    s_lshl_b32 s6, s93, 19
    s_add_u32 s6, s6, %d
    v_add_u32 v24, s6, v15
    v_add_u32 v25, s31, v15
    s_lshl_b32 s7, s94, 12
    s_add_u32 s32, s32, s7
    s_add_u32 s70, s5, 112
    s_lshl_b32 s70, s70, 13
    s_add_u32 s71, s70, 262144
    s_lshl_b32 s6, s92, 13
    s_add_u32 s6, s6, 0x20000
    s_lshl_b32 s7, s93, 1
    s_add_u32 s7, s7, s94
    s_lshl_b32 s7, s7, 13
    v_mov_b32 v22, s6
    v_mov_b32 v23, s7
    v_and_b32 v21, 16, v17
    v_cmp_eq_u32 vcc, 0, v21
    v_cndmask_b32 v22, v23, v22, vcc
    v_lshl_add_u32 v22, v18, 7, v22
    s_lshl_b32 s73, s3, 11
    s_add_u32 s73, s73, %d
    """ % (WS_FL, WS_C2, WS_FL))

def p2_enter(c):
    I = c.I
    I('s_waitcnt vmcnt(0)')
    stamp(I, 12)
    if c.emit:
        spin(c.P, 'P2_pf', 'v_cmp_gt_u32 vcc, 1, v56', 'buffer_load_dword v56, v20, s[20:23], s72 offen sc1', 1)
    stamp(I, 13); stamp_rt(I, 23)
    run(act_loads(c, 0))
    I('v_mov_b32 v57, 2\ns_mov_b64 exec, 1')
    c.vmem('buffer_store_dword v57, off, s[20:23], s76 sc1', ('SV',))
    I('s_mov_b64 exec, -1')
    run(act_loads(c, 1))
    for i in range(4):
        d = RES + i * 8
        c.vmem('buffer_store_dwordx4 v[%d:%d], v27, s[20:23], s70 offen offset:%d sc1' % (d, d + 3, i * 1024), ('SS',))
        c.vmem('buffer_store_dwordx4 v[%d:%d], v27, s[20:23], s71 offen offset:%d sc1' % (d + 4, d + 7, i * 1024), ('SS',))
    run(w_loads(c, 2)); run(act_loads(c, 2)); run(w_loads(c, 3)); run(act_loads(c, 3))
    for k in range(FD): run(frag_read(c, k))

def e0_loads(c):
    pre = """
    s_lshl_b32 s6, s92, 7
    s_lshr_b32 s7, s3, 1
    s_lshl_b32 s7, s7, 6
    s_add_u32 s6, s6, s7
    s_and_b32 s7, s3, 1
    s_lshl_b32 s7, s7, 1
    s_add_u32 s6, s6, s7
    v_lshl_add_u32 v20, v18, 2, s6
    s_lshl_b32 s7, s93, 7
    s_lshl_b32 s6, s94, 6
    s_add_u32 s7, s7, s6
    v_lshl_add_u32 v21, v19, 2, s7
    v_lshlrev_b32 v28, 10, v20
    v_add_u32 v28, v28, v21
    v_lshlrev_b32 v23, 1, v28
    v_lshlrev_b32 v28, 2, v28
    v_add_u32 v29, 0x1000, v28
    v_lshlrev_b32 v22, 1, v21
    v_lshlrev_b32 v21, 2, v20
    s_mov_b32 s74, %d
    """ % WS_G
    th = [lambda l=l.strip(): c.I(l) for l in pre.splitlines() if l.strip()]
    th += [lambda: c.vmem('buffer_load_dwordx2 v[30:31], v21, s[20:23], s74 offen sc1', ('E0',))]
    for k in range(2):
        for jt in range(4):
            th.append(lambda k=k, jt=jt: c.vmem('buffer_load_dwordx2 v[%d:%d], v23, s[8:11], 0 offen offset:%d' % (64 + (k * 4 + jt) * 2, 65 + (k * 4 + jt) * 2, k * 2048 + jt * 32), ('E0',)))
    for jt in range(4):
        th.append(lambda jt=jt: c.vmem('global_load_dwordx2 v[%d:%d], v22, s[52:53] offset:%d' % (80 + jt * 2, 81 + jt * 2, jt * 32), ('E0',)))
    return th

def xd_math(I, Z):
    for jt in range(4):
        for h in range(2):
            I('v_and_b32 v89, 0xffff0000, v%d\nv_lshlrev_b32 v88, 16, v%d' % (80 + jt * 2 + h, 80 + jt * 2 + h))
            seqs = []
            for k in range(2):
                t = k * 4 + jt; xs = 64 + t * 2 + h; a = 90 + 2 * k; z = Z + t * 4 + 2 * h
                seqs.append(['v_lshlrev_b32 v%d, 16, v%d' % (a, xs), 'v_and_b32 v%d, 0xffff0000, v%d' % (a + 1, xs),
                             'v_pk_mul_f32 v[%d:%d], v[%d:%d], v[88:89]' % (a, a + 1, a, a + 1),
                             'v_cvt_pk_bf16_f32 v%d, v%d, v%d' % (a, a, a + 1),
                             'v_and_b32 v%d, 0xffff0000, v%d' % (a + 1, a), 'v_lshlrev_b32 v%d, 16, v%d' % (a, a),
                             pk_bc('fma', z, a, 30 + k, z)])
            for x, y in zip(*seqs): I(x); I(y)

CPC = int(os.environ.get('CPC', '4'))
ZS = 160
add = lambda d, a, b: 'v_pk_add_f32 v[%d:%d], v[%d:%d], v[%d:%d]' % (d, d + 1, a, a + 1, b, b + 1)
def own_copy(P, jt0, dst, tag):
    for Q in range(4):
        if Q < 3: P('s_cmp_lg_u32 s3, %d\ns_cbranch_scc1 P2_%s%d' % (Q, tag, Q))
        for t in range(8):
            b = acc2(2 * Q + (t >> 2), jt0 + (t & 3))
            for r in range(4): P('v_accvgpr_read_b32 v%d, a%d' % (dst + t * 4 + r, b + r))
        if Q < 3:
            P('s_branch P2_%sx' % tag)
            P.label('P2_%s%d' % (tag, Q))
    P.label('P2_%sx' % tag)

def tail_setup(c):
    t = 'v_add_u32 v20, s31, v15\n'
    PL = [4, 7, 1]
    for Q in range(4):
        t += """
        s_cmp_lt_u32 s3, %d
        s_cselect_b32 s6, %d, %d
        s_cselect_b32 s7, %d, %d
        s_cmp_eq_u32 s3, %d
        s_cselect_b32 s6, 64, s6
        s_cselect_b32 s7, 64, s7
        s_lshl_b32 s6, s6, 12
        s_lshl_b32 s7, s7, 12
        v_add_u32 v%d, s6, v20
        v_add_u32 v%d, s7, v20
        """ % (Q, PL[max(Q - 1, 0)], PL[min(Q, 2)], 2 * max(Q - 1, 0), 2 * min(Q, 2), Q, 1 + Q, 8 + Q)
    for sl in range(3):
        t += """
        s_cmp_le_u32 s3, %d
        s_cselect_b32 s6, %d, %d
        s_cselect_b32 s7, 0, 1
        s_mul_i32 s6, s6, 40960
        s_sub_u32 s7, s3, s7
        s_lshl_b32 s70, s7, 13
        s_add_u32 s70, s70, s6
        v_add_u32 v%d, s70, v15
        s_lshl_b32 s7, s7, 2
        s_lshr_b32 s7, 0x174, s7
        s_and_b32 s7, s7, 15
        s_lshl_b32 s7, s7, 12
        s_add_u32 s7, s7, s6
        v_add_u32 v%d, s7, v15
        """ % (sl, sl + 1, sl, 12 + sl, 5 + sl)
    t += """
    s_lshl_b32 s6, s2, 2
    s_add_u32 s6, s6, s3
    s_lshl_b32 s78, s6, 13
    s_add_u32 s78, s78, %d
    s_add_u32 s79, s78, 4096
    s_xor_b32 s80, s78, 0x8000
    s_add_u32 s81, s80, 4096
    s_lshl_b32 s82, s6, 7
    s_add_u32 s82, s82, %d
    s_xor_b32 s83, s82, 0x200
    """ % (WS_XB, WS_FL + 0x40000)
    return [lambda l=l.strip(): c.I(l) for l in t.splitlines() if l.strip()]

def p2_main(c):
    def flagS():
        c.I('s_add_u32 s7, s76, 0x20000\ns_mov_b64 exec, 1')
        c.vmem('buffer_store_dword v26, off, s[20:23], s7 sc1', ('SV',))
        c.I('s_mov_b64 exec, -1')
    def pollS():
        c.vmem('buffer_load_dword v23, v22, s[20:23], s73 offen sc1', ('PS',))
    def chkS():
        c.wait_vm(('psw',), lambda t: t == ('PS',))
        if c.emit:
            spin(c.P, 'P2_ps', 'v_cmp_gt_u32 vcc, 1, v23', 'buffer_load_dword v23, v22, s[20:23], s73 offen sc1', 2)
    def flagS_pollF():
        flagS()
    def pollF():
        c.vmem('buffer_load_dword v21, v20, s[20:23], s72 offen sc1', ('PF',))
    def chkF():
        c.wait_vm(('pfw',), lambda t: t == ('PF',))
        if c.emit:
            spin(c.P, 'P2_pg', 'v_cmp_gt_u32 vcc, 2, v21', 'buffer_load_dword v21, v20, s[20:23], s72 offen sc1', 1)
    for n in range(NTL):
        if n == CPC: c.I('CP_c:')
        vm = step_vm(c, n)
        per = -(-len(vm) // 8)
        for jt in range(8):
            group(c, n * 8 + jt, vm[jt * per:(jt + 1) * per], pre={2: flagS, 3: pollF, 4: chkF, 8: pollS, NB - NS + 1: chkS}.get(n) if jt == 0 else None)
    side = e0_loads(c) + tail_setup(c)
    per = -(-len(side) // 16)
    for g in range(16):
        group(c, NTL * 8 + g, side[g * per:(g + 1) * per])
    stamp(c.I, 15); stamp_rt(c.I, 24)
    off = lambda t: t * 1024 if t < 4 else 8192 + (t - 4) * 1024
    def wr(Q, ts):
        def f():
            L = 'P2_w%d_%d' % (Q, ts[0])
            c.I('s_cmp_eq_u32 s3, %d\ns_cbranch_scc1 %s' % (Q, L))
            for t in ts: c.I('ds_write_b128 v%d, %s offset:%d' % (1 + Q, rr('a', acc2(2 * Q + (t >> 2), 4 + (t & 3))), off(t)))
            c.I(L + ':')
        return f
    def bar():
        c.I('s_waitcnt lgkmcnt(0)'); c.lg.q = []; c.I('s_barrier')
    def rds(t):
        T = 192 + (t & 1) * 12
        return [lambda sl=sl: c.ds('ds_read_b128 v[%d:%d], v%d offset:%d' % (T + sl * 4, T + sl * 4 + 3, 5 + sl, off(t)), ('SR', t)) for sl in range(3)]
    def sums(t):
        T = 192 + (t & 1) * 12; z = ZS + t * 4
        th = [lambda: c.wait_lg(('srw', t), lambda x: x == ('SR', t))]
        for x in (add(T, T, T + 4), add(T + 2, T + 2, T + 6), add(z, z, T + 8), add(z + 2, z + 2, T + 10), add(z, z, T), add(z + 2, z + 2, T + 2)):
            th.append(lambda x=x: c.I(x))
        th.append(lambda: c.vmem('buffer_store_dwordx4 v[%d:%d], v15, s[20:23], s%d offen offset:%d sc1' % (z, z + 3, 78 + (t >> 2), (t & 3) * 1024), ('XS',)))
        return th
    for g in range(16):
        side = []; post = None
        if g in (0, 1): side = [wr(Q, [2 * g, 2 * g + 1]) for Q in range(4)]
        if g == 1 and c.emit: post = lambda: own_copy(c.P, 4, ZS, 'so')
        if g in (3, 4): side = [wr(Q, [4 + 2 * (g - 3), 5 + 2 * (g - 3)]) for Q in range(4)]
        if g == 5: post = bar
        if 7 <= g <= 14: side += sums(g - 7)
        if 6 <= g <= 13: side += rds(g - 6)
        if g == 14: post = bar
        group(c, KP0 + g, side, post=post)

def p2_final(P):
    ZK, TMP, XR = 128, 160, 96
    for Q in range(4):
        P('s_cmp_eq_u32 s3, %d\ns_cbranch_scc1 P2_kw%d' % (Q, Q))
        for t in range(8):
            P('ds_write_b128 v%d, %s offset:%d' % (8 + Q, rr('a', acc2(2 * Q + (t >> 2), t & 3)), t * 1024))
        P.label('P2_kw%d' % Q)
    own_copy(P, 0, ZK, 'ko')
    P('s_waitcnt vmcnt(0)\ns_mov_b64 exec, 1\nbuffer_store_dword v26, off, s[20:23], s82 sc1\ns_mov_b64 exec, -1')
    P('s_waitcnt lgkmcnt(0)')
    P('s_barrier')
    stamp(P, 16)
    for t in range(8):
        for sl in range(3):
            P('ds_read_b128 v[%d:%d], v%d offset:%d' % (TMP + sl * 32 + t * 4, TMP + sl * 32 + t * 4 + 3, 12 + sl, t * 1024))
    xd_math(P, ZK)
    P('buffer_load_dword v59, off, s[20:23], s83 sc1')
    P('s_waitcnt lgkmcnt(0)')
    for t in range(8):
        for h in range(2):
            r = t * 4 + 2 * h
            P(add(TMP + r, TMP + r, TMP + 32 + r)); P(add(ZK + r, ZK + r, TMP + 64 + r))
        for h in range(2):
            r = t * 4 + 2 * h
            P(add(ZK + r, ZK + r, TMP + r))
    stamp(P, 17)
    P('s_waitcnt vmcnt(0)')
    spin(P, 'P2_x', 'v_cmp_ne_u32 vcc, 1, v59', 'buffer_load_dword v59, off, s[20:23], s83 sc1', 1)
    stamp(P, 18)
    for t in range(8):
        P('buffer_load_dwordx4 v[%d:%d], v15, s[20:23], s%d offen offset:%d sc1' % (XR + t * 4, XR + t * 4 + 3, 80 + (t >> 2), (t & 3) * 1024))
    for t in range(8):
        P('s_waitcnt vmcnt(7)')
        for h in range(2):
            r = t * 4 + 2 * h
            P(add(ZK + r, ZK + r, XR + r))
        P('buffer_store_dwordx4 v[%d:%d], v%d, s[12:15], 0 offen offset:%d' % (ZK + t * 4, ZK + t * 4 + 3, 29 if t >= 4 else 28, (t & 3) * 64))

CPF = int(os.environ.get('CPF', '1'))
_cpn = [0]
def code_touch(I, start, end, vt=26, sp=84):
    if not CPF: return
    _cpn[0] += 1
    L = 'CT%d' % _cpn[0]
    I('s_getpc_b64 s[%d:%d]' % (sp, sp + 1))
    I(L + ':')
    I('s_add_u32 s%d, s%d, %s-%s' % (sp, sp, start, L))
    I('s_addc_u32 s%d, s%d, 0' % (sp + 1, sp + 1))
    I('v_lshlrev_b32 v%d, 7, v0' % vt)
    I('v_min_u32 v%d, %s-%s-4, v%d' % (vt, end, start, vt))
    I('global_load_dword a255, v%d, s[%d:%d]' % (vt, sp, sp + 1))

def site_of(u):
    if u < 4: return ('F', u)
    if u >= 28: return ('E', u)
    return ('L', u % 4)

def body(c, emit):
    P = c.P
    prologue(c)
    if PRE:
        for u in range(4): substep(c, u, site_of(u), first=(u == 0))
    else:
        extra = [lambda: c.wait_vm(('s',), lambda t: t == ('S',))] + as_fill(c, tables_text())
        g1, g2 = g_work(c)
        substep(c, 0, site_of(0), extra=extra, first=True)
        substep(c, 1, site_of(1), extra=extra)
        extra += g1
        substep(c, 2, site_of(2), extra=extra, room_extra=1)
        assert not extra, len(extra)
        extra += g2
        substep(c, 3, site_of(3), extra=extra, room_extra=6)
        assert not extra, len(extra)
    if emit:
        stamp(P, 1); stamp_rt(P, 21)
        P('.p2align 6')
        P.label('K1_loop')
        P('s_cmp_eq_u32 s33, s93\ns_cbranch_scc1 K1_t1')
        P.label('K1_tback')
        c_loads(P)
        for u in range(4, 8): substep(c, u, site_of(u), tch=(u % 4 == TPOS))
        P("""
        s_add_u32 s33, s33, 1
        s_cmp_lt_u32 s33, 6
        s_cbranch_scc1 K1_loop
        """)
    else:
        for u in range(4, 28): substep(c, u, site_of(u), tch=(u % 4 == TPOS))
    c.I('CP_b:')
    stamp(c.I, 2); stamp_rt(c.I, 22)
    init_load(c)
    substep(c, 28, site_of(28), last=1)
    substep(c, 29, site_of(29), last=2, extra=c_stores(c))
    stamp(c.I, 6)
    init_check(c)
    last_stage(c)

DIAG = int(os.environ.get('DIAG', '0'))
if DIAG:
    DMAP = {0: 0, 4: 1, 1: 2, 2: 3, 5: 4, 7: 5, 9: 6, 12: 7, 13: 8, 15: 9, 16: 10, 17: 11, 18: 12, 19: 13, 20: 14}
    def stamp(I, idx, vr=16):
        if idx in DMAP:
            I('s_memrealtime s[84:85]')
            I('s_waitcnt lgkmcnt(0)')
            if idx == 0:
                I('s_not_b32 s85, s84')
                I('v_writelane_b32 v16, s85, 15')
            I('v_writelane_b32 v16, s84, %d' % DMAP[idx])
    def stamp_rt(I, idx, vr=16): pass
    def stamp_out(I, kern, vr=16, va=23):
        I('v_lshlrev_b32 v23, 2, v17')
        I('s_mov_b64 exec, 0xffff')
        I('buffer_atomic_umax v16, v23, s[24:27], 0 offen sc1')
        I('s_mov_b64 exec, -1')
PROBE = os.environ.get('PROBE', '')
if PROBE:
    PA, PB = [int(x) for x in PROBE.split(',')]
    def stamp(I, idx, vr=16):
        if idx == PA or idx == PB:
            I('s_memrealtime s[84:85]')
            I('s_waitcnt lgkmcnt(0)')
            I('v_writelane_b32 v16, s84, %d' % (0 if idx == PA else 1))
    def stamp_rt(I, idx, vr=16): pass
    def stamp_out(I, kern, vr=16, va=23):
        I('v_readlane_b32 s6, v16, 0')
        I('v_readlane_b32 s7, v16, 1')
        I('s_memrealtime s[84:85]')
        I('s_waitcnt lgkmcnt(0)')
        I('s_sub_u32 s6, s7, s6')
        I('s_add_u32 s6, s6, s84')
        I('PROBE_l:')
        I('s_memrealtime s[84:85]')
        I('s_waitcnt lgkmcnt(0)')
        I('s_sub_u32 s7, s84, s6')
        I('s_cmp_lt_i32 s7, 0')
        I('s_cbranch_scc1 PROBE_l')
KNAME = 'gated_mix__ssm_conv_s5__glu_gated_reglu__prompt_kernel'
def gen():
    waits = {}
    body(Ctx(None, waits), False)
    c = Ctx(None, waits)
    p2_enter(c); p2_main(c)
    P = Prog()
    c = Ctx(P, waits)
    P('.globl %s\n.p2align 8\n.type %s,@function' % (KNAME, KNAME))
    P.label(KNAME)
    body(c, True)
    epilogue(P)
    p2_enter(c)
    p2_main(c)
    P('s_nop 7')
    p2_final(P)
    stamp(P, 19); stamp_rt(P, 11)
    P('s_waitcnt vmcnt(0)')
    stamp(P, 20)
    stamp_out(P, 0)
    P.label('K1_done')
    P('s_endpgm')
    P.label('K1_t1')
    P("""
    s_lshl_b32 s6, 1, s4
    v_mov_b32 v26, s6
    s_lshl_b32 s7, s5, 2
    s_mov_b64 exec, 1
    buffer_atomic_add v26, off, s[24:27], s7 offset:128 sc1
    s_mov_b64 exec, -1
    s_branch K1_tback
    """)
    P.label('CP_end')
    txt = P.text()
    X = os.environ.get('XP', '')
    if X:
        a = txt.index('K1_tback:'); b = txt.index('s_cbranch_scc1 K1_loop')
        L = txt[a:b].split('\n')
        if 'r' in X: L = [l for l in L if 'ds_read' not in l]
        if 'd' in X: L = [l for l in L if ' lds' not in l]
        if 't' in X: L = [l for l in L if 'ds_read_b64_tr' not in l]
        if 'h' in X: L = [l for k, l in enumerate(L) if not ('ds_read_b64_tr' in l and (int(l.split('offset:')[1]) // 4096) % 2)]
        if 'b' in X: L = [l for l in L if 's_barrier' not in l]
        txt = txt[:a] + '\n'.join(L) + txt[b:]
    return txt, waits

if __name__ == '__main__':
    import sys
    NAME = 'gated_mix__ssm_conv_s5__glu_gated_reglu__prompt'
    ref = open('cdna_kernels/%s.s.ref' % NAME).read().splitlines()
    hdr = [l for l in ref if l.startswith(';') and '@launch' not in l]
    t, w = gen()
    out = '\n'.join(hdr) + '\n; @launch grid=(256,1,1) block=(256,1,1) lds=%d\n' % K1_LDS
    out += '.amdgcn_target "amdgcn-amd-amdhsa--gfx950"\n.text\n' + t
    out += '.section .rodata,"a"\n.p2align 6\n' + K1_DESC.replace('k1_kernel', KNAME)
    dst = sys.argv[1] if len(sys.argv) > 1 else 'cdna_kernels/%s.s' % NAME
    open(dst, 'w').write(out)
    print('wrote', dst, len(out))
```

```python
import os
from asmlib import Prog, Counter
import k1
from k1 import Ctx, rr, cmul_pk, ffn_out, acc_reg, ACC_V0, stamp, stamp_rt, stamp_out, NKB, WS_G, WS_T, WS_C2, WS_FL, WS_XB, K1_DESC

XB = 0
WB = 65536
BB = 131072
TAB = 147456
POW = TAB + 2048
WG64 = TAB + 6144
K1_LDS = 163840
assert TAB == k1.TAB
XSET = 128
RING = 192
BH = 220
OOB = 0x70000000
EXP = int(os.environ.get('EXP', '0'))
TS0 = int(os.environ.get('TS0', '6'))
TPRE = int(os.environ.get('TPRE', '0'))
DEFER = int(os.environ.get('DEFER', '0'))
NTW = 'nt' if int(os.environ.get('NTW', '1')) else ''
NTB = 'nt' if int(os.environ.get('NTB', '1')) else ''
NTC = 'nt' if int(os.environ.get('NTC', '1')) else ''
NTT = 'nt' if int(os.environ.get('NTT', '0')) else ''
NTX = 'nt' if int(os.environ.get('NTX', '0')) else ''
WDT = int(os.environ.get('WDT', '1'))
PRE = int(os.environ.get('PRE', '1'))
TPOS = int(os.environ.get('TPOS', '0'))
PT = int(os.environ.get('PT', '0'))
TOUCH = int(os.environ.get('TOUCH', '1'))

FFN = []
for jt in range(7): FFN += [('G', jt), ('U', jt)]
SSM = [('R', 0), ('I', 0), ('R', 1), ('I', 1)]

def w_read(c, u, t):
    kind, jt = FFN[t]
    slot = RING + (t % 7) * 4
    th = []
    for e in range(2):
        off = (u % 4) * 16384 + ((kind == 'U') * 2 + e) * 4096 + jt * 32
        th.append(lambda off=off, e=e: c.ds('ds_read_b64_tr_b16 a[%d:%d], v12 offset:%d' % (slot + 2 * e, slot + 2 * e + 1, off), ('F', u, t)))
    return th
def b_read(c, s, hh, k):
    kind, jt = SSM[k]
    off = (s % 2) * 8192 + ((kind == 'I') * 32 + jt * 16) * 128
    return lambda: c.ds('ds_read_b128 %s, v%d offset:%d' % (rr('a', BH + hh * 16 + k * 4), 13 + hh, off), ('BF', s, hh))
def x_read(c, s, hh, i):
    off = (s % 2) * 8192 + i * 2048
    return lambda: c.ds('ds_read_b128 %s, v%d offset:%d' % (rr('a', XSET + (s % 2) * 32 + hh * 16 + i * 4), 7 + hh, off), ('XF', s, hh))
def w_dma(c, u, n):
    th = []
    th.append(lambda: c.I('s_add_u32 m0, s32, %d' % ((u % 4) * 16384)))
    th.append(lambda: c.vmem('buffer_load_dwordx4 v%d, s[12:15], s30 offen offset:%d %s lds' % (3 + n, n * 1024, NTW), ('W', u)))
    if n == 3: th.append(lambda: c.I('s_add_u32 s30, s30, 229376'))
    return th
def x_dma(c, s, k):
    th = []
    th.append(lambda: c.I('s_add_u32 m0, s34, %d' % ((s % 2) * 8192 + (k >> 2) * 4096)))
    th.append(lambda: c.vmem('buffer_load_dwordx4 v%d, s[8:11], s%d offen offset:%d %s lds' % (1 + (k & 1), 28 + (k >> 2), (k & 3) * 1024, NTX), ('X', s)))
    if k == 7:
        th.append(lambda: c.I('s_add_u32 s28, s28, 128'))
        th.append(lambda: c.I('s_cmp_lt_u32 s28, 2048'))
        th.append(lambda: c.I('s_cselect_b32 s28, s28, s77'))
        th.append(lambda: c.I('s_add_u32 s29, s28, 4096'))
    return th
def b_dma(c, s, n):
    th = []
    th.append(lambda: c.I('s_add_u32 m0, s35, %d' % ((s % 2) * 8192)))
    th.append(lambda: c.vmem('buffer_load_dwordx4 v%d, s[16:19], s31 offen offset:%d %s lds' % (10 + n, n * 1024, NTB), ('B', s)))
    if n == 1:
        th.append(lambda: c.I('s_add_u32 s31, s31, 128'))
        th.append(lambda: c.I('s_cmp_lt_u32 s31, 2048'))
        th.append(lambda: c.I('s_cselect_b32 s31, s31, s77'))
    return th

def substep(c, u, site, extra=None, first=False, last=0, room_extra=0, tch=False):
    tq = ptouch(c) if (tch and TOUCH) else []
    hh = u & 1; s = u >> 1
    for j in range(18):
        fill = []
        if j <= 8: fill += w_read(c, u, j + 5)
        if 12 <= j <= 16 and u != 31: fill += w_read(c, u + 1, j - 12)
        if u == 31: pass
        elif hh == 1:
            if j == 9: fill.append(lambda: c.wait_vm((site, 'x'), lambda t: t == ('X', s + 1)))
            if j in (9, 10): fill += [x_read(c, s + 1, 0, (j - 9) * 2 + k) for k in range(2)]
            if j in (14, 15, 16, 17): fill.append(x_read(c, s + 1, 1, j - 14))
            if j in (12, 13): fill += [b_read(c, s + 1, 0, (j - 12) * 2 + k) for k in range(2)]
        else:
            if j in (0, 2, 4, 6): fill.append(b_read(c, s, 1, j // 2))
        d = []
        if j in (13, 15, 17): d = w_dma(c, u + 4, (j - 13) // 2)
        if j == 1: d = w_dma(c, u + 3, 3)
        if j in (3, 5, 7, 9): d = x_dma(c, s + 2, hh * 4 + (j - 3) // 2)
        if hh == 0 and j in (14, 16): d = b_dma(c, s + 2, (j - 14) // 2)
        if last == 2 or (last == 1 and j != 1): d = []
        if DEFER and u == 0:
            seq = [('x', 1, k) for k in range(8)] + [('w', 2, n) for n in range(4)] + [('b', 1, n) for n in range(2)] + [('w', 3, n) for n in range(4)] + [('x', 2, k) for k in range(4)]
            if j <= 10:
                d = []
                for ty, a, b in seq[2 * j:2 * j + 2]:
                    d += {'x': x_dma, 'w': w_dma, 'b': b_dma}[ty](c, a, b)
        fill = d[:1] + fill + d[1:]
        if tq and j in (10, 11): fill += tq[:2]; tq = tq[2:]
        if tq and j == 12: fill += tq; tq = []
        if extra:
            room = max(0, 8 - 1 - len(fill) + room_extra)
            for _ in range(min(room, len(extra))): fill.append(extra.pop(0))
        if j == 0: c.wait_lg((site, 'xf'), lambda t: t in (('XF', s, hh), ('F', u, 0)))
        elif j < 14: c.wait_lg((site, 'f', j), lambda t: t == ('F', u, j))
        elif j == 14: c.wait_lg((site, 'bf'), lambda t: t == ('BF', s, hh))
        if j < 14:
            kind, jt = FFN[j]; a = RING + (j % 7) * 4
        else:
            kind, jt = SSM[j - 14]; a = BH + hh * 16 + (j - 14) * 4
        nf = len(fill); k = 0
        for i in range(4):
            f, b = acc_reg(kind, jt, i)
            c.I('v_mfma_f32_16x16x32_bf16 %s, %s, %s, %s' % (rr(f, b), rr('a', a), rr('a', XSET + (s % 2) * 32 + hh * 16 + i * 4), '0' if first else rr(f, b)))
            take = (nf * (i + 1) + 3) // 4 - k
            for _ in range(take):
                fill[k](); k += 1
        if j == 11 and u != 31:
            if hh == 1: c.wait_vm((site, 'd'), lambda t: t in (('W', u + 1), ('B', s + 1)))
            else: c.wait_vm((site, 'd'), lambda t: t == ('W', u + 1))
            c.I('s_waitcnt lgkmcnt(0)')
            c.lg.q = []
            c.I('s_barrier')

def touch(I, batch):
    ks = 2 + 7 * batch
    I('''
    s_mov_b32 s6, %d
    s_mov_b32 s7, %d
    s_mov_b32 exec_hi, 0x1ffff
    buffer_load_dword a255, v28, s[12:15], s6 offen
    s_mov_b64 exec, 0x3fff
    buffer_load_dword a255, v29, s[16:19], s7 offen
    buffer_load_dword a255, v30, s[8:11], s7 offen
    s_mov_b64 exec, -1
    ''' % (ks * 64 * 7168, ks * 128))

def touch_wd(I):
    I('''
    s_lshl_b32 s6, s2, 2
    s_add_u32 s6, s6, s3
    s_mul_i32 s6, s6, 7168
    v_lshlrev_b32 v26, 7, v17
    s_mov_b32 exec_hi, 0xffffff
    buffer_load_dword a255, v26, s[88:91], s6 offen
    s_mov_b64 exec, -1
    ''')


def c_addr(I):
    I("""
    s_and_b32 s7, s3, 1
    s_lshl_b32 s6, s4, 7
    s_lshl_b32 s70, s7, 6
    s_add_u32 s6, s6, s70
    v_add_u32 v9, s6, v18
    v_lshlrev_b32 v9, 11, v9
    v_lshl_add_u32 v9, v19, 4, v9
    s_lshl_b32 s6, s5, 6
    v_add_u32 v9, s6, v9
    """)

def c_loads(P):
    for k in range(4):
        P('s_cmp_lg_u32 s33, %d' % (k + 1))
        P('s_cbranch_scc1 K1_c%d' % k)
        P('global_load_dwordx4 v[%d:%d], v9, s[86:87] %s' % (32 + 4 * k, 35 + 4 * k, NTC))
        P('v_add_u32 v9, 0x8000, v9')
        if k == 3: code_touch(P, 'CP_b', 'CP_c')
        P.label('K1_c%d' % k)

def c_stores(c):
    R = Rec(c, 'cs')
    R("""
    s_lshl_b32 s6, s4, 6
    s_lshr_b32 s7, s3, 1
    s_lshl_b32 s7, s7, 5
    s_add_u32 s6, s6, s7
    s_add_u32 s6, s6, s5
    s_lshl_b32 s6, s6, 13
    s_and_b32 s7, s3, 1
    s_lshl_b32 s7, s7, 12
    s_add_u32 s6, s6, s7
    s_add_u32 s6, s6, %d
    v_lshlrev_b32 v20, 4, v17
    """ % WS_C2)
    for k in range(4):
        R.vm('buffer_store_dwordx4 v[%d:%d], v20, s[20:23], s6 offen offset:%d sc1' % (32 + 4 * k, 35 + 4 * k, k * 1024), ('SV',))
    return R.th

def ptouch(c):
    def mk(mask, txt):
        def f():
            c.I('s_mov_b64 exec, %s' % mask); c.vmem(txt, ('TC',)); c.I('s_mov_b64 exec, -1')
        return f
    th = [mk('0x3fff', 'buffer_load_dword a255, v28, s[12:15], s95 offen %s' % NTT),
          mk('0xf', 'buffer_load_dword a255, v29, s[16:19], s94 offen %s' % NTB),
          mk('0xf', 'buffer_load_dword a255, v30, s[8:11], s94 offen'),
          mk('0x7ffff', 'buffer_load_dword a255, v31, s[88:91], s92 offen')]
    for t in ('s_add_u32 s92, s92, 2432', 's_add_u32 s95, s95, 917504'):
        th.append(lambda t=t: c.I(t))
    th.append(lambda: c.I('s_add_u32 s94, s94, 256\ns_cmp_lt_u32 s94, 2048\ns_cselect_b32 s94, s94, s77'))
    return th

def tables_text():
    t = """
    v_lshlrev_b32 v48, 16, v48
    v_lshlrev_b32 v49, 16, v49
    v_lshlrev_b32 v50, 16, v50
    v_mul_f32 v50, 0x3fb8aa3b, v50
    v_exp_f32 v50, v50
    v_cvt_pk_bf16_f32 v50, v50, v50
    v_lshlrev_b32 v50, 16, v50
    v_mul_f32 v51, v50, v48
    v_mul_f32 v52, v50, v49
    v_mul_f32 v51, 0x3fb8aa3b, v51
    v_exp_f32 v51, v51
    v_mul_f32 v52, 0.15915494, v52
    v_fract_f32 v52, v52
    v_cos_f32 v53, v52
    v_sin_f32 v54, v52
    v_mul_f32 v64, v51, v53
    v_mul_f32 v65, v51, v54
    v_add_f32 v51, -1.0, v64
    v_mul_f32 v52, v48, v48
    v_fmac_f32 v52, v49, v49
    v_rcp_f32 v53, v52
    v_mul_f32 v54, v51, v48
    v_fmac_f32 v54, v65, v49
    v_mul_f32 v55, v65, v48
    v_fma_f32 v55, -v51, v49, v55
    v_fma_f32 v52, -v52, v53, 2.0
    v_mul_f32 v53, v53, v52
    v_add_f32 v53, v53, v53
    v_mul_f32 v88, v54, v53
    v_mul_f32 v89, v55, v53
    """
    for k in range(9):
        a = 64 + 2 * k; d = a + 2
        t += """
        v_mul_f32 v%d, v%d, v%d
        v_fma_f32 v%d, -v%d, v%d, v%d
        v_mul_f32 v%d, v%d, v%d
        v_add_f32 v%d, v%d, v%d
        """ % (d, a, a, d, a + 1, a + 1, d, d + 1, a, a + 1, d + 1, d + 1, d + 1)
    t += """
    v_lshrrev_b32 v51, 5, v0
    v_mov_b32 v56, 1.0
    v_mov_b32 v57, 0
    v_mov_b32 v60, 1.0
    v_mov_b32 v61, 0
    """
    def cm(dr, di, ar, ai, br, bi):
        return """
        v_mul_f32 v%d, v%d, v%d
        v_fma_f32 v%d, -v%d, v%d, v%d
        v_mul_f32 v%d, v%d, v%d
        v_fmac_f32 v%d, v%d, v%d
        """ % (dr, ar, br, dr, ai, bi, dr, di, ar, bi, di, ai, br)
    for b in range(3):
        a = 68 + 2 * b; a2 = 76 + 2 * b
        t += 'v_and_b32 v54, %d, v51\nv_cmp_ne_u32 vcc, 0, v54\n' % (1 << b)
        t += cm(52, 53, 56, 57, a, a + 1) + cm(62, 63, 60, 61, a2, a2 + 1)
        t += """
        v_cndmask_b32 v56, v56, v52, vcc
        v_cndmask_b32 v57, v57, v53, vcc
        v_cndmask_b32 v60, v60, v62, vcc
        v_cndmask_b32 v61, v61, v63, vcc
        """
    t += cm(58, 59, 56, 57, 74, 75)
    t += cm(62, 63, 60, 61, 82, 83) + cm(84, 85, 62, 63, 82, 83) + cm(86, 87, 84, 85, 82, 83)
    t += """
    v_and_b32 v52, 31, v0
    v_lshlrev_b32 v52, 2, v52
    v_lshl_add_u32 v53, v51, 8, v52
    v_add_u32 v53, %d, v53
    v_add_u32 v52, %d, v52
    ds_write2_b32 v53, v56, v57 offset0:0 offset1:32
    ds_write_b32 v53, v58 offset:2048
    ds_write_b32 v53, v59 offset:2176
    """ % (POW, TAB)
    for k, r in enumerate((60, 62, 84, 86)):
        t += 'ds_write_b32 v53, v%d offset:%d\nds_write_b32 v53, v%d offset:%d\n' % (r, 4096 + k * 2048, r + 1, 4096 + k * 2048 + 128)
    for idx, r in enumerate([64, 68, 70, 72]):
        t += 'ds_write2_b32 v52, v%d, v%d offset0:%d offset1:%d\n' % (r, r + 1, idx * 64, idx * 64 + 32)
    for idx, r in ((4, 74), (5, 88)):
        t += 'ds_write_b32 v52, v%d offset:%d\nds_write_b32 v52, v%d offset:%d\n' % (r, idx * 256, r + 1, idx * 256 + 128)
    return [l.strip() for l in t.splitlines() if l.strip()]

class Rec:
    def __init__(self, c, name):
        self.c = c; self.th = []; self.name = name; self.n = 0
    def __call__(self, text):
        for l in text.strip('\n').split('\n'):
            l = l.strip()
            if l: self.th.append(lambda l=l: self.c.I(l))
    def blk(self, items):
        def f():
            for k, t in items:
                if k == 'vm': self.c.vmem(t, ('SV',))
                else: self.c.I(t)
        self.th.append(f)
    def ds(self, text, tag): self.th.append(lambda: self.c.ds(text, tag))
    def vm(self, text, tag): self.th.append(lambda: self.c.vmem(text, tag))
    def wl(self, tag):
        self.n += 1; site = (self.name, 'l', self.n)
        self.th.append(lambda: self.c.wait_lg(site, lambda t: t == tag))
    def wv(self, tag):
        self.n += 1; site = (self.name, 'v', self.n)
        self.th.append(lambda: self.c.wait_vm(site, lambda t: t == tag))

def g_work(c, GI=64, G=48):
    R = Rec(c, 'g')
    R("""
    s_lshl_b32 s6, s4, 1
    s_lshr_b32 s7, s3, 1
    s_add_u32 s6, s6, s7
    s_lshl_b32 s6, s6, 6
    s_lshl_b32 s7, s5, 1
    s_add_u32 s6, s6, s7
    s_and_b32 s7, s3, 1
    s_add_u32 s6, s6, s7
    s_lshl_b32 s76, s6, 7
    s_add_u32 s76, s76, %d
    s_add_u32 s7, s76, 0x20000
    v_mov_b32 v21, 0
    s_lshl_b32 s70, s71, 11
    v_lshlrev_b32 v25, 5, v17
    s_lshl_b32 s6, s2, 2
    s_add_u32 s6, s6, s3
    s_lshl_b32 s6, s6, 7
    s_add_u32 s6, s6, %d
    """ % (WS_FL, WS_FL + 0x40000))
    R.vm('buffer_load_dwordx4 v[%d:%d], v25, s[8:11], s70 offen' % (GI + 0, GI + 3), ('GL',))
    R.vm('buffer_load_dwordx4 v[%d:%d], v25, s[8:11], s70 offen offset:16' % (GI + 4, GI + 7), ('GL',))
    R.vm('buffer_load_dwordx4 v[%d:%d], v25, s[8:11], s70 offen offset:2048' % (GI + 8, GI + 11), ('GL',))
    R.vm('buffer_load_dwordx4 v[%d:%d], v25, s[8:11], s70 offen offset:2064' % (GI + 12, GI + 15), ('GL',))
    R.vm('global_load_dwordx4 v[%d:%d], v25, s[62:63]' % (GI + 16, GI + 19), ('GL',))
    R.vm('global_load_dwordx4 v[%d:%d], v25, s[62:63] offset:16' % (GI + 20, GI + 23), ('GL',))
    R.blk([('i', 's_mov_b64 exec, 1'), ('vm', 'buffer_store_dword v21, off, s[20:23], s76 sc1'), ('vm', 'buffer_store_dword v21, off, s[20:23], s7 sc1'), ('vm', 'buffer_store_dword v21, off, s[20:23], s6 sc1'), ('i', 's_mov_b64 exec, -1')])
    first = len(R.th)
    R.wv(('GL',))
    for d in range(8):
        R('v_and_b32 v%d, 0xffff0000, v%d\nv_lshlrev_b32 v%d, 16, v%d' % (G + 3, GI + 16 + d, G + 2, GI + 16 + d))
        for row in range(2):
            xr = GI + row * 8 + d; a = G + 4 + row * 2; t = G + 8 + row * 2
            R("""
            v_and_b32 v%d, 0xffff0000, v%d
            v_lshlrev_b32 v%d, 16, v%d
            v_pk_mul_f32 v[%d:%d], v[%d:%d], v[%d:%d]
            v_cvt_pk_bf16_f32 v%d, v%d, v%d
            v_and_b32 v%d, 0xffff0000, v%d
            v_lshlrev_b32 v%d, 16, v%d
            """ % (t + 1, xr, t, xr, t, t + 1, t, t + 1, G + 2, G + 3, t, t, t + 1, t + 1, t, t, t))
            if d == 0: R('v_mov_b64 v[%d:%d], v[%d:%d]' % (a, a + 1, t, t + 1))
            else: R('v_pk_add_f32 v[%d:%d], v[%d:%d], v[%d:%d]' % (a, a + 1, a, a + 1, t, t + 1))
    for row in range(2):
        a = G + 4 + row * 2
        R('v_add_f32 v%d, v%d, v%d' % (a, a, a + 1))
    for sh in (1, 2, 4, 8):
        for row in range(2):
            a = G + 4 + row * 2
            R('v_add_f32_dpp v%d, v%d, v%d row_shr:%d row_mask:0xf bank_mask:0xf bound_ctrl:0' % (a, a, a, sh))
    for row in range(2):
        for k in range(4):
            R('v_readlane_b32 s%d, v%d, %d' % (78 + row * 4 + k, G + 4 + row * 2, 15 + 16 * k))
    R("""
    v_mov_b32 v48, s78
    v_add_f32 v48, s79, v48
    v_add_f32 v48, s80, v48
    v_add_f32 v48, s81, v48
    v_mov_b32 v49, s82
    v_add_f32 v49, s83, v49
    v_add_f32 v49, s84, v49
    v_add_f32 v49, s85, v49
    v_cvt_pk_bf16_f32 v48, v48, v49
    v_lshlrev_b32 v49, 16, v48
    v_and_b32 v50, 0xffff0000, v48
    v_mul_f32 v49, 0xbfb8aa3b, v49
    v_mul_f32 v50, 0xbfb8aa3b, v50
    v_exp_f32 v49, v49
    v_exp_f32 v50, v50
    v_add_f32 v49, 1.0, v49
    v_add_f32 v50, 1.0, v50
    v_rcp_f32 v49, v49
    v_rcp_f32 v50, v50
    v_cvt_pk_bf16_f32 v48, v49, v50
    v_lshlrev_b32 v50, 16, v48
    v_and_b32 v51, 0xffff0000, v48
    s_lshl_b32 s6, s71, 2
    s_add_u32 s6, s6, %d
    """.replace('v48', 'v%d' % G).replace('v49', 'v%d' % (G + 1)).replace('v50', 'v%d' % (G + 2)).replace('v51', 'v%d' % (G + 3)) % WS_G)
    R.blk([('i', 's_mov_b64 exec, 1'), ('vm', 'buffer_store_dwordx2 v[%d:%d], off, s[20:23], s6 sc1' % (G + 2, G + 3)), ('i', 's_mov_b64 exec, -1')])
    return R.th[:first], R.th[first:]
def as_fill(c, lines):
    out = []
    for l in lines:
        if l.startswith('ds_'): out.append(lambda l=l: c.ds(l, ('T',)))
        else: out.append(lambda l=l: c.I(l))
    return out

def run(ths):
    for t in ths: t()

def prologue(c):
    I = c.I
    if k1.STAMP: I('s_memrealtime s[82:83]')
    I('''
    s_cmp_ge_u32 s2, 256
    s_cbranch_scc1 K1_done
    s_load_dwordx16 s[36:51], s[0:1], 0
    s_load_dwordx16 s[52:67], s[0:1], 64
    s_load_dwordx2 s[68:69], s[0:1], 128
    ''')
    if c.emit: code_touch(I, 'CP_a', 'CP_b')
    I('''
    CP_a:
    v_lshrrev_b32 v16, 6, v0
    v_and_b32 v17, 63, v0
    v_readfirstlane_b32 s3, v16
    s_lshr_b32 s4, s2, 5
    s_and_b32 s5, s2, 7
    s_lshl_b32 s5, s5, 2
    s_bfe_u32 s6, s2, 0x20003
    s_add_u32 s5, s5, s6
    v_and_b32 v18, 15, v0
    v_bfe_u32 v19, v0, 4, 2
    v_lshrrev_b32 v20, 3, v17
    v_and_b32 v21, 7, v17
    v_xor_b32 v21, v21, v20
    s_lshl_b32 s6, s4, 8
    s_lshl_b32 s7, s3, 6
    s_add_u32 s6, s6, s7
    v_lshl_add_u32 v1, v20, 2, s6
    v_lshlrev_b32 v1, 11, v1
    v_lshl_add_u32 v1, v21, 4, v1
    v_add_u32 v2, 0xfc00, v1
    s_mov_b32 s10, 0x400000
    s_mov_b32 s11, 0x00020000
    s_mov_b32 s14, 0x700000
    s_mov_b32 s15, 0x00020000
    s_mov_b32 s18, 0x200000
    s_mov_b32 s19, 0x00020000
    s_mov_b32 s22, 0x10000000
    s_mov_b32 s23, 0x00020000
    s_mov_b32 s26, 256
    s_mov_b32 s27, 0x00020000
    s_mov_b32 s90, 0x700000
    s_mov_b32 s91, 0x00020000
    s_mov_b32 s28, 0
    s_mov_b32 s29, 4096
    s_mov_b32 s30, 0
    s_mov_b32 s31, 0
    s_mov_b32 s77, 0x%x
    s_lshl_b32 s32, s3, 12
    s_add_u32 s32, s32, %d
    s_lshl_b32 s34, s3, 14
    s_lshl_b32 s35, s3, 11
    s_add_u32 s35, s35, %d
    v_lshrrev_b32 v22, 2, v20
    v_and_b32 v23, 3, v20
    v_lshl_add_u32 v22, v22, 3, v23
    s_and_b32 s7, s3, 1
    s_lshl_b32 s6, s5, 5
    s_lshl_b32 s70, s7, 2
    s_add_u32 s6, s6, s70
    v_add_u32 v22, s6, v22
    v_lshlrev_b32 v22, 11, v22
    v_lshl_add_u32 v10, v21, 4, v22
    v_add_u32 v11, 0x7c00, v10
    s_mul_i32 s72, s5, 224
    s_mul_i32 s70, s7, 28672
    s_add_u32 s72, s72, s70
    s_and_b32 s73, s5, 1
    s_lshl_b32 s73, s73, 1
    s_movk_i32 s74, 4682
    s_movk_i32 s75, 7168
    s_waitcnt lgkmcnt(0)
    s_mov_b32 s8, s36
    s_mov_b32 s9, s37
    s_cmp_ge_u32 s3, 2
    s_cselect_b32 s12, s58, s56
    s_cselect_b32 s13, s59, s57
    s_cselect_b32 s16, s44, s42
    s_cselect_b32 s17, s45, s43
    s_cselect_b32 s86, s48, s46
    s_cselect_b32 s87, s49, s47
    s_mov_b32 s20, s68
    s_mov_b32 s21, s69
    s_mov_b32 s24, s66
    s_mov_b32 s25, s67
    s_mov_b32 s88, s60
    s_mov_b32 s89, s61
    ''' % (OOB, WB, BB))
    stamp(I, 0); stamp_rt(I, 10)
    if k1.STAMP: I('v_writelane_b32 v16, s82, 25')
    if PT:
        I('''
        s_lshr_b32 s78, s2, 3
        s_lshl_b32 s78, s78, 2
        s_add_u32 s78, s78, s3
        s_and_b32 s79, s78, 15
        s_lshr_b32 s80, s78, 4
        s_mov_b32 s82, 0x11111112
        s_mov_b32 s83, 0x14144401
        s_lshl_b32 s81, s79, 2
        s_lshr_b64 s[82:83], s[82:83], s81
        s_and_b32 s82, s82, 15
        s_cmp_lt_u32 s80, s82
        s_cselect_b32 s79, s79, 0
        s_cselect_b32 s80, s80, 0
        s_sub_u32 s81, s78, 64
        s_cmp_lt_u32 s81, 20
        s_cselect_b32 s79, 16, s79
        s_cselect_b32 s80, s81, s80
        s_lshl_b32 s79, s79, 3
        s_lshl_b32 s80, s80, 21
        s_load_dwordx2 s[82:83], s[0:1], s79
        ''')
    def tv_block():
        for l in range(64): assert (l * 37) >> 8 == l // 7
        I("""
        v_mul_u32_u24 v26, 37, v17
        v_lshrrev_b32 v26, 8, v26
        v_mul_u32_u24 v27, 7, v26
        v_sub_u32 v27, v17, v27
        v_lshlrev_b32 v27, 7, v27
        s_lshr_b32 s6, s2, 3
        s_lshl_b32 s6, s6, 1
        s_add_u32 s6, s6, s7
        s_lshl_b32 s6, s6, 1
        s_and_b32 s70, s2, 7
        v_add_u32 v28, s6, v26
        v_mul_u32_u24 v28, s75, v28
        v_add_u32 v28, v28, v27
        s_mul_i32 s71, s70, 896
        v_add_u32 v28, s71, v28
        v_lshrrev_b32 v26, 1, v17
        v_and_b32 v27, 1, v17
        v_lshlrev_b32 v27, 7, v27
        s_lshl_b32 s71, s70, 7
        s_add_u32 s71, s71, s6
        v_add_u32 v29, s71, v26
        v_lshl_add_u32 v29, v29, 11, v27
        s_lshl_b32 s6, s4, 8
        s_lshl_b32 s70, s5, 3
        s_add_u32 s6, s6, s70
        s_lshl_b32 s70, s3, 1
        s_add_u32 s71, s6, s70
        v_add_u32 v30, s71, v26
        v_lshl_add_u32 v30, v30, 11, v27
        s_mov_b32 s94, %d
        s_mov_b32 s95, %d
        s_bfe_u32 s78, s2, 0x10004
        s_bfe_u32 s79, s2, 0x10003
        s_and_b32 s70, s2, 7
        s_lshl_b32 s6, s4, 4
        s_lshl_b32 s70, s70, 1
        s_add_u32 s6, s6, s70
        s_add_u32 s6, s6, s78
        s_lshl_b32 s6, s6, 2
        s_add_u32 s6, s6, s3
        s_mul_i32 s92, s6, 14336
        s_cmp_eq_u32 s78, s79
        s_cselect_b32 s92, s92, s77
        v_lshlrev_b32 v31, 7, v17
        """ % (TS0 * 128, TS0 * 458752))
    if TPRE:
        tv_block()
        for _ in range(TPRE):
            th = ptouch(c)
            run(th[:3] + th[5:])
    small = """
    v_and_b32 v24, 31, v0
    v_lshl_add_u32 v24, s5, 5, v24
    v_lshlrev_b32 v24, 1, v24
    """
    def small_loads():
        I(small)
        c.vmem('global_load_ushort v48, v24, s[38:39]', ('S',))
        c.vmem('global_load_ushort v49, v24, s[40:41]', ('S',))
        c.vmem('global_load_ushort v50, v24, s[50:51]', ('S',))
    I("""
    s_lshl_b32 s6, s4, 8
    s_lshl_b32 s70, s5, 3
    s_add_u32 s6, s6, s70
    s_lshl_b32 s70, s3, 1
    s_add_u32 s71, s6, s70
    """)
    if PRE:
        small_loads()
        g1, g2 = g_work(c, 96, 120)
        run(g1)
        I('s_and_b32 s7, s3, 1')
    for k in range(8): run(x_dma(c, 0, k))
    if PT:
        I('s_waitcnt lgkmcnt(0)')
        I('s_load_dword s81, s[82:83], s80')
    for n in range(4):
        I('''
        v_add_u32 v20, %d, v17
        v_mul_u32_u24 v21, s74, v20
        v_lshrrev_b32 v21, 16, v21
        v_mul_u32_u24 v22, 14, v21
        v_sub_u32 v22, v20, v22
        v_add_u32 v22, s73, v22
        v_subrev_u32 v23, 14, v22
        v_min_u32 v22, v22, v23
        v_lshrrev_b32 v23, 2, v21
        v_and_b32 v21, 3, v21
        v_lshl_add_u32 v21, v23, 3, v21
        v_mul_u32_u24 v21, s75, v21
        v_lshl_add_u32 v21, v22, 4, v21
        v_add_u32 v21, s72, v21
        v_subrev_u32 v%d, %d, v21
        ''' % (n * 64, 3 + n, n * 1024))
        if n == 3:
            I('v_mov_b32 v20, s77\nv_cmp_gt_u32 vcc, 32, v17\nv_cndmask_b32 v6, v20, v6, vcc')
        run(w_dma(c, 0, n))
    for n in range(2): run(b_dma(c, 0, n))
    for n in range(4): run(w_dma(c, 1, n))
    if PRE:
        c.wait_vm(('s',), lambda t: t == ('S',))
        run(as_fill(c, tables_text()))
        run(g2)
        I('s_and_b32 s7, s3, 1')
    else:
        small_loads()
    if not DEFER:
        for k in range(8): run(x_dma(c, 1, k))
        for n in range(4): run(w_dma(c, 2, n))
        for n in range(2): run(b_dma(c, 1, n))
        for n in range(3): run(w_dma(c, 3, n))
    if not TPRE: tv_block()
    c_addr(I)
    I('''
    s_lshl_b32 s6, s5, 5
    s_lshl_b32 s7, s4, 2
    s_add_u32 s6, s6, s7
    s_add_u32 s6, s6, s3
    s_lshl_b32 s6, s6, 8
    s_add_u32 s6, s6, %d
    v_lshlrev_b32 v26, 4, v17
    v_mov_b32 v24, -1
    v_mov_b32 v25, -1
    v_mov_b32 v22, -1
    v_mov_b32 v23, -1
    s_mov_b64 exec, 0xffff
    ''' % WS_T)
    c.vmem('buffer_store_dwordx4 v[22:25], v26, s[20:23], s6 offen sc1', ('SV',))
    I('''
    s_mov_b64 exec, -1
    s_bfe_u32 s93, s2, 0x20005
    s_max_u32 s93, s93, 1
    s_add_u32 s93, s93, 1
    s_cmp_eq_u32 s3, 0
    s_cselect_b32 s93, s93, 99
    ''')
    I('''
    v_lshrrev_b32 v26, 2, v18
    v_lshl_add_u32 v26, v19, 2, v26
    v_mul_u32_u24 v26, 224, v26
    v_and_b32 v27, 3, v17
    v_lshl_add_u32 v12, v27, 3, v26
    v_add_u32 v12, %d, v12
    v_and_b32 v26, 7, v17
    v_xor_b32 v26, v26, v19
    v_lshlrev_b32 v26, 4, v26
    v_lshl_add_u32 v26, v18, 7, v26
    v_add_u32 v13, %d, v26
    v_xor_b32 v14, 64, v13
    v_add_u32 v7, s34, v26
    v_xor_b32 v8, 64, v7
    s_mov_b32 s33, %d
    ''' % (WB, BB, (NP - 4) // 4))
    stamp(I, 3)
    c.wait_vm(('d0',), lambda t: t in (('W', 0), ('B', 0), ('X', 0)))
    I('s_barrier')
    stamp(I, 4)
    for i in range(4): x_read(c, 0, 0, i)()
    for t in range(5): run(w_read(c, 0, t))
    for i in range(4): x_read(c, 0, 1, i)()
    for k in range(4): b_read(c, 0, 0, k)()


RR = lambda jt, i: acc_reg('R', jt, i)[1]
II = lambda jt, i: acc_reg('I', jt, i)[1]
BA, BBk, BC, BD = 32, 48, 64, 80

def ld16(R, base_v, off, dst, tag):
    R.ds('ds_read_b128 v[%d:%d], v%d offset:%d' % (dst, dst + 3, base_v, off), tag)
    R.ds('ds_read_b128 v[%d:%d], v%d offset:%d' % (dst + 4, dst + 7, base_v, off + 16), tag)
    R.ds('ds_read_b128 v[%d:%d], v%d offset:%d' % (dst + 8, dst + 11, base_v, off + 128), tag)
    R.ds('ds_read_b128 v[%d:%d], v%d offset:%d' % (dst + 12, dst + 15, base_v, off + 144), tag)

def s1_pre(c):
    R = Rec(c, 's1p')
    R('v_lshlrev_b32 v20, 5, v19')
    R('v_add_u32 v20, %d, v20' % TAB)
    ld16(R, 20, 0, BA, ('K', 0)); ld16(R, 20, 256, BBk, ('K', 1))
    R("""
    s_lshl_b32 s78, s4, 2
    s_add_u32 s78, s78, s3
    s_lshl_b32 s79, s5, 13
    s_add_u32 s79, s79, %d
    s_lshl_b32 s80, s78, 8
    s_add_u32 s80, s80, s79
    v_lshlrev_b32 v21, 6, v19
    s_sub_u32 s81, s78, 1
    v_sub_u32 v22, s81, v18
    v_subrev_u32 v23, 16, v22
    v_cmp_gt_u32 vcc, 32, v22
    v_lshl_add_u32 v22, v22, 8, v21
    v_mov_b32 v24, s77
    v_cndmask_b32 v22, v24, v22, vcc
    v_cmp_gt_u32 vcc, 32, v23
    v_lshl_add_u32 v23, v23, 8, v21
    s_lshl_b32 s7, s5, 2
    v_cndmask_b32 v23, v24, v23, vcc
    v_cmp_eq_u32 s[82:83], 15, v18
    """ % WS_T)

    return R.th

def cmul_sc(P, dr, di, ar, ai, br, bi, cr, ci):
    for e in range(2): P('v_fma_f32 v%d, v%d, v%d, v%d' % (dr + e, ar + e, br + e, cr + e))
    for e in range(2): P('v_fma_f32 v%d, v%d, v%d, v%d' % (di + e, ar + e, bi + e, ci + e))
    for e in range(2): P('v_fma_f32 v%d, -v%d, v%d, v%d' % (dr + e, ai + e, bi + e, dr + e))
    for e in range(2): P('v_fmac_f32 v%d, v%d, v%d' % (di + e, ai + e, br + e))
S1SC = int(os.environ.get('S1SC', '1'))
def s1_work(c):
    cmul_pk = cmul_sc if S1SC else k1.cmul_pk
    R = Rec(c, 's1')
    LAM, CA, E, T = BA, BBk, BC, BD
    R.wl(('K', 0))
    cur = None; bufs = [E, T]
    for i in range(1, 4):
        d = bufs[i & 1]
        for jt in range(2):
            for h in range(2):
                o = jt * 4 + 2 * h
                if cur is None: br, bi = RR(jt, 0) + 2 * h, II(jt, 0) + 2 * h
                else: br, bi = cur + o, cur + 8 + o
                cmul_pk(R, d + o, d + 8 + o, LAM + o, LAM + 8 + o, br, bi, RR(jt, i) + 2 * h, II(jt, i) + 2 * h)
        cur = d
    S = E
    for k, sh in enumerate((1, 2, 4, 8)):
        for r in range(16):
            R('v_mov_b32_dpp v%d, v%d row_shr:%d row_mask:0xf bank_mask:0xf bound_ctrl:0' % (S + r, cur + r, sh))
        R.wl(('K', 1 + k))
        for o in range(0, 8, 2):
            cmul_pk(R, cur + o, cur + 8 + o, CA + o, CA + 8 + o, S + o, S + 8 + o, cur + o, cur + 8 + o)
        if k < 3: ld16(R, 20, (2 + k) * 256, CA, ('K', 2 + k))
    R.blk([('i', 's_mov_b64 exec, s[82:83]')] +
          [('vm', 'buffer_store_dwordx4 v[%d:%d], v21, s[20:23], s80 offen offset:%d sc1' % (cur + 4 * k, cur + 4 * k + 3, 16 * k)) for k in range(4)] +
          [('i', 's_mov_b64 exec, -1')])
    for r in range(16):
        R('v_mov_b32_dpp v%d, v%d row_shr:1 row_mask:0xf bank_mask:0xf bound_ctrl:0' % (S + r, cur + r))
    return R.th

def last_stage(c):
    s = 15
    order = [('S', 0, k) for k in range(4)] + [('S', 1, k) for k in range(4)] + [('F', 30, t) for t in range(14)] + [('F', 31, t) for t in range(14)]
    pre = s1_pre(c); work = s1_work(c)
    nF = 28
    per = -(-len(work) // (nF - 2))
    for n, (ty, a, b) in enumerate(order):
        fill = []
        site = ('Z', n)
        if ty == 'S':
            hh, k = a, b
            if hh == 0: fill.append(b_read(c, s, 1, k))
            for _ in range(min(5, len(pre))): fill.append(pre.pop(0))
            if k == 0: c.wait_lg((site, 'bf'), lambda t: t in (('BF', s, hh), ('XF', s, hh)))
            kind, jt = SSM[k]; areg = BH + hh * 16 + k * 4
        else:
            u, t = a, b; hh = u & 1
            if t <= 8: fill += w_read(c, u, t + 5)
            if u == 30 and t >= 10:
                for tt in {10: [], 11: [0], 12: [1, 2], 13: [3, 4]}[t]: fill += w_read(c, 31, tt)
            assert not pre
            if n >= 10:
                for _ in range(min(per, len(work))): fill.append(work.pop(0))
            c.wait_lg((site, 'f'), lambda tg: tg == ('F', u, t))
            kind, jt = FFN[t]; areg = RING + (t % 7) * 4
        nf = len(fill); k2 = 0
        for i in range(4):
            f, bb = acc_reg(kind, jt, i)
            c.I('v_mfma_f32_16x16x32_bf16 %s, %s, %s, %s' % (rr(f, bb), rr('a', areg), rr('a', XSET + 32 + hh * 16 + i * 4), rr(f, bb)))
            take = (nf * (i + 1) + 3) // 4 - k2
            for _ in range(take):
                fill[k2](); k2 += 1
        if ty == 'F' and a == 30 and b == 9:
            c.wait_vm((site, 'd'), lambda t: t == ('W', 31))
            c.I('s_barrier')
    assert not work


def pk_bc(op, d, a, f, cc=None):
    base = f & ~1; hi = f & 1
    if cc is None:
        return 'v_pk_mul_f32 v[%d:%d], v[%d:%d], v[%d:%d] op_sel:[0,%d] op_sel_hi:[1,%d]' % (d, d + 1, a, a + 1, base, base + 1, hi, hi)
    return 'v_pk_fma_f32 v[%d:%d], v[%d:%d], v[%d:%d], v[%d:%d] op_sel:[0,%d,0] op_sel_hi:[1,%d,1]' % (d, d + 1, a, a + 1, base, base + 1, cc, cc + 1, hi, hi)
def cmul16(P, d, a, b, c=None):
    p = lambda r: 'v[%d:%d]' % (r, r + 1)
    G = range(0, 8, 2)
    for o in G:
        if c is None: P('v_pk_mul_f32 %s, %s, %s' % (p(d(o)[0]), p(a(o)[0]), p(b(o)[0])))
        else: P('v_pk_fma_f32 %s, %s, %s, %s' % (p(d(o)[0]), p(a(o)[0]), p(b(o)[0]), p(c(o)[0])))
    for o in G:
        if c is None: P('v_pk_mul_f32 %s, %s, %s' % (p(d(o)[1]), p(a(o)[0]), p(b(o)[1])))
        else: P('v_pk_fma_f32 %s, %s, %s, %s' % (p(d(o)[1]), p(a(o)[0]), p(b(o)[1]), p(c(o)[1])))
    for o in G:
        P('v_pk_fma_f32 %s, %s, %s, %s neg_lo:[1,0,0] neg_hi:[1,0,0]' % (p(d(o)[0]), p(a(o)[1]), p(b(o)[1]), p(d(o)[0])))
    for o in G:
        P('v_pk_fma_f32 %s, %s, %s, %s' % (p(d(o)[1]), p(a(o)[1]), p(b(o)[0]), p(d(o)[1])))
blk = lambda base: (lambda o: (base + o, base + 8 + o))
uacc = lambda i: (lambda o: (RR(o >> 2, i) + (o & 3), II(o >> 2, i) + (o & 3)))

def ffn_out2(P, items, dst, tmp, om):
    ch = []
    for n, (jt, i) in enumerate(items):
        for h in range(2):
            ta = tmp + (n * 2 + h) * 4; tb = ta + 2
            seq = []
            srcs = []
            for kind, t in (('G', ta), ('U', tb)):
                f, b = acc_reg(kind, jt, i)
                if f == 'a':
                    seq.append('v_accvgpr_read_b32 v%d, a%d' % (t, b + 2 * h))
                    seq.append('v_accvgpr_read_b32 v%d, a%d' % (t + 1, b + 2 * h + 1))
                    srcs.append(t)
                else: srcs.append(b + 2 * h)
            g0, u0 = srcs
            if k1.EMUL:
                seq += ['v_cvt_pk_bf16_f32 v%d, v%d, v%d' % (ta, g0, g0 + 1),
                        'v_cvt_pk_bf16_f32 v%d, v%d, v%d' % (tb, u0, u0 + 1),
                        'v_pk_max_i16 v%d, v%d, 0' % (ta, ta),
                        'v_and_b32 v%d, 0xffff0000, v%d' % (tb + 1, tb),
                        'v_lshlrev_b32 v%d, 16, v%d' % (tb, tb),
                        'v_and_b32 v%d, 0xffff0000, v%d' % (ta + 1, ta),
                        'v_lshlrev_b32 v%d, 16, v%d' % (ta, ta),
                        'v_pk_mul_f32 v[%d:%d], v[%d:%d], v[%d:%d]' % (ta, ta + 1, ta, ta + 1, tb, tb + 1)]
            else:
                seq += ['v_max_f32 v%d, 0, v%d' % (ta, g0), 'v_max_f32 v%d, 0, v%d' % (ta + 1, g0 + 1),
                        'v_pk_mul_f32 v[%d:%d], v[%d:%d], v[%d:%d]' % (ta, ta + 1, ta, ta + 1, u0, u0 + 1)]
            seq.append(pk_bc('mul', ta, ta, om + i))
            seq.append('v_cvt_pk_bf16_f32 v%d, v%d, v%d' % (dst + 2 * n + h, ta, ta + 1))
            ch.append(seq)
    m = max(len(x) for x in ch)
    for k in range(m):
        for x in ch:
            kk = k - (m - len(x))
            if kk >= 0: P(x[kk])


NS = 5
ACT = 96
WF = 32
FD = 3
NB, NT = 14, 22
XD = 64
def acc2(tau, jt): return (tau * 8 + jt) * 4
def role_of(n): return 'B' if n < NB else 'Y'
ORD = [0, 1, 4, 5, 7, 8, 11, 12, 2, 6, 9, 13, 3, 10]
def act_loads(c, n):
    if n >= NT: return []
    th = []
    if n < NB: th.append(lambda: c.I('s_add_u32 s28, s33, %d' % (ORD[n] * 8192)))
    else: th.append(lambda: c.I('s_add_u32 s28, s29, %d' % ((n - NB) * 8192)))
    th += [lambda tau=tau: c.vmem('buffer_load_dwordx4 %s, v%d, s[20:23], s28 offen offset:%d sc1' % (rr('v', ACT + (n % NS) * 32 + tau * 4), 1 + (tau >> 2), (tau & 3) * 1024), ('A', n)) for tau in range(8)]
    return th
def w_loads(c, n):
    if n >= NT: return []
    th = []
    if n < NB:
        th.append(lambda: c.I('s_add_u32 s30, s34, %d' % (ORD[n] * 65536))); th.append(lambda: c.I('s_add_u32 s35, s30, 32768'))
    else:
        th.append(lambda: c.I('s_add_u32 s30, s32, %d' % ((n - NB) * 8192))); th.append(lambda: c.I('s_xor_b32 s35, s30, 4096'))
    for k in range(8):
        if k & 3 == 0: th.append(lambda k=k: c.I('s_add_u32 m0, s31, %d' % ((n % NS) * 8192 + (k >> 2) * 4096)))
        if n < NB: th.append(lambda k=k: c.vmem('buffer_load_dwordx4 v%d, s[16:19], s%d offen offset:%d lds' % (3 + (k & 3), 35 if k >> 2 else 30, (k & 3) * 1024), ('W', n)))
        else: th.append(lambda k=k: c.vmem('buffer_load_dwordx4 v24, s[20:23], s%d offen offset:%d sc1 lds' % (35 if k >> 2 else 30, (k & 3) * 1024), ('W', n)))
    return th
NTL = 18
GROUPS = [(n, jt) for n in range(NTL) for jt in range(8)] + [(n, jt) for n in range(NTL, NT) for jt in range(4, 8)] + [(n, jt) for n in range(NTL, NT) for jt in range(4)]
KP0 = NTL * 8 + 16
def frag_read(c, k):
    if k >= len(GROUPS): return []
    n, jt = GROUPS[k]
    reg = WF + (k % 8) * 4
    so = (n % NS) * 8192
    th = []
    if k == 0 or GROUPS[k - 1][0] != n:
        th.append(lambda: c.wait_vm(('P2w', k), lambda t: t == ('W', n)))
    if role_of(n) == 'Y':
        th.append(lambda: c.ds('ds_read_b128 %s, v25 offset:%d' % (rr('v', reg), so + jt * 1024), ('F', k)))
    else:
        th += [lambda e=e: c.ds('ds_read_b64_tr_b16 v[%d:%d], v%d offset:%d' % (reg + 2 * e, reg + 2 * e + 1, 7 + jt, so + e * 2048), ('F', k)) for e in range(2)]
    return th

def group(c, k, side, pre=None, post=None):
    n, jt = GROUPS[k]
    if k == 0 or GROUPS[k - 1][0] != n:
        c.wait_vm(('P2a', k), lambda t: t == ('A', n))
    if pre: pre()
    slots = [[] for _ in range(8)]
    fr = frag_read(c, k + FD)
    for i, f in enumerate(fr): slots[i].append(f)
    lo = len(fr)
    for i, f in enumerate(side):
        slots[lo + (i * (8 - lo)) // len(side)].append(f)
    c.wait_lg(('P2f', k), lambda t: t == ('F', k))
    for tau in range(8):
        b = acc2(tau, jt)
        c.I('v_mfma_f32_16x16x32_bf16 %s, %s, %s, %s' % (rr('a', b), rr('v', WF + (k % 8) * 4), rr('v', ACT + (n % NS) * 32 + tau * 4), '0' if n == 0 else rr('a', b)))
        for th in slots[tau]: th()
    if post: post()

def step_vm(c, n):
    a = act_loads(c, n + NS - 1); w = w_loads(c, n + NS - 1)
    vm = []
    while a or w:
        for _ in range(2):
            if w: vm.append(w.pop(0))
        if a: vm.append(a.pop(0))
        if len(a) > len(w) and a: vm.append(a.pop(0))
    return vm

def p2_setup(P):
    P("""
    s_bfe_u32 s92, s2, 0x10002
    s_lshl_b32 s92, s92, 3
    s_bfe_u32 s6, s2, 0x30003
    s_add_u32 s92, s92, s6
    s_bfe_u32 s93, s2, 0x10001
    s_lshl_b32 s93, s93, 2
    s_lshr_b32 s6, s2, 6
    s_add_u32 s93, s93, s6
    s_and_b32 s94, s2, 1
    s_lshl_b32 s95, s94, 2
    s_add_u32 s95, s95, s3
    s_mov_b32 s12, s64
    s_mov_b32 s13, s65
    s_mov_b32 s14, 0x800000
    s_mov_b32 s16, s60
    s_mov_b32 s17, s61
    s_mov_b32 s18, 0x700000
    s_mul_i32 s31, s3, %d
    v_lshlrev_b32 v84, 1, v19
    v_xor_b32 v84, v84, v18
    v_xor_b32 v85, 8, v84
    s_lshl_b32 s6, s93, 8
    v_lshl_add_u32 v86, v19, 11, s6
    v_lshl_add_u32 v3, v84, 4, v86
    v_lshl_add_u32 v4, v85, 4, v86
    v_add_u32 v4, 7168, v4
    v_add_u32 v5, 14336, v3
    v_add_u32 v6, 14336, v4
    s_mul_i32 s34, s95, %d
    """ % (NS * 8192, NB * 65536))
    P("""
    v_lshlrev_b32 v87, 4, v17
    s_mul_i32 s6, s92, %d
    v_add_u32 v1, s6, v87
    v_add_u32 v2, 0x1000, v1
    s_mul_i32 s33, s95, %d
    s_lshl_b32 s32, s95, 16
    s_add_u32 s29, s32, %d
    v_lshrrev_b32 v84, 2, v18
    v_lshl_add_u32 v84, v19, 2, v84
    v_and_b32 v85, 7, v84
    v_and_b32 v86, 8, v84
    v_lshl_add_u32 v84, v86, 1, v85
    v_and_b32 v86, 3, v17
    v_lshlrev_b32 v84, 8, v84
    v_lshl_add_u32 v84, v86, 3, v84
    v_add_u32 v84, s31, v84
    v_lshl_add_u32 v7, v85, 5, v84
    s_lshl_b32 s7, s94, 7
    v_xor_b32 v7, s7, v7
    """ % (NKB * 8192, NB * 8192, 112 * 8192))
    for jt in range(1, 8): P('v_xor_b32 v%d, %d, v7' % (7 + jt, jt * 32))

def spin(P, L, cond_text, reload_text, sleep=2):
    P('s_mov_b32 s75, 0')
    P.label(L)
    P(cond_text)
    P("""
    s_add_u32 s75, s75, 1
    s_cmp_eq_u64 vcc, 0
    s_cbranch_scc1 %sok
    s_cmp_ge_u32 s75, 0x4000
    s_cbranch_scc1 %sok
    s_sleep %d
    """ % (L, L, sleep))
    P(reload_text)
    P('s_waitcnt vmcnt(0)')
    P('s_branch %s' % L)
    P.label(L + 'ok')

def init_load(c):
    c.I('v_and_b32 v26, 31, v17\nv_lshlrev_b32 v26, 2, v26')
    c.vmem('buffer_load_dword v25, v26, s[24:27], 0 offen offset:128 sc1', ('IF',))
def init_check(c):
    c.wait_vm(('ifw',), lambda t: t == ('IF',))
    if c.emit:
        spin(c.P, 'K1_ichk', 'v_cmp_ne_u32 vcc, 0xff, v25', 'buffer_load_dword v25, v26, s[24:27], 0 offen offset:128 sc1', 4)
    c.I("""
    s_lshl_b32 s6, s4, 8
    s_lshl_b32 s7, s3, 6
    s_add_u32 s6, s6, s7
    s_lshl_b32 s6, s6, 2
    s_add_u32 s6, s6, %d
    v_lshlrev_b32 v24, 4, v18
    """ % WS_G)
    c.vmem('buffer_load_dwordx4 v[28:31], v24, s[20:23], s6 offen sc1', ('G4',))

PLI = int(os.environ.get('PLI', '1'))
WLATE = int(os.environ.get('WLATE', '1'))
RES = 224
def epilogue(P):
    LAM, S = BA, BC
    stamp(P, 5)
    P('s_waitcnt lgkmcnt(0)')
    P('s_barrier')
    P('s_waitcnt vmcnt(4)')
    P("""
    v_sub_f32 v60, 1.0, v28
    v_sub_f32 v61, 1.0, v29
    v_sub_f32 v62, 1.0, v30
    v_sub_f32 v63, 1.0, v31
    v_cvt_pk_bf16_f32 v60, v60, v61
    v_cvt_pk_bf16_f32 v62, v62, v63
    v_and_b32 v61, 0xffff0000, v60
    v_and_b32 v63, 0xffff0000, v62
    v_lshlrev_b32 v60, 16, v60
    v_lshlrev_b32 v62, 16, v62
    """)
    code_touch(P, 'CP_c', 'CP_end', 84)
    p2_setup(P)
    P("""
    s_lshl_b32 s6, s4, 1
    s_lshr_b32 s7, s3, 1
    s_add_u32 s6, s6, s7
    s_mul_i32 s6, s6, %d
    s_and_b32 s7, s3, 1
    s_lshl_b32 s7, s7, 12
    s_add_u32 s6, s6, s7
    v_lshl_add_u32 v15, v17, 4, s6
    s_mul_i32 s70, s5, 7
    s_add_u32 s70, s70, 1
    s_lshr_b32 s70, s70, 1
    s_lshl_b32 s70, s70, 13
    s_add_u32 s71, s70, 8192
    s_add_u32 s72, s70, 16384
    s_add_u32 s73, s70, 24576
    s_sub_u32 s74, s70, 7680
    s_bitcmp1_b32 s5, 0
    s_cselect_b32 s73, s74, s73
    v_and_b32 v27, 31, v17
    v_lshrrev_b32 v24, 5, v17
    v_lshl_add_u32 v27, v27, 4, s6
    v_lshl_add_u32 v27, v24, 10, v27
    v_lshl_add_u32 v21, v18, 8, v20
    """ % (NKB * 8192))
    stamp(P, 14)
    tmp = 80; n = 0
    def outreg():
        nonlocal n
        n += 1
        return 48 + (n % 3) * 4
    F = 160
    TA, TB, WA, WBk = F, F + 16, F + 32, F + 48
    tl = ''
    for k in range(4): tl += 'buffer_load_dwordx4 v[%d:%d], v22, s[20:23], s79 offen offset:%d sc1\n' % (TA + 4 * k, TA + 4 * k + 3, 16 * k)
    for k in range(4): tl += 'buffer_load_dwordx4 v[%d:%d], v23, s[20:23], s79 offen offset:%d sc1\n' % (TB + 4 * k, TB + 4 * k + 3, 16 * k)
    cw = Ctx(P, {})
    wq = w_loads(cw, 0) + w_loads(cw, 1)
    def fin(dst, va, so, off):
        for _ in range(5):
            if wq and not WLATE: wq.pop(0)()
        P('v_permlane32_swap_b32 v%d, v%d' % (dst, dst + 2))
        P('v_permlane32_swap_b32 v%d, v%d' % (dst + 1, dst + 3))
        P('buffer_store_dwordx4 v[%d:%d], v%d, s[20:23], s%d offen offset:%d %s' % (dst, dst + 3, va, so, off, os.environ.get('AMOD', 'sc1')))
    for pr in range(3):
        for i in range(4):
            dst = outreg()
            ffn_out2(P, [(2 * pr, i), (2 * pr + 1, i)], dst, tmp, 60)
            fin(dst, 15, 70 + pr, i * 1024)
        if pr == 1:
            P(tl)
            for off, dst in ((6144, WA), (6144 + 4096, WBk)):
                for k, o in enumerate((0, 16, 128, 144)):
                    P('ds_read_b128 v[%d:%d], v21 offset:%d' % (dst + 4 * k, dst + 4 * k + 3, off + o))
    for i in (0, 2):
        dst = outreg()
        ffn_out2(P, [(6, i), (6, i + 1)], dst, tmp, 60)
        fin(dst, 27, 73, i * 1024)
    P('v_mov_b32 v26, 1\ns_waitcnt vmcnt(14)\ns_mov_b64 exec, 1\nbuffer_store_dword v26, off, s[20:23], s76 sc1\ns_mov_b64 exec, -1')
    stamp(P, 7)
    PWr = F + 64; AC = F + 80
    S2 = BD
    for k, o in enumerate((0, 16, 128, 144)):
        P('ds_read_b128 v[%d:%d], v21 offset:%d' % (PWr + 4 * k, PWr + 4 * k + 3, 2048 + o))
        P('ds_read_b128 v[%d:%d], v20 offset:%d' % (S2 + 4 * k, S2 + 4 * k + 3, 5 * 256 + o))
    P('s_waitcnt vmcnt(7)')
    cond = 'v_max3_u32 v24, v%d, v%d, v%d\nv_max3_u32 v25, v%d, v%d, v%d\n' % (TA, TA + 1, TA + 2, TB, TB + 1, TB + 2)
    for r in range(3, 15, 2):
        cond += 'v_max3_u32 v24, v24, v%d, v%d\nv_max3_u32 v25, v25, v%d, v%d\n' % (TA + r, TA + r + 1, TB + r, TB + r + 1)
    cond += 'v_max3_u32 v24, v24, v%d, v%d\nv_max_u32 v24, v24, v25\nv_cmp_eq_u32 vcc, -1, v24\n' % (TA + 15, TB + 15)
    spin(P, 'K1_tchk', cond, tl)
    stamp(P, 8)
    P('s_waitcnt lgkmcnt(0)')
    P('s_barrier')
    def wsome(n):
        for _ in range(n):
            if wq: wq.pop(0)()
    wsome(6)
    cmul16(P, blk(AC), blk(WA), blk(TA))
    wsome(6)
    cmul16(P, blk(AC), blk(WBk), blk(TB), blk(AC))
    for sh in (8, 4, 2, 1):
        wsome(6)
        for r in range(16):
            P('v_add_f32_dpp v%d, v%d, v%d row_ror:%d row_mask:0xf bank_mask:0xf' % (AC + r, AC + r, AC + r, sh))
    cmul16(P, blk(S), blk(PWr), blk(AC), blk(S))
    assert not wq
    p2_pre(P)
    for i in range(4):
        O = TA if (i & 1) else TB
        cmul16(P, uacc(i), blk(LAM), blk(S) if i == 0 else uacc(i - 1), uacc(i))
        cmul16(P, blk(O), blk(S2), uacc(i))
        for k in range(8): P(pk_bc('mul', O + 2 * k, O + 2 * k, 28 + i))
        d = RES + i * 8
        for k in range(4):
            P('v_cvt_pk_bf16_f32 v%d, v%d, v%d' % (d + k, O + 2 * k, O + 2 * k + 1))
        for k in range(4):
            P('v_cvt_pk_bf16_f32 v%d, -v%d, -v%d' % (d + 4 + k, O + 8 + 2 * k, O + 8 + 2 * k + 1))
        if i == PLI:
            P('buffer_load_dword v56, v20, s[20:23], s72 offen sc1')
    stamp(P, 9)

def p2_pre(P):
    P("""
    v_mov_b32 v27, v15
    v_lshlrev_b32 v15, 4, v17
    v_and_b32 v20, 7, v17
    v_lshlrev_b32 v20, 7, v20
    s_lshl_b32 s72, s92, 13
    s_lshl_b32 s7, s95, 10
    s_add_u32 s72, s72, s7
    s_add_u32 s72, s72, %d
    s_lshl_b32 s6, s93, 19
    s_add_u32 s6, s6, %d
    v_add_u32 v24, s6, v15
    v_add_u32 v25, s31, v15
    s_lshl_b32 s7, s94, 12
    s_add_u32 s32, s32, s7
    s_add_u32 s70, s5, 112
    s_lshl_b32 s70, s70, 13
    s_add_u32 s71, s70, 262144
    s_lshl_b32 s6, s92, 13
    s_add_u32 s6, s6, 0x20000
    s_lshl_b32 s7, s93, 1
    s_add_u32 s7, s7, s94
    s_lshl_b32 s7, s7, 13
    v_mov_b32 v22, s6
    v_mov_b32 v23, s7
    v_and_b32 v21, 16, v17
    v_cmp_eq_u32 vcc, 0, v21
    v_cndmask_b32 v22, v23, v22, vcc
    v_lshl_add_u32 v22, v18, 7, v22
    s_lshl_b32 s73, s3, 11
    s_add_u32 s73, s73, %d
    """ % (WS_FL, WS_C2, WS_FL))

def p2_enter(c):
    I = c.I
    I('s_waitcnt vmcnt(0)')
    stamp(I, 12)
    if c.emit:
        spin(c.P, 'P2_pf', 'v_cmp_gt_u32 vcc, 1, v56', 'buffer_load_dword v56, v20, s[20:23], s72 offen sc1', 1)
    stamp(I, 13); stamp_rt(I, 23)
    run(act_loads(c, 0))
    I('v_mov_b32 v57, 2\ns_mov_b64 exec, 1')
    c.vmem('buffer_store_dword v57, off, s[20:23], s76 sc1', ('SV',))
    I('s_mov_b64 exec, -1')
    run(act_loads(c, 1))
    for i in range(4):
        d = RES + i * 8
        c.vmem('buffer_store_dwordx4 v[%d:%d], v27, s[20:23], s70 offen offset:%d sc1' % (d, d + 3, i * 1024), ('SS',))
        c.vmem('buffer_store_dwordx4 v[%d:%d], v27, s[20:23], s71 offen offset:%d sc1' % (d + 4, d + 7, i * 1024), ('SS',))
    run(w_loads(c, 2)); run(act_loads(c, 2)); run(w_loads(c, 3)); run(act_loads(c, 3))
    for k in range(FD): run(frag_read(c, k))

def e0_loads(c):
    pre = """
    s_lshl_b32 s6, s92, 7
    s_lshr_b32 s7, s3, 1
    s_lshl_b32 s7, s7, 6
    s_add_u32 s6, s6, s7
    s_and_b32 s7, s3, 1
    s_lshl_b32 s7, s7, 1
    s_add_u32 s6, s6, s7
    v_lshl_add_u32 v20, v18, 2, s6
    s_lshl_b32 s7, s93, 7
    s_lshl_b32 s6, s94, 6
    s_add_u32 s7, s7, s6
    v_lshl_add_u32 v21, v19, 2, s7
    v_lshlrev_b32 v28, 10, v20
    v_add_u32 v28, v28, v21
    v_lshlrev_b32 v23, 1, v28
    v_lshlrev_b32 v28, 2, v28
    v_add_u32 v29, 0x1000, v28
    v_lshlrev_b32 v22, 1, v21
    v_lshlrev_b32 v21, 2, v20
    s_mov_b32 s74, %d
    """ % WS_G
    th = [lambda l=l.strip(): c.I(l) for l in pre.splitlines() if l.strip()]
    th += [lambda: c.vmem('buffer_load_dwordx2 v[30:31], v21, s[20:23], s74 offen sc1', ('E0',))]
    for k in range(2):
        for jt in range(4):
            th.append(lambda k=k, jt=jt: c.vmem('buffer_load_dwordx2 v[%d:%d], v23, s[8:11], 0 offen offset:%d' % (64 + (k * 4 + jt) * 2, 65 + (k * 4 + jt) * 2, k * 2048 + jt * 32), ('E0',)))
    for jt in range(4):
        th.append(lambda jt=jt: c.vmem('global_load_dwordx2 v[%d:%d], v22, s[52:53] offset:%d' % (80 + jt * 2, 81 + jt * 2, jt * 32), ('E0',)))
    return th

def xd_math(I, Z):
    for jt in range(4):
        for h in range(2):
            I('v_and_b32 v89, 0xffff0000, v%d\nv_lshlrev_b32 v88, 16, v%d' % (80 + jt * 2 + h, 80 + jt * 2 + h))
            seqs = []
            for k in range(2):
                t = k * 4 + jt; xs = 64 + t * 2 + h; a = 90 + 2 * k; z = Z + t * 4 + 2 * h
                seqs.append(['v_lshlrev_b32 v%d, 16, v%d' % (a, xs), 'v_and_b32 v%d, 0xffff0000, v%d' % (a + 1, xs),
                             'v_pk_mul_f32 v[%d:%d], v[%d:%d], v[88:89]' % (a, a + 1, a, a + 1),
                             'v_cvt_pk_bf16_f32 v%d, v%d, v%d' % (a, a, a + 1),
                             'v_and_b32 v%d, 0xffff0000, v%d' % (a + 1, a), 'v_lshlrev_b32 v%d, 16, v%d' % (a, a),
                             pk_bc('fma', z, a, 30 + k, z)])
            for x, y in zip(*seqs): I(x); I(y)

CPC = int(os.environ.get('CPC', '4'))
ZS = 160
add = lambda d, a, b: 'v_pk_add_f32 v[%d:%d], v[%d:%d], v[%d:%d]' % (d, d + 1, a, a + 1, b, b + 1)
def own_copy(P, jt0, dst, tag):
    for Q in range(4):
        if Q < 3: P('s_cmp_lg_u32 s3, %d\ns_cbranch_scc1 P2_%s%d' % (Q, tag, Q))
        for t in range(8):
            b = acc2(2 * Q + (t >> 2), jt0 + (t & 3))
            for r in range(4): P('v_accvgpr_read_b32 v%d, a%d' % (dst + t * 4 + r, b + r))
        if Q < 3:
            P('s_branch P2_%sx' % tag)
            P.label('P2_%s%d' % (tag, Q))
    P.label('P2_%sx' % tag)

def tail_setup(c):
    t = 'v_add_u32 v20, s31, v15\n'
    PL = [4, 7, 1]
    for Q in range(4):
        t += """
        s_cmp_lt_u32 s3, %d
        s_cselect_b32 s6, %d, %d
        s_cselect_b32 s7, %d, %d
        s_cmp_eq_u32 s3, %d
        s_cselect_b32 s6, 64, s6
        s_cselect_b32 s7, 64, s7
        s_lshl_b32 s6, s6, 12
        s_lshl_b32 s7, s7, 12
        v_add_u32 v%d, s6, v20
        v_add_u32 v%d, s7, v20
        """ % (Q, PL[max(Q - 1, 0)], PL[min(Q, 2)], 2 * max(Q - 1, 0), 2 * min(Q, 2), Q, 1 + Q, 8 + Q)
    for sl in range(3):
        t += """
        s_cmp_le_u32 s3, %d
        s_cselect_b32 s6, %d, %d
        s_cselect_b32 s7, 0, 1
        s_mul_i32 s6, s6, 40960
        s_sub_u32 s7, s3, s7
        s_lshl_b32 s70, s7, 13
        s_add_u32 s70, s70, s6
        v_add_u32 v%d, s70, v15
        s_lshl_b32 s7, s7, 2
        s_lshr_b32 s7, 0x174, s7
        s_and_b32 s7, s7, 15
        s_lshl_b32 s7, s7, 12
        s_add_u32 s7, s7, s6
        v_add_u32 v%d, s7, v15
        """ % (sl, sl + 1, sl, 12 + sl, 5 + sl)
    t += """
    s_lshl_b32 s6, s2, 2
    s_add_u32 s6, s6, s3
    s_lshl_b32 s78, s6, 13
    s_add_u32 s78, s78, %d
    s_add_u32 s79, s78, 4096
    s_xor_b32 s80, s78, 0x8000
    s_add_u32 s81, s80, 4096
    s_lshl_b32 s82, s6, 7
    s_add_u32 s82, s82, %d
    s_xor_b32 s83, s82, 0x200
    """ % (WS_XB, WS_FL + 0x40000)
    return [lambda l=l.strip(): c.I(l) for l in t.splitlines() if l.strip()]

def p2_main(c):
    def flagS():
        c.I('s_add_u32 s7, s76, 0x20000\ns_mov_b64 exec, 1')
        c.vmem('buffer_store_dword v26, off, s[20:23], s7 sc1', ('SV',))
        c.I('s_mov_b64 exec, -1')
    def pollS():
        c.vmem('buffer_load_dword v23, v22, s[20:23], s73 offen sc1', ('PS',))
    def chkS():
        c.wait_vm(('psw',), lambda t: t == ('PS',))
        if c.emit:
            spin(c.P, 'P2_ps', 'v_cmp_gt_u32 vcc, 1, v23', 'buffer_load_dword v23, v22, s[20:23], s73 offen sc1', 2)
    def flagS_pollF():
        flagS()
    def pollF():
        c.vmem('buffer_load_dword v21, v20, s[20:23], s72 offen sc1', ('PF',))
    def chkF():
        c.wait_vm(('pfw',), lambda t: t == ('PF',))
        if c.emit:
            spin(c.P, 'P2_pg', 'v_cmp_gt_u32 vcc, 2, v21', 'buffer_load_dword v21, v20, s[20:23], s72 offen sc1', 1)
    for n in range(NTL):
        if n == CPC: c.I('CP_c:')
        vm = step_vm(c, n)
        per = -(-len(vm) // 8)
        for jt in range(8):
            group(c, n * 8 + jt, vm[jt * per:(jt + 1) * per], pre={2: flagS, 3: pollF, 4: chkF, 8: pollS, NB - NS + 1: chkS}.get(n) if jt == 0 else None)
    side = e0_loads(c) + tail_setup(c)
    per = -(-len(side) // 16)
    for g in range(16):
        group(c, NTL * 8 + g, side[g * per:(g + 1) * per])
    stamp(c.I, 15); stamp_rt(c.I, 24)
    off = lambda t: t * 1024 if t < 4 else 8192 + (t - 4) * 1024
    def wr(Q, ts):
        def f():
            L = 'P2_w%d_%d' % (Q, ts[0])
            c.I('s_cmp_eq_u32 s3, %d\ns_cbranch_scc1 %s' % (Q, L))
            for t in ts: c.I('ds_write_b128 v%d, %s offset:%d' % (1 + Q, rr('a', acc2(2 * Q + (t >> 2), 4 + (t & 3))), off(t)))
            c.I(L + ':')
        return f
    def bar():
        c.I('s_waitcnt lgkmcnt(0)'); c.lg.q = []; c.I('s_barrier')
    def rds(t):
        T = 192 + (t & 1) * 12
        return [lambda sl=sl: c.ds('ds_read_b128 v[%d:%d], v%d offset:%d' % (T + sl * 4, T + sl * 4 + 3, 5 + sl, off(t)), ('SR', t)) for sl in range(3)]
    def sums(t):
        T = 192 + (t & 1) * 12; z = ZS + t * 4
        th = [lambda: c.wait_lg(('srw', t), lambda x: x == ('SR', t))]
        for x in (add(T, T, T + 4), add(T + 2, T + 2, T + 6), add(z, z, T + 8), add(z + 2, z + 2, T + 10), add(z, z, T), add(z + 2, z + 2, T + 2)):
            th.append(lambda x=x: c.I(x))
        th.append(lambda: c.vmem('buffer_store_dwordx4 v[%d:%d], v15, s[20:23], s%d offen offset:%d sc1' % (z, z + 3, 78 + (t >> 2), (t & 3) * 1024), ('XS',)))
        return th
    for g in range(16):
        side = []; post = None
        if g in (0, 1): side = [wr(Q, [2 * g, 2 * g + 1]) for Q in range(4)]
        if g == 1 and c.emit: post = lambda: own_copy(c.P, 4, ZS, 'so')
        if g in (3, 4): side = [wr(Q, [4 + 2 * (g - 3), 5 + 2 * (g - 3)]) for Q in range(4)]
        if g == 5: post = bar
        if 7 <= g <= 14: side += sums(g - 7)
        if 6 <= g <= 13: side += rds(g - 6)
        if g == 14: post = bar
        group(c, KP0 + g, side, post=post)

def p2_final(P):
    ZK, TMP, XR = 128, 160, 96
    for Q in range(4):
        P('s_cmp_eq_u32 s3, %d\ns_cbranch_scc1 P2_kw%d' % (Q, Q))
        for t in range(8):
            P('ds_write_b128 v%d, %s offset:%d' % (8 + Q, rr('a', acc2(2 * Q + (t >> 2), t & 3)), t * 1024))
        P.label('P2_kw%d' % Q)
    own_copy(P, 0, ZK, 'ko')
    P('s_waitcnt vmcnt(0)\ns_mov_b64 exec, 1\nbuffer_store_dword v26, off, s[20:23], s82 sc1\ns_mov_b64 exec, -1')
    P('s_waitcnt lgkmcnt(0)')
    P('s_barrier')
    stamp(P, 16)
    for t in range(8):
        for sl in range(3):
            P('ds_read_b128 v[%d:%d], v%d offset:%d' % (TMP + sl * 32 + t * 4, TMP + sl * 32 + t * 4 + 3, 12 + sl, t * 1024))
    xd_math(P, ZK)
    P('buffer_load_dword v59, off, s[20:23], s83 sc1')
    P('s_waitcnt lgkmcnt(0)')
    for t in range(8):
        for h in range(2):
            r = t * 4 + 2 * h
            P(add(TMP + r, TMP + r, TMP + 32 + r)); P(add(ZK + r, ZK + r, TMP + 64 + r))
        for h in range(2):
            r = t * 4 + 2 * h
            P(add(ZK + r, ZK + r, TMP + r))
    stamp(P, 17)
    P('s_waitcnt vmcnt(0)')
    spin(P, 'P2_x', 'v_cmp_ne_u32 vcc, 1, v59', 'buffer_load_dword v59, off, s[20:23], s83 sc1', 1)
    stamp(P, 18)
    for t in range(8):
        P('buffer_load_dwordx4 v[%d:%d], v15, s[20:23], s%d offen offset:%d sc1' % (XR + t * 4, XR + t * 4 + 3, 80 + (t >> 2), (t & 3) * 1024))
    for t in range(8):
        P('s_waitcnt vmcnt(7)')
        for h in range(2):
            r = t * 4 + 2 * h
            P(add(ZK + r, ZK + r, XR + r))
        P('buffer_store_dwordx4 v[%d:%d], v%d, s[12:15], 0 offen offset:%d' % (ZK + t * 4, ZK + t * 4 + 3, 29 if t >= 4 else 28, (t & 3) * 64))

CPF = int(os.environ.get('CPF', '1'))
_cpn = [0]
def code_touch(I, start, end, vt=26, sp=84):
    if not CPF: return
    _cpn[0] += 1
    L = 'CT%d' % _cpn[0]
    I('s_getpc_b64 s[%d:%d]' % (sp, sp + 1))
    I(L + ':')
    I('s_add_u32 s%d, s%d, %s-%s' % (sp, sp, start, L))
    I('s_addc_u32 s%d, s%d, 0' % (sp + 1, sp + 1))
    I('v_lshlrev_b32 v%d, 7, v0' % vt)
    I('v_min_u32 v%d, %s-%s-4, v%d' % (vt, end, start, vt))
    I('global_load_dword a255, v%d, s[%d:%d]' % (vt, sp, sp + 1))

NP = int(os.environ.get('NP', '4'))
ROOM = int(os.environ.get('ROOM', '7'))
def site_of(u):
    if u < NP: return ('F', u)
    if u >= 28: return ('E', u)
    return ('L', u % 4)

def body(c, emit):
    P = c.P
    prologue(c)
    if PRE:
        for u in range(NP): substep(c, u, site_of(u), first=(u == 0), tch=(u >= 4 and u % 4 == TPOS))
    else:
        g1, g2 = g_work(c, 64, 32)
        extra = g1 + [lambda: c.wait_vm(('s',), lambda t: t == ('S',))] + g2[:0]
        tb = as_fill(c, tables_text())
        q = [g1, g2, [lambda: c.wait_vm(('s',), lambda t: t == ('S',))] + tb]
        extra = []
        for u in range(NP):
            if u == 0: extra += q[0]
            if u == 1: extra += q[1] + q[2]
            substep(c, u, site_of(u), extra=extra, first=(u == 0), tch=(u >= 4 and u % 4 == TPOS), room_extra=ROOM - 7)
        assert not extra, len(extra)
    if emit:
        stamp(P, 1); stamp_rt(P, 21)
        P('.p2align 6')
        P.label('K1_loop')
        P('s_cmp_eq_u32 s33, s93\ns_cbranch_scc1 K1_t1')
        P.label('K1_tback')
        c_loads(P)
        for u in range(NP, NP + 4): substep(c, u, site_of(u), tch=(u % 4 == TPOS))
        P("""
        s_add_u32 s33, s33, 1
        s_cmp_lt_u32 s33, 6
        s_cbranch_scc1 K1_loop
        """)
    else:
        for u in range(NP, 28): substep(c, u, site_of(u), tch=(u % 4 == TPOS))
    c.I('CP_b:')
    stamp(c.I, 2); stamp_rt(c.I, 22)
    init_load(c)
    substep(c, 28, site_of(28), last=1)
    substep(c, 29, site_of(29), last=2, extra=c_stores(c))
    stamp(c.I, 6)
    init_check(c)
    last_stage(c)

DIAG = int(os.environ.get('DIAG', '0'))
if DIAG:
    DMAP = {0: 0, 4: 1, 1: 2, 2: 3, 5: 4, 7: 5, 9: 6, 12: 7, 13: 8, 15: 9, 16: 10, 17: 11, 18: 12, 19: 13, 20: 14}
    def stamp(I, idx, vr=16):
        if idx in DMAP:
            I('s_memrealtime s[84:85]')
            I('s_waitcnt lgkmcnt(0)')
            if idx == 0:
                I('s_not_b32 s85, s84')
                I('v_writelane_b32 v16, s85, 15')
            I('v_writelane_b32 v16, s84, %d' % DMAP[idx])
    def stamp_rt(I, idx, vr=16): pass
    def stamp_out(I, kern, vr=16, va=23):
        I('v_lshlrev_b32 v23, 2, v17')
        I('s_mov_b64 exec, 0xffff')
        I('buffer_atomic_umax v16, v23, s[24:27], 0 offen sc1')
        I('s_mov_b64 exec, -1')
PROBE = os.environ.get('PROBE', '')
if PROBE:
    PA, PB = [int(x) for x in PROBE.split(',')]
    def stamp(I, idx, vr=16):
        if idx == PA or idx == PB:
            I('s_memrealtime s[84:85]')
            I('s_waitcnt lgkmcnt(0)')
            I('v_writelane_b32 v16, s84, %d' % (0 if idx == PA else 1))
    def stamp_rt(I, idx, vr=16): pass
    def stamp_out(I, kern, vr=16, va=23):
        I('v_readlane_b32 s6, v16, 0')
        I('v_readlane_b32 s7, v16, 1')
        I('s_memrealtime s[84:85]')
        I('s_waitcnt lgkmcnt(0)')
        I('s_sub_u32 s6, s7, s6')
        I('s_add_u32 s6, s6, s84')
        I('PROBE_l:')
        I('s_memrealtime s[84:85]')
        I('s_waitcnt lgkmcnt(0)')
        I('s_sub_u32 s7, s84, s6')
        I('s_cmp_lt_i32 s7, 0')
        I('s_cbranch_scc1 PROBE_l')
KNAME = 'gated_mix__ssm_conv_s5__glu_gated_reglu__prompt_kernel'
def gen():
    waits = {}
    body(Ctx(None, waits), False)
    c = Ctx(None, waits)
    p2_enter(c); p2_main(c)
    P = Prog()
    c = Ctx(P, waits)
    P('.globl %s\n.p2align 8\n.type %s,@function' % (KNAME, KNAME))
    P.label(KNAME)
    body(c, True)
    epilogue(P)
    p2_enter(c)
    p2_main(c)
    P('s_nop 7')
    p2_final(P)
    stamp(P, 19); stamp_rt(P, 11)
    P('s_waitcnt vmcnt(0)')
    stamp(P, 20)
    stamp_out(P, 0)
    P.label('K1_done')
    P('s_endpgm')
    P.label('K1_t1')
    P("""
    s_lshl_b32 s6, 1, s4
    v_mov_b32 v26, s6
    s_lshl_b32 s7, s5, 2
    s_mov_b64 exec, 1
    buffer_atomic_add v26, off, s[24:27], s7 offset:128 sc1
    s_mov_b64 exec, -1
    s_branch K1_tback
    """)
    P.label('CP_end')
    txt = P.text()
    X = os.environ.get('XP', '')
    if X:
        a = txt.index('K1_tback:'); b = txt.index('s_cbranch_scc1 K1_loop')
        L = txt[a:b].split('\n')
        if 'r' in X: L = [l for l in L if 'ds_read' not in l]
        if 'd' in X: L = [l for l in L if ' lds' not in l]
        if 't' in X: L = [l for l in L if 'ds_read_b64_tr' not in l]
        if 'h' in X: L = [l for k, l in enumerate(L) if not ('ds_read_b64_tr' in l and (int(l.split('offset:')[1]) // 4096) % 2)]
        if 'b' in X: L = [l for l in L if 's_barrier' not in l]
        txt = txt[:a] + '\n'.join(L) + txt[b:]
    return txt, waits

if __name__ == '__main__':
    import sys
    NAME = 'gated_mix__ssm_conv_s5__glu_gated_reglu__prompt'
    ref = open('cdna_kernels/%s.s.ref' % NAME).read().splitlines()
    hdr = [l for l in ref if l.startswith(';') and '@launch' not in l]
    t, w = gen()
    out = '\n'.join(hdr) + '\n; @launch grid=(256,1,1) block=(256,1,1) lds=%d\n' % K1_LDS
    out += '.amdgcn_target "amdgcn-amd-amdhsa--gfx950"\n.text\n' + t
    out += '.section .rodata,"a"\n.p2align 6\n' + K1_DESC.replace('k1_kernel', KNAME)
    dst = sys.argv[1] if len(sys.argv) > 1 else 'cdna_kernels/%s.s' % NAME
    open(dst, 'w').write(out)
    print('wrote', dst, len(out))
```

```python
import os
from asmlib import Prog, Counter
import k1
from k1 import Ctx, rr, cmul_pk, ffn_out, acc_reg, ACC_V0, stamp, stamp_rt, stamp_out, NKB, WS_G, WS_T, WS_C2, WS_FL, WS_XB, K1_DESC

XB = 0
WB = 65536
BB = 131072
TAB = 147456
POW = TAB + 2048
WG64 = TAB + 6144
K1_LDS = 163840
assert TAB == k1.TAB
XSET = 128
RING = 192
BH = 220
OOB = 0x70000000
EXP = int(os.environ.get('EXP', '0'))
TS0 = int(os.environ.get('TS0', '6'))
TPRE = int(os.environ.get('TPRE', '0'))
DEFER = int(os.environ.get('DEFER', '0'))
NTW = 'nt' if int(os.environ.get('NTW', '1')) else ''
NTB = 'nt' if int(os.environ.get('NTB', '1')) else ''
NTC = 'nt' if int(os.environ.get('NTC', '1')) else ''
NTT = 'nt' if int(os.environ.get('NTT', '0')) else ''
NTX = 'nt' if int(os.environ.get('NTX', '0')) else ''
WDT = int(os.environ.get('WDT', '1'))
PRE = int(os.environ.get('PRE', '1'))
TPOS = int(os.environ.get('TPOS', '0'))
WL2 = int(os.environ.get('WL2', '0'))
WL2TXT = """
    s_lshr_b32 s6, s2, 3
    s_lshl_b32 s6, s6, 2
    s_add_u32 s6, s6, s3
    s_mul_i32 s6, s6, 14
    s_and_b32 s70, s2, 1
    s_mul_i32 s70, s70, 1792
    s_add_u32 s6, s6, s70
    s_lshl_b32 s92, s6, 11
    s_bfe_u32 s70, s2, 0x10001
    s_lshl_b32 s70, s70, 10
    s_add_u32 s92, s92, s70
    s_sub_u32 s92, s92, """ + {0: '0', 1: '6144', 2: '16384'}[WL2] + """
    v_lshrrev_b32 v26, 3, v17
    v_and_b32 v27, 7, v17
    v_lshlrev_b32 v31, 11, v26
    v_lshl_add_u32 v31, v27, 7, v31
""" if WL2 else ''
PT = int(os.environ.get('PT', '0'))
TOUCH = int(os.environ.get('TOUCH', '1'))

FFN = []
for jt in range(7): FFN += [('G', jt), ('U', jt)]
SSM = [('R', 0), ('I', 0), ('R', 1), ('I', 1)]

def w_read(c, u, t):
    kind, jt = FFN[t]
    slot = RING + (t % 7) * 4
    th = []
    for e in range(2):
        off = (u % 4) * 16384 + ((kind == 'U') * 2 + e) * 4096 + jt * 32
        th.append(lambda off=off, e=e: c.ds('ds_read_b64_tr_b16 a[%d:%d], v12 offset:%d' % (slot + 2 * e, slot + 2 * e + 1, off), ('F', u, t)))
    return th
def b_read(c, s, hh, k):
    kind, jt = SSM[k]
    off = (s % 2) * 8192 + ((kind == 'I') * 32 + jt * 16) * 128
    return lambda: c.ds('ds_read_b128 %s, v%d offset:%d' % (rr('a', BH + hh * 16 + k * 4), 13 + hh, off), ('BF', s, hh))
def x_read(c, s, hh, i):
    off = (s % 2) * 8192 + i * 2048
    return lambda: c.ds('ds_read_b128 %s, v%d offset:%d' % (rr('a', XSET + (s % 2) * 32 + hh * 16 + i * 4), 7 + hh, off), ('XF', s, hh))
def w_dma(c, u, n):
    th = []
    th.append(lambda: c.I('s_add_u32 m0, s32, %d' % ((u % 4) * 16384)))
    th.append(lambda: c.vmem('buffer_load_dwordx4 v%d, s[12:15], s30 offen offset:%d %s lds' % (3 + n, n * 1024, NTW), ('W', u)))
    if n == 3: th.append(lambda: c.I('s_add_u32 s30, s30, 229376'))
    return th
def x_dma(c, s, k):
    th = []
    th.append(lambda: c.I('s_add_u32 m0, s34, %d' % ((s % 2) * 8192 + (k >> 2) * 4096)))
    th.append(lambda: c.vmem('buffer_load_dwordx4 v%d, s[8:11], s%d offen offset:%d %s lds' % (1 + (k & 1), 28 + (k >> 2), (k & 3) * 1024, NTX), ('X', s)))
    if k == 7:
        th.append(lambda: c.I('s_add_u32 s28, s28, 128'))
        th.append(lambda: c.I('s_cmp_lt_u32 s28, 2048'))
        th.append(lambda: c.I('s_cselect_b32 s28, s28, s77'))
        th.append(lambda: c.I('s_add_u32 s29, s28, 4096'))
    return th
def b_dma(c, s, n):
    th = []
    th.append(lambda: c.I('s_add_u32 m0, s35, %d' % ((s % 2) * 8192)))
    th.append(lambda: c.vmem('buffer_load_dwordx4 v%d, s[16:19], s31 offen offset:%d %s lds' % (10 + n, n * 1024, NTB), ('B', s)))
    if n == 1:
        th.append(lambda: c.I('s_add_u32 s31, s31, 128'))
        th.append(lambda: c.I('s_cmp_lt_u32 s31, 2048'))
        th.append(lambda: c.I('s_cselect_b32 s31, s31, s77'))
    return th

def substep(c, u, site, extra=None, first=False, last=0, room_extra=0, tch=False):
    tq = ptouch(c) if (tch and TOUCH) else []
    hh = u & 1; s = u >> 1
    for j in range(18):
        fill = []
        if j <= 8: fill += w_read(c, u, j + 5)
        if 12 <= j <= 16 and u != 31: fill += w_read(c, u + 1, j - 12)
        if u == 31: pass
        elif hh == 1:
            if j == 9: fill.append(lambda: c.wait_vm((site, 'x'), lambda t: t == ('X', s + 1)))
            if j in (9, 10): fill += [x_read(c, s + 1, 0, (j - 9) * 2 + k) for k in range(2)]
            if j in (14, 15, 16, 17): fill.append(x_read(c, s + 1, 1, j - 14))
            if j in (12, 13): fill += [b_read(c, s + 1, 0, (j - 12) * 2 + k) for k in range(2)]
        else:
            if j in (0, 2, 4, 6): fill.append(b_read(c, s, 1, j // 2))
        d = []
        if j in (13, 15, 17): d = w_dma(c, u + 4, (j - 13) // 2)
        if j == 1: d = w_dma(c, u + 3, 3)
        if j in (3, 5, 7, 9): d = x_dma(c, s + 2, hh * 4 + (j - 3) // 2)
        if hh == 0 and j in (14, 16): d = b_dma(c, s + 2, (j - 14) // 2)
        if last == 2 or (last == 1 and j != 1): d = []
        if DEFER and u == 0:
            seq = [('x', 1, k) for k in range(8)] + [('w', 2, n) for n in range(4)] + [('b', 1, n) for n in range(2)] + [('w', 3, n) for n in range(4)] + [('x', 2, k) for k in range(4)]
            if j <= 10:
                d = []
                for ty, a, b in seq[2 * j:2 * j + 2]:
                    d += {'x': x_dma, 'w': w_dma, 'b': b_dma}[ty](c, a, b)
        fill = d[:1] + fill + d[1:]
        if tq and j in (10, 11): fill += tq[:2]; tq = tq[2:]
        if tq and j == 12: fill += tq; tq = []
        if extra:
            room = max(0, 8 - 1 - len(fill) + room_extra)
            for _ in range(min(room, len(extra))): fill.append(extra.pop(0))
        if j == 0: c.wait_lg((site, 'xf'), lambda t: t in (('XF', s, hh), ('F', u, 0)))
        elif j < 14: c.wait_lg((site, 'f', j), lambda t: t == ('F', u, j))
        elif j == 14: c.wait_lg((site, 'bf'), lambda t: t == ('BF', s, hh))
        if j < 14:
            kind, jt = FFN[j]; a = RING + (j % 7) * 4
        else:
            kind, jt = SSM[j - 14]; a = BH + hh * 16 + (j - 14) * 4
        nf = len(fill); k = 0
        for i in range(4):
            f, b = acc_reg(kind, jt, i)
            c.I('v_mfma_f32_16x16x32_bf16 %s, %s, %s, %s' % (rr(f, b), rr('a', a), rr('a', XSET + (s % 2) * 32 + hh * 16 + i * 4), '0' if first else rr(f, b)))
            take = (nf * (i + 1) + 3) // 4 - k
            for _ in range(take):
                fill[k](); k += 1
        if j == 11 and u != 31:
            if hh == 1: c.wait_vm((site, 'd'), lambda t: t in (('W', u + 1), ('B', s + 1)))
            else: c.wait_vm((site, 'd'), lambda t: t == ('W', u + 1))
            c.I('s_waitcnt lgkmcnt(0)')
            c.lg.q = []
            c.I('s_barrier')

def touch(I, batch):
    ks = 2 + 7 * batch
    I('''
    s_mov_b32 s6, %d
    s_mov_b32 s7, %d
    s_mov_b32 exec_hi, 0x1ffff
    buffer_load_dword a255, v28, s[12:15], s6 offen
    s_mov_b64 exec, 0x3fff
    buffer_load_dword a255, v29, s[16:19], s7 offen
    buffer_load_dword a255, v30, s[8:11], s7 offen
    s_mov_b64 exec, -1
    ''' % (ks * 64 * 7168, ks * 128))

def touch_wd(I):
    I('''
    s_lshl_b32 s6, s2, 2
    s_add_u32 s6, s6, s3
    s_mul_i32 s6, s6, 7168
    v_lshlrev_b32 v26, 7, v17
    s_mov_b32 exec_hi, 0xffffff
    buffer_load_dword a255, v26, s[88:91], s6 offen
    s_mov_b64 exec, -1
    ''')


def c_addr(I):
    I("""
    s_and_b32 s7, s3, 1
    s_lshl_b32 s6, s4, 7
    s_lshl_b32 s70, s7, 6
    s_add_u32 s6, s6, s70
    v_add_u32 v9, s6, v18
    v_lshlrev_b32 v9, 11, v9
    v_lshl_add_u32 v9, v19, 4, v9
    s_lshl_b32 s6, s5, 6
    v_add_u32 v9, s6, v9
    """)

def c_loads(P):
    for k in range(4):
        P('s_cmp_lg_u32 s33, %d' % (k + 1))
        P('s_cbranch_scc1 K1_c%d' % k)
        P('global_load_dwordx4 v[%d:%d], v9, s[86:87] %s' % (32 + 4 * k, 35 + 4 * k, NTC))
        P('v_add_u32 v9, 0x8000, v9')
        if k == 3: code_touch(P, 'CP_b', 'CP_c')
        P.label('K1_c%d' % k)

def c_stores(c):
    R = Rec(c, 'cs')
    R("""
    s_lshl_b32 s6, s4, 6
    s_lshr_b32 s7, s3, 1
    s_lshl_b32 s7, s7, 5
    s_add_u32 s6, s6, s7
    s_add_u32 s6, s6, s5
    s_lshl_b32 s6, s6, 13
    s_and_b32 s7, s3, 1
    s_lshl_b32 s7, s7, 12
    s_add_u32 s6, s6, s7
    s_add_u32 s6, s6, %d
    v_lshlrev_b32 v20, 4, v17
    """ % WS_C2)
    for k in range(4):
        R.vm('buffer_store_dwordx4 v[%d:%d], v20, s[20:23], s6 offen offset:%d sc1' % (32 + 4 * k, 35 + 4 * k, k * 1024), ('SV',))
    return R.th

def ptouch(c):
    def mk(mask, txt):
        def f():
            c.I('s_mov_b64 exec, %s' % mask); c.vmem(txt, ('TC',)); c.I('s_mov_b64 exec, -1')
        return f
    th = [mk('0x3fff', 'buffer_load_dword a255, v28, s[12:15], s95 offen %s' % NTT),
          mk('0xf', 'buffer_load_dword a255, v29, s[16:19], s94 offen %s' % NTB),
          mk('0xf', 'buffer_load_dword a255, v30, s[8:11], s94 offen'),
          mk({0: '0x7ffff', 1: '0xffffff', 2: '0xffffffff'}[WL2], 'buffer_load_dword a255, v31, s[88:91], s92 offen')]
    for t in ('s_add_u32 s92, s92, %d' % {0: 2432, 1: 6144, 2: 8192}[WL2], 's_add_u32 s95, s95, 917504'):
        th.append(lambda t=t: c.I(t))
    th.append(lambda: c.I('s_add_u32 s94, s94, 256\ns_cmp_lt_u32 s94, 2048\ns_cselect_b32 s94, s94, s77'))
    return th

def tables_text():
    t = """
    v_lshlrev_b32 v48, 16, v48
    v_lshlrev_b32 v49, 16, v49
    v_lshlrev_b32 v50, 16, v50
    v_mul_f32 v50, 0x3fb8aa3b, v50
    v_exp_f32 v50, v50
    v_cvt_pk_bf16_f32 v50, v50, v50
    v_lshlrev_b32 v50, 16, v50
    v_mul_f32 v51, v50, v48
    v_mul_f32 v52, v50, v49
    v_mul_f32 v51, 0x3fb8aa3b, v51
    v_exp_f32 v51, v51
    v_mul_f32 v52, 0.15915494, v52
    v_fract_f32 v52, v52
    v_cos_f32 v53, v52
    v_sin_f32 v54, v52
    v_mul_f32 v64, v51, v53
    v_mul_f32 v65, v51, v54
    v_add_f32 v51, -1.0, v64
    v_mul_f32 v52, v48, v48
    v_fmac_f32 v52, v49, v49
    v_rcp_f32 v53, v52
    v_mul_f32 v54, v51, v48
    v_fmac_f32 v54, v65, v49
    v_mul_f32 v55, v65, v48
    v_fma_f32 v55, -v51, v49, v55
    v_fma_f32 v52, -v52, v53, 2.0
    v_mul_f32 v53, v53, v52
    v_add_f32 v53, v53, v53
    v_mul_f32 v88, v54, v53
    v_mul_f32 v89, v55, v53
    """
    for k in range(9):
        a = 64 + 2 * k; d = a + 2
        t += """
        v_mul_f32 v%d, v%d, v%d
        v_fma_f32 v%d, -v%d, v%d, v%d
        v_mul_f32 v%d, v%d, v%d
        v_add_f32 v%d, v%d, v%d
        """ % (d, a, a, d, a + 1, a + 1, d, d + 1, a, a + 1, d + 1, d + 1, d + 1)
    t += """
    v_lshrrev_b32 v51, 5, v0
    v_mov_b32 v56, 1.0
    v_mov_b32 v57, 0
    v_mov_b32 v60, 1.0
    v_mov_b32 v61, 0
    """
    def cm(dr, di, ar, ai, br, bi):
        return """
        v_mul_f32 v%d, v%d, v%d
        v_fma_f32 v%d, -v%d, v%d, v%d
        v_mul_f32 v%d, v%d, v%d
        v_fmac_f32 v%d, v%d, v%d
        """ % (dr, ar, br, dr, ai, bi, dr, di, ar, bi, di, ai, br)
    for b in range(3):
        a = 68 + 2 * b; a2 = 76 + 2 * b
        t += 'v_and_b32 v54, %d, v51\nv_cmp_ne_u32 vcc, 0, v54\n' % (1 << b)
        t += cm(52, 53, 56, 57, a, a + 1) + cm(62, 63, 60, 61, a2, a2 + 1)
        t += """
        v_cndmask_b32 v56, v56, v52, vcc
        v_cndmask_b32 v57, v57, v53, vcc
        v_cndmask_b32 v60, v60, v62, vcc
        v_cndmask_b32 v61, v61, v63, vcc
        """
    t += cm(58, 59, 56, 57, 74, 75)
    t += cm(62, 63, 60, 61, 82, 83) + cm(84, 85, 62, 63, 82, 83) + cm(86, 87, 84, 85, 82, 83)
    t += """
    v_and_b32 v52, 31, v0
    v_lshlrev_b32 v52, 2, v52
    v_lshl_add_u32 v53, v51, 8, v52
    v_add_u32 v53, %d, v53
    v_add_u32 v52, %d, v52
    ds_write2_b32 v53, v56, v57 offset0:0 offset1:32
    ds_write_b32 v53, v58 offset:2048
    ds_write_b32 v53, v59 offset:2176
    """ % (POW, TAB)
    for k, r in enumerate((60, 62, 84, 86)):
        t += 'ds_write_b32 v53, v%d offset:%d\nds_write_b32 v53, v%d offset:%d\n' % (r, 4096 + k * 2048, r + 1, 4096 + k * 2048 + 128)
    for idx, r in enumerate([64, 68, 70, 72]):
        t += 'ds_write2_b32 v52, v%d, v%d offset0:%d offset1:%d\n' % (r, r + 1, idx * 64, idx * 64 + 32)
    for idx, r in ((4, 74), (5, 88)):
        t += 'ds_write_b32 v52, v%d offset:%d\nds_write_b32 v52, v%d offset:%d\n' % (r, idx * 256, r + 1, idx * 256 + 128)
    return [l.strip() for l in t.splitlines() if l.strip()]

class Rec:
    def __init__(self, c, name):
        self.c = c; self.th = []; self.name = name; self.n = 0
    def __call__(self, text):
        for l in text.strip('\n').split('\n'):
            l = l.strip()
            if l: self.th.append(lambda l=l: self.c.I(l))
    def blk(self, items):
        def f():
            for k, t in items:
                if k == 'vm': self.c.vmem(t, ('SV',))
                else: self.c.I(t)
        self.th.append(f)
    def ds(self, text, tag): self.th.append(lambda: self.c.ds(text, tag))
    def vm(self, text, tag): self.th.append(lambda: self.c.vmem(text, tag))
    def wl(self, tag):
        self.n += 1; site = (self.name, 'l', self.n)
        self.th.append(lambda: self.c.wait_lg(site, lambda t: t == tag))
    def wv(self, tag):
        self.n += 1; site = (self.name, 'v', self.n)
        self.th.append(lambda: self.c.wait_vm(site, lambda t: t == tag))

def g_work(c, GI=64, G=48):
    R = Rec(c, 'g')
    R("""
    s_lshl_b32 s6, s4, 1
    s_lshr_b32 s7, s3, 1
    s_add_u32 s6, s6, s7
    s_lshl_b32 s6, s6, 6
    s_lshl_b32 s7, s5, 1
    s_add_u32 s6, s6, s7
    s_and_b32 s7, s3, 1
    s_add_u32 s6, s6, s7
    s_lshl_b32 s76, s6, 7
    s_add_u32 s76, s76, %d
    s_add_u32 s7, s76, 0x20000
    v_mov_b32 v21, 0
    s_lshl_b32 s70, s71, 11
    v_lshlrev_b32 v25, 5, v17
    s_lshl_b32 s6, s2, 2
    s_add_u32 s6, s6, s3
    s_lshl_b32 s6, s6, 7
    s_add_u32 s6, s6, %d
    """ % (WS_FL, WS_FL + 0x40000))
    R.vm('buffer_load_dwordx4 v[%d:%d], v25, s[8:11], s70 offen' % (GI + 0, GI + 3), ('GL',))
    R.vm('buffer_load_dwordx4 v[%d:%d], v25, s[8:11], s70 offen offset:16' % (GI + 4, GI + 7), ('GL',))
    R.vm('buffer_load_dwordx4 v[%d:%d], v25, s[8:11], s70 offen offset:2048' % (GI + 8, GI + 11), ('GL',))
    R.vm('buffer_load_dwordx4 v[%d:%d], v25, s[8:11], s70 offen offset:2064' % (GI + 12, GI + 15), ('GL',))
    R.vm('global_load_dwordx4 v[%d:%d], v25, s[62:63]' % (GI + 16, GI + 19), ('GL',))
    R.vm('global_load_dwordx4 v[%d:%d], v25, s[62:63] offset:16' % (GI + 20, GI + 23), ('GL',))
    R.blk([('i', 's_mov_b64 exec, 1'), ('vm', 'buffer_store_dword v21, off, s[20:23], s76 sc1'), ('vm', 'buffer_store_dword v21, off, s[20:23], s7 sc1'), ('vm', 'buffer_store_dword v21, off, s[20:23], s6 sc1'), ('i', 's_mov_b64 exec, -1')])
    first = len(R.th)
    R.wv(('GL',))
    for d in range(8):
        R('v_and_b32 v%d, 0xffff0000, v%d\nv_lshlrev_b32 v%d, 16, v%d' % (G + 3, GI + 16 + d, G + 2, GI + 16 + d))
        for row in range(2):
            xr = GI + row * 8 + d; a = G + 4 + row * 2; t = G + 8 + row * 2
            R("""
            v_and_b32 v%d, 0xffff0000, v%d
            v_lshlrev_b32 v%d, 16, v%d
            v_pk_mul_f32 v[%d:%d], v[%d:%d], v[%d:%d]
            v_cvt_pk_bf16_f32 v%d, v%d, v%d
            v_and_b32 v%d, 0xffff0000, v%d
            v_lshlrev_b32 v%d, 16, v%d
            """ % (t + 1, xr, t, xr, t, t + 1, t, t + 1, G + 2, G + 3, t, t, t + 1, t + 1, t, t, t))
            if d == 0: R('v_mov_b64 v[%d:%d], v[%d:%d]' % (a, a + 1, t, t + 1))
            else: R('v_pk_add_f32 v[%d:%d], v[%d:%d], v[%d:%d]' % (a, a + 1, a, a + 1, t, t + 1))
    for row in range(2):
        a = G + 4 + row * 2
        R('v_add_f32 v%d, v%d, v%d' % (a, a, a + 1))
    for sh in (1, 2, 4, 8):
        for row in range(2):
            a = G + 4 + row * 2
            R('v_add_f32_dpp v%d, v%d, v%d row_shr:%d row_mask:0xf bank_mask:0xf bound_ctrl:0' % (a, a, a, sh))
    for row in range(2):
        for k in range(4):
            R('v_readlane_b32 s%d, v%d, %d' % (78 + row * 4 + k, G + 4 + row * 2, 15 + 16 * k))
    R("""
    v_mov_b32 v48, s78
    v_add_f32 v48, s79, v48
    v_add_f32 v48, s80, v48
    v_add_f32 v48, s81, v48
    v_mov_b32 v49, s82
    v_add_f32 v49, s83, v49
    v_add_f32 v49, s84, v49
    v_add_f32 v49, s85, v49
    v_cvt_pk_bf16_f32 v48, v48, v49
    v_lshlrev_b32 v49, 16, v48
    v_and_b32 v50, 0xffff0000, v48
    v_mul_f32 v49, 0xbfb8aa3b, v49
    v_mul_f32 v50, 0xbfb8aa3b, v50
    v_exp_f32 v49, v49
    v_exp_f32 v50, v50
    v_add_f32 v49, 1.0, v49
    v_add_f32 v50, 1.0, v50
    v_rcp_f32 v49, v49
    v_rcp_f32 v50, v50
    v_cvt_pk_bf16_f32 v48, v49, v50
    v_lshlrev_b32 v50, 16, v48
    v_and_b32 v51, 0xffff0000, v48
    s_lshl_b32 s6, s71, 2
    s_add_u32 s6, s6, %d
    """.replace('v48', 'v%d' % G).replace('v49', 'v%d' % (G + 1)).replace('v50', 'v%d' % (G + 2)).replace('v51', 'v%d' % (G + 3)) % WS_G)
    R.blk([('i', 's_mov_b64 exec, 1'), ('vm', 'buffer_store_dwordx2 v[%d:%d], off, s[20:23], s6 sc1' % (G + 2, G + 3)), ('i', 's_mov_b64 exec, -1')])
    return R.th[:first], R.th[first:]
def as_fill(c, lines):
    out = []
    for l in lines:
        if l.startswith('ds_'): out.append(lambda l=l: c.ds(l, ('T',)))
        else: out.append(lambda l=l: c.I(l))
    return out

def run(ths):
    for t in ths: t()

def prologue(c):
    I = c.I
    if k1.STAMP: I('s_memrealtime s[82:83]')
    I('''
    s_cmp_ge_u32 s2, 256
    s_cbranch_scc1 K1_done
    s_load_dwordx16 s[36:51], s[0:1], 0
    s_load_dwordx16 s[52:67], s[0:1], 64
    s_load_dwordx2 s[68:69], s[0:1], 128
    ''')
    if c.emit: code_touch(I, 'CP_a', 'CP_b')
    I('''
    CP_a:
    v_lshrrev_b32 v16, 6, v0
    v_and_b32 v17, 63, v0
    v_readfirstlane_b32 s3, v16
    s_lshr_b32 s4, s2, 5
    s_and_b32 s5, s2, 7
    s_lshl_b32 s5, s5, 2
    s_bfe_u32 s6, s2, 0x20003
    s_add_u32 s5, s5, s6
    v_and_b32 v18, 15, v0
    v_bfe_u32 v19, v0, 4, 2
    v_lshrrev_b32 v20, 3, v17
    v_and_b32 v21, 7, v17
    v_xor_b32 v21, v21, v20
    s_lshl_b32 s6, s4, 8
    s_lshl_b32 s7, s3, 6
    s_add_u32 s6, s6, s7
    v_lshl_add_u32 v1, v20, 2, s6
    v_lshlrev_b32 v1, 11, v1
    v_lshl_add_u32 v1, v21, 4, v1
    v_add_u32 v2, 0xfc00, v1
    s_mov_b32 s10, 0x400000
    s_mov_b32 s11, 0x00020000
    s_mov_b32 s14, 0x700000
    s_mov_b32 s15, 0x00020000
    s_mov_b32 s18, 0x200000
    s_mov_b32 s19, 0x00020000
    s_mov_b32 s22, 0x10000000
    s_mov_b32 s23, 0x00020000
    s_mov_b32 s26, 256
    s_mov_b32 s27, 0x00020000
    s_mov_b32 s90, 0x700000
    s_mov_b32 s91, 0x00020000
    s_mov_b32 s28, 0
    s_mov_b32 s29, 4096
    s_mov_b32 s30, 0
    s_mov_b32 s31, 0
    s_mov_b32 s77, 0x%x
    s_lshl_b32 s32, s3, 12
    s_add_u32 s32, s32, %d
    s_lshl_b32 s34, s3, 14
    s_lshl_b32 s35, s3, 11
    s_add_u32 s35, s35, %d
    v_lshrrev_b32 v22, 2, v20
    v_and_b32 v23, 3, v20
    v_lshl_add_u32 v22, v22, 3, v23
    s_and_b32 s7, s3, 1
    s_lshl_b32 s6, s5, 5
    s_lshl_b32 s70, s7, 2
    s_add_u32 s6, s6, s70
    v_add_u32 v22, s6, v22
    v_lshlrev_b32 v22, 11, v22
    v_lshl_add_u32 v10, v21, 4, v22
    v_add_u32 v11, 0x7c00, v10
    s_mul_i32 s72, s5, 224
    s_mul_i32 s70, s7, 28672
    s_add_u32 s72, s72, s70
    s_and_b32 s73, s5, 1
    s_lshl_b32 s73, s73, 1
    s_movk_i32 s74, 4682
    s_movk_i32 s75, 7168
    s_waitcnt lgkmcnt(0)
    s_mov_b32 s8, s36
    s_mov_b32 s9, s37
    s_cmp_ge_u32 s3, 2
    s_cselect_b32 s12, s58, s56
    s_cselect_b32 s13, s59, s57
    s_cselect_b32 s16, s44, s42
    s_cselect_b32 s17, s45, s43
    s_cselect_b32 s86, s48, s46
    s_cselect_b32 s87, s49, s47
    s_mov_b32 s20, s68
    s_mov_b32 s21, s69
    s_mov_b32 s24, s66
    s_mov_b32 s25, s67
    s_mov_b32 s88, s60
    s_mov_b32 s89, s61
    ''' % (OOB, WB, BB))
    stamp(I, 0); stamp_rt(I, 10)
    if k1.STAMP: I('v_writelane_b32 v16, s82, 25')
    if PT:
        I('''
        s_lshr_b32 s78, s2, 3
        s_lshl_b32 s78, s78, 2
        s_add_u32 s78, s78, s3
        s_and_b32 s79, s78, 15
        s_lshr_b32 s80, s78, 4
        s_mov_b32 s82, 0x11111112
        s_mov_b32 s83, 0x14144401
        s_lshl_b32 s81, s79, 2
        s_lshr_b64 s[82:83], s[82:83], s81
        s_and_b32 s82, s82, 15
        s_cmp_lt_u32 s80, s82
        s_cselect_b32 s79, s79, 0
        s_cselect_b32 s80, s80, 0
        s_sub_u32 s81, s78, 64
        s_cmp_lt_u32 s81, 20
        s_cselect_b32 s79, 16, s79
        s_cselect_b32 s80, s81, s80
        s_lshl_b32 s79, s79, 3
        s_lshl_b32 s80, s80, 21
        s_load_dwordx2 s[82:83], s[0:1], s79
        ''')
    def tv_block():
        for l in range(64): assert (l * 37) >> 8 == l // 7
        I("""
        v_mul_u32_u24 v26, 37, v17
        v_lshrrev_b32 v26, 8, v26
        v_mul_u32_u24 v27, 7, v26
        v_sub_u32 v27, v17, v27
        v_lshlrev_b32 v27, 7, v27
        s_lshr_b32 s6, s2, 3
        s_lshl_b32 s6, s6, 1
        s_add_u32 s6, s6, s7
        s_lshl_b32 s6, s6, 1
        s_and_b32 s70, s2, 7
        v_add_u32 v28, s6, v26
        v_mul_u32_u24 v28, s75, v28
        v_add_u32 v28, v28, v27
        s_mul_i32 s71, s70, 896
        v_add_u32 v28, s71, v28
        v_lshrrev_b32 v26, 1, v17
        v_and_b32 v27, 1, v17
        v_lshlrev_b32 v27, 7, v27
        s_lshl_b32 s71, s70, 7
        s_add_u32 s71, s71, s6
        v_add_u32 v29, s71, v26
        v_lshl_add_u32 v29, v29, 11, v27
        s_lshl_b32 s6, s4, 8
        s_lshl_b32 s70, s5, 3
        s_add_u32 s6, s6, s70
        s_lshl_b32 s70, s3, 1
        s_add_u32 s71, s6, s70
        v_add_u32 v30, s71, v26
        v_lshl_add_u32 v30, v30, 11, v27
        s_mov_b32 s94, %d
        s_mov_b32 s95, %d
        s_bfe_u32 s78, s2, 0x10004
        s_bfe_u32 s79, s2, 0x10003
        s_and_b32 s70, s2, 7
        s_lshl_b32 s6, s4, 4
        s_lshl_b32 s70, s70, 1
        s_add_u32 s6, s6, s70
        s_add_u32 s6, s6, s78
        s_lshl_b32 s6, s6, 2
        s_add_u32 s6, s6, s3
        s_mul_i32 s92, s6, 14336
        s_cmp_eq_u32 s78, s79
        s_cselect_b32 s92, s92, s77
        v_lshlrev_b32 v31, 7, v17
        WL2BLOCK
        """ .replace('WL2BLOCK', WL2TXT) % (TS0 * 128, TS0 * 458752))
    if TPRE:
        tv_block()
        for _ in range(TPRE):
            th = ptouch(c)
            run(th[:3] + th[5:])
    small = """
    v_and_b32 v24, 31, v0
    v_lshl_add_u32 v24, s5, 5, v24
    v_lshlrev_b32 v24, 1, v24
    """
    def small_loads():
        I(small)
        c.vmem('global_load_ushort v48, v24, s[38:39]', ('S',))
        c.vmem('global_load_ushort v49, v24, s[40:41]', ('S',))
        c.vmem('global_load_ushort v50, v24, s[50:51]', ('S',))
    I("""
    s_lshl_b32 s6, s4, 8
    s_lshl_b32 s70, s5, 3
    s_add_u32 s6, s6, s70
    s_lshl_b32 s70, s3, 1
    s_add_u32 s71, s6, s70
    """)
    if PRE:
        small_loads()
        g1, g2 = g_work(c, 96, 120)
        run(g1)
        I('s_and_b32 s7, s3, 1')
    for k in range(8): run(x_dma(c, 0, k))
    if PT:
        I('s_waitcnt lgkmcnt(0)')
        I('s_load_dword s81, s[82:83], s80')
    for n in range(4):
        I('''
        v_add_u32 v20, %d, v17
        v_mul_u32_u24 v21, s74, v20
        v_lshrrev_b32 v21, 16, v21
        v_mul_u32_u24 v22, 14, v21
        v_sub_u32 v22, v20, v22
        v_add_u32 v22, s73, v22
        v_subrev_u32 v23, 14, v22
        v_min_u32 v22, v22, v23
        v_lshrrev_b32 v23, 2, v21
        v_and_b32 v21, 3, v21
        v_lshl_add_u32 v21, v23, 3, v21
        v_mul_u32_u24 v21, s75, v21
        v_lshl_add_u32 v21, v22, 4, v21
        v_add_u32 v21, s72, v21
        v_subrev_u32 v%d, %d, v21
        ''' % (n * 64, 3 + n, n * 1024))
        if n == 3:
            I('v_mov_b32 v20, s77\nv_cmp_gt_u32 vcc, 32, v17\nv_cndmask_b32 v6, v20, v6, vcc')
        run(w_dma(c, 0, n))
    for n in range(2): run(b_dma(c, 0, n))
    for n in range(4): run(w_dma(c, 1, n))
    if PRE:
        c.wait_vm(('s',), lambda t: t == ('S',))
        run(as_fill(c, tables_text()))
        run(g2)
        I('s_and_b32 s7, s3, 1')
    else:
        small_loads()
    if not DEFER:
        for k in range(8): run(x_dma(c, 1, k))
        for n in range(4): run(w_dma(c, 2, n))
        for n in range(2): run(b_dma(c, 1, n))
        for n in range(3): run(w_dma(c, 3, n))
    if not TPRE: tv_block()
    c_addr(I)
    I('''
    s_lshl_b32 s6, s5, 5
    s_lshl_b32 s7, s4, 2
    s_add_u32 s6, s6, s7
    s_add_u32 s6, s6, s3
    s_lshl_b32 s6, s6, 8
    s_add_u32 s6, s6, %d
    v_lshlrev_b32 v26, 4, v17
    v_mov_b32 v24, -1
    v_mov_b32 v25, -1
    v_mov_b32 v22, -1
    v_mov_b32 v23, -1
    s_mov_b64 exec, 0xffff
    ''' % WS_T)
    c.vmem('buffer_store_dwordx4 v[22:25], v26, s[20:23], s6 offen sc1', ('SV',))
    I('''
    s_mov_b64 exec, -1
    s_bfe_u32 s93, s2, 0x20005
    s_max_u32 s93, s93, 1
    s_add_u32 s93, s93, 1
    s_cmp_eq_u32 s3, 0
    s_cselect_b32 s93, s93, 99
    ''')
    I('''
    v_lshrrev_b32 v26, 2, v18
    v_lshl_add_u32 v26, v19, 2, v26
    v_mul_u32_u24 v26, 224, v26
    v_and_b32 v27, 3, v17
    v_lshl_add_u32 v12, v27, 3, v26
    v_add_u32 v12, %d, v12
    v_and_b32 v26, 7, v17
    v_xor_b32 v26, v26, v19
    v_lshlrev_b32 v26, 4, v26
    v_lshl_add_u32 v26, v18, 7, v26
    v_add_u32 v13, %d, v26
    v_xor_b32 v14, 64, v13
    v_add_u32 v7, s34, v26
    v_xor_b32 v8, 64, v7
    s_mov_b32 s33, %d
    ''' % (WB, BB, (NP - 4) // 4))
    stamp(I, 3)
    c.wait_vm(('d0',), lambda t: t in (('W', 0), ('B', 0), ('X', 0)))
    I('s_barrier')
    stamp(I, 4)
    for i in range(4): x_read(c, 0, 0, i)()
    for t in range(5): run(w_read(c, 0, t))
    for i in range(4): x_read(c, 0, 1, i)()
    for k in range(4): b_read(c, 0, 0, k)()


RR = lambda jt, i: acc_reg('R', jt, i)[1]
II = lambda jt, i: acc_reg('I', jt, i)[1]
BA, BBk, BC, BD = 32, 48, 64, 80

def ld16(R, base_v, off, dst, tag):
    R.ds('ds_read_b128 v[%d:%d], v%d offset:%d' % (dst, dst + 3, base_v, off), tag)
    R.ds('ds_read_b128 v[%d:%d], v%d offset:%d' % (dst + 4, dst + 7, base_v, off + 16), tag)
    R.ds('ds_read_b128 v[%d:%d], v%d offset:%d' % (dst + 8, dst + 11, base_v, off + 128), tag)
    R.ds('ds_read_b128 v[%d:%d], v%d offset:%d' % (dst + 12, dst + 15, base_v, off + 144), tag)

def s1_pre(c):
    R = Rec(c, 's1p')
    R('v_lshlrev_b32 v20, 5, v19')
    R('v_add_u32 v20, %d, v20' % TAB)
    ld16(R, 20, 0, BA, ('K', 0)); ld16(R, 20, 256, BBk, ('K', 1))
    R("""
    s_lshl_b32 s78, s4, 2
    s_add_u32 s78, s78, s3
    s_lshl_b32 s79, s5, 13
    s_add_u32 s79, s79, %d
    s_lshl_b32 s80, s78, 8
    s_add_u32 s80, s80, s79
    v_lshlrev_b32 v21, 6, v19
    s_sub_u32 s81, s78, 1
    v_sub_u32 v22, s81, v18
    v_subrev_u32 v23, 16, v22
    v_cmp_gt_u32 vcc, 32, v22
    v_lshl_add_u32 v22, v22, 8, v21
    v_mov_b32 v24, s77
    v_cndmask_b32 v22, v24, v22, vcc
    v_cmp_gt_u32 vcc, 32, v23
    v_lshl_add_u32 v23, v23, 8, v21
    s_lshl_b32 s7, s5, 2
    v_cndmask_b32 v23, v24, v23, vcc
    v_cmp_eq_u32 s[82:83], 15, v18
    """ % WS_T)

    return R.th

def cmul_sc(P, dr, di, ar, ai, br, bi, cr, ci):
    for e in range(2): P('v_fma_f32 v%d, v%d, v%d, v%d' % (dr + e, ar + e, br + e, cr + e))
    for e in range(2): P('v_fma_f32 v%d, v%d, v%d, v%d' % (di + e, ar + e, bi + e, ci + e))
    for e in range(2): P('v_fma_f32 v%d, -v%d, v%d, v%d' % (dr + e, ai + e, bi + e, dr + e))
    for e in range(2): P('v_fmac_f32 v%d, v%d, v%d' % (di + e, ai + e, br + e))
S1SC = int(os.environ.get('S1SC', '1'))
def s1_work(c):
    cmul_pk = cmul_sc if S1SC else k1.cmul_pk
    R = Rec(c, 's1')
    LAM, CA, E, T = BA, BBk, BC, BD
    R.wl(('K', 0))
    cur = None; bufs = [E, T]
    for i in range(1, 4):
        d = bufs[i & 1]
        for jt in range(2):
            for h in range(2):
                o = jt * 4 + 2 * h
                if cur is None: br, bi = RR(jt, 0) + 2 * h, II(jt, 0) + 2 * h
                else: br, bi = cur + o, cur + 8 + o
                cmul_pk(R, d + o, d + 8 + o, LAM + o, LAM + 8 + o, br, bi, RR(jt, i) + 2 * h, II(jt, i) + 2 * h)
        cur = d
    S = E
    for k, sh in enumerate((1, 2, 4, 8)):
        for r in range(16):
            R('v_mov_b32_dpp v%d, v%d row_shr:%d row_mask:0xf bank_mask:0xf bound_ctrl:0' % (S + r, cur + r, sh))
        R.wl(('K', 1 + k))
        for o in range(0, 8, 2):
            cmul_pk(R, cur + o, cur + 8 + o, CA + o, CA + 8 + o, S + o, S + 8 + o, cur + o, cur + 8 + o)
        if k < 3: ld16(R, 20, (2 + k) * 256, CA, ('K', 2 + k))
    R.blk([('i', 's_mov_b64 exec, s[82:83]')] +
          [('vm', 'buffer_store_dwordx4 v[%d:%d], v21, s[20:23], s80 offen offset:%d sc1' % (cur + 4 * k, cur + 4 * k + 3, 16 * k)) for k in range(4)] +
          [('i', 's_mov_b64 exec, -1')])
    for r in range(16):
        R('v_mov_b32_dpp v%d, v%d row_shr:1 row_mask:0xf bank_mask:0xf bound_ctrl:0' % (S + r, cur + r))
    return R.th

def last_stage(c):
    s = 15
    order = [('S', 0, k) for k in range(4)] + [('S', 1, k) for k in range(4)] + [('F', 30, t) for t in range(14)] + [('F', 31, t) for t in range(14)]
    pre = s1_pre(c); work = s1_work(c)
    nF = 28
    per = -(-len(work) // (nF - 2))
    for n, (ty, a, b) in enumerate(order):
        fill = []
        site = ('Z', n)
        if ty == 'S':
            hh, k = a, b
            if hh == 0: fill.append(b_read(c, s, 1, k))
            for _ in range(min(5, len(pre))): fill.append(pre.pop(0))
            if k == 0: c.wait_lg((site, 'bf'), lambda t: t in (('BF', s, hh), ('XF', s, hh)))
            kind, jt = SSM[k]; areg = BH + hh * 16 + k * 4
        else:
            u, t = a, b; hh = u & 1
            if t <= 8: fill += w_read(c, u, t + 5)
            if u == 30 and t >= 10:
                for tt in {10: [], 11: [0], 12: [1, 2], 13: [3, 4]}[t]: fill += w_read(c, 31, tt)
            assert not pre
            if n >= 10:
                for _ in range(min(per, len(work))): fill.append(work.pop(0))
            c.wait_lg((site, 'f'), lambda tg: tg == ('F', u, t))
            kind, jt = FFN[t]; areg = RING + (t % 7) * 4
        nf = len(fill); k2 = 0
        for i in range(4):
            f, bb = acc_reg(kind, jt, i)
            c.I('v_mfma_f32_16x16x32_bf16 %s, %s, %s, %s' % (rr(f, bb), rr('a', areg), rr('a', XSET + 32 + hh * 16 + i * 4), rr(f, bb)))
            take = (nf * (i + 1) + 3) // 4 - k2
            for _ in range(take):
                fill[k2](); k2 += 1
        if ty == 'F' and a == 30 and b == 9:
            c.wait_vm((site, 'd'), lambda t: t == ('W', 31))
            c.I('s_barrier')
    assert not work


def pk_bc(op, d, a, f, cc=None):
    base = f & ~1; hi = f & 1
    if cc is None:
        return 'v_pk_mul_f32 v[%d:%d], v[%d:%d], v[%d:%d] op_sel:[0,%d] op_sel_hi:[1,%d]' % (d, d + 1, a, a + 1, base, base + 1, hi, hi)
    return 'v_pk_fma_f32 v[%d:%d], v[%d:%d], v[%d:%d], v[%d:%d] op_sel:[0,%d,0] op_sel_hi:[1,%d,1]' % (d, d + 1, a, a + 1, base, base + 1, cc, cc + 1, hi, hi)
def cmul16(P, d, a, b, c=None):
    p = lambda r: 'v[%d:%d]' % (r, r + 1)
    G = range(0, 8, 2)
    for o in G:
        if c is None: P('v_pk_mul_f32 %s, %s, %s' % (p(d(o)[0]), p(a(o)[0]), p(b(o)[0])))
        else: P('v_pk_fma_f32 %s, %s, %s, %s' % (p(d(o)[0]), p(a(o)[0]), p(b(o)[0]), p(c(o)[0])))
    for o in G:
        if c is None: P('v_pk_mul_f32 %s, %s, %s' % (p(d(o)[1]), p(a(o)[0]), p(b(o)[1])))
        else: P('v_pk_fma_f32 %s, %s, %s, %s' % (p(d(o)[1]), p(a(o)[0]), p(b(o)[1]), p(c(o)[1])))
    for o in G:
        P('v_pk_fma_f32 %s, %s, %s, %s neg_lo:[1,0,0] neg_hi:[1,0,0]' % (p(d(o)[0]), p(a(o)[1]), p(b(o)[1]), p(d(o)[0])))
    for o in G:
        P('v_pk_fma_f32 %s, %s, %s, %s' % (p(d(o)[1]), p(a(o)[1]), p(b(o)[0]), p(d(o)[1])))
blk = lambda base: (lambda o: (base + o, base + 8 + o))
uacc = lambda i: (lambda o: (RR(o >> 2, i) + (o & 3), II(o >> 2, i) + (o & 3)))

def ffn_out2(P, items, dst, tmp, om, sc=False):
    ch = []
    for n, (jt, i) in enumerate(items):
        for h in range(2):
            ta = tmp + (n * 2 + h) * 4; tb = ta + 2
            seq = []
            srcs = []
            for kind, t in (('G', ta), ('U', tb)):
                f, b = acc_reg(kind, jt, i)
                if f == 'a':
                    seq.append('v_accvgpr_read_b32 v%d, a%d' % (t, b + 2 * h))
                    seq.append('v_accvgpr_read_b32 v%d, a%d' % (t + 1, b + 2 * h + 1))
                    srcs.append(t)
                else: srcs.append(b + 2 * h)
            g0, u0 = srcs
            if k1.EMUL:
                seq += ['v_cvt_pk_bf16_f32 v%d, v%d, v%d' % (ta, g0, g0 + 1),
                        'v_cvt_pk_bf16_f32 v%d, v%d, v%d' % (tb, u0, u0 + 1),
                        'v_pk_max_i16 v%d, v%d, 0' % (ta, ta),
                        'v_and_b32 v%d, 0xffff0000, v%d' % (tb + 1, tb),
                        'v_lshlrev_b32 v%d, 16, v%d' % (tb, tb),
                        'v_and_b32 v%d, 0xffff0000, v%d' % (ta + 1, ta),
                        'v_lshlrev_b32 v%d, 16, v%d' % (ta, ta),
                        'v_pk_mul_f32 v[%d:%d], v[%d:%d], v[%d:%d]' % (ta, ta + 1, ta, ta + 1, tb, tb + 1)]
            else:
                seq += ['v_max_f32 v%d, 0, v%d' % (ta, g0), 'v_max_f32 v%d, 0, v%d' % (ta + 1, g0 + 1),
                        'v_pk_mul_f32 v[%d:%d], v[%d:%d], v[%d:%d]' % (ta, ta + 1, ta, ta + 1, u0, u0 + 1)]
            if sc and not k1.EMUL:
                seq.pop()
                seq += ['v_mul_f32 v%d, v%d, v%d' % (ta + e, ta + e, u0 + e) for e in range(2)]
                seq += ['v_mul_f32 v%d, v%d, v%d' % (ta + e, ta + e, om + i) for e in range(2)]
            else: seq.append(pk_bc('mul', ta, ta, om + i))
            seq.append('v_cvt_pk_bf16_f32 v%d, v%d, v%d' % (dst + 2 * n + h, ta, ta + 1))
            ch.append(seq)
    m = max(len(x) for x in ch)
    for k in range(m):
        for x in ch:
            kk = k - (m - len(x))
            if kk >= 0: P(x[kk])


NS = 5
ACT = 96
WF = 32
FD = 3
NB, NT = 14, 22
XD = 64
def acc2(tau, jt): return (tau * 8 + jt) * 4
def role_of(n): return 'B' if n < NB else 'Y'
ORD = [0, 1, 4, 5, 7, 8, 11, 12, 2, 6, 9, 13, 3, 10]
ROT = int(os.environ.get('ROT', '0'))
def blk_idx(c, n, dst):
    reg, pos = (86, n) if n < 8 else (87, n - 8) if n < NB else (88, n - NB)
    return lambda: c.I('s_bfe_u32 s%d, s%d, 0x%x' % (dst, reg, 0x40000 | (4 * pos)))
def act_loads(c, n):
    if n >= NT: return []
    th = [blk_idx(c, n, 28), lambda: c.I('s_lshl_b32 s28, s28, 13'), lambda: c.I('s_add_u32 s28, s28, s%d' % (33 if n < NB else 29))]
    th += [lambda tau=tau: c.vmem('buffer_load_dwordx4 %s, v%d, s[20:23], s28 offen offset:%d sc1' % (rr('v', ACT + (n % 4) * 32 + tau * 4), 1 + (tau >> 2), (tau & 3) * 1024), ('A', n)) for tau in range(8)]
    return th
def w_loads(c, n):
    if n >= NT: return []
    th = [blk_idx(c, n, 30), lambda: c.I('s_lshl_b32 s30, s30, %d' % (16 if n < NB else 13)), lambda: c.I('s_add_u32 s30, s30, s%d' % (34 if n < NB else 32))]
    th.append(lambda: c.I('s_add_u32 s35, s30, 32768' if n < NB else 's_xor_b32 s35, s30, 4096'))
    for k in range(8):
        if k & 3 == 0: th.append(lambda k=k: c.I('s_add_u32 m0, s31, %d' % ((n % NS) * 8192 + (k >> 2) * 4096)))
        if n < NB: th.append(lambda k=k: c.vmem('buffer_load_dwordx4 v%d, s[16:19], s%d offen offset:%d lds' % (3 + (k & 3), 35 if k >> 2 else 30, (k & 3) * 1024), ('W', n)))
        else: th.append(lambda k=k: c.vmem('buffer_load_dwordx4 v24, s[20:23], s%d offen offset:%d sc1 lds' % (35 if k >> 2 else 30, (k & 3) * 1024), ('W', n)))
    return th
def rot_tables(P):
    pk = lambda a: sum(v << (4 * i) for i, v in enumerate(a))
    if ROT == 0:
        P('s_mov_b32 s86, 0x%x\ns_mov_b32 s87, 0x%x\ns_mov_b32 s88, 0x76543210' % (pk(ORD[:8]), pk(ORD[8:]))); return
    if ROT == 4:
        P('s_lshr_b32 s6, s2, 6\ns_bfe_u32 s7, s2, 0x30003\ns_add_u32 s6, s6, s7\ns_and_b32 s6, s6, 3\ns_lshl_b32 s6, s6, 2')
        def r16(dst, g): P('s_lshr_b32 s%d, 0x%x, s6\ns_and_b32 s%d, s%d, 0xffff' % (dst, g | g << 16, dst, dst))
        for reg, lo, hi in ((86, ORD[:4], ORD[4:8]), (88, [0, 1, 2, 3], [4, 5, 6, 7])):
            r16(reg, pk(lo)); r16(7, pk(hi)); P('s_lshl_b32 s7, s7, 16\ns_or_b32 s%d, s%d, s7' % (reg, reg))
        r16(87, pk(ORD[8:12]))
        g = pk(ORD[12:14]); P('s_lshr_b32 s7, 0x%x, s6\ns_and_b32 s7, s7, 0xff\ns_lshl_b32 s7, s7, 16\ns_or_b32 s87, s87, s7' % (g * 0x01010101))
    if ROT == 8:
        P('s_lshr_b32 s6, s2, 6\ns_lshl_b32 s6, s6, 1\ns_bfe_u32 s7, s2, 0x30003\ns_add_u32 s6, s6, s7\ns_and_b32 s6, s6, 7\ns_lshl_b32 s6, s6, 2')
        for reg, g in ((86, pk(ORD[:8])), (88, 0x76543210)):
            P('s_mov_b32 s90, 0x%x\ns_mov_b32 s91, 0x%x\ns_lshr_b64 s[90:91], s[90:91], s6\ns_mov_b32 s%d, s90' % (g, g, reg))
        P('s_and_b32 s6, s6, 12')
        g = pk(ORD[8:12]); P('s_lshr_b32 s87, 0x%x, s6\ns_and_b32 s87, s87, 0xffff' % (g | g << 16))
        g = pk(ORD[12:14]); P('s_lshr_b32 s7, 0x%x, s6\ns_and_b32 s7, s7, 0xff\ns_lshl_b32 s7, s7, 16\ns_or_b32 s87, s87, s7' % (g * 0x01010101))
DP = int(os.environ.get('DP', '2'))
NTL = 20
GROUPS = [(n, jt) for n in range(NTL) for jt in range(8)] + [(n, jt) for n in range(NTL, NT) for jt in range(4, 8)] + [(n, jt) for n in range(NTL, NT) for jt in range(4)]
KP0 = NTL * 8 + 8
def frag_read(c, k):
    if k >= len(GROUPS): return []
    n, jt = GROUPS[k]
    reg = WF + (k % 8) * 4
    so = (n % NS) * 8192
    th = []
    if k == 0 or GROUPS[k - 1][0] != n:
        th.append(lambda: c.wait_vm(('P2w', k), lambda t: t == ('W', n)))
    if role_of(n) == 'Y':
        th.append(lambda: c.ds('ds_read_b128 %s, v25 offset:%d' % (rr('v', reg), so + jt * 1024), ('F', k)))
    else:
        th += [lambda e=e: c.ds('ds_read_b64_tr_b16 v[%d:%d], v%d offset:%d' % (reg + 2 * e, reg + 2 * e + 1, 7 + jt, so + e * 2048), ('F', k)) for e in range(2)]
    return th

def group(c, k, side, pre=None, post=None):
    n, jt = GROUPS[k]
    if k == 0 or GROUPS[k - 1][0] != n:
        c.wait_vm(('P2a', k), lambda t: t == ('A', n))
    if pre: pre()
    slots = [[] for _ in range(8)]
    fr = frag_read(c, k + FD)
    for i, f in enumerate(fr): slots[i].append(f)
    lo = len(fr)
    for i, f in enumerate(side):
        slots[lo + (i * (8 - lo)) // len(side)].append(f)
    c.wait_lg(('P2f', k), lambda t: t == ('F', k))
    for tau in range(8):
        b = acc2(tau, jt)
        c.I('v_mfma_f32_16x16x32_bf16 %s, %s, %s, %s' % (rr('a', b), rr('v', WF + (k % 8) * 4), rr('v', ACT + (n % 4) * 32 + tau * 4), '0' if n == 0 else rr('a', b)))
        for th in slots[tau]: th()
    if post: post()

def step_vm(c, n):
    a = act_loads(c, n + DP); w = w_loads(c, n + DP)
    vm = []
    while a or w:
        for _ in range(2):
            if w: vm.append(w.pop(0))
        if a: vm.append(a.pop(0))
        if len(a) > len(w) and a: vm.append(a.pop(0))
    return vm

def p2_setup(P):
    rot_tables(P)
    P("""
    s_bfe_u32 s92, s2, 0x10002
    s_lshl_b32 s92, s92, 3
    s_bfe_u32 s6, s2, 0x30003
    s_add_u32 s92, s92, s6
    s_bfe_u32 s93, s2, 0x10001
    s_lshl_b32 s93, s93, 2
    s_lshr_b32 s6, s2, 6
    s_add_u32 s93, s93, s6
    s_and_b32 s94, s2, 1
    s_lshl_b32 s95, s94, 2
    s_add_u32 s95, s95, s3
    s_mov_b32 s12, s64
    s_mov_b32 s13, s65
    s_mov_b32 s14, 0x800000
    s_mov_b32 s16, s60
    s_mov_b32 s17, s61
    s_mov_b32 s18, 0x700000
    s_mul_i32 s31, s3, %d
    v_lshlrev_b32 v84, 1, v19
    v_xor_b32 v84, v84, v18
    v_xor_b32 v85, 8, v84
    s_lshl_b32 s6, s93, 8
    v_lshl_add_u32 v86, v19, 11, s6
    v_lshl_add_u32 v3, v84, 4, v86
    v_lshl_add_u32 v4, v85, 4, v86
    v_add_u32 v4, 7168, v4
    v_add_u32 v5, 14336, v3
    v_add_u32 v6, 14336, v4
    s_mul_i32 s34, s95, %d
    """ % (NS * 8192, NB * 65536))
    P("""
    v_lshlrev_b32 v87, 4, v17
    s_mul_i32 s6, s92, %d
    v_add_u32 v1, s6, v87
    v_add_u32 v2, 0x1000, v1
    s_mul_i32 s33, s95, %d
    s_lshl_b32 s32, s95, 16
    s_add_u32 s29, s32, %d
    v_lshrrev_b32 v84, 2, v18
    v_lshl_add_u32 v84, v19, 2, v84
    v_and_b32 v85, 7, v84
    v_and_b32 v86, 8, v84
    v_lshl_add_u32 v84, v86, 1, v85
    v_and_b32 v86, 3, v17
    v_lshlrev_b32 v84, 8, v84
    v_lshl_add_u32 v84, v86, 3, v84
    v_add_u32 v84, s31, v84
    v_lshl_add_u32 v7, v85, 5, v84
    s_lshl_b32 s7, s94, 7
    v_xor_b32 v7, s7, v7
    """ % (NKB * 8192, NB * 8192, 112 * 8192))
    for jt in range(1, 8): P('v_xor_b32 v%d, %d, v7' % (7 + jt, jt * 32))

def spin(P, L, cond_text, reload_text, sleep=2):
    P('s_mov_b32 s75, 0')
    P.label(L)
    P(cond_text)
    P("""
    s_add_u32 s75, s75, 1
    s_cmp_eq_u64 vcc, 0
    s_cbranch_scc1 %sok
    s_cmp_ge_u32 s75, 0x4000
    s_cbranch_scc1 %sok
    s_sleep %d
    """ % (L, L, sleep))
    P(reload_text)
    P('s_waitcnt vmcnt(0)')
    P('s_branch %s' % L)
    P.label(L + 'ok')

def init_load(c):
    c.I('v_and_b32 v26, 31, v17\nv_lshlrev_b32 v26, 2, v26')
    c.vmem('buffer_load_dword v25, v26, s[24:27], 0 offen offset:128 sc1', ('IF',))
def init_check(c):
    c.wait_vm(('ifw',), lambda t: t == ('IF',))
    if c.emit:
        spin(c.P, 'K1_ichk', 'v_cmp_ne_u32 vcc, 0xff, v25', 'buffer_load_dword v25, v26, s[24:27], 0 offen offset:128 sc1', 4)
    c.I("""
    s_lshl_b32 s6, s4, 8
    s_lshl_b32 s7, s3, 6
    s_add_u32 s6, s6, s7
    s_lshl_b32 s6, s6, 2
    s_add_u32 s6, s6, %d
    v_lshlrev_b32 v24, 4, v18
    """ % WS_G)
    c.vmem('buffer_load_dwordx4 v[28:31], v24, s[20:23], s6 offen sc1', ('G4',))

PLI = int(os.environ.get('PLI', '1'))
WLATE = int(os.environ.get('WLATE', '1'))
SSE = int(os.environ.get('SSE', '0'))
RES = 224
F = 160
TA, TB, WA, WBk = F, F + 16, F + 32, F + 48
tl = ''
for k in range(4): tl += 'buffer_load_dwordx4 v[%d:%d], v22, s[20:23], s79 offen offset:%d sc1\n' % (TA + 4 * k, TA + 4 * k + 3, 16 * k)
for k in range(4): tl += 'buffer_load_dwordx4 v[%d:%d], v23, s[20:23], s79 offen offset:%d sc1\n' % (TB + 4 * k, TB + 4 * k + 3, 16 * k)
_on = [0]
FSC = int(os.environ.get('FSC', '1'))
def ffn_unit(R, items, va, so, off, tag):
    _on[0] += 1
    dst = 48 + (_on[0] % 3) * 4
    ffn_out2(R, items, dst, 80, 60, sc=(FSC and tag[1] < 2))
    R('v_permlane32_swap_b32 v%d, v%d' % (dst, dst + 2))
    R('v_permlane32_swap_b32 v%d, v%d' % (dst + 1, dst + 3))
    R.vm('buffer_store_dwordx4 v[%d:%d], v%d, s[20:23], s%d offen offset:%d sc1' % (dst, dst + 3, va, so, off), tag)

def store_setup(R):
    R("""
    s_lshl_b32 s6, s4, 1
    s_lshr_b32 s7, s3, 1
    s_add_u32 s6, s6, s7
    s_mul_i32 s6, s6, %d
    s_and_b32 s7, s3, 1
    s_lshl_b32 s7, s7, 12
    s_add_u32 s6, s6, s7
    v_lshl_add_u32 v15, v17, 4, s6
    s_mul_i32 s70, s5, 7
    s_add_u32 s70, s70, 1
    s_lshr_b32 s70, s70, 1
    s_lshl_b32 s70, s70, 13
    s_add_u32 s71, s70, 8192
    s_add_u32 s72, s70, 16384
    s_add_u32 s73, s70, 24576
    s_sub_u32 s74, s70, 7680
    s_bitcmp1_b32 s5, 0
    s_cselect_b32 s73, s74, s73
    v_and_b32 v27, 31, v17
    v_lshrrev_b32 v9, 5, v17
    v_lshl_add_u32 v27, v27, 4, s6
    v_lshl_add_u32 v27, v9, 10, v27
    """ % (NKB * 8192))

FSC = int(os.environ.get('FSC', '1'))
PACE = int(os.environ.get('PACE', '14'))
def tail1(c):
    _on[0] = 0
    Pg = lambda p, u: [('F', u, t) for t in range(4 * p, min(4 * p + 4, 14))]
    Sg = lambda s_, hh: [('S', s_, hh, k) for k in range(4)]
    order = Sg(14, 0) + Sg(14, 1) + Pg(0, 28) + Sg(15, 0) + Sg(15, 1) + Pg(0, 29) + Pg(0, 30) + Pg(0, 31)
    for p in (1, 2, 3):
        for u in range(28, 32): order += Pg(p, u)
    T1, T2 = 7, 21
    FS = [g for g in order if g[0] == 'F']
    fidx = {g: i for i, g in enumerate(FS)}
    def fread(i):
        _, u, t = FS[i]
        kind, jt = FFN[t]; slot = RING + (i % 7) * 4
        return [lambda e=e: c.ds('ds_read_b64_tr_b16 a[%d:%d], v12 offset:%d' % (slot + 2 * e, slot + 2 * e + 1, (u % 4) * 16384 + ((kind == 'U') * 2 + e) * 4096 + jt * 32), ('F2', i)) for e in range(2)]
    nxt = 4; done = 0
    R0 = Rec(c, 't0'); store_setup(R0)
    pre = c_stores(c) + s1_pre(c) + R0.th
    R = Rec(c, 't1')
    R.th += s1_work(c)
    R.wv(('G4',))
    R("""
    v_sub_f32 v60, 1.0, v28
    v_sub_f32 v61, 1.0, v29
    v_sub_f32 v62, 1.0, v30
    v_sub_f32 v63, 1.0, v31
    v_cvt_pk_bf16_f32 v60, v60, v61
    v_cvt_pk_bf16_f32 v62, v62, v63
    v_and_b32 v61, 0xffff0000, v60
    v_and_b32 v63, 0xffff0000, v62
    v_lshlrev_b32 v60, 16, v60
    v_lshlrev_b32 v62, 16, v62
    v_lshl_add_u32 v21, v18, 8, v20
    """)
    marks = {}
    for pr in range(3):
        marks[len(R.th)] = 33 + 16 * pr
        for i in range(4): ffn_unit(R, [(2 * pr, i), (2 * pr + 1, i)], 15, 70 + pr, i * 1024, ('FS', pr))
        if pr == 1:
            for l in tl.strip().split('\n'): R.vm(l, ('TL',))
            for off, dst in ((6144, WA), (6144 + 4096, WBk)):
                for k, o in enumerate((0, 16, 128, 144)):
                    R.ds('ds_read_b128 v[%d:%d], v21 offset:%d' % (dst + 4 * k, dst + 4 * k + 3, off + o), ('TW',))
    marks[len(R.th)] = 999
    for i in (0, 2): ffn_unit(R, [(6, i), (6, i + 1)], 27, 73, i * 1024, ('FS', 3))
    work = R.th; wp = 0
    init_load(c)
    for n, g in enumerate(order):
        fill = []
        site = ('Z', n)
        if n == 0: fill += w_dma(c, 31, 3)[:2]
        if n < 4: fill.append(b_read(c, 14, 1, n))
        if n == 4: fill.append(lambda: c.wait_vm(('tx',), lambda t: t == ('X', 15)))
        if 4 <= n < 8: fill += [x_read(c, 15, (n - 4) >> 1, ((n - 4) & 1) * 2 + k) for k in range(2)]
        if 8 <= n < 12: fill += [b_read(c, 15, (n - 8) >> 1, ((n - 8) & 1) * 2 + k) for k in range(2)]
        k = 0
        while nxt < len(FS) and k < 2 and nxt <= done + 5 + (g[0] == 'F') - 1 + 1 - 1:
            u = FS[nxt][1]
            if (u in (29, 30) and n <= T1) or (u == 31 and n <= T2): break
            fill += fread(nxt); nxt += 1; k += 1
        if n < 20:
            for _ in range(min(4, len(pre))): fill.append(pre.pop(0))
        if n >= 22:
            assert not pre
            k = 0
            while wp < len(work) and k < PACE:
                if wp in marks and n < marks[wp]: break
                fill.append(work[wp]); wp += 1; k += 1
        if g[0] == 'S':
            _, s_, hh, k = g
            if k == 0: c.wait_lg((site, 'bf'), lambda t: t in (('BF', s_, hh), ('XF', s_, hh)))
            kind, jt = SSM[k]; areg = BH + hh * 16 + k * 4
        else:
            _, u, t = g; s_ = u >> 1; hh = u & 1
            i = fidx[g]
            c.wait_lg((site, 'f'), lambda tg: tg == (('F', 28, t) if i < 4 else ('F2', i)))
            kind, jt = FFN[t]; areg = RING + (i % 7) * 4
            done += 1
        nf = len(fill); k2 = 0
        for i4 in range(4):
            f, bb = acc_reg(kind, jt, i4)
            c.I('v_mfma_f32_16x16x32_bf16 %s, %s, %s, %s' % (rr(f, bb), rr('a', areg), rr('a', XSET + (s_ % 2) * 32 + hh * 16 + i4 * 4), rr(f, bb)))
            take = (nf * (i4 + 1) + 3) // 4 - k2
            for _ in range(take):
                fill[k2](); k2 += 1
        if n == T1:
            c.wait_vm((site, 'd'), lambda t: t in (('W', 29), ('W', 30), ('B', 15))); c.I('s_barrier')
        if n == T2:
            c.wait_vm((site, 'd'), lambda t: t == ('W', 31)); c.I('s_barrier')
            init_check(c)
    stamp(c.I, 5)
    if c.emit: code_touch(c.P, 'CP_c', 'CP_end', 9)
    run(work[wp:])
    c.I('v_mov_b32 v26, 1')
    c.wait_vm(('ef',), lambda t: t == ('FS', 1))
    c.I('s_mov_b64 exec, 1')
    c.vmem('buffer_store_dword v26, off, s[20:23], s76 sc1', ('SV',))
    c.I('s_mov_b64 exec, -1')
    stamp(c.I, 14)
    if c.emit: p2_setup(c.P)
    c.wait_vm(('tlw',), lambda t: t == ('TL',))

def epilogue(P):
    LAM, S = BA, BC
    cw = Ctx(P, {})
    wq = w_loads(cw, 0) + w_loads(cw, 1)
    stamp(P, 7)
    PWr = F + 64; AC = F + 80
    S2 = BD
    for k, o in enumerate((0, 16, 128, 144)):
        P('ds_read_b128 v[%d:%d], v21 offset:%d' % (PWr + 4 * k, PWr + 4 * k + 3, 2048 + o))
        P('ds_read_b128 v[%d:%d], v20 offset:%d' % (S2 + 4 * k, S2 + 4 * k + 3, 5 * 256 + o))
    cond = 'v_max3_u32 v24, v%d, v%d, v%d\nv_max3_u32 v25, v%d, v%d, v%d\n' % (TA, TA + 1, TA + 2, TB, TB + 1, TB + 2)
    for r in range(3, 15, 2):
        cond += 'v_max3_u32 v24, v24, v%d, v%d\nv_max3_u32 v25, v25, v%d, v%d\n' % (TA + r, TA + r + 1, TB + r, TB + r + 1)
    cond += 'v_max3_u32 v24, v24, v%d, v%d\nv_max_u32 v24, v24, v25\nv_cmp_eq_u32 vcc, -1, v24\n' % (TA + 15, TB + 15)
    spin(P, 'K1_tchk', cond, tl)
    stamp(P, 8)
    P('s_waitcnt lgkmcnt(0)')
    P('s_barrier')
    def wsome(n):
        for _ in range(n):
            if wq: wq.pop(0)()
    wsome(6)
    cmul16(P, blk(AC), blk(WA), blk(TA))
    wsome(1)
    cmul16(P, blk(AC), blk(WBk), blk(TB), blk(AC))
    for sh in (8, 4, 2, 1):
        wsome(1)
        for r in range(16):
            P('v_add_f32_dpp v%d, v%d, v%d row_ror:%d row_mask:0xf bank_mask:0xf' % (AC + r, AC + r, AC + r, sh))
    wsome(1)
    cmul16(P, blk(S), blk(PWr), blk(AC), blk(S))
    wsome(2)
    assert len(wq) == 14
    p2_pre(P)
    P('buffer_load_dword v56, v20, s[20:23], s72 offen sc1')
    wsome(4)
    for i in range(4):
        O = TA if (i & 1) else TB
        wsome(2 if i in (0, 2) else 1)
        cmul16(P, uacc(i), blk(LAM), blk(S) if i == 0 else uacc(i - 1), uacc(i))
        cmul16(P, blk(O), blk(S2), uacc(i))
        wsome(1)
        for k in range(8): P(pk_bc('mul', O + 2 * k, O + 2 * k, 28 + i))
        d = RES + i * 8
        for k in range(4):
            P('v_cvt_pk_bf16_f32 v%d, v%d, v%d' % (d + k, O + 2 * k, O + 2 * k + 1))
        for k in range(4):
            P('v_cvt_pk_bf16_f32 v%d, -v%d, -v%d' % (d + 4 + k, O + 8 + 2 * k, O + 8 + 2 * k + 1))
    assert not wq
    stamp(P, 9)

def p2_pre(P):
    P("""
    v_mov_b32 v27, v15
    v_lshlrev_b32 v15, 4, v17
    v_and_b32 v20, 7, v17
    v_lshlrev_b32 v20, 7, v20
    s_lshl_b32 s72, s92, 13
    s_lshl_b32 s7, s95, 10
    s_add_u32 s72, s72, s7
    s_add_u32 s72, s72, %d
    s_lshl_b32 s6, s93, 19
    s_add_u32 s6, s6, %d
    v_add_u32 v24, s6, v15
    v_add_u32 v25, s31, v15
    s_lshl_b32 s7, s94, 12
    s_add_u32 s32, s32, s7
    s_add_u32 s70, s5, 112
    s_lshl_b32 s70, s70, 13
    s_add_u32 s71, s70, 262144
    s_lshl_b32 s6, s92, 13
    s_add_u32 s6, s6, 0x20000
    s_lshl_b32 s7, s93, 1
    s_add_u32 s7, s7, s94
    s_lshl_b32 s7, s7, 13
    v_mov_b32 v22, s6
    v_mov_b32 v23, s7
    v_and_b32 v21, 16, v17
    v_cmp_eq_u32 vcc, 0, v21
    v_cndmask_b32 v22, v23, v22, vcc
    v_lshl_add_u32 v22, v18, 7, v22
    s_lshl_b32 s73, s3, 11
    s_add_u32 s73, s73, %d
    """ % (WS_FL, WS_C2, WS_FL))

def p2_enter(c):
    I = c.I
    I('s_waitcnt vmcnt(8)')
    c.vm.issue(('W', 1))
    stamp(I, 12)
    if c.emit:
        spin(c.P, 'P2_pf', 'v_cmp_gt_u32 vcc, 1, v56', 'buffer_load_dword v56, v20, s[20:23], s72 offen sc1', 1)
    stamp(I, 13); stamp_rt(I, 23)
    run(act_loads(c, 0))
    I('v_mov_b32 v57, 2\ns_mov_b64 exec, 1')
    c.vmem('buffer_store_dword v57, off, s[20:23], s76 sc1', ('SV',))
    I('s_mov_b64 exec, -1')
    for k in range(FD): run(frag_read(c, k))
    run(act_loads(c, 1))
    for n in range(2, DP): run(w_loads(c, n)); run(act_loads(c, n))

def ss_stores(c):
    th = []
    for i in range(4):
        d = RES + i * 8
        th.append(lambda d=d, i=i: c.vmem('buffer_store_dwordx4 v[%d:%d], v27, s[20:23], s70 offen offset:%d sc1' % (d, d + 3, i * 1024), ('SS',)))
        th.append(lambda d=d, i=i: c.vmem('buffer_store_dwordx4 v[%d:%d], v27, s[20:23], s71 offen offset:%d sc1' % (d + 4, d + 7, i * 1024), ('SS',)))
    return th

def e0_setup(c):
    pre = """
    s_lshl_b32 s6, s92, 7
    s_lshr_b32 s7, s3, 1
    s_lshl_b32 s7, s7, 6
    s_add_u32 s6, s6, s7
    s_and_b32 s7, s3, 1
    s_lshl_b32 s7, s7, 1
    s_add_u32 s74, s6, s7
    v_lshl_add_u32 v20, v18, 2, s74
    s_lshl_b32 s7, s93, 7
    s_lshl_b32 s6, s94, 6
    s_add_u32 s7, s7, s6
    v_lshl_add_u32 v21, v19, 2, s7
    v_lshlrev_b32 v28, 10, v20
    v_add_u32 v28, v28, v21
    v_lshlrev_b32 v28, 2, v28
    v_add_u32 v29, 0x1000, v28
    v_lshlrev_b32 v22, 1, v21
    v_lshlrev_b32 v21, 2, v20
    v_bfe_u32 v20, v17, 3, 1
    v_lshl_add_u32 v20, v19, 2, v20
    v_add_u32 v20, s74, v20
    v_lshlrev_b32 v20, 11, v20
    v_and_b32 v23, 7, v17
    v_xor_b32 v23, v23, v19
    v_lshl_add_u32 v23, v23, 4, v20
    s_lshl_b32 s7, s7, 1
    v_add_u32 v23, s7, v23
    v_xor_b32 v11, 64, v23
    v_add_u32 v11, 0x7c00, v11
    v_and_b32 v20, 7, v18
    v_lshrrev_b32 v10, 1, v19
    v_xor_b32 v20, v20, v10
    v_lshlrev_b32 v20, 4, v20
    v_and_b32 v10, 1, v19
    v_lshl_add_u32 v20, v10, 3, v20
    v_lshl_add_u32 v20, v18, 8, v20
    v_add_u32 v10, s31, v20
    s_mov_b32 s74, %d
    s_mov_b32 s89, 0xf800
    """ % WS_G
    return [lambda l=l.strip(): c.I(l) for l in pre.splitlines() if l.strip()]

def e0_loads(c):
    th = [lambda: c.vmem('buffer_load_dwordx2 v[30:31], v21, s[20:23], s74 offen sc1', ('E0',))]
    for jt in range(4):
        th.append(lambda jt=jt: c.vmem('global_load_dwordx2 v[%d:%d], v22, s[52:53] offset:%d' % (80 + jt * 2, 81 + jt * 2, jt * 32), ('E0',)))
    th.append(lambda: c.I('s_add_u32 m0, s31, 16384'))
    for j in range(4):
        th.append(lambda j=j: c.vmem('buffer_load_dwordx4 v%d, s[8:11], %s offen offset:%d lds' % (11 if j & 1 else 23, 's89' if j >> 1 else '0', j * 1024), ('EX',)))
    return th
def e0_reads(c):
    th = [lambda: c.wait_vm(('exw',), lambda t: t == ('EX',))]
    for jt in range(1, 4): th.append(lambda jt=jt: c.I('v_xor_b32 v%d, %d, v10' % (11 + jt, jt * 32)))
    for k in range(2):
        for jt in range(4):
            r = 64 + (k * 4 + jt) * 2
            th.append(lambda r=r, k=k, jt=jt: c.ds('ds_read_b64 v[%d:%d], v%d offset:%d' % (r, r + 1, 11 + jt if jt else 10, 16384 + k * 128), ('ER',)))
    return th

def xd_math(I, Z):
    for jt in range(4):
        for h in range(2):
            I('v_and_b32 v89, 0xffff0000, v%d\nv_lshlrev_b32 v88, 16, v%d' % (80 + jt * 2 + h, 80 + jt * 2 + h))
            seqs = []
            for k in range(2):
                t = k * 4 + jt; xs = 64 + t * 2 + h; a = 90 + 2 * k; z = Z + t * 4 + 2 * h
                seqs.append(['v_lshlrev_b32 v%d, 16, v%d' % (a, xs), 'v_and_b32 v%d, 0xffff0000, v%d' % (a + 1, xs),
                             'v_pk_mul_f32 v[%d:%d], v[%d:%d], v[88:89]' % (a, a + 1, a, a + 1),
                             'v_cvt_pk_bf16_f32 v%d, v%d, v%d' % (a, a, a + 1),
                             'v_and_b32 v%d, 0xffff0000, v%d' % (a + 1, a), 'v_lshlrev_b32 v%d, 16, v%d' % (a, a),
                             pk_bc('fma', z, a, 30 + k, z)])
            for x, y in zip(*seqs): I(x); I(y)

CPC = int(os.environ.get('CPC', '4'))
ZS = 160
add = lambda d, a, b: 'v_pk_add_f32 v[%d:%d], v[%d:%d], v[%d:%d]' % (d, d + 1, a, a + 1, b, b + 1)
def own_copy(P, jt0, dst, tag):
    for Q in range(4):
        if Q < 3: P('s_cmp_lg_u32 s3, %d\ns_cbranch_scc1 P2_%s%d' % (Q, tag, Q))
        for t in range(8):
            b = acc2(2 * Q + (t >> 2), jt0 + (t & 3))
            for r in range(4): P('v_accvgpr_read_b32 v%d, a%d' % (dst + t * 4 + r, b + r))
        if Q < 3:
            P('s_branch P2_%sx' % tag)
            P.label('P2_%s%d' % (tag, Q))
    P.label('P2_%sx' % tag)

def tail_setup(c):
    t = 'v_add_u32 v20, s31, v15\n'
    for Q in range(4):
        t += """
        s_cmp_lt_u32 s3, %d
        s_cselect_b32 s6, %d, %d
        s_lshl_b32 s6, s6, 13
        v_add_u32 v%d, s6, v20
        """ % (Q, max(Q - 1, 0), min(Q, 2), 3 + Q)
    for sl in range(3):
        t += """
        s_cmp_le_u32 s3, %d
        s_cselect_b32 s6, %d, %d
        s_cselect_b32 s7, 0, 1
        s_mul_i32 s6, s6, 40960
        s_sub_u32 s7, s3, s7
        s_lshl_b32 s7, s7, 13
        s_add_u32 s7, s7, s6
        v_add_u32 v%d, s7, v15
        """ % (sl, sl + 1, sl, 7 + sl)
    t += """
    s_lshl_b32 s6, s2, 2
    s_add_u32 s6, s6, s3
    s_lshl_b32 s78, s6, 13
    s_add_u32 s78, s78, %d
    s_add_u32 s79, s78, 4096
    s_xor_b32 s80, s78, 0x8000
    s_add_u32 s81, s80, 4096
    s_lshl_b32 s82, s6, 7
    s_add_u32 s82, s82, %d
    s_xor_b32 s83, s82, 0x200
    """ % (WS_XB, WS_FL + 0x40000)
    L = [l.strip() for l in t.splitlines() if l.strip()]
    out = []; i = 0
    while i < len(L):
        j = i + 1
        if L[i].startswith('s_cmp'):
            while L[j].startswith('s_cselect'): j += 1
        out.append(lambda x='\n'.join(L[i:j]): c.I(x)); i = j
    return out

def p2_main(c):
    def flagS():
        c.wait_vm(('ssw',), lambda t: t == ('SS',))
        c.I('s_add_u32 s7, s76, 0x20000\ns_mov_b64 exec, 1')
        c.vmem('buffer_store_dword v26, off, s[20:23], s7 sc1', ('SV',))
        c.I('s_mov_b64 exec, -1')
    def pollS():
        c.I('v_mov_b32 v23, 1\ns_mov_b64 exec, 0xffffffff')
        c.vmem('buffer_load_dword v23, v22, s[20:23], s73 offen sc1', ('PS',))
        c.I('s_mov_b64 exec, -1')
    def chkS():
        c.wait_vm(('psw',), lambda t: t == ('PS',))
        if c.emit:
            spin(c.P, 'P2_ps', 'v_cmp_gt_u32 vcc, 1, v23', 'buffer_load_dword v23, v22, s[20:23], s73 offen sc1', 2)
    def flagS_pollF():
        flagS()
    def pollF():
        c.vmem('buffer_load_dword v21, v20, s[20:23], s72 offen sc1', ('PF',))
    def chkF():
        c.wait_vm(('pfw',), lambda t: t == ('PF',))
        if c.emit:
            spin(c.P, 'P2_pg', 'v_cmp_gt_u32 vcc, 2, v21', 'buffer_load_dword v21, v20, s[20:23], s72 offen sc1', 1)
    misc = None
    ssq = [] if SSE else ss_stores(c)
    SS0 = int(os.environ.get('SS0', '1'))
    ev = {(0 if SSE else SS0 + 3 + DP + 1): flagS, 7 - DP: pollF, 8 - DP: chkF, 12 - DP: pollS, NB - DP: chkS}
    for n in range(NTL):
        if n == CPC: c.I('CP_c:')
        if os.environ.get('ST2') and n < 18: stamp(c.I, 32 + n)
        vm = step_vm(c, n)
        if SS0 <= n < SS0 + 4: vm = ssq[(n - SS0) * 2:(n - SS0) * 2 + 2] + vm
        if n == 19: vm = vm + e0_loads(c)
        if n == 15: misc = tail_setup(c) + e0_setup(c)
        per = -(-len(vm) // 8)
        for jt in range(8):
            side = vm[jt * per:(jt + 1) * per]
            if misc:
                side = side + misc[:3]; misc = misc[3:]
            group(c, n * 8 + jt, side, pre=ev.get(n) if jt == 0 else None)
    assert not misc
    er = e0_reads(c)
    for g in range(8):
        group(c, NTL * 8 + g, er[(g - 4) * 3:(g - 3) * 3] if g >= 4 else [])
    stamp(c.I, 15); stamp_rt(c.I, 24)
    def wr(Q, ts):
        def f():
            L = 'P2_w%d_%d' % (Q, ts[0])
            c.I('s_cmp_eq_u32 s3, %d\ns_cbranch_scc1 %s' % (Q, L))
            for t in ts: c.I('ds_write_b128 v%d, %s offset:%d' % (3 + Q, rr('a', acc2(2 * Q + (t >> 2), 4 + (t & 3))), 16384 + t * 1024))
            c.I(L + ':')
        return f
    def bar():
        c.I('s_waitcnt lgkmcnt(0)'); c.lg.q = []; c.I('s_barrier')
    def rds(t):
        T = 192 + (t & 3) * 12
        return [lambda sl=sl: c.ds('ds_read_b128 v[%d:%d], v%d offset:%d' % (T + sl * 4, T + sl * 4 + 3, 7 + sl, 16384 + t * 1024), ('SR', t)) for sl in range(3)]
    def sums(t):
        T = 192 + (t & 3) * 12; z = ZS + t * 4
        th = [lambda: c.wait_lg(('srw', t), lambda x: x == ('SR', t))]
        for x in (add(T, T, T + 4), add(T + 2, T + 2, T + 6), add(z, z, T + 8), add(z + 2, z + 2, T + 10), add(z, z, T), add(z + 2, z + 2, T + 2)):
            th.append(lambda x=x: c.I(x))
        th.append(lambda: c.vmem('buffer_store_dwordx4 v[%d:%d], v15, s[20:23], s%d offen offset:%d sc1' % (z, z + 3, 78 + (t >> 2), (t & 3) * 1024), ('XS',)))
        return th
    for g in range(8):
        side = []; post = None; pre = None
        if g == 0: pre = lambda: c.wait_lg(('erw',), lambda x: x == ('ER',))
        if g < 3: side = [wr(Q, ts) for Q in range(4) for ts in ([[0, 1, 4], [2, 5, 6], [3, 7]][g],)]
        if g == 2 and c.emit: post = lambda: own_copy(c.P, 4, ZS, 'so')
        if g == 3: post = bar
        if g >= 5: side += sums(2 * (g - 5)) + sums(2 * (g - 5) + 1)
        if g >= 4: side += rds(2 * (g - 4)) + rds(2 * (g - 4) + 1)
        group(c, KP0 + g, side, pre=pre, post=post)
    run(sums(6) + sums(7))
    bar()

def p2_final(P):
    ZK, TMP, XR = 128, 160, 96
    for Q in range(4):
        P('s_cmp_eq_u32 s3, %d\ns_cbranch_scc1 P2_kw%d' % (Q, Q))
        for t in range(8):
            P('ds_write_b128 v%d, %s offset:%d' % (3 + Q, rr('a', acc2(2 * Q + (t >> 2), t & 3)), t * 1024))
        P.label('P2_kw%d' % Q)
    own_copy(P, 0, ZK, 'ko')
    P('s_waitcnt vmcnt(0)\ns_mov_b64 exec, 1\nbuffer_store_dword v26, off, s[20:23], s82 sc1\ns_mov_b64 exec, -1')
    P('s_waitcnt lgkmcnt(0)')
    P('s_barrier')
    stamp(P, 16)
    for t in range(8):
        for sl in range(3):
            P('ds_read_b128 v[%d:%d], v%d offset:%d' % (TMP + sl * 32 + t * 4, TMP + sl * 32 + t * 4 + 3, 7 + sl, t * 1024))
    xd_math(P, ZK)
    P('buffer_load_dword v59, off, s[20:23], s83 sc1')
    P('s_waitcnt lgkmcnt(0)')
    for t in range(8):
        for h in range(2):
            r = t * 4 + 2 * h
            P(add(TMP + r, TMP + r, TMP + 32 + r)); P(add(ZK + r, ZK + r, TMP + 64 + r))
        for h in range(2):
            r = t * 4 + 2 * h
            P(add(ZK + r, ZK + r, TMP + r))
    stamp(P, 17)
    P('s_waitcnt vmcnt(0)')
    spin(P, 'P2_x', 'v_cmp_ne_u32 vcc, 1, v59', 'buffer_load_dword v59, off, s[20:23], s83 sc1', 1)
    stamp(P, 18)
    for t in range(8):
        P('buffer_load_dwordx4 v[%d:%d], v15, s[20:23], s%d offen offset:%d sc1' % (XR + t * 4, XR + t * 4 + 3, 80 + (t >> 2), (t & 3) * 1024))
    for t in range(8):
        P('s_waitcnt vmcnt(7)')
        for h in range(2):
            r = t * 4 + 2 * h
            P(add(ZK + r, ZK + r, XR + r))
        P('buffer_store_dwordx4 v[%d:%d], v%d, s[12:15], 0 offen offset:%d' % (ZK + t * 4, ZK + t * 4 + 3, 29 if t >= 4 else 28, (t & 3) * 64))

CPF = int(os.environ.get('CPF', '1'))
_cpn = [0]
def code_touch(I, start, end, vt=26, sp=84):
    if not CPF: return
    _cpn[0] += 1
    L = 'CT%d' % _cpn[0]
    I('s_getpc_b64 s[%d:%d]' % (sp, sp + 1))
    I(L + ':')
    I('s_add_u32 s%d, s%d, %s-%s' % (sp, sp, start, L))
    I('s_addc_u32 s%d, s%d, 0' % (sp + 1, sp + 1))
    I('v_lshlrev_b32 v%d, 7, v0' % vt)
    I('v_min_u32 v%d, %s-%s-4, v%d' % (vt, end, start, vt))
    I('global_load_dword a255, v%d, s[%d:%d]' % (vt, sp, sp + 1))

NP = int(os.environ.get('NP', '4'))
ROOM = int(os.environ.get('ROOM', '7'))
def site_of(u):
    if u < NP: return ('F', u)
    if u >= 28: return ('E', u)
    return ('L', u % 4)

def body(c, emit):
    P = c.P
    prologue(c)
    if PRE:
        for u in range(NP): substep(c, u, site_of(u), first=(u == 0), tch=(u >= 4 and u % 4 == TPOS))
    else:
        g1, g2 = g_work(c, 64, 32)
        extra = g1 + [lambda: c.wait_vm(('s',), lambda t: t == ('S',))] + g2[:0]
        tb = as_fill(c, tables_text())
        q = [g1, g2, [lambda: c.wait_vm(('s',), lambda t: t == ('S',))] + tb]
        extra = []
        for u in range(NP):
            if u == 0: extra += q[0]
            if u == 1: extra += q[1] + q[2]
            substep(c, u, site_of(u), extra=extra, first=(u == 0), tch=(u >= 4 and u % 4 == TPOS), room_extra=ROOM - 7)
        assert not extra, len(extra)
    if emit:
        stamp(P, 1); stamp_rt(P, 21)
        P('.p2align 6')
        P.label('K1_loop')
        P('s_cmp_eq_u32 s33, s93\ns_cbranch_scc1 K1_t1')
        P.label('K1_tback')
        c_loads(P)
        for u in range(NP, NP + 4): substep(c, u, site_of(u), tch=(u % 4 == TPOS))
        P("""
        s_add_u32 s33, s33, 1
        s_cmp_lt_u32 s33, 6
        s_cbranch_scc1 K1_loop
        """)
    else:
        for u in range(NP, 28): substep(c, u, site_of(u), tch=(u % 4 == TPOS))
    c.I('CP_b:')
    stamp(c.I, 2); stamp_rt(c.I, 22)
    tail1(c)

DIAG = int(os.environ.get('DIAG', '0'))
if DIAG:
    DMAP = {0: 0, 4: 1, 1: 2, 2: 3, 5: 4, 7: 5, 9: 6, 12: 7, 13: 8, 15: 9, 16: 10, 17: 11, 18: 12, 19: 13, 20: 14}
    def stamp(I, idx, vr=16):
        if idx in DMAP:
            I('s_memrealtime s[84:85]')
            I('s_waitcnt lgkmcnt(0)')
            if idx == 0:
                I('s_not_b32 s85, s84')
                I('v_writelane_b32 v16, s85, 15')
            I('v_writelane_b32 v16, s84, %d' % DMAP[idx])
    def stamp_rt(I, idx, vr=16): pass
    def stamp_out(I, kern, vr=16, va=23):
        I('v_lshlrev_b32 v23, 2, v17')
        I('s_mov_b64 exec, 0xffff')
        I('buffer_atomic_umax v16, v23, s[24:27], 0 offen sc1')
        I('s_mov_b64 exec, -1')
PROBE = os.environ.get('PROBE', '')
if PROBE:
    PA, PB = [int(x) for x in PROBE.split(',')]
    def stamp(I, idx, vr=16):
        if idx == PA or idx == PB:
            I('s_memrealtime s[84:85]')
            I('s_waitcnt lgkmcnt(0)')
            I('v_writelane_b32 v16, s84, %d' % (0 if idx == PA else 1))
    def stamp_rt(I, idx, vr=16): pass
    def stamp_out(I, kern, vr=16, va=23):
        I('v_readlane_b32 s6, v16, 0')
        I('v_readlane_b32 s7, v16, 1')
        I('s_memrealtime s[84:85]')
        I('s_waitcnt lgkmcnt(0)')
        I('s_sub_u32 s6, s7, s6')
        I('s_add_u32 s6, s6, s84')
        I('PROBE_l:')
        I('s_memrealtime s[84:85]')
        I('s_waitcnt lgkmcnt(0)')
        I('s_sub_u32 s7, s84, s6')
        I('s_cmp_lt_i32 s7, 0')
        I('s_cbranch_scc1 PROBE_l')
KNAME = 'gated_mix__ssm_conv_s5__glu_gated_reglu__prompt_kernel'
def gen():
    waits = {}
    body(Ctx(None, waits), False)
    c = Ctx(None, waits)
    p2_enter(c); p2_main(c)
    P = Prog()
    c = Ctx(P, waits)
    P('.globl %s\n.p2align 8\n.type %s,@function' % (KNAME, KNAME))
    P.label(KNAME)
    body(c, True)
    epilogue(P)
    p2_enter(c)
    p2_main(c)
    P('s_nop 7')
    p2_final(P)
    stamp(P, 19); stamp_rt(P, 11)
    P('s_waitcnt vmcnt(0)')
    stamp(P, 20)
    stamp_out(P, 0)
    P.label('K1_done')
    P('s_endpgm')
    P.label('K1_t1')
    P("""
    s_lshl_b32 s6, 1, s4
    v_mov_b32 v26, s6
    s_lshl_b32 s7, s5, 2
    s_mov_b64 exec, 1
    buffer_atomic_add v26, off, s[24:27], s7 offset:128 sc1
    s_mov_b64 exec, -1
    s_branch K1_tback
    """)
    P.label('CP_end')
    txt = P.text()
    X = os.environ.get('XP', '')
    if X:
        a = txt.index('K1_tback:'); b = txt.index('s_cbranch_scc1 K1_loop')
        L = txt[a:b].split('\n')
        if 'r' in X: L = [l for l in L if 'ds_read' not in l]
        if 'd' in X: L = [l for l in L if ' lds' not in l]
        if 't' in X: L = [l for l in L if 'ds_read_b64_tr' not in l]
        if 'h' in X: L = [l for k, l in enumerate(L) if not ('ds_read_b64_tr' in l and (int(l.split('offset:')[1]) // 4096) % 2)]
        if 'b' in X: L = [l for l in L if 's_barrier' not in l]
        txt = txt[:a] + '\n'.join(L) + txt[b:]
    return txt, waits

if __name__ == '__main__':
    import sys
    NAME = 'gated_mix__ssm_conv_s5__glu_gated_reglu__prompt'
    ref = open('cdna_kernels/%s.s.ref' % NAME).read().splitlines()
    hdr = [l for l in ref if l.startswith(';') and '@launch' not in l]
    t, w = gen()
    out = '\n'.join(hdr) + '\n; @launch grid=(256,1,1) block=(256,1,1) lds=%d\n' % K1_LDS
    out += '.amdgcn_target "amdgcn-amd-amdhsa--gfx950"\n.text\n' + t
    out += '.section .rodata,"a"\n.p2align 6\n' + K1_DESC.replace('k1_kernel', KNAME)
    dst = sys.argv[1] if len(sys.argv) > 1 else 'cdna_kernels/%s.s' % NAME
    open(dst, 'w').write(out)
    print('wrote', dst, len(out))
```

```python
import os
from asmlib import Prog, Counter
import k1
from k1 import Ctx, rr, cmul_pk, ffn_out, acc_reg, ACC_V0, stamp, stamp_rt, stamp_out, NKB, WS_G, WS_T, WS_C2, WS_FL, WS_XB, K1_DESC

XB = 0
WB = 65536
BB = 131072
TAB = 147456
POW = TAB + 2048
WG64 = TAB + 6144
K1_LDS = 163840
assert TAB == k1.TAB
XSET = 128
RING = 192
BH = 220
OOB = 0x70000000
EXP = int(os.environ.get('EXP', '0'))
TS0 = int(os.environ.get('TS0', '6'))
TPRE = int(os.environ.get('TPRE', '0'))
DEFER = int(os.environ.get('DEFER', '0'))
NTW = 'nt' if int(os.environ.get('NTW', '1')) else ''
NTB = 'nt' if int(os.environ.get('NTB', '1')) else ''
NTC = 'nt' if int(os.environ.get('NTC', '1')) else ''
NTT = 'nt' if int(os.environ.get('NTT', '0')) else ''
NTX = 'nt' if int(os.environ.get('NTX', '0')) else ''
WDT = int(os.environ.get('WDT', '1'))
PRE = int(os.environ.get('PRE', '2'))
TPOS = int(os.environ.get('TPOS', '0'))
WL2 = int(os.environ.get('WL2', '0'))
WL2TXT = """
    s_lshr_b32 s6, s2, 3
    s_lshl_b32 s6, s6, 2
    s_add_u32 s6, s6, s3
    s_mul_i32 s6, s6, 14
    s_and_b32 s70, s2, 1
    s_mul_i32 s70, s70, 1792
    s_add_u32 s6, s6, s70
    s_lshl_b32 s92, s6, 11
    s_bfe_u32 s70, s2, 0x10001
    s_lshl_b32 s70, s70, 10
    s_add_u32 s92, s92, s70
    s_sub_u32 s92, s92, """ + {0: '0', 1: '6144', 2: '16384'}[WL2] + """
    v_lshrrev_b32 v26, 3, v17
    v_and_b32 v27, 7, v17
    v_lshlrev_b32 v31, 11, v26
    v_lshl_add_u32 v31, v27, 7, v31
""" if WL2 else ''
TPW = int(os.environ.get('TPW', '1'))
PT = int(os.environ.get('PT', '0'))
TOUCH = int(os.environ.get('TOUCH', '1'))

FFN = []
for jt in range(7): FFN += [('G', jt), ('U', jt)]
SSM = [('R', 0), ('I', 0), ('R', 1), ('I', 1)]

def w_read(c, u, t):
    kind, jt = FFN[t]
    slot = RING + (t % 7) * 4
    th = []
    for e in range(2):
        off = (u % 4) * 16384 + ((kind == 'U') * 2 + e) * 4096 + jt * 32
        th.append(lambda off=off, e=e: c.ds('ds_read_b64_tr_b16 a[%d:%d], v12 offset:%d' % (slot + 2 * e, slot + 2 * e + 1, off), ('F', u, t)))
    return th
def b_read(c, s, hh, k):
    kind, jt = SSM[k]
    off = (s % 2) * 8192 + ((kind == 'I') * 32 + jt * 16) * 128
    return lambda: c.ds('ds_read_b128 %s, v%d offset:%d' % (rr('a', BH + hh * 16 + k * 4), 13 + hh, off), ('BF', s, hh))
def x_read(c, s, hh, i):
    off = (s % 2) * 8192 + i * 2048
    return lambda: c.ds('ds_read_b128 %s, v%d offset:%d' % (rr('a', XSET + (s % 2) * 32 + hh * 16 + i * 4), 7 + hh, off), ('XF', s, hh))
def w_dma(c, u, n):
    th = []
    th.append(lambda: c.I('s_add_u32 m0, s32, %d' % ((u % 4) * 16384)))
    th.append(lambda: c.vmem('buffer_load_dwordx4 v%d, s[12:15], s30 offen offset:%d %s lds' % (3 + n, n * 1024, NTW), ('W', u)))
    if n == 3: th.append(lambda: c.I('s_add_u32 s30, s30, 229376'))
    return th
def x_dma(c, s, k):
    th = []
    th.append(lambda: c.I('s_add_u32 m0, s34, %d' % ((s % 2) * 8192 + (k >> 2) * 4096)))
    th.append(lambda: c.vmem('buffer_load_dwordx4 v%d, s[8:11], s%d offen offset:%d %s lds' % (1 + (k & 1), 28 + (k >> 2), (k & 3) * 1024, NTX), ('X', s)))
    if k == 7:
        th.append(lambda: c.I('s_add_u32 s28, s28, 128'))
        th.append(lambda: c.I('s_cmp_lt_u32 s28, 2048'))
        th.append(lambda: c.I('s_cselect_b32 s28, s28, s77'))
        th.append(lambda: c.I('s_add_u32 s29, s28, 4096'))
    return th
def b_dma(c, s, n):
    th = []
    th.append(lambda: c.I('s_add_u32 m0, s35, %d' % ((s % 2) * 8192)))
    th.append(lambda: c.vmem('buffer_load_dwordx4 v%d, s[16:19], s31 offen offset:%d %s lds' % (10 + n, n * 1024, NTB), ('B', s)))
    if n == 1:
        th.append(lambda: c.I('s_add_u32 s31, s31, 128'))
        th.append(lambda: c.I('s_cmp_lt_u32 s31, 2048'))
        th.append(lambda: c.I('s_cselect_b32 s31, s31, s77'))
    return th

def substep(c, u, site, extra=None, first=False, last=0, room_extra=0, tch=False):
    tq = ptouch(c) if (tch and TOUCH) else []
    hh = u & 1; s = u >> 1
    for j in range(18):
        fill = []
        if j <= 8: fill += w_read(c, u, j + 5)
        if 12 <= j <= 16 and u != 31: fill += w_read(c, u + 1, j - 12)
        if u == 31: pass
        elif hh == 1:
            if j == 9: fill.append(lambda: c.wait_vm((site, 'x'), lambda t: t == ('X', s + 1)))
            if j in (9, 10): fill += [x_read(c, s + 1, 0, (j - 9) * 2 + k) for k in range(2)]
            if j in (14, 15, 16, 17): fill.append(x_read(c, s + 1, 1, j - 14))
            if j in (12, 13): fill += [b_read(c, s + 1, 0, (j - 12) * 2 + k) for k in range(2)]
        else:
            if j in (0, 2, 4, 6): fill.append(b_read(c, s, 1, j // 2))
        d = []
        if j in (13, 15, 17): d = w_dma(c, u + 4, (j - 13) // 2)
        if j == 1: d = w_dma(c, u + 3, 3)
        if j in (3, 5, 7, 9): d = x_dma(c, s + 2, hh * 4 + (j - 3) // 2)
        if hh == 0 and j in (14, 16): d = b_dma(c, s + 2, (j - 14) // 2)
        if last == 2 or (last == 1 and j != 1): d = []
        if DEFER and u == 0:
            seq = [('x', 1, k) for k in range(8)] + [('w', 2, n) for n in range(4)] + [('b', 1, n) for n in range(2)] + [('w', 3, n) for n in range(4)] + [('x', 2, k) for k in range(4)]
            if DEFER == 2: seq = seq[8:]
            if j <= 10:
                d = []
                for ty, a, b in seq[2 * j:2 * j + 2] if DEFER == 1 else seq[(j * 14) // 11:((j + 1) * 14) // 11]:
                    d += {'x': x_dma, 'w': w_dma, 'b': b_dma}[ty](c, a, b)
        fill = d[:1] + fill + d[1:]
        if tq and j in (10, 11): fill += tq[:2]; tq = tq[2:]
        if tq and j == 12: fill += tq; tq = []
        if extra:
            room = max(0, 8 - 1 - len(fill) + room_extra)
            for _ in range(min(room, len(extra))): fill.append(extra.pop(0))
        if j == 0: c.wait_lg((site, 'xf'), lambda t: t in (('XF', s, hh), ('F', u, 0)))
        elif j < 14: c.wait_lg((site, 'f', j), lambda t: t == ('F', u, j))
        elif j == 14: c.wait_lg((site, 'bf'), lambda t: t == ('BF', s, hh))
        if j < 14:
            kind, jt = FFN[j]; a = RING + (j % 7) * 4
        else:
            kind, jt = SSM[j - 14]; a = BH + hh * 16 + (j - 14) * 4
        nf = len(fill); k = 0
        for i in range(4):
            f, b = acc_reg(kind, jt, i)
            c.I('v_mfma_f32_16x16x32_bf16 %s, %s, %s, %s' % (rr(f, b), rr('a', a), rr('a', XSET + (s % 2) * 32 + hh * 16 + i * 4), '0' if first else rr(f, b)))
            take = (nf * (i + 1) + 3) // 4 - k
            for _ in range(take):
                fill[k](); k += 1
        if j == 11 and u != 31:
            if hh == 1: c.wait_vm((site, 'd'), lambda t: t in (('W', u + 1), ('B', s + 1)))
            else: c.wait_vm((site, 'd'), lambda t: t == ('W', u + 1))
            c.I('s_waitcnt lgkmcnt(0)')
            c.lg.q = []
            c.I('s_barrier')

def touch(I, batch):
    ks = 2 + 7 * batch
    I('''
    s_mov_b32 s6, %d
    s_mov_b32 s7, %d
    s_mov_b32 exec_hi, 0x1ffff
    buffer_load_dword a255, v28, s[12:15], s6 offen
    s_mov_b64 exec, 0x3fff
    buffer_load_dword a255, v29, s[16:19], s7 offen
    buffer_load_dword a255, v30, s[8:11], s7 offen
    s_mov_b64 exec, -1
    ''' % (ks * 64 * 7168, ks * 128))

def touch_wd(I):
    I('''
    s_lshl_b32 s6, s2, 2
    s_add_u32 s6, s6, s3
    s_mul_i32 s6, s6, 7168
    v_lshlrev_b32 v26, 7, v17
    s_mov_b32 exec_hi, 0xffffff
    buffer_load_dword a255, v26, s[88:91], s6 offen
    s_mov_b64 exec, -1
    ''')


def c_addr(I):
    I("""
    s_and_b32 s7, s3, 1
    s_lshl_b32 s6, s4, 7
    s_lshl_b32 s70, s7, 6
    s_add_u32 s6, s6, s70
    v_add_u32 v9, s6, v18
    v_lshlrev_b32 v9, 11, v9
    v_lshl_add_u32 v9, v19, 4, v9
    s_lshl_b32 s6, s5, 6
    v_add_u32 v9, s6, v9
    """)

def c_loads(P):
    for k in range(4):
        P('s_cmp_lg_u32 s33, %d' % (k + 1))
        P('s_cbranch_scc1 K1_c%d' % k)
        P('global_load_dwordx4 v[%d:%d], v9, s[86:87] %s' % (32 + 4 * k, 35 + 4 * k, NTC))
        P('v_add_u32 v9, 0x8000, v9')
        if k == 3: code_touch(P, 'CP_b', 'CP_c')
        P.label('K1_c%d' % k)

def c_stores(c):
    R = Rec(c, 'cs')
    R("""
    s_lshl_b32 s6, s4, 6
    s_lshr_b32 s7, s3, 1
    s_lshl_b32 s7, s7, 5
    s_add_u32 s6, s6, s7
    s_add_u32 s6, s6, s5
    s_lshl_b32 s6, s6, 13
    s_and_b32 s7, s3, 1
    s_lshl_b32 s7, s7, 12
    s_add_u32 s6, s6, s7
    s_add_u32 s6, s6, %d
    v_lshlrev_b32 v20, 4, v17
    """ % WS_C2)
    for k in range(4):
        R.vm('buffer_store_dwordx4 v[%d:%d], v20, s[20:23], s6 offen offset:%d sc1' % (32 + 4 * k, 35 + 4 * k, k * 1024), ('SV',))
    return R.th

def ptouch(c):
    def mk(mask, txt):
        def f():
            c.I('s_mov_b64 exec, %s' % mask); c.vmem(txt, ('TC',)); c.I('s_mov_b64 exec, -1')
        return f
    th = [mk('0x3fff', 'buffer_load_dword a255, v28, s[12:15], s95 offen %s' % NTT),
          mk('0xf', 'buffer_load_dword a255, v29, s[16:19], s94 offen %s' % NTB),
          mk('0xf', 'buffer_load_dword a255, v30, s[8:11], s94 offen'),
          mk({0: '0x7ffff', 1: '0xffffff', 2: '0xffffffff'}[WL2], 'buffer_load_dword a255, v31, s[88:91], s92 offen')]
    for t in ('s_add_u32 s92, s92, %d' % {0: 2432, 1: 6144, 2: 8192}[WL2], 's_add_u32 s95, s95, 917504'):
        th.append(lambda t=t: c.I(t))
    th.append(lambda: c.I('s_add_u32 s94, s94, 256\ns_cmp_lt_u32 s94, 2048\ns_cselect_b32 s94, s94, s77'))
    return th

def tables_text():
    t = """
    v_lshlrev_b32 v48, 16, v48
    v_lshlrev_b32 v49, 16, v49
    v_lshlrev_b32 v50, 16, v50
    v_mul_f32 v50, 0x3fb8aa3b, v50
    v_exp_f32 v50, v50
    v_cvt_pk_bf16_f32 v50, v50, v50
    v_lshlrev_b32 v50, 16, v50
    v_mul_f32 v51, v50, v48
    v_mul_f32 v52, v50, v49
    v_mul_f32 v51, 0x3fb8aa3b, v51
    v_exp_f32 v51, v51
    v_mul_f32 v52, 0.15915494, v52
    v_fract_f32 v52, v52
    v_cos_f32 v53, v52
    v_sin_f32 v54, v52
    v_mul_f32 v64, v51, v53
    v_mul_f32 v65, v51, v54
    v_add_f32 v51, -1.0, v64
    v_mul_f32 v52, v48, v48
    v_fmac_f32 v52, v49, v49
    v_rcp_f32 v53, v52
    v_mul_f32 v54, v51, v48
    v_fmac_f32 v54, v65, v49
    v_mul_f32 v55, v65, v48
    v_fma_f32 v55, -v51, v49, v55
    v_fma_f32 v52, -v52, v53, 2.0
    v_mul_f32 v53, v53, v52
    v_add_f32 v53, v53, v53
    v_mul_f32 v88, v54, v53
    v_mul_f32 v89, v55, v53
    """
    for k in range(9):
        a = 64 + 2 * k; d = a + 2
        t += """
        v_mul_f32 v%d, v%d, v%d
        v_fma_f32 v%d, -v%d, v%d, v%d
        v_mul_f32 v%d, v%d, v%d
        v_add_f32 v%d, v%d, v%d
        """ % (d, a, a, d, a + 1, a + 1, d, d + 1, a, a + 1, d + 1, d + 1, d + 1)
    t += """
    v_lshrrev_b32 v51, 5, v0
    v_mov_b32 v56, 1.0
    v_mov_b32 v57, 0
    v_mov_b32 v60, 1.0
    v_mov_b32 v61, 0
    """
    def cm(dr, di, ar, ai, br, bi):
        return """
        v_mul_f32 v%d, v%d, v%d
        v_fma_f32 v%d, -v%d, v%d, v%d
        v_mul_f32 v%d, v%d, v%d
        v_fmac_f32 v%d, v%d, v%d
        """ % (dr, ar, br, dr, ai, bi, dr, di, ar, bi, di, ai, br)
    for b in range(3):
        a = 68 + 2 * b; a2 = 76 + 2 * b
        t += 'v_and_b32 v54, %d, v51\nv_cmp_ne_u32 vcc, 0, v54\n' % (1 << b)
        t += cm(52, 53, 56, 57, a, a + 1) + cm(62, 63, 60, 61, a2, a2 + 1)
        t += """
        v_cndmask_b32 v56, v56, v52, vcc
        v_cndmask_b32 v57, v57, v53, vcc
        v_cndmask_b32 v60, v60, v62, vcc
        v_cndmask_b32 v61, v61, v63, vcc
        """
    t += cm(58, 59, 56, 57, 74, 75)
    t += cm(62, 63, 60, 61, 82, 83) + cm(84, 85, 62, 63, 82, 83) + cm(86, 87, 84, 85, 82, 83)
    t += """
    v_and_b32 v52, 31, v0
    v_lshlrev_b32 v52, 2, v52
    v_lshl_add_u32 v53, v51, 8, v52
    v_add_u32 v53, %d, v53
    v_add_u32 v52, %d, v52
    ds_write2_b32 v53, v56, v57 offset0:0 offset1:32
    ds_write_b32 v53, v58 offset:2048
    ds_write_b32 v53, v59 offset:2176
    """ % (POW, TAB)
    for k, r in enumerate((60, 62, 84, 86)):
        t += 'ds_write_b32 v53, v%d offset:%d\nds_write_b32 v53, v%d offset:%d\n' % (r, 4096 + k * 2048, r + 1, 4096 + k * 2048 + 128)
    for idx, r in enumerate([64, 68, 70, 72]):
        t += 'ds_write2_b32 v52, v%d, v%d offset0:%d offset1:%d\n' % (r, r + 1, idx * 64, idx * 64 + 32)
    for idx, r in ((4, 74), (5, 88)):
        t += 'ds_write_b32 v52, v%d offset:%d\nds_write_b32 v52, v%d offset:%d\n' % (r, idx * 256, r + 1, idx * 256 + 128)
    return [l.strip() for l in t.splitlines() if l.strip()]

class Rec:
    def __init__(self, c, name):
        self.c = c; self.th = []; self.name = name; self.n = 0
    def __call__(self, text):
        for l in text.strip('\n').split('\n'):
            l = l.strip()
            if l: self.th.append(lambda l=l: self.c.I(l))
    def blk(self, items):
        def f():
            for k, t in items:
                if k == 'vm': self.c.vmem(t, ('SV',))
                else: self.c.I(t)
        self.th.append(f)
    def ds(self, text, tag): self.th.append(lambda: self.c.ds(text, tag))
    def vm(self, text, tag): self.th.append(lambda: self.c.vmem(text, tag))
    def wl(self, tag):
        self.n += 1; site = (self.name, 'l', self.n)
        self.th.append(lambda: self.c.wait_lg(site, lambda t: t == tag))
    def wv(self, tag):
        self.n += 1; site = (self.name, 'v', self.n)
        self.th.append(lambda: self.c.wait_vm(site, lambda t: t == tag))

def g_work(c, GI=64, G=48):
    R = Rec(c, 'g')
    R("""
    s_lshl_b32 s6, s4, 1
    s_lshr_b32 s7, s3, 1
    s_add_u32 s6, s6, s7
    s_lshl_b32 s6, s6, 6
    s_lshl_b32 s7, s5, 1
    s_add_u32 s6, s6, s7
    s_and_b32 s7, s3, 1
    s_add_u32 s6, s6, s7
    s_lshl_b32 s76, s6, 7
    s_add_u32 s76, s76, %d
    s_add_u32 s7, s76, 0x20000
    v_mov_b32 v21, 0
    s_lshl_b32 s70, s71, 11
    v_lshlrev_b32 v25, 5, v17
    s_lshl_b32 s6, s2, 2
    s_add_u32 s6, s6, s3
    s_lshl_b32 s6, s6, 7
    s_add_u32 s6, s6, %d
    """ % (WS_FL, WS_FL + 0x40000))
    R.vm('buffer_load_dwordx4 v[%d:%d], v25, s[8:11], s70 offen' % (GI + 0, GI + 3), ('GL',))
    R.vm('buffer_load_dwordx4 v[%d:%d], v25, s[8:11], s70 offen offset:16' % (GI + 4, GI + 7), ('GL',))
    R.vm('buffer_load_dwordx4 v[%d:%d], v25, s[8:11], s70 offen offset:2048' % (GI + 8, GI + 11), ('GL',))
    R.vm('buffer_load_dwordx4 v[%d:%d], v25, s[8:11], s70 offen offset:2064' % (GI + 12, GI + 15), ('GL',))
    R.vm('global_load_dwordx4 v[%d:%d], v25, s[62:63]' % (GI + 16, GI + 19), ('GL',))
    R.vm('global_load_dwordx4 v[%d:%d], v25, s[62:63] offset:16' % (GI + 20, GI + 23), ('GL',))
    R.blk([('i', 's_mov_b64 exec, 1'), ('vm', 'buffer_store_dword v21, off, s[20:23], s76 sc1'), ('vm', 'buffer_store_dword v21, off, s[20:23], s7 sc1'), ('vm', 'buffer_store_dword v21, off, s[20:23], s6 sc1'), ('i', 's_mov_b64 exec, -1')])
    first = len(R.th)
    R.wv(('GL',))
    for d in range(8):
        R('v_and_b32 v%d, 0xffff0000, v%d\nv_lshlrev_b32 v%d, 16, v%d' % (G + 3, GI + 16 + d, G + 2, GI + 16 + d))
        for row in range(2):
            xr = GI + row * 8 + d; a = G + 4 + row * 2; t = G + 8 + row * 2
            R("""
            v_and_b32 v%d, 0xffff0000, v%d
            v_lshlrev_b32 v%d, 16, v%d
            v_pk_mul_f32 v[%d:%d], v[%d:%d], v[%d:%d]
            v_cvt_pk_bf16_f32 v%d, v%d, v%d
            v_and_b32 v%d, 0xffff0000, v%d
            v_lshlrev_b32 v%d, 16, v%d
            """ % (t + 1, xr, t, xr, t, t + 1, t, t + 1, G + 2, G + 3, t, t, t + 1, t + 1, t, t, t))
            if d == 0: R('v_mov_b64 v[%d:%d], v[%d:%d]' % (a, a + 1, t, t + 1))
            else: R('v_pk_add_f32 v[%d:%d], v[%d:%d], v[%d:%d]' % (a, a + 1, a, a + 1, t, t + 1))
    for row in range(2):
        a = G + 4 + row * 2
        R('v_add_f32 v%d, v%d, v%d' % (a, a, a + 1))
    for sh in (1, 2, 4, 8):
        for row in range(2):
            a = G + 4 + row * 2
            R('v_add_f32_dpp v%d, v%d, v%d row_shr:%d row_mask:0xf bank_mask:0xf bound_ctrl:0' % (a, a, a, sh))
    for row in range(2):
        for k in range(4):
            R('v_readlane_b32 s%d, v%d, %d' % (78 + row * 4 + k, G + 4 + row * 2, 15 + 16 * k))
    R("""
    v_mov_b32 v48, s78
    v_add_f32 v48, s79, v48
    v_add_f32 v48, s80, v48
    v_add_f32 v48, s81, v48
    v_mov_b32 v49, s82
    v_add_f32 v49, s83, v49
    v_add_f32 v49, s84, v49
    v_add_f32 v49, s85, v49
    v_cvt_pk_bf16_f32 v48, v48, v49
    v_lshlrev_b32 v49, 16, v48
    v_and_b32 v50, 0xffff0000, v48
    v_mul_f32 v49, 0xbfb8aa3b, v49
    v_mul_f32 v50, 0xbfb8aa3b, v50
    v_exp_f32 v49, v49
    v_exp_f32 v50, v50
    v_add_f32 v49, 1.0, v49
    v_add_f32 v50, 1.0, v50
    v_rcp_f32 v49, v49
    v_rcp_f32 v50, v50
    v_cvt_pk_bf16_f32 v48, v49, v50
    v_lshlrev_b32 v50, 16, v48
    v_and_b32 v51, 0xffff0000, v48
    s_lshl_b32 s6, s71, 2
    s_add_u32 s6, s6, %d
    """.replace('v48', 'v%d' % G).replace('v49', 'v%d' % (G + 1)).replace('v50', 'v%d' % (G + 2)).replace('v51', 'v%d' % (G + 3)) % WS_G)
    R.blk([('i', 's_mov_b64 exec, 1'), ('vm', 'buffer_store_dwordx2 v[%d:%d], off, s[20:23], s6 sc1' % (G + 2, G + 3)), ('i', 's_mov_b64 exec, -1')])
    return R.th[:first], R.th[first:]
def as_fill(c, lines):
    out = []
    for l in lines:
        if l.startswith('ds_'): out.append(lambda l=l: c.ds(l, ('T',)))
        else: out.append(lambda l=l: c.I(l))
    return out

def run(ths):
    for t in ths: t()

def prologue(c):
    I = c.I
    if k1.STAMP: I('s_memrealtime s[82:83]')
    I('''
    s_cmp_ge_u32 s2, 256
    s_cbranch_scc1 K1_done
    s_load_dwordx16 s[36:51], s[0:1], 0
    s_load_dwordx16 s[52:67], s[0:1], 64
    s_load_dwordx2 s[68:69], s[0:1], 128
    ''')
    if c.emit: code_touch(I, 'CP_a', 'CP_b')
    I('''
    CP_a:
    v_lshrrev_b32 v16, 6, v0
    v_and_b32 v17, 63, v0
    v_readfirstlane_b32 s3, v16
    s_lshr_b32 s4, s2, 5
    s_and_b32 s5, s2, 7
    s_lshl_b32 s5, s5, 2
    s_bfe_u32 s6, s2, 0x20003
    s_add_u32 s5, s5, s6
    v_and_b32 v18, 15, v0
    v_bfe_u32 v19, v0, 4, 2
    v_lshrrev_b32 v20, 3, v17
    v_and_b32 v21, 7, v17
    v_xor_b32 v21, v21, v20
    s_lshl_b32 s6, s4, 8
    s_lshl_b32 s7, s3, 6
    s_add_u32 s6, s6, s7
    v_lshl_add_u32 v1, v20, 2, s6
    v_lshlrev_b32 v1, 11, v1
    v_lshl_add_u32 v1, v21, 4, v1
    v_add_u32 v2, 0xfc00, v1
    s_mov_b32 s10, 0x400000
    s_mov_b32 s11, 0x00020000
    s_mov_b32 s14, 0x700000
    s_mov_b32 s15, 0x00020000
    s_mov_b32 s18, 0x200000
    s_mov_b32 s19, 0x00020000
    s_mov_b32 s22, 0x10000000
    s_mov_b32 s23, 0x00020000
    s_mov_b32 s26, 256
    s_mov_b32 s27, 0x00020000
    s_mov_b32 s90, 0x700000
    s_mov_b32 s91, 0x00020000
    s_mov_b32 s28, 0
    s_mov_b32 s29, 4096
    s_mov_b32 s30, 0
    s_mov_b32 s31, 0
    s_mov_b32 s77, 0x%x
    s_lshl_b32 s32, s3, 12
    s_add_u32 s32, s32, %d
    s_lshl_b32 s34, s3, 14
    s_lshl_b32 s35, s3, 11
    s_add_u32 s35, s35, %d
    v_lshrrev_b32 v22, 2, v20
    v_and_b32 v23, 3, v20
    v_lshl_add_u32 v22, v22, 3, v23
    s_and_b32 s7, s3, 1
    s_lshl_b32 s6, s5, 5
    s_lshl_b32 s70, s7, 2
    s_add_u32 s6, s6, s70
    v_add_u32 v22, s6, v22
    v_lshlrev_b32 v22, 11, v22
    v_lshl_add_u32 v10, v21, 4, v22
    v_add_u32 v11, 0x7c00, v10
    s_mul_i32 s72, s5, 224
    s_mul_i32 s70, s7, 28672
    s_add_u32 s72, s72, s70
    s_and_b32 s73, s5, 1
    s_lshl_b32 s73, s73, 1
    s_movk_i32 s74, 4682
    s_movk_i32 s75, 7168
    s_waitcnt lgkmcnt(0)
    s_mov_b32 s8, s36
    s_mov_b32 s9, s37
    s_cmp_ge_u32 s3, 2
    s_cselect_b32 s12, s58, s56
    s_cselect_b32 s13, s59, s57
    s_cselect_b32 s16, s44, s42
    s_cselect_b32 s17, s45, s43
    s_cselect_b32 s86, s48, s46
    s_cselect_b32 s87, s49, s47
    s_mov_b32 s20, s68
    s_mov_b32 s21, s69
    s_mov_b32 s24, s66
    s_mov_b32 s25, s67
    s_mov_b32 s88, s60
    s_mov_b32 s89, s61
    ''' % (OOB, WB, BB))
    stamp(I, 0); stamp_rt(I, 10)
    if k1.STAMP: I('v_writelane_b32 v16, s82, 25')
    if PT:
        I('''
        s_lshr_b32 s78, s2, 3
        s_lshl_b32 s78, s78, 2
        s_add_u32 s78, s78, s3
        s_and_b32 s79, s78, 15
        s_lshr_b32 s80, s78, 4
        s_mov_b32 s82, 0x11111112
        s_mov_b32 s83, 0x14144401
        s_lshl_b32 s81, s79, 2
        s_lshr_b64 s[82:83], s[82:83], s81
        s_and_b32 s82, s82, 15
        s_cmp_lt_u32 s80, s82
        s_cselect_b32 s79, s79, 0
        s_cselect_b32 s80, s80, 0
        s_sub_u32 s81, s78, 64
        s_cmp_lt_u32 s81, 20
        s_cselect_b32 s79, 16, s79
        s_cselect_b32 s80, s81, s80
        s_lshl_b32 s79, s79, 3
        s_lshl_b32 s80, s80, 21
        s_load_dwordx2 s[82:83], s[0:1], s79
        ''')
    def tv_block():
        for l in range(64): assert (l * 37) >> 8 == l // 7
        I("""
        v_mul_u32_u24 v26, 37, v17
        v_lshrrev_b32 v26, 8, v26
        v_mul_u32_u24 v27, 7, v26
        v_sub_u32 v27, v17, v27
        v_lshlrev_b32 v27, 7, v27
        s_lshr_b32 s6, s2, 3
        s_lshl_b32 s6, s6, 1
        s_add_u32 s6, s6, s7
        s_lshl_b32 s6, s6, 1
        s_and_b32 s70, s2, 7
        v_add_u32 v28, s6, v26
        v_mul_u32_u24 v28, s75, v28
        v_add_u32 v28, v28, v27
        s_mul_i32 s71, s70, 896
        v_add_u32 v28, s71, v28
        v_lshrrev_b32 v26, 1, v17
        v_and_b32 v27, 1, v17
        v_lshlrev_b32 v27, 7, v27
        s_lshl_b32 s71, s70, 7
        s_add_u32 s71, s71, s6
        v_add_u32 v29, s71, v26
        v_lshl_add_u32 v29, v29, 11, v27
        s_lshl_b32 s6, s4, 8
        s_lshl_b32 s70, s5, 3
        s_add_u32 s6, s6, s70
        s_lshl_b32 s70, s3, 1
        s_add_u32 s71, s6, s70
        v_add_u32 v30, s71, v26
        v_lshl_add_u32 v30, v30, 11, v27
        s_mov_b32 s94, %d
        s_mov_b32 s95, %d
        s_bfe_u32 s78, s2, 0x10004
        s_bfe_u32 s79, s2, 0x10003
        s_and_b32 s70, s2, 7
        s_lshl_b32 s6, s4, 4
        s_lshl_b32 s70, s70, 1
        s_add_u32 s6, s6, s70
        s_add_u32 s6, s6, s78
        s_lshl_b32 s6, s6, 2
        s_add_u32 s6, s6, s3
        s_mul_i32 s92, s6, 14336
        s_cmp_eq_u32 s78, s79
        s_cselect_b32 s92, s92, s77
        v_lshlrev_b32 v31, 7, v17
        WL2BLOCK
        """ .replace('WL2BLOCK', WL2TXT) % (TS0 * 128, TS0 * 458752))
    def tpre():
        tv_block()
        for _ in range(TPRE):
            th = ptouch(c)
            run(th[:3] + th[5:])
    if TPRE and TPW == 0: tpre()
    small = """
    v_and_b32 v24, 31, v0
    v_lshl_add_u32 v24, s5, 5, v24
    v_lshlrev_b32 v24, 1, v24
    """
    def small_loads():
        I(small)
        c.vmem('global_load_ushort v48, v24, s[38:39]', ('S',))
        c.vmem('global_load_ushort v49, v24, s[40:41]', ('S',))
        c.vmem('global_load_ushort v50, v24, s[50:51]', ('S',))
    I("""
    s_lshl_b32 s6, s4, 8
    s_lshl_b32 s70, s5, 3
    s_add_u32 s6, s6, s70
    s_lshl_b32 s70, s3, 1
    s_add_u32 s71, s6, s70
    """)
    if PRE:
        small_loads()
        g1, g2 = g_work(c, 96, 120)
        run(g1)
        I('s_and_b32 s7, s3, 1')
    for k in range(8): run(x_dma(c, 0, k))
    if PT:
        I('s_waitcnt lgkmcnt(0)')
        I('s_load_dword s81, s[82:83], s80')
    for n in range(4):
        I('''
        v_add_u32 v20, %d, v17
        v_mul_u32_u24 v21, s74, v20
        v_lshrrev_b32 v21, 16, v21
        v_mul_u32_u24 v22, 14, v21
        v_sub_u32 v22, v20, v22
        v_add_u32 v22, s73, v22
        v_subrev_u32 v23, 14, v22
        v_min_u32 v22, v22, v23
        v_lshrrev_b32 v23, 2, v21
        v_and_b32 v21, 3, v21
        v_lshl_add_u32 v21, v23, 3, v21
        v_mul_u32_u24 v21, s75, v21
        v_lshl_add_u32 v21, v22, 4, v21
        v_add_u32 v21, s72, v21
        v_subrev_u32 v%d, %d, v21
        ''' % (n * 64, 3 + n, n * 1024))
        if n == 3:
            I('v_mov_b32 v20, s77\nv_cmp_gt_u32 vcc, 32, v17\nv_cndmask_b32 v6, v20, v6, vcc')
        run(w_dma(c, 0, n))
    if PRE == 2:
        if TPRE and TPW == 1: tpre()
        D = [b_dma(c, 0, n) for n in range(2)] + [w_dma(c, 1, n) for n in range(4)] + [x_dma(c, 1, k) for k in range(8)] + [w_dma(c, 2, n) for n in range(4)] + [b_dma(c, 1, n) for n in range(2)] + [w_dma(c, 3, n) for n in range(3)]
        if DEFER == 1: D = D[:6]
        if DEFER == 2: D = D[:14]
        V1 = as_fill(c, tables_text()); V2 = list(g2)
        V = [V2.pop(0)]
        while V1 or V2:
            if V1: V.append(V1.pop(0))
            if V2: V.append(V2.pop(0))
        stepn = len(V) // len(D)
        stamp(I, 50)
        for k, v in enumerate(V):
            v()
            if k == 0: stamp(I, 51)
            if k == len(V) - len(g2): stamp(I, 52)
            if k % stepn == 1 and D: run(D.pop(0))
        for d in D: run(d)
        stamp(I, 53)
        I('s_and_b32 s7, s3, 1')
    else:
        for n in range(2): run(b_dma(c, 0, n))
        for n in range(4): run(w_dma(c, 1, n))
        if PRE:
            c.wait_vm(('s',), lambda t: t == ('S',))
            run(as_fill(c, tables_text()))
            run(g2)
            I('s_and_b32 s7, s3, 1')
        else:
            small_loads()
        for k in range(8): run(x_dma(c, 1, k))
        for n in range(4): run(w_dma(c, 2, n))
        for n in range(2): run(b_dma(c, 1, n))
        for n in range(3): run(w_dma(c, 3, n))
    if TPRE and TPW == 2: tpre()
    if not TPRE: tv_block()
    c_addr(I)
    I('''
    s_lshl_b32 s6, s5, 5
    s_lshl_b32 s7, s4, 2
    s_add_u32 s6, s6, s7
    s_add_u32 s6, s6, s3
    s_lshl_b32 s6, s6, 8
    s_add_u32 s6, s6, %d
    v_lshlrev_b32 v26, 4, v17
    v_mov_b32 v24, -1
    v_mov_b32 v25, -1
    v_mov_b32 v22, -1
    v_mov_b32 v23, -1
    s_mov_b64 exec, 0xffff
    ''' % WS_T)
    c.vmem('buffer_store_dwordx4 v[22:25], v26, s[20:23], s6 offen sc1', ('SV',))
    I('''
    s_mov_b64 exec, -1
    s_bfe_u32 s93, s2, 0x20005
    s_max_u32 s93, s93, 1
    s_add_u32 s93, s93, 1
    s_cmp_eq_u32 s3, 0
    s_cselect_b32 s93, s93, 99
    ''')
    I('''
    v_lshrrev_b32 v26, 2, v18
    v_lshl_add_u32 v26, v19, 2, v26
    v_mul_u32_u24 v26, 224, v26
    v_and_b32 v27, 3, v17
    v_lshl_add_u32 v12, v27, 3, v26
    v_add_u32 v12, %d, v12
    v_and_b32 v26, 7, v17
    v_xor_b32 v26, v26, v19
    v_lshlrev_b32 v26, 4, v26
    v_lshl_add_u32 v26, v18, 7, v26
    v_add_u32 v13, %d, v26
    v_xor_b32 v14, 64, v13
    v_add_u32 v7, s34, v26
    v_xor_b32 v8, 64, v7
    s_mov_b32 s33, %d
    ''' % (WB, BB, (NP - 4) // 4))
    stamp(I, 3)
    c.wait_vm(('d0',), lambda t: t in (('W', 0), ('B', 0), ('X', 0)))
    I('s_barrier')
    stamp(I, 4)
    for i in range(4): x_read(c, 0, 0, i)()
    for t in range(5): run(w_read(c, 0, t))
    for i in range(4): x_read(c, 0, 1, i)()
    for k in range(4): b_read(c, 0, 0, k)()


RR = lambda jt, i: acc_reg('R', jt, i)[1]
II = lambda jt, i: acc_reg('I', jt, i)[1]
BA, BBk, BC, BD = 32, 48, 64, 80

def ld16(R, base_v, off, dst, tag):
    R.ds('ds_read_b128 v[%d:%d], v%d offset:%d' % (dst, dst + 3, base_v, off), tag)
    R.ds('ds_read_b128 v[%d:%d], v%d offset:%d' % (dst + 4, dst + 7, base_v, off + 16), tag)
    R.ds('ds_read_b128 v[%d:%d], v%d offset:%d' % (dst + 8, dst + 11, base_v, off + 128), tag)
    R.ds('ds_read_b128 v[%d:%d], v%d offset:%d' % (dst + 12, dst + 15, base_v, off + 144), tag)

def s1_pre(c):
    R = Rec(c, 's1p')
    R('v_lshlrev_b32 v20, 5, v19')
    R('v_add_u32 v20, %d, v20' % TAB)
    ld16(R, 20, 0, BA, ('K', 0)); ld16(R, 20, 256, BBk, ('K', 1))
    R("""
    s_lshl_b32 s78, s4, 2
    s_add_u32 s78, s78, s3
    s_lshl_b32 s79, s5, 13
    s_add_u32 s79, s79, %d
    s_lshl_b32 s80, s78, 8
    s_add_u32 s80, s80, s79
    v_lshlrev_b32 v21, 6, v19
    s_sub_u32 s81, s78, 1
    v_sub_u32 v22, s81, v18
    v_subrev_u32 v23, 16, v22
    v_cmp_gt_u32 vcc, 32, v22
    v_lshl_add_u32 v22, v22, 8, v21
    v_mov_b32 v24, s77
    v_cndmask_b32 v22, v24, v22, vcc
    v_cmp_gt_u32 vcc, 32, v23
    v_lshl_add_u32 v23, v23, 8, v21
    s_lshl_b32 s7, s5, 2
    v_cndmask_b32 v23, v24, v23, vcc
    v_cmp_eq_u32 s[82:83], 15, v18
    """ % WS_T)

    return R.th

def cmul_sc(P, dr, di, ar, ai, br, bi, cr, ci):
    for e in range(2): P('v_fma_f32 v%d, v%d, v%d, v%d' % (dr + e, ar + e, br + e, cr + e))
    for e in range(2): P('v_fma_f32 v%d, v%d, v%d, v%d' % (di + e, ar + e, bi + e, ci + e))
    for e in range(2): P('v_fma_f32 v%d, -v%d, v%d, v%d' % (dr + e, ai + e, bi + e, dr + e))
    for e in range(2): P('v_fmac_f32 v%d, v%d, v%d' % (di + e, ai + e, br + e))
S1SC = int(os.environ.get('S1SC', '1'))
def s1_work(c):
    cmul_pk = cmul_sc if S1SC else k1.cmul_pk
    R = Rec(c, 's1')
    LAM, CA, E, T = BA, BBk, BC, BD
    R.wl(('K', 0))
    cur = None; bufs = [E, T]
    for i in range(1, 4):
        d = bufs[i & 1]
        for jt in range(2):
            for h in range(2):
                o = jt * 4 + 2 * h
                if cur is None: br, bi = RR(jt, 0) + 2 * h, II(jt, 0) + 2 * h
                else: br, bi = cur + o, cur + 8 + o
                cmul_pk(R, d + o, d + 8 + o, LAM + o, LAM + 8 + o, br, bi, RR(jt, i) + 2 * h, II(jt, i) + 2 * h)
        cur = d
    S = E
    for k, sh in enumerate((1, 2, 4, 8)):
        for r in range(16):
            R('v_mov_b32_dpp v%d, v%d row_shr:%d row_mask:0xf bank_mask:0xf bound_ctrl:0' % (S + r, cur + r, sh))
        R.wl(('K', 1 + k))
        for o in range(0, 8, 2):
            cmul_pk(R, cur + o, cur + 8 + o, CA + o, CA + 8 + o, S + o, S + 8 + o, cur + o, cur + 8 + o)
        if k < 3: ld16(R, 20, (2 + k) * 256, CA, ('K', 2 + k))
    R.blk([('i', 's_mov_b64 exec, s[82:83]')] +
          [('vm', 'buffer_store_dwordx4 v[%d:%d], v21, s[20:23], s80 offen offset:%d sc1' % (cur + 4 * k, cur + 4 * k + 3, 16 * k)) for k in range(4)] +
          [('i', 's_mov_b64 exec, -1')])
    for r in range(16):
        R('v_mov_b32_dpp v%d, v%d row_shr:1 row_mask:0xf bank_mask:0xf bound_ctrl:0' % (S + r, cur + r))
    return R.th

def last_stage(c):
    s = 15
    order = [('S', 0, k) for k in range(4)] + [('S', 1, k) for k in range(4)] + [('F', 30, t) for t in range(14)] + [('F', 31, t) for t in range(14)]
    pre = s1_pre(c); work = s1_work(c)
    nF = 28
    per = -(-len(work) // (nF - 2))
    for n, (ty, a, b) in enumerate(order):
        fill = []
        site = ('Z', n)
        if ty == 'S':
            hh, k = a, b
            if hh == 0: fill.append(b_read(c, s, 1, k))
            for _ in range(min(5, len(pre))): fill.append(pre.pop(0))
            if k == 0: c.wait_lg((site, 'bf'), lambda t: t in (('BF', s, hh), ('XF', s, hh)))
            kind, jt = SSM[k]; areg = BH + hh * 16 + k * 4
        else:
            u, t = a, b; hh = u & 1
            if t <= 8: fill += w_read(c, u, t + 5)
            if u == 30 and t >= 10:
                for tt in {10: [], 11: [0], 12: [1, 2], 13: [3, 4]}[t]: fill += w_read(c, 31, tt)
            assert not pre
            if n >= 10:
                for _ in range(min(per, len(work))): fill.append(work.pop(0))
            c.wait_lg((site, 'f'), lambda tg: tg == ('F', u, t))
            kind, jt = FFN[t]; areg = RING + (t % 7) * 4
        nf = len(fill); k2 = 0
        for i in range(4):
            f, bb = acc_reg(kind, jt, i)
            c.I('v_mfma_f32_16x16x32_bf16 %s, %s, %s, %s' % (rr(f, bb), rr('a', areg), rr('a', XSET + 32 + hh * 16 + i * 4), rr(f, bb)))
            take = (nf * (i + 1) + 3) // 4 - k2
            for _ in range(take):
                fill[k2](); k2 += 1
        if ty == 'F' and a == 30 and b == 9:
            c.wait_vm((site, 'd'), lambda t: t == ('W', 31))
            c.I('s_barrier')
    assert not work


def pk_bc(op, d, a, f, cc=None):
    base = f & ~1; hi = f & 1
    if cc is None:
        return 'v_pk_mul_f32 v[%d:%d], v[%d:%d], v[%d:%d] op_sel:[0,%d] op_sel_hi:[1,%d]' % (d, d + 1, a, a + 1, base, base + 1, hi, hi)
    return 'v_pk_fma_f32 v[%d:%d], v[%d:%d], v[%d:%d], v[%d:%d] op_sel:[0,%d,0] op_sel_hi:[1,%d,1]' % (d, d + 1, a, a + 1, base, base + 1, cc, cc + 1, hi, hi)
def cmul16(P, d, a, b, c=None):
    p = lambda r: 'v[%d:%d]' % (r, r + 1)
    G = range(0, 8, 2)
    for o in G:
        if c is None: P('v_pk_mul_f32 %s, %s, %s' % (p(d(o)[0]), p(a(o)[0]), p(b(o)[0])))
        else: P('v_pk_fma_f32 %s, %s, %s, %s' % (p(d(o)[0]), p(a(o)[0]), p(b(o)[0]), p(c(o)[0])))
    for o in G:
        if c is None: P('v_pk_mul_f32 %s, %s, %s' % (p(d(o)[1]), p(a(o)[0]), p(b(o)[1])))
        else: P('v_pk_fma_f32 %s, %s, %s, %s' % (p(d(o)[1]), p(a(o)[0]), p(b(o)[1]), p(c(o)[1])))
    for o in G:
        P('v_pk_fma_f32 %s, %s, %s, %s neg_lo:[1,0,0] neg_hi:[1,0,0]' % (p(d(o)[0]), p(a(o)[1]), p(b(o)[1]), p(d(o)[0])))
    for o in G:
        P('v_pk_fma_f32 %s, %s, %s, %s' % (p(d(o)[1]), p(a(o)[1]), p(b(o)[0]), p(d(o)[1])))
blk = lambda base: (lambda o: (base + o, base + 8 + o))
uacc = lambda i: (lambda o: (RR(o >> 2, i) + (o & 3), II(o >> 2, i) + (o & 3)))

def ffn_out2(P, items, dst, tmp, om, sc=False):
    ch = []
    for n, (jt, i) in enumerate(items):
        for h in range(2):
            ta = tmp + (n * 2 + h) * 4; tb = ta + 2
            seq = []
            srcs = []
            for kind, t in (('G', ta), ('U', tb)):
                f, b = acc_reg(kind, jt, i)
                if f == 'a':
                    seq.append('v_accvgpr_read_b32 v%d, a%d' % (t, b + 2 * h))
                    seq.append('v_accvgpr_read_b32 v%d, a%d' % (t + 1, b + 2 * h + 1))
                    srcs.append(t)
                else: srcs.append(b + 2 * h)
            g0, u0 = srcs
            if k1.EMUL:
                seq += ['v_cvt_pk_bf16_f32 v%d, v%d, v%d' % (ta, g0, g0 + 1),
                        'v_cvt_pk_bf16_f32 v%d, v%d, v%d' % (tb, u0, u0 + 1),
                        'v_pk_max_i16 v%d, v%d, 0' % (ta, ta),
                        'v_and_b32 v%d, 0xffff0000, v%d' % (tb + 1, tb),
                        'v_lshlrev_b32 v%d, 16, v%d' % (tb, tb),
                        'v_and_b32 v%d, 0xffff0000, v%d' % (ta + 1, ta),
                        'v_lshlrev_b32 v%d, 16, v%d' % (ta, ta),
                        'v_pk_mul_f32 v[%d:%d], v[%d:%d], v[%d:%d]' % (ta, ta + 1, ta, ta + 1, tb, tb + 1)]
            else:
                seq += ['v_max_f32 v%d, 0, v%d' % (ta, g0), 'v_max_f32 v%d, 0, v%d' % (ta + 1, g0 + 1),
                        'v_pk_mul_f32 v[%d:%d], v[%d:%d], v[%d:%d]' % (ta, ta + 1, ta, ta + 1, u0, u0 + 1)]
            if sc and not k1.EMUL:
                seq.pop()
                seq += ['v_mul_f32 v%d, v%d, v%d' % (ta + e, ta + e, u0 + e) for e in range(2)]
                seq += ['v_mul_f32 v%d, v%d, v%d' % (ta + e, ta + e, om + i) for e in range(2)]
            else: seq.append(pk_bc('mul', ta, ta, om + i))
            seq.append('v_cvt_pk_bf16_f32 v%d, v%d, v%d' % (dst + 2 * n + h, ta, ta + 1))
            ch.append(seq)
    m = max(len(x) for x in ch)
    for k in range(m):
        for x in ch:
            kk = k - (m - len(x))
            if kk >= 0: P(x[kk])


NS = 5
ACT = 96
WF = 32
FD = 3
NB, NT = 14, 22
XD = 64
def acc2(tau, jt): return (tau * 8 + jt) * 4
def role_of(n): return 'B' if n < NB else 'Y'
ORD = [0, 1, 4, 5, 7, 8, 11, 12, 2, 6, 9, 13, 3, 10]
ROT = int(os.environ.get('ROT', '0'))
def blk_idx(c, n, dst):
    reg, pos = (86, n) if n < 8 else (87, n - 8) if n < NB else (88, n - NB)
    return lambda: c.I('s_bfe_u32 s%d, s%d, 0x%x' % (dst, reg, 0x40000 | (4 * pos)))
def act_loads(c, n):
    if n >= NT: return []
    th = [blk_idx(c, n, 28), lambda: c.I('s_lshl_b32 s28, s28, 13'), lambda: c.I('s_add_u32 s28, s28, s%d' % (33 if n < NB else 29))]
    th += [lambda tau=tau: c.vmem('buffer_load_dwordx4 %s, v%d, s[20:23], s28 offen offset:%d sc1' % (rr('v', ACT + (n % 4) * 32 + tau * 4), 1 + (tau >> 2), (tau & 3) * 1024), ('A', n)) for tau in range(8)]
    return th
def w_loads(c, n):
    if n >= NT: return []
    th = [blk_idx(c, n, 30), lambda: c.I('s_lshl_b32 s30, s30, %d' % (16 if n < NB else 13)), lambda: c.I('s_add_u32 s30, s30, s%d' % (34 if n < NB else 32))]
    th.append(lambda: c.I('s_add_u32 s35, s30, 32768' if n < NB else 's_xor_b32 s35, s30, 4096'))
    for k in range(8):
        if k & 3 == 0: th.append(lambda k=k: c.I('s_add_u32 m0, s31, %d' % ((n % NS) * 8192 + (k >> 2) * 4096)))
        if n < NB: th.append(lambda k=k: c.vmem('buffer_load_dwordx4 v%d, s[16:19], s%d offen offset:%d lds' % (3 + (k & 3), 35 if k >> 2 else 30, (k & 3) * 1024), ('W', n)))
        else: th.append(lambda k=k: c.vmem('buffer_load_dwordx4 v24, s[20:23], s%d offen offset:%d sc1 lds' % (35 if k >> 2 else 30, (k & 3) * 1024), ('W', n)))
    return th
def rot_tables(P):
    pk = lambda a: sum(v << (4 * i) for i, v in enumerate(a))
    if ROT == 0:
        P('s_mov_b32 s86, 0x%x\ns_mov_b32 s87, 0x%x\ns_mov_b32 s88, 0x76543210' % (pk(ORD[:8]), pk(ORD[8:]))); return
    if ROT == 4:
        P('s_lshr_b32 s6, s2, 6\ns_bfe_u32 s7, s2, 0x30003\ns_add_u32 s6, s6, s7\ns_and_b32 s6, s6, 3\ns_lshl_b32 s6, s6, 2')
        def r16(dst, g): P('s_lshr_b32 s%d, 0x%x, s6\ns_and_b32 s%d, s%d, 0xffff' % (dst, g | g << 16, dst, dst))
        for reg, lo, hi in ((86, ORD[:4], ORD[4:8]), (88, [0, 1, 2, 3], [4, 5, 6, 7])):
            r16(reg, pk(lo)); r16(7, pk(hi)); P('s_lshl_b32 s7, s7, 16\ns_or_b32 s%d, s%d, s7' % (reg, reg))
        r16(87, pk(ORD[8:12]))
        g = pk(ORD[12:14]); P('s_lshr_b32 s7, 0x%x, s6\ns_and_b32 s7, s7, 0xff\ns_lshl_b32 s7, s7, 16\ns_or_b32 s87, s87, s7' % (g * 0x01010101))
    if ROT == 8:
        P('s_lshr_b32 s6, s2, 6\ns_lshl_b32 s6, s6, 1\ns_bfe_u32 s7, s2, 0x30003\ns_add_u32 s6, s6, s7\ns_and_b32 s6, s6, 7\ns_lshl_b32 s6, s6, 2')
        for reg, g in ((86, pk(ORD[:8])), (88, 0x76543210)):
            P('s_mov_b32 s90, 0x%x\ns_mov_b32 s91, 0x%x\ns_lshr_b64 s[90:91], s[90:91], s6\ns_mov_b32 s%d, s90' % (g, g, reg))
        P('s_and_b32 s6, s6, 12')
        g = pk(ORD[8:12]); P('s_lshr_b32 s87, 0x%x, s6\ns_and_b32 s87, s87, 0xffff' % (g | g << 16))
        g = pk(ORD[12:14]); P('s_lshr_b32 s7, 0x%x, s6\ns_and_b32 s7, s7, 0xff\ns_lshl_b32 s7, s7, 16\ns_or_b32 s87, s87, s7' % (g * 0x01010101))
DP = int(os.environ.get('DP', '2'))
NTL = 20
GROUPS = [(n, jt) for n in range(NTL) for jt in range(8)] + [(n, jt) for n in range(NTL, NT) for jt in range(4, 8)] + [(n, jt) for n in range(NTL, NT) for jt in range(4)]
KP0 = NTL * 8 + 8
def frag_read(c, k):
    if k >= len(GROUPS): return []
    n, jt = GROUPS[k]
    reg = WF + (k % 8) * 4
    so = (n % NS) * 8192
    th = []
    if k == 0 or GROUPS[k - 1][0] != n:
        th.append(lambda: c.wait_vm(('P2w', k), lambda t: t == ('W', n)))
    if role_of(n) == 'Y':
        th.append(lambda: c.ds('ds_read_b128 %s, v25 offset:%d' % (rr('v', reg), so + jt * 1024), ('F', k)))
    else:
        th += [lambda e=e: c.ds('ds_read_b64_tr_b16 v[%d:%d], v%d offset:%d' % (reg + 2 * e, reg + 2 * e + 1, 7 + jt, so + e * 2048), ('F', k)) for e in range(2)]
    return th

def group(c, k, side, pre=None, post=None):
    n, jt = GROUPS[k]
    if k == 0 or GROUPS[k - 1][0] != n:
        c.wait_vm(('P2a', k), lambda t: t == ('A', n))
    if pre: pre()
    slots = [[] for _ in range(8)]
    fr = frag_read(c, k + FD)
    for i, f in enumerate(fr): slots[i].append(f)
    lo = len(fr)
    for i, f in enumerate(side):
        slots[lo + (i * (8 - lo)) // len(side)].append(f)
    c.wait_lg(('P2f', k), lambda t: t == ('F', k))
    for tau in range(8):
        b = acc2(tau, jt)
        c.I('v_mfma_f32_16x16x32_bf16 %s, %s, %s, %s' % (rr('a', b), rr('v', WF + (k % 8) * 4), rr('v', ACT + (n % 4) * 32 + tau * 4), '0' if n == 0 else rr('a', b)))
        for th in slots[tau]: th()
    if post: post()

def step_vm(c, n):
    a = act_loads(c, n + DP); w = w_loads(c, n + DP)
    vm = []
    while a or w:
        for _ in range(2):
            if w: vm.append(w.pop(0))
        if a: vm.append(a.pop(0))
        if len(a) > len(w) and a: vm.append(a.pop(0))
    return vm

def p2_setup(P):
    rot_tables(P)
    P("""
    s_bfe_u32 s92, s2, 0x10002
    s_lshl_b32 s92, s92, 3
    s_bfe_u32 s6, s2, 0x30003
    s_add_u32 s92, s92, s6
    s_bfe_u32 s93, s2, 0x10001
    s_lshl_b32 s93, s93, 2
    s_lshr_b32 s6, s2, 6
    s_add_u32 s93, s93, s6
    s_and_b32 s94, s2, 1
    s_lshl_b32 s95, s94, 2
    s_add_u32 s95, s95, s3
    s_mov_b32 s12, s64
    s_mov_b32 s13, s65
    s_mov_b32 s14, 0x800000
    s_mov_b32 s16, s60
    s_mov_b32 s17, s61
    s_mov_b32 s18, 0x700000
    s_mul_i32 s31, s3, %d
    v_lshlrev_b32 v84, 1, v19
    v_xor_b32 v84, v84, v18
    v_xor_b32 v85, 8, v84
    s_lshl_b32 s6, s93, 8
    v_lshl_add_u32 v86, v19, 11, s6
    v_lshl_add_u32 v3, v84, 4, v86
    v_lshl_add_u32 v4, v85, 4, v86
    v_add_u32 v4, 7168, v4
    v_add_u32 v5, 14336, v3
    v_add_u32 v6, 14336, v4
    s_mul_i32 s34, s95, %d
    """ % (NS * 8192, NB * 65536))
    P("""
    v_lshlrev_b32 v87, 4, v17
    s_mul_i32 s6, s92, %d
    v_add_u32 v1, s6, v87
    v_add_u32 v2, 0x1000, v1
    s_mul_i32 s33, s95, %d
    s_lshl_b32 s32, s95, 16
    s_add_u32 s29, s32, %d
    v_lshrrev_b32 v84, 2, v18
    v_lshl_add_u32 v84, v19, 2, v84
    v_and_b32 v85, 7, v84
    v_and_b32 v86, 8, v84
    v_lshl_add_u32 v84, v86, 1, v85
    v_and_b32 v86, 3, v17
    v_lshlrev_b32 v84, 8, v84
    v_lshl_add_u32 v84, v86, 3, v84
    v_add_u32 v84, s31, v84
    v_lshl_add_u32 v7, v85, 5, v84
    s_lshl_b32 s7, s94, 7
    v_xor_b32 v7, s7, v7
    """ % (NKB * 8192, NB * 8192, 112 * 8192))
    for jt in range(1, 8): P('v_xor_b32 v%d, %d, v7' % (7 + jt, jt * 32))

def spin(P, L, cond_text, reload_text, sleep=2):
    P('s_mov_b32 s75, 0')
    P.label(L)
    P(cond_text)
    P("""
    s_add_u32 s75, s75, 1
    s_cmp_eq_u64 vcc, 0
    s_cbranch_scc1 %sok
    s_cmp_ge_u32 s75, 0x4000
    s_cbranch_scc1 %sok
    s_sleep %d
    """ % (L, L, sleep))
    P(reload_text)
    P('s_waitcnt vmcnt(0)')
    P('s_branch %s' % L)
    P.label(L + 'ok')

def init_load(c):
    c.I('v_and_b32 v26, 31, v17\nv_lshlrev_b32 v26, 2, v26')
    c.vmem('buffer_load_dword v25, v26, s[24:27], 0 offen offset:128 sc1', ('IF',))
def init_check(c):
    c.wait_vm(('ifw',), lambda t: t == ('IF',))
    if c.emit:
        spin(c.P, 'K1_ichk', 'v_cmp_ne_u32 vcc, 0xff, v25', 'buffer_load_dword v25, v26, s[24:27], 0 offen offset:128 sc1', 4)
    c.I("""
    s_lshl_b32 s6, s4, 8
    s_lshl_b32 s7, s3, 6
    s_add_u32 s6, s6, s7
    s_lshl_b32 s6, s6, 2
    s_add_u32 s6, s6, %d
    v_lshlrev_b32 v24, 4, v18
    """ % WS_G)
    c.vmem('buffer_load_dwordx4 v[28:31], v24, s[20:23], s6 offen sc1', ('G4',))

PLI = int(os.environ.get('PLI', '1'))
WLATE = int(os.environ.get('WLATE', '1'))
SSE = int(os.environ.get('SSE', '0'))
RES = 224
F = 160
TA, TB, WA, WBk = F, F + 16, F + 32, F + 48
tl = ''
for k in range(4): tl += 'buffer_load_dwordx4 v[%d:%d], v22, s[20:23], s79 offen offset:%d sc1\n' % (TA + 4 * k, TA + 4 * k + 3, 16 * k)
for k in range(4): tl += 'buffer_load_dwordx4 v[%d:%d], v23, s[20:23], s79 offen offset:%d sc1\n' % (TB + 4 * k, TB + 4 * k + 3, 16 * k)
_on = [0]
FSC = int(os.environ.get('FSC', '1'))
def ffn_unit(R, items, va, so, off, tag):
    _on[0] += 1
    dst = 48 + (_on[0] % 3) * 4
    ffn_out2(R, items, dst, 80, 60, sc=(FSC and tag[1] < 2))
    R('v_permlane32_swap_b32 v%d, v%d' % (dst, dst + 2))
    R('v_permlane32_swap_b32 v%d, v%d' % (dst + 1, dst + 3))
    R.vm('buffer_store_dwordx4 v[%d:%d], v%d, s[20:23], s%d offen offset:%d sc1' % (dst, dst + 3, va, so, off), tag)

def store_setup(R):
    R("""
    s_lshl_b32 s6, s4, 1
    s_lshr_b32 s7, s3, 1
    s_add_u32 s6, s6, s7
    s_mul_i32 s6, s6, %d
    s_and_b32 s7, s3, 1
    s_lshl_b32 s7, s7, 12
    s_add_u32 s6, s6, s7
    v_lshl_add_u32 v15, v17, 4, s6
    s_mul_i32 s70, s5, 7
    s_add_u32 s70, s70, 1
    s_lshr_b32 s70, s70, 1
    s_lshl_b32 s70, s70, 13
    s_add_u32 s71, s70, 8192
    s_add_u32 s72, s70, 16384
    s_add_u32 s73, s70, 24576
    s_sub_u32 s74, s70, 7680
    s_bitcmp1_b32 s5, 0
    s_cselect_b32 s73, s74, s73
    v_and_b32 v27, 31, v17
    v_lshrrev_b32 v9, 5, v17
    v_lshl_add_u32 v27, v27, 4, s6
    v_lshl_add_u32 v27, v9, 10, v27
    """ % (NKB * 8192))

FSC = int(os.environ.get('FSC', '1'))
PACE = int(os.environ.get('PACE', '14'))
def tail1(c):
    _on[0] = 0
    Pg = lambda p, u: [('F', u, t) for t in range(4 * p, min(4 * p + 4, 14))]
    Sg = lambda s_, hh: [('S', s_, hh, k) for k in range(4)]
    order = Sg(14, 0) + Sg(14, 1) + Pg(0, 28) + Sg(15, 0) + Sg(15, 1) + Pg(0, 29) + Pg(0, 30) + Pg(0, 31)
    for p in (1, 2, 3):
        for u in range(28, 32): order += Pg(p, u)
    T1, T2 = 7, 21
    FS = [g for g in order if g[0] == 'F']
    fidx = {g: i for i, g in enumerate(FS)}
    def fread(i):
        _, u, t = FS[i]
        kind, jt = FFN[t]; slot = RING + (i % 7) * 4
        return [lambda e=e: c.ds('ds_read_b64_tr_b16 a[%d:%d], v12 offset:%d' % (slot + 2 * e, slot + 2 * e + 1, (u % 4) * 16384 + ((kind == 'U') * 2 + e) * 4096 + jt * 32), ('F2', i)) for e in range(2)]
    nxt = 4; done = 0
    R0 = Rec(c, 't0'); store_setup(R0)
    pre = c_stores(c) + s1_pre(c) + R0.th
    R = Rec(c, 't1')
    R.th += s1_work(c)
    R.wv(('G4',))
    R("""
    v_sub_f32 v60, 1.0, v28
    v_sub_f32 v61, 1.0, v29
    v_sub_f32 v62, 1.0, v30
    v_sub_f32 v63, 1.0, v31
    v_cvt_pk_bf16_f32 v60, v60, v61
    v_cvt_pk_bf16_f32 v62, v62, v63
    v_and_b32 v61, 0xffff0000, v60
    v_and_b32 v63, 0xffff0000, v62
    v_lshlrev_b32 v60, 16, v60
    v_lshlrev_b32 v62, 16, v62
    v_lshl_add_u32 v21, v18, 8, v20
    """)
    marks = {}
    for pr in range(3):
        marks[len(R.th)] = 33 + 16 * pr
        for i in range(4): ffn_unit(R, [(2 * pr, i), (2 * pr + 1, i)], 15, 70 + pr, i * 1024, ('FS', pr))
        if pr == 1:
            for l in tl.strip().split('\n'): R.vm(l, ('TL',))
            for off, dst in ((6144, WA), (6144 + 4096, WBk)):
                for k, o in enumerate((0, 16, 128, 144)):
                    R.ds('ds_read_b128 v[%d:%d], v21 offset:%d' % (dst + 4 * k, dst + 4 * k + 3, off + o), ('TW',))
    marks[len(R.th)] = 999
    for i in (0, 2): ffn_unit(R, [(6, i), (6, i + 1)], 27, 73, i * 1024, ('FS', 3))
    work = R.th; wp = 0
    init_load(c)
    for n, g in enumerate(order):
        fill = []
        site = ('Z', n)
        if n == 0: fill += w_dma(c, 31, 3)[:2]
        if n < 4: fill.append(b_read(c, 14, 1, n))
        if n == 4: fill.append(lambda: c.wait_vm(('tx',), lambda t: t == ('X', 15)))
        if 4 <= n < 8: fill += [x_read(c, 15, (n - 4) >> 1, ((n - 4) & 1) * 2 + k) for k in range(2)]
        if 8 <= n < 12: fill += [b_read(c, 15, (n - 8) >> 1, ((n - 8) & 1) * 2 + k) for k in range(2)]
        k = 0
        while nxt < len(FS) and k < 2 and nxt <= done + 5 + (g[0] == 'F') - 1 + 1 - 1:
            u = FS[nxt][1]
            if (u in (29, 30) and n <= T1) or (u == 31 and n <= T2): break
            fill += fread(nxt); nxt += 1; k += 1
        if n < 20:
            for _ in range(min(4, len(pre))): fill.append(pre.pop(0))
        if n >= 22:
            assert not pre
            k = 0
            while wp < len(work) and k < PACE:
                if wp in marks and n < marks[wp]: break
                fill.append(work[wp]); wp += 1; k += 1
        if g[0] == 'S':
            _, s_, hh, k = g
            if k == 0: c.wait_lg((site, 'bf'), lambda t: t in (('BF', s_, hh), ('XF', s_, hh)))
            kind, jt = SSM[k]; areg = BH + hh * 16 + k * 4
        else:
            _, u, t = g; s_ = u >> 1; hh = u & 1
            i = fidx[g]
            c.wait_lg((site, 'f'), lambda tg: tg == (('F', 28, t) if i < 4 else ('F2', i)))
            kind, jt = FFN[t]; areg = RING + (i % 7) * 4
            done += 1
        nf = len(fill); k2 = 0
        for i4 in range(4):
            f, bb = acc_reg(kind, jt, i4)
            c.I('v_mfma_f32_16x16x32_bf16 %s, %s, %s, %s' % (rr(f, bb), rr('a', areg), rr('a', XSET + (s_ % 2) * 32 + hh * 16 + i4 * 4), rr(f, bb)))
            take = (nf * (i4 + 1) + 3) // 4 - k2
            for _ in range(take):
                fill[k2](); k2 += 1
        if n == T1:
            c.wait_vm((site, 'd'), lambda t: t in (('W', 29), ('W', 30), ('B', 15))); c.I('s_barrier')
        if n == T2:
            c.wait_vm((site, 'd'), lambda t: t == ('W', 31)); c.I('s_barrier')
            init_check(c)
    stamp(c.I, 5)
    if c.emit: code_touch(c.P, 'CP_c', 'CP_end', 9)
    run(work[wp:])
    c.I('v_mov_b32 v26, 1')
    c.wait_vm(('ef',), lambda t: t == ('FS', 1))
    c.I('s_mov_b64 exec, 1')
    c.vmem('buffer_store_dword v26, off, s[20:23], s76 sc1', ('SV',))
    c.I('s_mov_b64 exec, -1')
    stamp(c.I, 14)
    if c.emit: p2_setup(c.P)
    c.wait_vm(('tlw',), lambda t: t == ('TL',))

def epilogue(P):
    LAM, S = BA, BC
    cw = Ctx(P, {})
    wq = w_loads(cw, 0) + w_loads(cw, 1)
    stamp(P, 7)
    PWr = F + 64; AC = F + 80
    S2 = BD
    for k, o in enumerate((0, 16, 128, 144)):
        P('ds_read_b128 v[%d:%d], v21 offset:%d' % (PWr + 4 * k, PWr + 4 * k + 3, 2048 + o))
        P('ds_read_b128 v[%d:%d], v20 offset:%d' % (S2 + 4 * k, S2 + 4 * k + 3, 5 * 256 + o))
    cond = 'v_max3_u32 v24, v%d, v%d, v%d\nv_max3_u32 v25, v%d, v%d, v%d\n' % (TA, TA + 1, TA + 2, TB, TB + 1, TB + 2)
    for r in range(3, 15, 2):
        cond += 'v_max3_u32 v24, v24, v%d, v%d\nv_max3_u32 v25, v25, v%d, v%d\n' % (TA + r, TA + r + 1, TB + r, TB + r + 1)
    cond += 'v_max3_u32 v24, v24, v%d, v%d\nv_max_u32 v24, v24, v25\nv_cmp_eq_u32 vcc, -1, v24\n' % (TA + 15, TB + 15)
    spin(P, 'K1_tchk', cond, tl)
    stamp(P, 8)
    P('s_waitcnt lgkmcnt(0)')
    P('s_barrier')
    def wsome(n):
        for _ in range(n):
            if wq: wq.pop(0)()
    wsome(6)
    cmul16(P, blk(AC), blk(WA), blk(TA))
    wsome(1)
    cmul16(P, blk(AC), blk(WBk), blk(TB), blk(AC))
    for sh in (8, 4, 2, 1):
        wsome(1)
        for r in range(16):
            P('v_add_f32_dpp v%d, v%d, v%d row_ror:%d row_mask:0xf bank_mask:0xf' % (AC + r, AC + r, AC + r, sh))
    wsome(1)
    cmul16(P, blk(S), blk(PWr), blk(AC), blk(S))
    wsome(2)
    assert len(wq) == 14
    p2_pre(P)
    P('buffer_load_dword v56, v20, s[20:23], s72 offen sc1')
    wsome(4)
    for i in range(4):
        O = TA if (i & 1) else TB
        wsome(2 if i in (0, 2) else 1)
        cmul16(P, uacc(i), blk(LAM), blk(S) if i == 0 else uacc(i - 1), uacc(i))
        cmul16(P, blk(O), blk(S2), uacc(i))
        wsome(1)
        for k in range(8): P(pk_bc('mul', O + 2 * k, O + 2 * k, 28 + i))
        d = RES + i * 8
        for k in range(4):
            P('v_cvt_pk_bf16_f32 v%d, v%d, v%d' % (d + k, O + 2 * k, O + 2 * k + 1))
        for k in range(4):
            P('v_cvt_pk_bf16_f32 v%d, -v%d, -v%d' % (d + 4 + k, O + 8 + 2 * k, O + 8 + 2 * k + 1))
    assert not wq
    stamp(P, 9)

def p2_pre(P):
    P("""
    v_mov_b32 v27, v15
    v_lshlrev_b32 v15, 4, v17
    v_and_b32 v20, 7, v17
    v_lshlrev_b32 v20, 7, v20
    s_lshl_b32 s72, s92, 13
    s_lshl_b32 s7, s95, 10
    s_add_u32 s72, s72, s7
    s_add_u32 s72, s72, %d
    s_lshl_b32 s6, s93, 19
    s_add_u32 s6, s6, %d
    v_add_u32 v24, s6, v15
    v_add_u32 v25, s31, v15
    s_lshl_b32 s7, s94, 12
    s_add_u32 s32, s32, s7
    s_add_u32 s70, s5, 112
    s_lshl_b32 s70, s70, 13
    s_add_u32 s71, s70, 262144
    s_lshl_b32 s6, s92, 13
    s_add_u32 s6, s6, 0x20000
    s_lshl_b32 s7, s93, 1
    s_add_u32 s7, s7, s94
    s_lshl_b32 s7, s7, 13
    v_mov_b32 v22, s6
    v_mov_b32 v23, s7
    v_and_b32 v21, 16, v17
    v_cmp_eq_u32 vcc, 0, v21
    v_cndmask_b32 v22, v23, v22, vcc
    v_lshl_add_u32 v22, v18, 7, v22
    s_lshl_b32 s73, s3, 11
    s_add_u32 s73, s73, %d
    """ % (WS_FL, WS_C2, WS_FL))

def p2_enter(c):
    I = c.I
    I('s_waitcnt vmcnt(8)')
    c.vm.issue(('W', 1))
    stamp(I, 12)
    if c.emit:
        spin(c.P, 'P2_pf', 'v_cmp_gt_u32 vcc, 1, v56', 'buffer_load_dword v56, v20, s[20:23], s72 offen sc1', 1)
    stamp(I, 13); stamp_rt(I, 23)
    run(act_loads(c, 0))
    I('v_mov_b32 v57, 2\ns_mov_b64 exec, 1')
    c.vmem('buffer_store_dword v57, off, s[20:23], s76 sc1', ('SV',))
    I('s_mov_b64 exec, -1')
    for k in range(FD): run(frag_read(c, k))
    run(act_loads(c, 1))
    for n in range(2, DP): run(w_loads(c, n)); run(act_loads(c, n))

def ss_stores(c):
    th = []
    for i in range(4):
        d = RES + i * 8
        th.append(lambda d=d, i=i: c.vmem('buffer_store_dwordx4 v[%d:%d], v27, s[20:23], s70 offen offset:%d sc1' % (d, d + 3, i * 1024), ('SS',)))
        th.append(lambda d=d, i=i: c.vmem('buffer_store_dwordx4 v[%d:%d], v27, s[20:23], s71 offen offset:%d sc1' % (d + 4, d + 7, i * 1024), ('SS',)))
    return th

def e0_setup(c):
    pre = """
    s_lshl_b32 s6, s92, 7
    s_lshr_b32 s7, s3, 1
    s_lshl_b32 s7, s7, 6
    s_add_u32 s6, s6, s7
    s_and_b32 s7, s3, 1
    s_lshl_b32 s7, s7, 1
    s_add_u32 s74, s6, s7
    v_lshl_add_u32 v20, v18, 2, s74
    s_lshl_b32 s7, s93, 7
    s_lshl_b32 s6, s94, 6
    s_add_u32 s7, s7, s6
    v_lshl_add_u32 v21, v19, 2, s7
    v_lshlrev_b32 v28, 10, v20
    v_add_u32 v28, v28, v21
    v_lshlrev_b32 v28, 2, v28
    v_add_u32 v29, 0x1000, v28
    v_lshlrev_b32 v22, 1, v21
    v_lshlrev_b32 v21, 2, v20
    v_bfe_u32 v20, v17, 3, 1
    v_lshl_add_u32 v20, v19, 2, v20
    v_add_u32 v20, s74, v20
    v_lshlrev_b32 v20, 11, v20
    v_and_b32 v23, 7, v17
    v_xor_b32 v23, v23, v19
    v_lshl_add_u32 v23, v23, 4, v20
    s_lshl_b32 s7, s7, 1
    v_add_u32 v23, s7, v23
    v_xor_b32 v11, 64, v23
    v_add_u32 v11, 0x7c00, v11
    v_and_b32 v20, 7, v18
    v_lshrrev_b32 v10, 1, v19
    v_xor_b32 v20, v20, v10
    v_lshlrev_b32 v20, 4, v20
    v_and_b32 v10, 1, v19
    v_lshl_add_u32 v20, v10, 3, v20
    v_lshl_add_u32 v20, v18, 8, v20
    v_add_u32 v10, s31, v20
    s_mov_b32 s74, %d
    s_mov_b32 s89, 0xf800
    """ % WS_G
    return [lambda l=l.strip(): c.I(l) for l in pre.splitlines() if l.strip()]

def e0_loads(c):
    th = [lambda: c.vmem('buffer_load_dwordx2 v[30:31], v21, s[20:23], s74 offen sc1', ('E0',))]
    for jt in range(4):
        th.append(lambda jt=jt: c.vmem('global_load_dwordx2 v[%d:%d], v22, s[52:53] offset:%d' % (80 + jt * 2, 81 + jt * 2, jt * 32), ('E0',)))
    th.append(lambda: c.I('s_add_u32 m0, s31, 16384'))
    for j in range(4):
        th.append(lambda j=j: c.vmem('buffer_load_dwordx4 v%d, s[8:11], %s offen offset:%d lds' % (11 if j & 1 else 23, 's89' if j >> 1 else '0', j * 1024), ('EX',)))
    return th
def e0_reads(c):
    th = [lambda: c.wait_vm(('exw',), lambda t: t == ('EX',))]
    for jt in range(1, 4): th.append(lambda jt=jt: c.I('v_xor_b32 v%d, %d, v10' % (11 + jt, jt * 32)))
    for k in range(2):
        for jt in range(4):
            r = 64 + (k * 4 + jt) * 2
            th.append(lambda r=r, k=k, jt=jt: c.ds('ds_read_b64 v[%d:%d], v%d offset:%d' % (r, r + 1, 11 + jt if jt else 10, 16384 + k * 128), ('ER',)))
    return th

def xd_math(I, Z):
    for jt in range(4):
        for h in range(2):
            I('v_and_b32 v89, 0xffff0000, v%d\nv_lshlrev_b32 v88, 16, v%d' % (80 + jt * 2 + h, 80 + jt * 2 + h))
            seqs = []
            for k in range(2):
                t = k * 4 + jt; xs = 64 + t * 2 + h; a = 90 + 2 * k; z = Z + t * 4 + 2 * h
                seqs.append(['v_lshlrev_b32 v%d, 16, v%d' % (a, xs), 'v_and_b32 v%d, 0xffff0000, v%d' % (a + 1, xs),
                             'v_pk_mul_f32 v[%d:%d], v[%d:%d], v[88:89]' % (a, a + 1, a, a + 1),
                             'v_cvt_pk_bf16_f32 v%d, v%d, v%d' % (a, a, a + 1),
                             'v_and_b32 v%d, 0xffff0000, v%d' % (a + 1, a), 'v_lshlrev_b32 v%d, 16, v%d' % (a, a),
                             pk_bc('fma', z, a, 30 + k, z)])
            for x, y in zip(*seqs): I(x); I(y)

CPC = int(os.environ.get('CPC', '4'))
ZS = 160
add = lambda d, a, b: 'v_pk_add_f32 v[%d:%d], v[%d:%d], v[%d:%d]' % (d, d + 1, a, a + 1, b, b + 1)
def own_copy(P, jt0, dst, tag):
    for Q in range(4):
        if Q < 3: P('s_cmp_lg_u32 s3, %d\ns_cbranch_scc1 P2_%s%d' % (Q, tag, Q))
        for t in range(8):
            b = acc2(2 * Q + (t >> 2), jt0 + (t & 3))
            for r in range(4): P('v_accvgpr_read_b32 v%d, a%d' % (dst + t * 4 + r, b + r))
        if Q < 3:
            P('s_branch P2_%sx' % tag)
            P.label('P2_%s%d' % (tag, Q))
    P.label('P2_%sx' % tag)

def tail_setup(c):
    t = 'v_add_u32 v20, s31, v15\n'
    for Q in range(4):
        t += """
        s_cmp_lt_u32 s3, %d
        s_cselect_b32 s6, %d, %d
        s_lshl_b32 s6, s6, 13
        v_add_u32 v%d, s6, v20
        """ % (Q, max(Q - 1, 0), min(Q, 2), 3 + Q)
    for sl in range(3):
        t += """
        s_cmp_le_u32 s3, %d
        s_cselect_b32 s6, %d, %d
        s_cselect_b32 s7, 0, 1
        s_mul_i32 s6, s6, 40960
        s_sub_u32 s7, s3, s7
        s_lshl_b32 s7, s7, 13
        s_add_u32 s7, s7, s6
        v_add_u32 v%d, s7, v15
        """ % (sl, sl + 1, sl, 7 + sl)
    t += """
    s_lshl_b32 s6, s2, 2
    s_add_u32 s6, s6, s3
    s_lshl_b32 s78, s6, 13
    s_add_u32 s78, s78, %d
    s_add_u32 s79, s78, 4096
    s_xor_b32 s80, s78, 0x8000
    s_add_u32 s81, s80, 4096
    s_lshl_b32 s82, s6, 7
    s_add_u32 s82, s82, %d
    s_xor_b32 s83, s82, 0x200
    """ % (WS_XB, WS_FL + 0x40000)
    L = [l.strip() for l in t.splitlines() if l.strip()]
    out = []; i = 0
    while i < len(L):
        j = i + 1
        if L[i].startswith('s_cmp'):
            while L[j].startswith('s_cselect'): j += 1
        out.append(lambda x='\n'.join(L[i:j]): c.I(x)); i = j
    return out

def p2_main(c):
    def flagS():
        c.wait_vm(('ssw',), lambda t: t == ('SS',))
        c.I('s_add_u32 s7, s76, 0x20000\ns_mov_b64 exec, 1')
        c.vmem('buffer_store_dword v26, off, s[20:23], s7 sc1', ('SV',))
        c.I('s_mov_b64 exec, -1')
    def pollS():
        c.I('v_mov_b32 v23, 1\ns_mov_b64 exec, 0xffffffff')
        c.vmem('buffer_load_dword v23, v22, s[20:23], s73 offen sc1', ('PS',))
        c.I('s_mov_b64 exec, -1')
    def chkS():
        c.wait_vm(('psw',), lambda t: t == ('PS',))
        if c.emit:
            spin(c.P, 'P2_ps', 'v_cmp_gt_u32 vcc, 1, v23', 'buffer_load_dword v23, v22, s[20:23], s73 offen sc1', 2)
    def flagS_pollF():
        flagS()
    def pollF():
        c.vmem('buffer_load_dword v21, v20, s[20:23], s72 offen sc1', ('PF',))
    def chkF():
        c.wait_vm(('pfw',), lambda t: t == ('PF',))
        if c.emit:
            spin(c.P, 'P2_pg', 'v_cmp_gt_u32 vcc, 2, v21', 'buffer_load_dword v21, v20, s[20:23], s72 offen sc1', 1)
    misc = None
    ssq = [] if SSE else ss_stores(c)
    SS0 = int(os.environ.get('SS0', '1'))
    ev = {(0 if SSE else SS0 + 3 + DP + 1): flagS, 7 - DP: pollF, 8 - DP: chkF, 12 - DP: pollS, NB - DP: chkS}
    for n in range(NTL):
        if n == CPC: c.I('CP_c:')
        if os.environ.get('ST2') and n < 18: stamp(c.I, 32 + n)
        vm = step_vm(c, n)
        if SS0 <= n < SS0 + 4: vm = ssq[(n - SS0) * 2:(n - SS0) * 2 + 2] + vm
        if n == 19: vm = vm + e0_loads(c)
        if n == 15: misc = tail_setup(c) + e0_setup(c)
        per = -(-len(vm) // 8)
        for jt in range(8):
            side = vm[jt * per:(jt + 1) * per]
            if misc:
                side = side + misc[:3]; misc = misc[3:]
            group(c, n * 8 + jt, side, pre=ev.get(n) if jt == 0 else None)
    assert not misc
    er = e0_reads(c)
    for g in range(8):
        group(c, NTL * 8 + g, er[(g - 4) * 3:(g - 3) * 3] if g >= 4 else [])
    stamp(c.I, 15); stamp_rt(c.I, 24)
    def wr(Q, ts):
        def f():
            L = 'P2_w%d_%d' % (Q, ts[0])
            c.I('s_cmp_eq_u32 s3, %d\ns_cbranch_scc1 %s' % (Q, L))
            for t in ts: c.I('ds_write_b128 v%d, %s offset:%d' % (3 + Q, rr('a', acc2(2 * Q + (t >> 2), 4 + (t & 3))), 16384 + t * 1024))
            c.I(L + ':')
        return f
    def bar():
        c.I('s_waitcnt lgkmcnt(0)'); c.lg.q = []; c.I('s_barrier')
    def rds(t):
        T = 192 + (t & 3) * 12
        return [lambda sl=sl: c.ds('ds_read_b128 v[%d:%d], v%d offset:%d' % (T + sl * 4, T + sl * 4 + 3, 7 + sl, 16384 + t * 1024), ('SR', t)) for sl in range(3)]
    def sums(t):
        T = 192 + (t & 3) * 12; z = ZS + t * 4
        th = [lambda: c.wait_lg(('srw', t), lambda x: x == ('SR', t))]
        for x in (add(T, T, T + 4), add(T + 2, T + 2, T + 6), add(z, z, T + 8), add(z + 2, z + 2, T + 10), add(z, z, T), add(z + 2, z + 2, T + 2)):
            th.append(lambda x=x: c.I(x))
        th.append(lambda: c.vmem('buffer_store_dwordx4 v[%d:%d], v15, s[20:23], s%d offen offset:%d sc1' % (z, z + 3, 78 + (t >> 2), (t & 3) * 1024), ('XS',)))
        return th
    for g in range(8):
        side = []; post = None; pre = None
        if g == 0: pre = lambda: c.wait_lg(('erw',), lambda x: x == ('ER',))
        if g < 3: side = [wr(Q, ts) for Q in range(4) for ts in ([[0, 1, 4], [2, 5, 6], [3, 7]][g],)]
        if g == 2 and c.emit: post = lambda: own_copy(c.P, 4, ZS, 'so')
        if g == 3: post = bar
        if g >= 5: side += sums(2 * (g - 5)) + sums(2 * (g - 5) + 1)
        if g >= 4: side += rds(2 * (g - 4)) + rds(2 * (g - 4) + 1)
        group(c, KP0 + g, side, pre=pre, post=post)
    run(sums(6) + sums(7))
    bar()

def p2_final(P):
    ZK, TMP, XR = 128, 160, 96
    for Q in range(4):
        P('s_cmp_eq_u32 s3, %d\ns_cbranch_scc1 P2_kw%d' % (Q, Q))
        for t in range(8):
            P('ds_write_b128 v%d, %s offset:%d' % (3 + Q, rr('a', acc2(2 * Q + (t >> 2), t & 3)), t * 1024))
        P.label('P2_kw%d' % Q)
    own_copy(P, 0, ZK, 'ko')
    P('s_waitcnt vmcnt(0)\ns_mov_b64 exec, 1\nbuffer_store_dword v26, off, s[20:23], s82 sc1\ns_mov_b64 exec, -1')
    P('s_waitcnt lgkmcnt(0)')
    P('s_barrier')
    stamp(P, 16)
    for t in range(8):
        for sl in range(3):
            P('ds_read_b128 v[%d:%d], v%d offset:%d' % (TMP + sl * 32 + t * 4, TMP + sl * 32 + t * 4 + 3, 7 + sl, t * 1024))
    xl = ''.join('buffer_load_dwordx4 v[%d:%d], v15, s[20:23], s%d offen offset:%d sc1\n' % (XR + t * 4, XR + t * 4 + 3, 80 + (t >> 2), (t & 3) * 1024) for t in range(8))
    P('buffer_load_dword v59, off, s[20:23], s83 sc1')
    xd_math(P, ZK)
    P('s_waitcnt vmcnt(0)\nv_cmp_ne_u32 vcc, 1, v59\ns_mov_b32 s74, 0\ns_cmp_eq_u64 vcc, 0\ns_cbranch_scc0 P2_xa')
    P(xl)
    P('s_mov_b32 s74, 1\ns_branch P2_xb')
    P.label('P2_xa')
    P('buffer_load_dword v59, off, s[20:23], s83 sc1')
    P.label('P2_xb')
    P('s_waitcnt lgkmcnt(0)')
    for t in range(8):
        for h in range(2):
            r = t * 4 + 2 * h
            P(add(TMP + r, TMP + r, TMP + 32 + r)); P(add(ZK + r, ZK + r, TMP + 64 + r))
        for h in range(2):
            r = t * 4 + 2 * h
            P(add(ZK + r, ZK + r, TMP + r))
    stamp(P, 17)
    P('s_cmp_eq_u32 s74, 1\ns_cbranch_scc1 P2_xc')
    P('s_waitcnt vmcnt(0)')
    spin(P, 'P2_x', 'v_cmp_ne_u32 vcc, 1, v59', 'buffer_load_dword v59, off, s[20:23], s83 sc1', 1)
    P(xl)
    P.label('P2_xc')
    stamp(P, 18)
    for t in range(8):
        P('s_waitcnt vmcnt(7)')
        for h in range(2):
            r = t * 4 + 2 * h
            P(add(ZK + r, ZK + r, XR + r))
        P('buffer_store_dwordx4 v[%d:%d], v%d, s[12:15], 0 offen offset:%d' % (ZK + t * 4, ZK + t * 4 + 3, 29 if t >= 4 else 28, (t & 3) * 64))

CPF = int(os.environ.get('CPF', '1'))
_cpn = [0]
def code_touch(I, start, end, vt=26, sp=84):
    if not CPF: return
    _cpn[0] += 1
    L = 'CT%d' % _cpn[0]
    I('s_getpc_b64 s[%d:%d]' % (sp, sp + 1))
    I(L + ':')
    I('s_add_u32 s%d, s%d, %s-%s' % (sp, sp, start, L))
    I('s_addc_u32 s%d, s%d, 0' % (sp + 1, sp + 1))
    I('v_lshlrev_b32 v%d, 7, v0' % vt)
    I('v_min_u32 v%d, %s-%s-4, v%d' % (vt, end, start, vt))
    I('global_load_dword a255, v%d, s[%d:%d]' % (vt, sp, sp + 1))

NP = int(os.environ.get('NP', '4'))
ROOM = int(os.environ.get('ROOM', '7'))
def site_of(u):
    if u < NP: return ('F', u)
    if u >= 28: return ('E', u)
    return ('L', u % 4)

def body(c, emit):
    P = c.P
    prologue(c)
    if PRE:
        for u in range(NP): substep(c, u, site_of(u), first=(u == 0), tch=(u >= 4 and u % 4 == TPOS))
    else:
        g1, g2 = g_work(c, 64, 32)
        extra = g1 + [lambda: c.wait_vm(('s',), lambda t: t == ('S',))] + g2[:0]
        tb = as_fill(c, tables_text())
        q = [g1, g2, [lambda: c.wait_vm(('s',), lambda t: t == ('S',))] + tb]
        extra = []
        for u in range(NP):
            if u == 0: extra += q[0]
            if u == 1: extra += q[1] + q[2]
            substep(c, u, site_of(u), extra=extra, first=(u == 0), tch=(u >= 4 and u % 4 == TPOS), room_extra=ROOM - 7)
        assert not extra, len(extra)
    if emit:
        stamp(P, 1); stamp_rt(P, 21)
        P('.p2align 6')
        P.label('K1_loop')
        P('s_cmp_eq_u32 s33, s93\ns_cbranch_scc1 K1_t1')
        P.label('K1_tback')
        c_loads(P)
        for u in range(NP, NP + 4): substep(c, u, site_of(u), tch=(u % 4 == TPOS))
        P("""
        s_add_u32 s33, s33, 1
        s_cmp_lt_u32 s33, 6
        s_cbranch_scc1 K1_loop
        """)
    else:
        for u in range(NP, 28): substep(c, u, site_of(u), tch=(u % 4 == TPOS))
    c.I('CP_b:')
    stamp(c.I, 2); stamp_rt(c.I, 22)
    tail1(c)

DIAG = int(os.environ.get('DIAG', '0'))
if DIAG:
    DMAP = {0: 0, 4: 1, 1: 2, 2: 3, 5: 4, 7: 5, 9: 6, 12: 7, 13: 8, 15: 9, 16: 10, 17: 11, 18: 12, 19: 13, 20: 14}
    def stamp(I, idx, vr=16):
        if idx in DMAP:
            I('s_memrealtime s[84:85]')
            I('s_waitcnt lgkmcnt(0)')
            if idx == 0:
                I('s_not_b32 s85, s84')
                I('v_writelane_b32 v16, s85, 15')
            I('v_writelane_b32 v16, s84, %d' % DMAP[idx])
    def stamp_rt(I, idx, vr=16): pass
    def stamp_out(I, kern, vr=16, va=23):
        I('v_lshlrev_b32 v23, 2, v17')
        I('s_mov_b64 exec, 0xffff')
        I('buffer_atomic_umax v16, v23, s[24:27], 0 offen sc1')
        I('s_mov_b64 exec, -1')
PROBE = os.environ.get('PROBE', '')
if PROBE:
    PA, PB = [int(x) for x in PROBE.split(',')]
    def stamp(I, idx, vr=16):
        if idx == PA or idx == PB:
            I('s_memrealtime s[84:85]')
            I('s_waitcnt lgkmcnt(0)')
            I('v_writelane_b32 v16, s84, %d' % (0 if idx == PA else 1))
    def stamp_rt(I, idx, vr=16): pass
    def stamp_out(I, kern, vr=16, va=23):
        I('v_readlane_b32 s6, v16, 0')
        I('v_readlane_b32 s7, v16, 1')
        I('s_memrealtime s[84:85]')
        I('s_waitcnt lgkmcnt(0)')
        I('s_sub_u32 s6, s7, s6')
        I('s_add_u32 s6, s6, s84')
        I('PROBE_l:')
        I('s_memrealtime s[84:85]')
        I('s_waitcnt lgkmcnt(0)')
        I('s_sub_u32 s7, s84, s6')
        I('s_cmp_lt_i32 s7, 0')
        I('s_cbranch_scc1 PROBE_l')
JIT = int(os.environ.get('JIT', '0'))
if JIT:
    _jn = [0]
    def stamp(I, idx, vr=16):
        _jn[0] += 1
        L = 'JIT%d' % _jn[0]
        I('s_lshl_b32 s84, s2, 2')
        I('s_add_u32 s84, s84, s3')
        I('s_mul_i32 s84, s84, 0x%x' % ((2654435761 * (2 * idx + 1 + 64 * JIT)) & 0x7fffffff | 1))
        I('s_lshr_b32 s84, s84, 27')
        I('s_cmp_lt_u32 s84, 24')
        I('s_cselect_b32 s84, 0, s84')
        I(L + ':')
        I('s_cmp_eq_u32 s84, 0')
        I('s_cbranch_scc1 %sx' % L)
        I('s_sleep 32')
        I('s_sub_u32 s84, s84, 1')
        I('s_branch %s' % L)
        I(L + 'x:')
    def stamp_rt(I, idx, vr=16): pass
    def stamp_out(I, kern, vr=16, va=23): pass
KNAME = 'gated_mix__ssm_conv_s5__glu_gated_reglu__prompt_kernel'
def gen():
    waits = {}
    body(Ctx(None, waits), False)
    c = Ctx(None, waits)
    p2_enter(c); p2_main(c)
    P = Prog()
    c = Ctx(P, waits)
    P('.globl %s\n.p2align 8\n.type %s,@function' % (KNAME, KNAME))
    P.label(KNAME)
    body(c, True)
    epilogue(P)
    p2_enter(c)
    p2_main(c)
    P('s_nop 7')
    p2_final(P)
    stamp(P, 19); stamp_rt(P, 11)
    P('s_waitcnt vmcnt(0)')
    stamp(P, 20)
    stamp_out(P, 0)
    P.label('K1_done')
    P('s_endpgm')
    P.label('K1_t1')
    P("""
    s_lshl_b32 s6, 1, s4
    v_mov_b32 v26, s6
    s_lshl_b32 s7, s5, 2
    s_mov_b64 exec, 1
    buffer_atomic_add v26, off, s[24:27], s7 offset:128 sc1
    s_mov_b64 exec, -1
    s_branch K1_tback
    """)
    P.label('CP_end')
    txt = P.text()
    X = os.environ.get('XP', '')
    if X:
        a = txt.index('K1_tback:'); b = txt.index('s_cbranch_scc1 K1_loop')
        L = txt[a:b].split('\n')
        if 'r' in X: L = [l for l in L if 'ds_read' not in l]
        if 'd' in X: L = [l for l in L if ' lds' not in l]
        if 't' in X: L = [l for l in L if 'ds_read_b64_tr' not in l]
        if 'h' in X: L = [l for k, l in enumerate(L) if not ('ds_read_b64_tr' in l and (int(l.split('offset:')[1]) // 4096) % 2)]
        if 'b' in X: L = [l for l in L if 's_barrier' not in l]
        txt = txt[:a] + '\n'.join(L) + txt[b:]
    return txt, waits

if __name__ == '__main__':
    import sys
    NAME = 'gated_mix__ssm_conv_s5__glu_gated_reglu__prompt'
    ref = open('cdna_kernels/%s.s.ref' % NAME).read().splitlines()
    hdr = [l for l in ref if l.startswith(';') and '@launch' not in l]
    t, w = gen()
    out = '\n'.join(hdr) + '\n; @launch grid=(256,1,1) block=(256,1,1) lds=%d\n' % K1_LDS
    out += '.amdgcn_target "amdgcn-amd-amdhsa--gfx950"\n.text\n' + t
    out += '.section .rodata,"a"\n.p2align 6\n' + K1_DESC.replace('k1_kernel', KNAME)
    dst = sys.argv[1] if len(sys.argv) > 1 else 'cdna_kernels/%s.s' % NAME
    open(dst, 'w').write(out)
    print('wrote', dst, len(out))
```

```python
import os
from asmlib import Prog, Counter
import k1
from k1 import Ctx, rr, cmul_pk, ffn_out, acc_reg, ACC_V0, stamp, stamp_rt, stamp_out, NKB, WS_G, WS_T, WS_C2, WS_FL, WS_XB, K1_DESC

XB = 0
WB = 65536
BB = 131072
TAB = 147456
POW = TAB + 2048
WG64 = TAB + 6144
K1_LDS = 163840
assert TAB == k1.TAB
XSET = 128
RING = 192
BH = 220
OOB = 0x70000000
EXP = int(os.environ.get('EXP', '0'))
TS0 = int(os.environ.get('TS0', '6'))
TPRE = int(os.environ.get('TPRE', '0'))
DEFER = int(os.environ.get('DEFER', '0'))
NTW = 'nt' if int(os.environ.get('NTW', '1')) else ''
NTB = 'nt' if int(os.environ.get('NTB', '1')) else ''
NTC = 'nt' if int(os.environ.get('NTC', '1')) else ''
NTT = 'nt' if int(os.environ.get('NTT', '0')) else ''
NTX = 'nt' if int(os.environ.get('NTX', '0')) else ''
WDT = int(os.environ.get('WDT', '1'))
PRE = int(os.environ.get('PRE', '2'))
TPOS = int(os.environ.get('TPOS', '0'))
WL2 = int(os.environ.get('WL2', '0'))
WL2TXT = """
    s_lshr_b32 s6, s2, 3
    s_lshl_b32 s6, s6, 2
    s_add_u32 s6, s6, s3
    s_mul_i32 s6, s6, 14
    s_and_b32 s70, s2, 1
    s_mul_i32 s70, s70, 1792
    s_add_u32 s6, s6, s70
    s_lshl_b32 s92, s6, 11
    s_bfe_u32 s70, s2, 0x10001
    s_lshl_b32 s70, s70, 10
    s_add_u32 s92, s92, s70
    s_sub_u32 s92, s92, """ + {0: '0', 1: '6144', 2: '16384'}[WL2] + """
    v_lshrrev_b32 v26, 3, v17
    v_and_b32 v27, 7, v17
    v_lshlrev_b32 v31, 11, v26
    v_lshl_add_u32 v31, v27, 7, v31
""" if WL2 else ''
TPW = int(os.environ.get('TPW', '1'))
PT = int(os.environ.get('PT', '0'))
TOUCH = int(os.environ.get('TOUCH', '1'))

FFN = []
for jt in range(7): FFN += [('G', jt), ('U', jt)]
SSM = [('R', 0), ('I', 0), ('R', 1), ('I', 1)]

def w_read(c, u, t):
    kind, jt = FFN[t]
    slot = RING + (t % 7) * 4
    th = []
    for e in range(2):
        off = (u % 4) * 16384 + ((kind == 'U') * 2 + e) * 4096 + jt * 32
        th.append(lambda off=off, e=e: c.ds('ds_read_b64_tr_b16 a[%d:%d], v12 offset:%d' % (slot + 2 * e, slot + 2 * e + 1, off), ('F', u, t)))
    return th
def b_read(c, s, hh, k):
    kind, jt = SSM[k]
    off = (s % 2) * 8192 + ((kind == 'I') * 32 + jt * 16) * 128
    return lambda: c.ds('ds_read_b128 %s, v%d offset:%d' % (rr('a', BH + hh * 16 + k * 4), 13 + hh, off), ('BF', s, hh))
def x_read(c, s, hh, i):
    off = (s % 2) * 8192 + i * 2048
    return lambda: c.ds('ds_read_b128 %s, v%d offset:%d' % (rr('a', XSET + (s % 2) * 32 + hh * 16 + i * 4), 7 + hh, off), ('XF', s, hh))
def w_dma(c, u, n):
    th = []
    th.append(lambda: c.I('s_add_u32 m0, s32, %d' % ((u % 4) * 16384)))
    th.append(lambda: c.vmem('buffer_load_dwordx4 v%d, s[12:15], s30 offen offset:%d %s lds' % (3 + n, n * 1024, NTW), ('W', u)))
    if n == 3: th.append(lambda: c.I('s_add_u32 s30, s30, 229376'))
    return th
def x_dma(c, s, k):
    th = []
    th.append(lambda: c.I('s_add_u32 m0, s34, %d' % ((s % 2) * 8192 + (k >> 2) * 4096)))
    th.append(lambda: c.vmem('buffer_load_dwordx4 v%d, s[8:11], s%d offen offset:%d %s lds' % (1 + (k & 1), 28 + (k >> 2), (k & 3) * 1024, NTX), ('X', s)))
    if k == 7:
        th.append(lambda: c.I('s_add_u32 s28, s28, 128'))
        th.append(lambda: c.I('s_cmp_lt_u32 s28, 2048'))
        th.append(lambda: c.I('s_cselect_b32 s28, s28, s77'))
        th.append(lambda: c.I('s_add_u32 s29, s28, 4096'))
    return th
def b_dma(c, s, n):
    th = []
    th.append(lambda: c.I('s_add_u32 m0, s35, %d' % ((s % 2) * 8192)))
    th.append(lambda: c.vmem('buffer_load_dwordx4 v%d, s[16:19], s31 offen offset:%d %s lds' % (10 + n, n * 1024, NTB), ('B', s)))
    if n == 1:
        th.append(lambda: c.I('s_add_u32 s31, s31, 128'))
        th.append(lambda: c.I('s_cmp_lt_u32 s31, 2048'))
        th.append(lambda: c.I('s_cselect_b32 s31, s31, s77'))
    return th

def substep(c, u, site, extra=None, first=False, last=0, room_extra=0, tch=False):
    tq = ptouch(c) if (tch and TOUCH) else []
    hh = u & 1; s = u >> 1
    for j in range(18):
        fill = []
        if j <= 8: fill += w_read(c, u, j + 5)
        if 12 <= j <= 16 and u != 31: fill += w_read(c, u + 1, j - 12)
        if u == 31: pass
        elif hh == 1:
            if j == 9: fill.append(lambda: c.wait_vm((site, 'x'), lambda t: t == ('X', s + 1)))
            if j in (9, 10): fill += [x_read(c, s + 1, 0, (j - 9) * 2 + k) for k in range(2)]
            if j in (14, 15, 16, 17): fill.append(x_read(c, s + 1, 1, j - 14))
            if j in (12, 13): fill += [b_read(c, s + 1, 0, (j - 12) * 2 + k) for k in range(2)]
        else:
            if j in (0, 2, 4, 6): fill.append(b_read(c, s, 1, j // 2))
        d = []
        if j in (13, 15, 17): d = w_dma(c, u + 4, (j - 13) // 2)
        if j == 1: d = w_dma(c, u + 3, 3)
        if j in (3, 5, 7, 9): d = x_dma(c, s + 2, hh * 4 + (j - 3) // 2)
        if hh == 0 and j in (14, 16): d = b_dma(c, s + 2, (j - 14) // 2)
        if last == 2 or (last == 1 and j != 1): d = []
        if DEFER and u == 0:
            seq = [('x', 1, k) for k in range(8)] + [('w', 2, n) for n in range(4)] + [('b', 1, n) for n in range(2)] + [('w', 3, n) for n in range(4)] + [('x', 2, k) for k in range(4)]
            if DEFER == 2: seq = seq[8:]
            if j <= 10:
                d = []
                for ty, a, b in seq[2 * j:2 * j + 2] if DEFER == 1 else seq[(j * 14) // 11:((j + 1) * 14) // 11]:
                    d += {'x': x_dma, 'w': w_dma, 'b': b_dma}[ty](c, a, b)
        fill = d[:1] + fill + d[1:]
        if tq and j in (10, 11): fill += tq[:2]; tq = tq[2:]
        if tq and j == 12: fill += tq; tq = []
        if extra:
            room = max(0, 8 - 1 - len(fill) + room_extra)
            for _ in range(min(room, len(extra))): fill.append(extra.pop(0))
        if j == 0: c.wait_lg((site, 'xf'), lambda t: t in (('XF', s, hh), ('F', u, 0)))
        elif j < 14: c.wait_lg((site, 'f', j), lambda t: t == ('F', u, j))
        elif j == 14: c.wait_lg((site, 'bf'), lambda t: t == ('BF', s, hh))
        if j < 14:
            kind, jt = FFN[j]; a = RING + (j % 7) * 4
        else:
            kind, jt = SSM[j - 14]; a = BH + hh * 16 + (j - 14) * 4
        nf = len(fill); k = 0
        for i in range(4):
            f, b = acc_reg(kind, jt, i)
            c.I('v_mfma_f32_16x16x32_bf16 %s, %s, %s, %s' % (rr(f, b), rr('a', a), rr('a', XSET + (s % 2) * 32 + hh * 16 + i * 4), '0' if first else rr(f, b)))
            take = (nf * (i + 1) + 3) // 4 - k
            for _ in range(take):
                fill[k](); k += 1
        if j == 11 and u != 31:
            if hh == 1: c.wait_vm((site, 'd'), lambda t: t in (('W', u + 1), ('B', s + 1)))
            else: c.wait_vm((site, 'd'), lambda t: t == ('W', u + 1))
            c.I('s_waitcnt lgkmcnt(0)')
            c.lg.q = []
            c.I('s_barrier')

def touch(I, batch):
    ks = 2 + 7 * batch
    I('''
    s_mov_b32 s6, %d
    s_mov_b32 s7, %d
    s_mov_b32 exec_hi, 0x1ffff
    buffer_load_dword a255, v28, s[12:15], s6 offen
    s_mov_b64 exec, 0x3fff
    buffer_load_dword a255, v29, s[16:19], s7 offen
    buffer_load_dword a255, v30, s[8:11], s7 offen
    s_mov_b64 exec, -1
    ''' % (ks * 64 * 7168, ks * 128))

def touch_wd(I):
    I('''
    s_lshl_b32 s6, s2, 2
    s_add_u32 s6, s6, s3
    s_mul_i32 s6, s6, 7168
    v_lshlrev_b32 v26, 7, v17
    s_mov_b32 exec_hi, 0xffffff
    buffer_load_dword a255, v26, s[88:91], s6 offen
    s_mov_b64 exec, -1
    ''')


def c_addr(I):
    I("""
    s_and_b32 s7, s3, 1
    s_lshl_b32 s6, s4, 7
    s_lshl_b32 s70, s7, 6
    s_add_u32 s6, s6, s70
    v_add_u32 v9, s6, v18
    v_lshlrev_b32 v9, 11, v9
    v_lshl_add_u32 v9, v19, 4, v9
    s_lshl_b32 s6, s5, 6
    v_add_u32 v9, s6, v9
    """)

def c_loads(P):
    for k in range(4):
        P('s_cmp_lg_u32 s33, %d' % (k + 1))
        P('s_cbranch_scc1 K1_c%d' % k)
        P('global_load_dwordx4 v[%d:%d], v9, s[86:87] %s' % (32 + 4 * k, 35 + 4 * k, NTC))
        P('v_add_u32 v9, 0x8000, v9')
        if k == 3: code_touch(P, 'CP_b', 'CP_c')
        P.label('K1_c%d' % k)

def c_stores(c):
    R = Rec(c, 'cs')
    R("""
    s_lshl_b32 s6, s4, 6
    s_lshr_b32 s7, s3, 1
    s_lshl_b32 s7, s7, 5
    s_add_u32 s6, s6, s7
    s_add_u32 s6, s6, s5
    s_lshl_b32 s6, s6, 13
    s_and_b32 s7, s3, 1
    s_lshl_b32 s7, s7, 12
    s_add_u32 s6, s6, s7
    s_add_u32 s6, s6, %d
    v_lshlrev_b32 v20, 4, v17
    """ % WS_C2)
    for k in range(4):
        R.vm('buffer_store_dwordx4 v[%d:%d], v20, s[20:23], s6 offen offset:%d sc1' % (32 + 4 * k, 35 + 4 * k, k * 1024), ('SV',))
    return R.th

def ptouch(c):
    def mk(mask, txt):
        def f():
            c.I('s_mov_b64 exec, %s' % mask); c.vmem(txt, ('TC',)); c.I('s_mov_b64 exec, -1')
        return f
    th = [mk('0x3fff', 'buffer_load_dword a255, v28, s[12:15], s95 offen %s' % NTT),
          mk('0xf', 'buffer_load_dword a255, v29, s[16:19], s94 offen %s' % NTB),
          mk('0xf', 'buffer_load_dword a255, v30, s[8:11], s94 offen'),
          mk({0: '0x7ffff', 1: '0xffffff', 2: '0xffffffff'}[WL2], 'buffer_load_dword a255, v31, s[88:91], s92 offen')]
    for t in ('s_add_u32 s92, s92, %d' % {0: 2432, 1: 6144, 2: 8192}[WL2], 's_add_u32 s95, s95, 917504'):
        th.append(lambda t=t: c.I(t))
    th.append(lambda: c.I('s_add_u32 s94, s94, 256\ns_cmp_lt_u32 s94, 2048\ns_cselect_b32 s94, s94, s77'))
    return th

def tables_text():
    t = """
    v_lshlrev_b32 v48, 16, v48
    v_lshlrev_b32 v49, 16, v49
    v_lshlrev_b32 v50, 16, v50
    v_mul_f32 v50, 0x3fb8aa3b, v50
    v_exp_f32 v50, v50
    v_cvt_pk_bf16_f32 v50, v50, v50
    v_lshlrev_b32 v50, 16, v50
    v_mul_f32 v51, v50, v48
    v_mul_f32 v52, v50, v49
    v_mul_f32 v51, 0x3fb8aa3b, v51
    v_exp_f32 v51, v51
    v_mul_f32 v52, 0.15915494, v52
    v_fract_f32 v52, v52
    v_cos_f32 v53, v52
    v_sin_f32 v54, v52
    v_mul_f32 v64, v51, v53
    v_mul_f32 v65, v51, v54
    v_add_f32 v51, -1.0, v64
    v_mul_f32 v52, v48, v48
    v_fmac_f32 v52, v49, v49
    v_rcp_f32 v53, v52
    v_mul_f32 v54, v51, v48
    v_fmac_f32 v54, v65, v49
    v_mul_f32 v55, v65, v48
    v_fma_f32 v55, -v51, v49, v55
    v_fma_f32 v52, -v52, v53, 2.0
    v_mul_f32 v53, v53, v52
    v_add_f32 v53, v53, v53
    v_mul_f32 v88, v54, v53
    v_mul_f32 v89, v55, v53
    """
    for k in range(9):
        a = 64 + 2 * k; d = a + 2
        t += """
        v_mul_f32 v%d, v%d, v%d
        v_fma_f32 v%d, -v%d, v%d, v%d
        v_mul_f32 v%d, v%d, v%d
        v_add_f32 v%d, v%d, v%d
        """ % (d, a, a, d, a + 1, a + 1, d, d + 1, a, a + 1, d + 1, d + 1, d + 1)
    t += """
    v_lshrrev_b32 v51, 5, v0
    v_mov_b32 v56, 1.0
    v_mov_b32 v57, 0
    v_mov_b32 v60, 1.0
    v_mov_b32 v61, 0
    """
    def cm(dr, di, ar, ai, br, bi):
        return """
        v_mul_f32 v%d, v%d, v%d
        v_fma_f32 v%d, -v%d, v%d, v%d
        v_mul_f32 v%d, v%d, v%d
        v_fmac_f32 v%d, v%d, v%d
        """ % (dr, ar, br, dr, ai, bi, dr, di, ar, bi, di, ai, br)
    for b in range(3):
        a = 68 + 2 * b; a2 = 76 + 2 * b
        t += 'v_and_b32 v54, %d, v51\nv_cmp_ne_u32 vcc, 0, v54\n' % (1 << b)
        t += cm(52, 53, 56, 57, a, a + 1) + cm(62, 63, 60, 61, a2, a2 + 1)
        t += """
        v_cndmask_b32 v56, v56, v52, vcc
        v_cndmask_b32 v57, v57, v53, vcc
        v_cndmask_b32 v60, v60, v62, vcc
        v_cndmask_b32 v61, v61, v63, vcc
        """
    t += cm(58, 59, 56, 57, 74, 75)
    t += cm(62, 63, 60, 61, 82, 83) + cm(84, 85, 62, 63, 82, 83) + cm(86, 87, 84, 85, 82, 83)
    t += """
    v_and_b32 v52, 31, v0
    v_lshlrev_b32 v52, 2, v52
    v_lshl_add_u32 v53, v51, 8, v52
    v_add_u32 v53, %d, v53
    v_add_u32 v52, %d, v52
    ds_write2_b32 v53, v56, v57 offset0:0 offset1:32
    ds_write_b32 v53, v58 offset:2048
    ds_write_b32 v53, v59 offset:2176
    """ % (POW, TAB)
    for k, r in enumerate((60, 62, 84, 86)):
        t += 'ds_write_b32 v53, v%d offset:%d\nds_write_b32 v53, v%d offset:%d\n' % (r, 4096 + k * 2048, r + 1, 4096 + k * 2048 + 128)
    for idx, r in enumerate([64, 68, 70, 72]):
        t += 'ds_write2_b32 v52, v%d, v%d offset0:%d offset1:%d\n' % (r, r + 1, idx * 64, idx * 64 + 32)
    for idx, r in ((4, 74), (5, 88)):
        t += 'ds_write_b32 v52, v%d offset:%d\nds_write_b32 v52, v%d offset:%d\n' % (r, idx * 256, r + 1, idx * 256 + 128)
    return [l.strip() for l in t.splitlines() if l.strip()]

class Rec:
    def __init__(self, c, name):
        self.c = c; self.th = []; self.name = name; self.n = 0
    def __call__(self, text):
        for l in text.strip('\n').split('\n'):
            l = l.strip()
            if l: self.th.append(lambda l=l: self.c.I(l))
    def blk(self, items):
        def f():
            for k, t in items:
                if k == 'vm': self.c.vmem(t, ('SV',))
                else: self.c.I(t)
        self.th.append(f)
    def ds(self, text, tag): self.th.append(lambda: self.c.ds(text, tag))
    def vm(self, text, tag): self.th.append(lambda: self.c.vmem(text, tag))
    def wl(self, tag):
        self.n += 1; site = (self.name, 'l', self.n)
        self.th.append(lambda: self.c.wait_lg(site, lambda t: t == tag))
    def wv(self, tag):
        self.n += 1; site = (self.name, 'v', self.n)
        self.th.append(lambda: self.c.wait_vm(site, lambda t: t == tag))

def g_work(c, GI=64, G=48):
    R = Rec(c, 'g')
    R("""
    s_lshl_b32 s6, s4, 1
    s_lshr_b32 s7, s3, 1
    s_add_u32 s6, s6, s7
    s_lshl_b32 s6, s6, 6
    s_lshl_b32 s7, s5, 1
    s_add_u32 s6, s6, s7
    s_and_b32 s7, s3, 1
    s_add_u32 s6, s6, s7
    s_lshl_b32 s76, s6, 7
    s_add_u32 s76, s76, %d
    s_add_u32 s7, s76, 0x20000
    v_mov_b32 v21, 0
    s_lshl_b32 s70, s71, 11
    v_lshlrev_b32 v25, 5, v17
    s_lshl_b32 s6, s2, 2
    s_add_u32 s6, s6, s3
    s_lshl_b32 s6, s6, 7
    s_add_u32 s6, s6, %d
    """ % (WS_FL, WS_FL + 0x40000))
    R.vm('buffer_load_dwordx4 v[%d:%d], v25, s[8:11], s70 offen' % (GI + 0, GI + 3), ('GL',))
    R.vm('buffer_load_dwordx4 v[%d:%d], v25, s[8:11], s70 offen offset:16' % (GI + 4, GI + 7), ('GL',))
    R.vm('buffer_load_dwordx4 v[%d:%d], v25, s[8:11], s70 offen offset:2048' % (GI + 8, GI + 11), ('GL',))
    R.vm('buffer_load_dwordx4 v[%d:%d], v25, s[8:11], s70 offen offset:2064' % (GI + 12, GI + 15), ('GL',))
    R.vm('global_load_dwordx4 v[%d:%d], v25, s[62:63]' % (GI + 16, GI + 19), ('GL',))
    R.vm('global_load_dwordx4 v[%d:%d], v25, s[62:63] offset:16' % (GI + 20, GI + 23), ('GL',))
    R.blk([('i', 's_mov_b64 exec, 1'), ('vm', 'buffer_store_dword v21, off, s[20:23], s76 sc1'), ('vm', 'buffer_store_dword v21, off, s[20:23], s7 sc1'), ('vm', 'buffer_store_dword v21, off, s[20:23], s6 sc1'), ('i', 's_mov_b64 exec, -1')])
    first = len(R.th)
    R.wv(('GL',))
    for d in range(8):
        R('v_and_b32 v%d, 0xffff0000, v%d\nv_lshlrev_b32 v%d, 16, v%d' % (G + 3, GI + 16 + d, G + 2, GI + 16 + d))
        for row in range(2):
            xr = GI + row * 8 + d; a = G + 4 + row * 2; t = G + 8 + row * 2
            R("""
            v_and_b32 v%d, 0xffff0000, v%d
            v_lshlrev_b32 v%d, 16, v%d
            v_pk_mul_f32 v[%d:%d], v[%d:%d], v[%d:%d]
            v_cvt_pk_bf16_f32 v%d, v%d, v%d
            v_and_b32 v%d, 0xffff0000, v%d
            v_lshlrev_b32 v%d, 16, v%d
            """ % (t + 1, xr, t, xr, t, t + 1, t, t + 1, G + 2, G + 3, t, t, t + 1, t + 1, t, t, t))
            if d == 0: R('v_mov_b64 v[%d:%d], v[%d:%d]' % (a, a + 1, t, t + 1))
            else: R('v_pk_add_f32 v[%d:%d], v[%d:%d], v[%d:%d]' % (a, a + 1, a, a + 1, t, t + 1))
    for row in range(2):
        a = G + 4 + row * 2
        R('v_add_f32 v%d, v%d, v%d' % (a, a, a + 1))
    for sh in (1, 2, 4, 8):
        for row in range(2):
            a = G + 4 + row * 2
            R('v_add_f32_dpp v%d, v%d, v%d row_shr:%d row_mask:0xf bank_mask:0xf bound_ctrl:0' % (a, a, a, sh))
    for row in range(2):
        for k in range(4):
            R('v_readlane_b32 s%d, v%d, %d' % (78 + row * 4 + k, G + 4 + row * 2, 15 + 16 * k))
    R("""
    v_mov_b32 v48, s78
    v_add_f32 v48, s79, v48
    v_add_f32 v48, s80, v48
    v_add_f32 v48, s81, v48
    v_mov_b32 v49, s82
    v_add_f32 v49, s83, v49
    v_add_f32 v49, s84, v49
    v_add_f32 v49, s85, v49
    v_cvt_pk_bf16_f32 v48, v48, v49
    v_lshlrev_b32 v49, 16, v48
    v_and_b32 v50, 0xffff0000, v48
    v_mul_f32 v49, 0xbfb8aa3b, v49
    v_mul_f32 v50, 0xbfb8aa3b, v50
    v_exp_f32 v49, v49
    v_exp_f32 v50, v50
    v_add_f32 v49, 1.0, v49
    v_add_f32 v50, 1.0, v50
    v_rcp_f32 v49, v49
    v_rcp_f32 v50, v50
    v_cvt_pk_bf16_f32 v48, v49, v50
    v_lshlrev_b32 v50, 16, v48
    v_and_b32 v51, 0xffff0000, v48
    s_lshl_b32 s6, s71, 2
    s_add_u32 s6, s6, %d
    """.replace('v48', 'v%d' % G).replace('v49', 'v%d' % (G + 1)).replace('v50', 'v%d' % (G + 2)).replace('v51', 'v%d' % (G + 3)) % WS_G)
    R.blk([('i', 's_mov_b64 exec, 1'), ('vm', 'buffer_store_dwordx2 v[%d:%d], off, s[20:23], s6 sc1' % (G + 2, G + 3)), ('i', 's_mov_b64 exec, -1')])
    return R.th[:first], R.th[first:]
def as_fill(c, lines):
    out = []
    for l in lines:
        if l.startswith('ds_'): out.append(lambda l=l: c.ds(l, ('T',)))
        else: out.append(lambda l=l: c.I(l))
    return out

def run(ths):
    for t in ths: t()

def prologue(c):
    I = c.I
    if k1.STAMP: I('s_memrealtime s[82:83]')
    I('''
    s_cmp_ge_u32 s2, 256
    s_cbranch_scc1 K1_done
    s_load_dwordx16 s[36:51], s[0:1], 0
    s_load_dwordx16 s[52:67], s[0:1], 64
    s_load_dwordx2 s[68:69], s[0:1], 128
    ''')
    if c.emit: code_touch(I, 'CP_a', 'CP_b')
    I('''
    CP_a:
    v_lshrrev_b32 v16, 6, v0
    v_and_b32 v17, 63, v0
    v_readfirstlane_b32 s3, v16
    s_lshr_b32 s4, s2, 5
    s_and_b32 s5, s2, 7
    s_lshl_b32 s5, s5, 2
    s_bfe_u32 s6, s2, 0x20003
    s_add_u32 s5, s5, s6
    v_and_b32 v18, 15, v0
    v_bfe_u32 v19, v0, 4, 2
    v_lshrrev_b32 v20, 3, v17
    v_and_b32 v21, 7, v17
    v_xor_b32 v21, v21, v20
    s_lshl_b32 s6, s4, 8
    s_lshl_b32 s7, s3, 6
    s_add_u32 s6, s6, s7
    v_lshl_add_u32 v1, v20, 2, s6
    v_lshlrev_b32 v1, 11, v1
    v_lshl_add_u32 v1, v21, 4, v1
    v_add_u32 v2, 0xfc00, v1
    s_mov_b32 s10, 0x400000
    s_mov_b32 s11, 0x00020000
    s_mov_b32 s14, 0x700000
    s_mov_b32 s15, 0x00020000
    s_mov_b32 s18, 0x200000
    s_mov_b32 s19, 0x00020000
    s_mov_b32 s22, 0x10000000
    s_mov_b32 s23, 0x00020000
    s_mov_b32 s26, 256
    s_mov_b32 s27, 0x00020000
    s_mov_b32 s90, 0x700000
    s_mov_b32 s91, 0x00020000
    s_mov_b32 s28, 0
    s_mov_b32 s29, 4096
    s_mov_b32 s30, 0
    s_mov_b32 s31, 0
    s_mov_b32 s77, 0x%x
    s_lshl_b32 s32, s3, 12
    s_add_u32 s32, s32, %d
    s_lshl_b32 s34, s3, 14
    s_lshl_b32 s35, s3, 11
    s_add_u32 s35, s35, %d
    v_lshrrev_b32 v22, 2, v20
    v_and_b32 v23, 3, v20
    v_lshl_add_u32 v22, v22, 3, v23
    s_and_b32 s7, s3, 1
    s_lshl_b32 s6, s5, 5
    s_lshl_b32 s70, s7, 2
    s_add_u32 s6, s6, s70
    v_add_u32 v22, s6, v22
    v_lshlrev_b32 v22, 11, v22
    v_lshl_add_u32 v10, v21, 4, v22
    v_add_u32 v11, 0x7c00, v10
    s_mul_i32 s72, s5, 224
    s_mul_i32 s70, s7, 28672
    s_add_u32 s72, s72, s70
    s_and_b32 s73, s5, 1
    s_lshl_b32 s73, s73, 1
    s_movk_i32 s74, 4682
    s_movk_i32 s75, 7168
    s_waitcnt lgkmcnt(0)
    s_mov_b32 s8, s36
    s_mov_b32 s9, s37
    s_cmp_ge_u32 s3, 2
    s_cselect_b32 s12, s58, s56
    s_cselect_b32 s13, s59, s57
    s_cselect_b32 s16, s44, s42
    s_cselect_b32 s17, s45, s43
    s_cselect_b32 s86, s48, s46
    s_cselect_b32 s87, s49, s47
    s_mov_b32 s20, s68
    s_mov_b32 s21, s69
    s_mov_b32 s24, s66
    s_mov_b32 s25, s67
    s_mov_b32 s88, s60
    s_mov_b32 s89, s61
    ''' % (OOB, WB, BB))
    stamp(I, 0); stamp_rt(I, 10)
    if k1.STAMP: I('v_writelane_b32 v16, s82, 25')
    if PT:
        I('''
        s_lshr_b32 s78, s2, 3
        s_lshl_b32 s78, s78, 2
        s_add_u32 s78, s78, s3
        s_and_b32 s79, s78, 15
        s_lshr_b32 s80, s78, 4
        s_mov_b32 s82, 0x11111112
        s_mov_b32 s83, 0x14144401
        s_lshl_b32 s81, s79, 2
        s_lshr_b64 s[82:83], s[82:83], s81
        s_and_b32 s82, s82, 15
        s_cmp_lt_u32 s80, s82
        s_cselect_b32 s79, s79, 0
        s_cselect_b32 s80, s80, 0
        s_sub_u32 s81, s78, 64
        s_cmp_lt_u32 s81, 20
        s_cselect_b32 s79, 16, s79
        s_cselect_b32 s80, s81, s80
        s_lshl_b32 s79, s79, 3
        s_lshl_b32 s80, s80, 21
        s_load_dwordx2 s[82:83], s[0:1], s79
        ''')
    def tv_block():
        for l in range(64): assert (l * 37) >> 8 == l // 7
        I("""
        v_mul_u32_u24 v26, 37, v17
        v_lshrrev_b32 v26, 8, v26
        v_mul_u32_u24 v27, 7, v26
        v_sub_u32 v27, v17, v27
        v_lshlrev_b32 v27, 7, v27
        s_lshr_b32 s6, s2, 3
        s_lshl_b32 s6, s6, 1
        s_add_u32 s6, s6, s7
        s_lshl_b32 s6, s6, 1
        s_and_b32 s70, s2, 7
        v_add_u32 v28, s6, v26
        v_mul_u32_u24 v28, s75, v28
        v_add_u32 v28, v28, v27
        s_mul_i32 s71, s70, 896
        v_add_u32 v28, s71, v28
        v_lshrrev_b32 v26, 1, v17
        v_and_b32 v27, 1, v17
        v_lshlrev_b32 v27, 7, v27
        s_lshl_b32 s71, s70, 7
        s_add_u32 s71, s71, s6
        v_add_u32 v29, s71, v26
        v_lshl_add_u32 v29, v29, 11, v27
        s_lshl_b32 s6, s4, 8
        s_lshl_b32 s70, s5, 3
        s_add_u32 s6, s6, s70
        s_lshl_b32 s70, s3, 1
        s_add_u32 s71, s6, s70
        v_add_u32 v30, s71, v26
        v_lshl_add_u32 v30, v30, 11, v27
        s_mov_b32 s94, %d
        s_mov_b32 s95, %d
        s_bfe_u32 s78, s2, 0x10004
        s_bfe_u32 s79, s2, 0x10003
        s_and_b32 s70, s2, 7
        s_lshl_b32 s6, s4, 4
        s_lshl_b32 s70, s70, 1
        s_add_u32 s6, s6, s70
        s_add_u32 s6, s6, s78
        s_lshl_b32 s6, s6, 2
        s_add_u32 s6, s6, s3
        s_mul_i32 s92, s6, 14336
        s_cmp_eq_u32 s78, s79
        s_cselect_b32 s92, s92, s77
        v_lshlrev_b32 v31, 7, v17
        WL2BLOCK
        """ .replace('WL2BLOCK', WL2TXT) % (TS0 * 128, TS0 * 458752))
    def tpre():
        tv_block()
        for _ in range(TPRE):
            th = ptouch(c)
            run(th[:3] + th[5:])
    if TPRE and TPW == 0: tpre()
    small = """
    v_and_b32 v24, 31, v0
    v_lshl_add_u32 v24, s5, 5, v24
    v_lshlrev_b32 v24, 1, v24
    """
    def small_loads():
        I(small)
        c.vmem('global_load_ushort v48, v24, s[38:39]', ('S',))
        c.vmem('global_load_ushort v49, v24, s[40:41]', ('S',))
        c.vmem('global_load_ushort v50, v24, s[50:51]', ('S',))
    I("""
    s_lshl_b32 s6, s4, 8
    s_lshl_b32 s70, s5, 3
    s_add_u32 s6, s6, s70
    s_lshl_b32 s70, s3, 1
    s_add_u32 s71, s6, s70
    """)
    if PRE:
        small_loads()
        g1, g2 = g_work(c, 96, 120)
        run(g1)
        I('s_and_b32 s7, s3, 1')
    for k in range(8): run(x_dma(c, 0, k))
    if PT:
        I('s_waitcnt lgkmcnt(0)')
        I('s_load_dword s81, s[82:83], s80')
    for n in range(4):
        I('''
        v_add_u32 v20, %d, v17
        v_mul_u32_u24 v21, s74, v20
        v_lshrrev_b32 v21, 16, v21
        v_mul_u32_u24 v22, 14, v21
        v_sub_u32 v22, v20, v22
        v_add_u32 v22, s73, v22
        v_subrev_u32 v23, 14, v22
        v_min_u32 v22, v22, v23
        v_lshrrev_b32 v23, 2, v21
        v_and_b32 v21, 3, v21
        v_lshl_add_u32 v21, v23, 3, v21
        v_mul_u32_u24 v21, s75, v21
        v_lshl_add_u32 v21, v22, 4, v21
        v_add_u32 v21, s72, v21
        v_subrev_u32 v%d, %d, v21
        ''' % (n * 64, 3 + n, n * 1024))
        if n == 3:
            I('v_mov_b32 v20, s77\nv_cmp_gt_u32 vcc, 32, v17\nv_cndmask_b32 v6, v20, v6, vcc')
        run(w_dma(c, 0, n))
    if PRE == 2:
        if TPRE and TPW == 1: tpre()
        D = [b_dma(c, 0, n) for n in range(2)] + [w_dma(c, 1, n) for n in range(4)] + [x_dma(c, 1, k) for k in range(8)] + [w_dma(c, 2, n) for n in range(4)] + [b_dma(c, 1, n) for n in range(2)] + [w_dma(c, 3, n) for n in range(3)]
        if DEFER == 1: D = D[:6]
        if DEFER == 2: D = D[:14]
        V1 = as_fill(c, tables_text()); V2 = list(g2)
        V = [V2.pop(0)]
        while V1 or V2:
            if V1: V.append(V1.pop(0))
            if V2: V.append(V2.pop(0))
        stepn = len(V) // len(D)
        stamp(I, 50)
        for k, v in enumerate(V):
            v()
            if k == 0: stamp(I, 51)
            if k == len(V) - len(g2): stamp(I, 52)
            if k % stepn == 1 and D: run(D.pop(0))
        for d in D: run(d)
        stamp(I, 53)
        I('s_and_b32 s7, s3, 1')
    else:
        for n in range(2): run(b_dma(c, 0, n))
        for n in range(4): run(w_dma(c, 1, n))
        if PRE:
            c.wait_vm(('s',), lambda t: t == ('S',))
            run(as_fill(c, tables_text()))
            run(g2)
            I('s_and_b32 s7, s3, 1')
        else:
            small_loads()
        for k in range(8): run(x_dma(c, 1, k))
        for n in range(4): run(w_dma(c, 2, n))
        for n in range(2): run(b_dma(c, 1, n))
        for n in range(3): run(w_dma(c, 3, n))
    if TPRE and TPW == 2: tpre()
    if not TPRE: tv_block()
    c_addr(I)
    I('''
    s_lshl_b32 s6, s5, 5
    s_lshl_b32 s7, s4, 2
    s_add_u32 s6, s6, s7
    s_add_u32 s6, s6, s3
    s_lshl_b32 s6, s6, 8
    s_add_u32 s6, s6, %d
    v_lshlrev_b32 v26, 4, v17
    v_mov_b32 v24, -1
    v_mov_b32 v25, -1
    v_mov_b32 v22, -1
    v_mov_b32 v23, -1
    s_mov_b64 exec, 0xffff
    ''' % WS_T)
    c.vmem('buffer_store_dwordx4 v[22:25], v26, s[20:23], s6 offen sc1', ('SV',))
    I('''
    s_mov_b64 exec, -1
    s_bfe_u32 s93, s2, 0x20005
    s_max_u32 s93, s93, 1
    s_add_u32 s93, s93, 1
    s_cmp_eq_u32 s3, 0
    s_cselect_b32 s93, s93, 99
    ''')
    I('''
    v_lshrrev_b32 v26, 2, v18
    v_lshl_add_u32 v26, v19, 2, v26
    v_mul_u32_u24 v26, 224, v26
    v_and_b32 v27, 3, v17
    v_lshl_add_u32 v12, v27, 3, v26
    v_add_u32 v12, %d, v12
    v_and_b32 v26, 7, v17
    v_xor_b32 v26, v26, v19
    v_lshlrev_b32 v26, 4, v26
    v_lshl_add_u32 v26, v18, 7, v26
    v_add_u32 v13, %d, v26
    v_xor_b32 v14, 64, v13
    v_add_u32 v7, s34, v26
    v_xor_b32 v8, 64, v7
    s_mov_b32 s33, %d
    ''' % (WB, BB, (NP - 4) // 4))
    stamp(I, 3)
    c.wait_vm(('d0',), lambda t: t in (('W', 0), ('B', 0), ('X', 0)))
    I('s_barrier')
    stamp(I, 4)
    for i in range(4): x_read(c, 0, 0, i)()
    for t in range(5): run(w_read(c, 0, t))
    for i in range(4): x_read(c, 0, 1, i)()
    for k in range(4): b_read(c, 0, 0, k)()


RR = lambda jt, i: acc_reg('R', jt, i)[1]
II = lambda jt, i: acc_reg('I', jt, i)[1]
BA, BBk, BC, BD = 32, 48, 64, 80

def ld16(R, base_v, off, dst, tag):
    R.ds('ds_read_b128 v[%d:%d], v%d offset:%d' % (dst, dst + 3, base_v, off), tag)
    R.ds('ds_read_b128 v[%d:%d], v%d offset:%d' % (dst + 4, dst + 7, base_v, off + 16), tag)
    R.ds('ds_read_b128 v[%d:%d], v%d offset:%d' % (dst + 8, dst + 11, base_v, off + 128), tag)
    R.ds('ds_read_b128 v[%d:%d], v%d offset:%d' % (dst + 12, dst + 15, base_v, off + 144), tag)

def s1_pre(c):
    R = Rec(c, 's1p')
    R('v_lshlrev_b32 v20, 5, v19')
    R('v_add_u32 v20, %d, v20' % TAB)
    ld16(R, 20, 0, BA, ('K', 0)); ld16(R, 20, 256, BBk, ('K', 1))
    R("""
    s_lshl_b32 s78, s4, 2
    s_add_u32 s78, s78, s3
    s_lshl_b32 s79, s5, 13
    s_add_u32 s79, s79, %d
    s_lshl_b32 s80, s78, 8
    s_add_u32 s80, s80, s79
    v_lshlrev_b32 v21, 6, v19
    s_sub_u32 s81, s78, 1
    v_sub_u32 v22, s81, v18
    v_subrev_u32 v23, 16, v22
    v_cmp_gt_u32 vcc, 32, v22
    v_lshl_add_u32 v22, v22, 8, v21
    v_mov_b32 v24, s77
    v_cndmask_b32 v22, v24, v22, vcc
    v_cmp_gt_u32 vcc, 32, v23
    v_lshl_add_u32 v23, v23, 8, v21
    s_lshl_b32 s7, s5, 2
    v_cndmask_b32 v23, v24, v23, vcc
    v_cmp_eq_u32 s[82:83], 15, v18
    """ % WS_T)

    return R.th

def cmul_sc(P, dr, di, ar, ai, br, bi, cr, ci):
    for e in range(2): P('v_fma_f32 v%d, v%d, v%d, v%d' % (dr + e, ar + e, br + e, cr + e))
    for e in range(2): P('v_fma_f32 v%d, v%d, v%d, v%d' % (di + e, ar + e, bi + e, ci + e))
    for e in range(2): P('v_fma_f32 v%d, -v%d, v%d, v%d' % (dr + e, ai + e, bi + e, dr + e))
    for e in range(2): P('v_fmac_f32 v%d, v%d, v%d' % (di + e, ai + e, br + e))
S1SC = int(os.environ.get('S1SC', '1'))
def s1_work(c):
    cmul_pk = cmul_sc if S1SC else k1.cmul_pk
    R = Rec(c, 's1')
    LAM, CA, E, T = BA, BBk, BC, BD
    R.wl(('K', 0))
    cur = None; bufs = [E, T]
    for i in range(1, 4):
        d = bufs[i & 1]
        for jt in range(2):
            for h in range(2):
                o = jt * 4 + 2 * h
                if cur is None: br, bi = RR(jt, 0) + 2 * h, II(jt, 0) + 2 * h
                else: br, bi = cur + o, cur + 8 + o
                cmul_pk(R, d + o, d + 8 + o, LAM + o, LAM + 8 + o, br, bi, RR(jt, i) + 2 * h, II(jt, i) + 2 * h)
        cur = d
    S = E
    for k, sh in enumerate((1, 2, 4, 8)):
        for r in range(16):
            R('v_mov_b32_dpp v%d, v%d row_shr:%d row_mask:0xf bank_mask:0xf bound_ctrl:0' % (S + r, cur + r, sh))
        R.wl(('K', 1 + k))
        for o in range(0, 8, 2):
            cmul_pk(R, cur + o, cur + 8 + o, CA + o, CA + 8 + o, S + o, S + 8 + o, cur + o, cur + 8 + o)
        if k < 3: ld16(R, 20, (2 + k) * 256, CA, ('K', 2 + k))
    R.blk([('i', 's_mov_b64 exec, s[82:83]')] +
          [('vm', 'buffer_store_dwordx4 v[%d:%d], v21, s[20:23], s80 offen offset:%d sc1' % (cur + 4 * k, cur + 4 * k + 3, 16 * k)) for k in range(4)] +
          [('i', 's_mov_b64 exec, -1')])
    for r in range(16):
        R('v_mov_b32_dpp v%d, v%d row_shr:1 row_mask:0xf bank_mask:0xf bound_ctrl:0' % (S + r, cur + r))
    return R.th

def last_stage(c):
    s = 15
    order = [('S', 0, k) for k in range(4)] + [('S', 1, k) for k in range(4)] + [('F', 30, t) for t in range(14)] + [('F', 31, t) for t in range(14)]
    pre = s1_pre(c); work = s1_work(c)
    nF = 28
    per = -(-len(work) // (nF - 2))
    for n, (ty, a, b) in enumerate(order):
        fill = []
        site = ('Z', n)
        if ty == 'S':
            hh, k = a, b
            if hh == 0: fill.append(b_read(c, s, 1, k))
            for _ in range(min(5, len(pre))): fill.append(pre.pop(0))
            if k == 0: c.wait_lg((site, 'bf'), lambda t: t in (('BF', s, hh), ('XF', s, hh)))
            kind, jt = SSM[k]; areg = BH + hh * 16 + k * 4
        else:
            u, t = a, b; hh = u & 1
            if t <= 8: fill += w_read(c, u, t + 5)
            if u == 30 and t >= 10:
                for tt in {10: [], 11: [0], 12: [1, 2], 13: [3, 4]}[t]: fill += w_read(c, 31, tt)
            assert not pre
            if n >= 10:
                for _ in range(min(per, len(work))): fill.append(work.pop(0))
            c.wait_lg((site, 'f'), lambda tg: tg == ('F', u, t))
            kind, jt = FFN[t]; areg = RING + (t % 7) * 4
        nf = len(fill); k2 = 0
        for i in range(4):
            f, bb = acc_reg(kind, jt, i)
            c.I('v_mfma_f32_16x16x32_bf16 %s, %s, %s, %s' % (rr(f, bb), rr('a', areg), rr('a', XSET + 32 + hh * 16 + i * 4), rr(f, bb)))
            take = (nf * (i + 1) + 3) // 4 - k2
            for _ in range(take):
                fill[k2](); k2 += 1
        if ty == 'F' and a == 30 and b == 9:
            c.wait_vm((site, 'd'), lambda t: t == ('W', 31))
            c.I('s_barrier')
    assert not work


def pk_bc(op, d, a, f, cc=None):
    base = f & ~1; hi = f & 1
    if cc is None:
        return 'v_pk_mul_f32 v[%d:%d], v[%d:%d], v[%d:%d] op_sel:[0,%d] op_sel_hi:[1,%d]' % (d, d + 1, a, a + 1, base, base + 1, hi, hi)
    return 'v_pk_fma_f32 v[%d:%d], v[%d:%d], v[%d:%d], v[%d:%d] op_sel:[0,%d,0] op_sel_hi:[1,%d,1]' % (d, d + 1, a, a + 1, base, base + 1, cc, cc + 1, hi, hi)
def cmul16(P, d, a, b, c=None):
    p = lambda r: 'v[%d:%d]' % (r, r + 1)
    G = range(0, 8, 2)
    for o in G:
        if c is None: P('v_pk_mul_f32 %s, %s, %s' % (p(d(o)[0]), p(a(o)[0]), p(b(o)[0])))
        else: P('v_pk_fma_f32 %s, %s, %s, %s' % (p(d(o)[0]), p(a(o)[0]), p(b(o)[0]), p(c(o)[0])))
    for o in G:
        if c is None: P('v_pk_mul_f32 %s, %s, %s' % (p(d(o)[1]), p(a(o)[0]), p(b(o)[1])))
        else: P('v_pk_fma_f32 %s, %s, %s, %s' % (p(d(o)[1]), p(a(o)[0]), p(b(o)[1]), p(c(o)[1])))
    for o in G:
        P('v_pk_fma_f32 %s, %s, %s, %s neg_lo:[1,0,0] neg_hi:[1,0,0]' % (p(d(o)[0]), p(a(o)[1]), p(b(o)[1]), p(d(o)[0])))
    for o in G:
        P('v_pk_fma_f32 %s, %s, %s, %s' % (p(d(o)[1]), p(a(o)[1]), p(b(o)[0]), p(d(o)[1])))
blk = lambda base: (lambda o: (base + o, base + 8 + o))
uacc = lambda i: (lambda o: (RR(o >> 2, i) + (o & 3), II(o >> 2, i) + (o & 3)))

def ffn_out2(P, items, dst, tmp, om, sc=False):
    ch = []
    for n, (jt, i) in enumerate(items):
        for h in range(2):
            ta = tmp + (n * 2 + h) * 4; tb = ta + 2
            seq = []
            srcs = []
            for kind, t in (('G', ta), ('U', tb)):
                f, b = acc_reg(kind, jt, i)
                if f == 'a':
                    seq.append('v_accvgpr_read_b32 v%d, a%d' % (t, b + 2 * h))
                    seq.append('v_accvgpr_read_b32 v%d, a%d' % (t + 1, b + 2 * h + 1))
                    srcs.append(t)
                else: srcs.append(b + 2 * h)
            g0, u0 = srcs
            if k1.EMUL:
                seq += ['v_cvt_pk_bf16_f32 v%d, v%d, v%d' % (ta, g0, g0 + 1),
                        'v_cvt_pk_bf16_f32 v%d, v%d, v%d' % (tb, u0, u0 + 1),
                        'v_pk_max_i16 v%d, v%d, 0' % (ta, ta),
                        'v_and_b32 v%d, 0xffff0000, v%d' % (tb + 1, tb),
                        'v_lshlrev_b32 v%d, 16, v%d' % (tb, tb),
                        'v_and_b32 v%d, 0xffff0000, v%d' % (ta + 1, ta),
                        'v_lshlrev_b32 v%d, 16, v%d' % (ta, ta),
                        'v_pk_mul_f32 v[%d:%d], v[%d:%d], v[%d:%d]' % (ta, ta + 1, ta, ta + 1, tb, tb + 1)]
            else:
                seq += ['v_max_f32 v%d, 0, v%d' % (ta, g0), 'v_max_f32 v%d, 0, v%d' % (ta + 1, g0 + 1),
                        'v_pk_mul_f32 v[%d:%d], v[%d:%d], v[%d:%d]' % (ta, ta + 1, ta, ta + 1, u0, u0 + 1)]
            if sc and not k1.EMUL:
                seq.pop()
                seq += ['v_mul_f32 v%d, v%d, v%d' % (ta + e, ta + e, u0 + e) for e in range(2)]
                seq += ['v_mul_f32 v%d, v%d, v%d' % (ta + e, ta + e, om + i) for e in range(2)]
            else: seq.append(pk_bc('mul', ta, ta, om + i))
            seq.append('v_cvt_pk_bf16_f32 v%d, v%d, v%d' % (dst + 2 * n + h, ta, ta + 1))
            ch.append(seq)
    m = max(len(x) for x in ch)
    for k in range(m):
        for x in ch:
            kk = k - (m - len(x))
            if kk >= 0: P(x[kk])


NS = 5
ACT = 96
WF = 32
FD = int(os.environ.get('FD', '3'))
NB, NT = 14, 22
XD = 64
def acc2(tau, jt): return (tau * 8 + jt) * 4
def role_of(n): return 'B' if n < NB else 'Y'
ORD = [0, 1, 4, 5, 7, 8, 11, 12, 2, 6, 9, 13, 3, 10]
ROT = int(os.environ.get('ROT', '0'))
def blk_idx(c, n, dst):
    reg, pos = (86, n) if n < 8 else (87, n - 8) if n < NB else (88, n - NB)
    return lambda: c.I('s_bfe_u32 s%d, s%d, 0x%x' % (dst, reg, 0x40000 | (4 * pos)))
def act_loads(c, n):
    if n >= NT: return []
    th = [blk_idx(c, n, 28), lambda: c.I('s_lshl_b32 s28, s28, 13'), lambda: c.I('s_add_u32 s28, s28, s%d' % (33 if n < NB else 29))]
    th += [lambda tau=tau: c.vmem('buffer_load_dwordx4 %s, v%d, s[20:23], s28 offen offset:%d sc1' % (rr('v', ACT + (n % 4) * 32 + tau * 4), 1 + (tau >> 2), (tau & 3) * 1024), ('A', n)) for tau in range(8)]
    return th
def w_loads(c, n):
    if n >= NT: return []
    th = [blk_idx(c, n, 30), lambda: c.I('s_lshl_b32 s30, s30, %d' % (16 if n < NB else 13)), lambda: c.I('s_add_u32 s30, s30, s%d' % (34 if n < NB else 32))]
    th.append(lambda: c.I('s_add_u32 s35, s30, 32768' if n < NB else 's_xor_b32 s35, s30, 4096'))
    for k in range(8):
        if k & 3 == 0: th.append(lambda k=k: c.I('s_add_u32 m0, s31, %d' % ((n % NS) * 8192 + (k >> 2) * 4096)))
        if n < NB: th.append(lambda k=k: c.vmem('buffer_load_dwordx4 v%d, s[16:19], s%d offen offset:%d lds' % (3 + (k & 3), 35 if k >> 2 else 30, (k & 3) * 1024), ('W', n)))
        else: th.append(lambda k=k: c.vmem('buffer_load_dwordx4 v24, s[20:23], s%d offen offset:%d sc1 lds' % (35 if k >> 2 else 30, (k & 3) * 1024), ('W', n)))
    return th
def rot_tables(P):
    pk = lambda a: sum(v << (4 * i) for i, v in enumerate(a))
    if ROT == 0:
        P('s_mov_b32 s86, 0x%x\ns_mov_b32 s87, 0x%x\ns_mov_b32 s88, 0x76543210' % (pk(ORD[:8]), pk(ORD[8:]))); return
    if ROT == 4:
        P('s_lshr_b32 s6, s2, 6\ns_bfe_u32 s7, s2, 0x30003\ns_add_u32 s6, s6, s7\ns_and_b32 s6, s6, 3\ns_lshl_b32 s6, s6, 2')
        def r16(dst, g): P('s_lshr_b32 s%d, 0x%x, s6\ns_and_b32 s%d, s%d, 0xffff' % (dst, g | g << 16, dst, dst))
        for reg, lo, hi in ((86, ORD[:4], ORD[4:8]), (88, [0, 1, 2, 3], [4, 5, 6, 7])):
            r16(reg, pk(lo)); r16(7, pk(hi)); P('s_lshl_b32 s7, s7, 16\ns_or_b32 s%d, s%d, s7' % (reg, reg))
        r16(87, pk(ORD[8:12]))
        g = pk(ORD[12:14]); P('s_lshr_b32 s7, 0x%x, s6\ns_and_b32 s7, s7, 0xff\ns_lshl_b32 s7, s7, 16\ns_or_b32 s87, s87, s7' % (g * 0x01010101))
    if ROT == 8:
        P('s_lshr_b32 s6, s2, 6\ns_lshl_b32 s6, s6, 1\ns_bfe_u32 s7, s2, 0x30003\ns_add_u32 s6, s6, s7\ns_and_b32 s6, s6, 7\ns_lshl_b32 s6, s6, 2')
        for reg, g in ((86, pk(ORD[:8])), (88, 0x76543210)):
            P('s_mov_b32 s90, 0x%x\ns_mov_b32 s91, 0x%x\ns_lshr_b64 s[90:91], s[90:91], s6\ns_mov_b32 s%d, s90' % (g, g, reg))
        P('s_and_b32 s6, s6, 12')
        g = pk(ORD[8:12]); P('s_lshr_b32 s87, 0x%x, s6\ns_and_b32 s87, s87, 0xffff' % (g | g << 16))
        g = pk(ORD[12:14]); P('s_lshr_b32 s7, 0x%x, s6\ns_and_b32 s7, s7, 0xff\ns_lshl_b32 s7, s7, 16\ns_or_b32 s87, s87, s7' % (g * 0x01010101))
DP = int(os.environ.get('DP', '2'))
NTL = 20
GROUPS = [(n, jt) for n in range(NTL) for jt in range(8)] + [(n, jt) for n in range(NTL, NT) for jt in range(4, 8)] + [(n, jt) for n in range(NTL, NT) for jt in range(4)]
KP0 = NTL * 8 + 8
def frag_read(c, k):
    if k >= len(GROUPS): return []
    n, jt = GROUPS[k]
    reg = WF + (k % 8) * 4
    so = (n % NS) * 8192
    th = []
    if k == 0 or GROUPS[k - 1][0] != n:
        th.append(lambda: c.wait_vm(('P2w', k), lambda t: t == ('W', n)))
    if role_of(n) == 'Y':
        th.append(lambda: c.ds('ds_read_b128 %s, v25 offset:%d' % (rr('v', reg), so + jt * 1024), ('F', k)))
    else:
        th += [lambda e=e: c.ds('ds_read_b64_tr_b16 v[%d:%d], v%d offset:%d' % (reg + 2 * e, reg + 2 * e + 1, 7 + jt, so + e * 2048), ('F', k)) for e in range(2)]
    return th

def group(c, k, side, pre=None, post=None):
    n, jt = GROUPS[k]
    if k == 0 or GROUPS[k - 1][0] != n:
        c.wait_vm(('P2a', k), lambda t: t == ('A', n))
    if pre: pre()
    slots = [[] for _ in range(8)]
    fr = frag_read(c, k + FD)
    for i, f in enumerate(fr): slots[i].append(f)
    lo = len(fr)
    for i, f in enumerate(side):
        slots[lo + (i * (8 - lo)) // len(side)].append(f)
    c.wait_lg(('P2f', k), lambda t: t == ('F', k))
    for tau in range(8):
        b = acc2(tau, jt)
        c.I('v_mfma_f32_16x16x32_bf16 %s, %s, %s, %s' % (rr('a', b), rr('v', WF + (k % 8) * 4), rr('v', ACT + (n % 4) * 32 + tau * 4), '0' if n == 0 else rr('a', b)))
        for th in slots[tau]: th()
    if post: post()

def step_vm(c, n):
    a = act_loads(c, n + DP); w = w_loads(c, n + DP)
    vm = []
    while a or w:
        for _ in range(2):
            if w: vm.append(w.pop(0))
        if a: vm.append(a.pop(0))
        if len(a) > len(w) and a: vm.append(a.pop(0))
    return vm

def p2_setup(P):
    rot_tables(P)
    P("""
    s_bfe_u32 s92, s2, 0x10002
    s_lshl_b32 s92, s92, 3
    s_bfe_u32 s6, s2, 0x30003
    s_add_u32 s92, s92, s6
    s_bfe_u32 s93, s2, 0x10001
    s_lshl_b32 s93, s93, 2
    s_lshr_b32 s6, s2, 6
    s_add_u32 s93, s93, s6
    s_and_b32 s94, s2, 1
    s_lshl_b32 s95, s94, 2
    s_add_u32 s95, s95, s3
    s_mov_b32 s12, s64
    s_mov_b32 s13, s65
    s_mov_b32 s14, 0x800000
    s_mov_b32 s16, s60
    s_mov_b32 s17, s61
    s_mov_b32 s18, 0x700000
    s_mul_i32 s31, s3, %d
    v_lshlrev_b32 v84, 1, v19
    v_xor_b32 v84, v84, v18
    v_xor_b32 v85, 8, v84
    s_lshl_b32 s6, s93, 8
    v_lshl_add_u32 v86, v19, 11, s6
    v_lshl_add_u32 v3, v84, 4, v86
    v_lshl_add_u32 v4, v85, 4, v86
    v_add_u32 v4, 7168, v4
    v_add_u32 v5, 14336, v3
    v_add_u32 v6, 14336, v4
    s_mul_i32 s34, s95, %d
    """ % (NS * 8192, NB * 65536))
    P("""
    v_lshlrev_b32 v87, 4, v17
    s_mul_i32 s6, s92, %d
    v_add_u32 v1, s6, v87
    v_add_u32 v2, 0x1000, v1
    s_mul_i32 s33, s95, %d
    s_lshl_b32 s32, s95, 16
    s_add_u32 s29, s32, %d
    v_lshrrev_b32 v84, 2, v18
    v_lshl_add_u32 v84, v19, 2, v84
    v_and_b32 v85, 7, v84
    v_and_b32 v86, 8, v84
    v_lshl_add_u32 v84, v86, 1, v85
    v_and_b32 v86, 3, v17
    v_lshlrev_b32 v84, 8, v84
    v_lshl_add_u32 v84, v86, 3, v84
    v_add_u32 v84, s31, v84
    v_lshl_add_u32 v7, v85, 5, v84
    s_lshl_b32 s7, s94, 7
    v_xor_b32 v7, s7, v7
    """ % (NKB * 8192, NB * 8192, 112 * 8192))
    for jt in range(1, 8): P('v_xor_b32 v%d, %d, v7' % (7 + jt, jt * 32))

def spin(P, L, cond_text, reload_text, sleep=2):
    P('s_mov_b32 s75, 0')
    P.label(L)
    P(cond_text)
    P("""
    s_add_u32 s75, s75, 1
    s_cmp_eq_u64 vcc, 0
    s_cbranch_scc1 %sok
    s_cmp_ge_u32 s75, 0x4000
    s_cbranch_scc1 %sok
    s_sleep %d
    """ % (L, L, sleep))
    P(reload_text)
    P('s_waitcnt vmcnt(0)')
    P('s_branch %s' % L)
    P.label(L + 'ok')

def init_load(c):
    c.I('v_and_b32 v26, 31, v17\nv_lshlrev_b32 v26, 2, v26')
    c.vmem('buffer_load_dword v25, v26, s[24:27], 0 offen offset:128 sc1', ('IF',))
def init_check(c):
    c.wait_vm(('ifw',), lambda t: t == ('IF',))
    if c.emit:
        spin(c.P, 'K1_ichk', 'v_cmp_ne_u32 vcc, 0xff, v25', 'buffer_load_dword v25, v26, s[24:27], 0 offen offset:128 sc1', 4)
    c.I("""
    s_lshl_b32 s6, s4, 8
    s_lshl_b32 s7, s3, 6
    s_add_u32 s6, s6, s7
    s_lshl_b32 s6, s6, 2
    s_add_u32 s6, s6, %d
    v_lshlrev_b32 v24, 4, v18
    """ % WS_G)
    c.vmem('buffer_load_dwordx4 v[28:31], v24, s[20:23], s6 offen sc1', ('G4',))

PLI = int(os.environ.get('PLI', '1'))
WLATE = int(os.environ.get('WLATE', '1'))
SSE = int(os.environ.get('SSE', '0'))
RES = 224
F = 160
TA, TB, WA, WBk = F, F + 16, F + 32, F + 48
tl = ''
for k in range(4): tl += 'buffer_load_dwordx4 v[%d:%d], v22, s[20:23], s79 offen offset:%d sc1\n' % (TA + 4 * k, TA + 4 * k + 3, 16 * k)
for k in range(4): tl += 'buffer_load_dwordx4 v[%d:%d], v23, s[20:23], s79 offen offset:%d sc1\n' % (TB + 4 * k, TB + 4 * k + 3, 16 * k)
_on = [0]
FSC = int(os.environ.get('FSC', '1'))
def ffn_unit(R, items, va, so, off, tag):
    _on[0] += 1
    dst = 48 + (_on[0] % 3) * 4
    ffn_out2(R, items, dst, 80, 60, sc=(FSC and tag[1] < 2))
    R('v_permlane32_swap_b32 v%d, v%d' % (dst, dst + 2))
    R('v_permlane32_swap_b32 v%d, v%d' % (dst + 1, dst + 3))
    R.vm('buffer_store_dwordx4 v[%d:%d], v%d, s[20:23], s%d offen offset:%d sc1' % (dst, dst + 3, va, so, off), tag)

def store_setup(R):
    R("""
    s_lshl_b32 s6, s4, 1
    s_lshr_b32 s7, s3, 1
    s_add_u32 s6, s6, s7
    s_mul_i32 s6, s6, %d
    s_and_b32 s7, s3, 1
    s_lshl_b32 s7, s7, 12
    s_add_u32 s6, s6, s7
    v_lshl_add_u32 v15, v17, 4, s6
    s_mul_i32 s70, s5, 7
    s_add_u32 s70, s70, 1
    s_lshr_b32 s70, s70, 1
    s_lshl_b32 s70, s70, 13
    s_add_u32 s71, s70, 8192
    s_add_u32 s72, s70, 16384
    s_add_u32 s73, s70, 24576
    s_sub_u32 s74, s70, 7680
    s_bitcmp1_b32 s5, 0
    s_cselect_b32 s73, s74, s73
    v_and_b32 v27, 31, v17
    v_lshrrev_b32 v9, 5, v17
    v_lshl_add_u32 v27, v27, 4, s6
    v_lshl_add_u32 v27, v9, 10, v27
    """ % (NKB * 8192))

FSC = int(os.environ.get('FSC', '1'))
PACE = int(os.environ.get('PACE', '14'))
def tail1(c):
    _on[0] = 0
    Pg = lambda p, u: [('F', u, t) for t in range(4 * p, min(4 * p + 4, 14))]
    Sg = lambda s_, hh: [('S', s_, hh, k) for k in range(4)]
    order = Sg(14, 0) + Sg(14, 1) + Pg(0, 28) + Sg(15, 0) + Sg(15, 1) + Pg(0, 29) + Pg(0, 30) + Pg(0, 31)
    for p in (1, 2, 3):
        for u in range(28, 32): order += Pg(p, u)
    T1, T2 = 7, 21
    FS = [g for g in order if g[0] == 'F']
    fidx = {g: i for i, g in enumerate(FS)}
    def fread(i):
        _, u, t = FS[i]
        kind, jt = FFN[t]; slot = RING + (i % 7) * 4
        return [lambda e=e: c.ds('ds_read_b64_tr_b16 a[%d:%d], v12 offset:%d' % (slot + 2 * e, slot + 2 * e + 1, (u % 4) * 16384 + ((kind == 'U') * 2 + e) * 4096 + jt * 32), ('F2', i)) for e in range(2)]
    nxt = 4; done = 0
    R0 = Rec(c, 't0'); store_setup(R0)
    pre = c_stores(c) + s1_pre(c) + R0.th
    R = Rec(c, 't1')
    R.th += s1_work(c)
    R.wv(('G4',))
    R("""
    v_sub_f32 v60, 1.0, v28
    v_sub_f32 v61, 1.0, v29
    v_sub_f32 v62, 1.0, v30
    v_sub_f32 v63, 1.0, v31
    v_cvt_pk_bf16_f32 v60, v60, v61
    v_cvt_pk_bf16_f32 v62, v62, v63
    v_and_b32 v61, 0xffff0000, v60
    v_and_b32 v63, 0xffff0000, v62
    v_lshlrev_b32 v60, 16, v60
    v_lshlrev_b32 v62, 16, v62
    v_lshl_add_u32 v21, v18, 8, v20
    """)
    marks = {}
    for pr in range(3):
        marks[len(R.th)] = 33 + 16 * pr
        for i in range(4): ffn_unit(R, [(2 * pr, i), (2 * pr + 1, i)], 15, 70 + pr, i * 1024, ('FS', pr))
        if pr == 1:
            for l in tl.strip().split('\n'): R.vm(l, ('TL',))
            for off, dst in ((6144, WA), (6144 + 4096, WBk)):
                for k, o in enumerate((0, 16, 128, 144)):
                    R.ds('ds_read_b128 v[%d:%d], v21 offset:%d' % (dst + 4 * k, dst + 4 * k + 3, off + o), ('TW',))
    marks[len(R.th)] = 999
    for i in (0, 2): ffn_unit(R, [(6, i), (6, i + 1)], 27, 73, i * 1024, ('FS', 3))
    work = R.th; wp = 0
    init_load(c)
    for n, g in enumerate(order):
        fill = []
        site = ('Z', n)
        if n == 0: fill += w_dma(c, 31, 3)[:2]
        if n < 4: fill.append(b_read(c, 14, 1, n))
        if n == 4: fill.append(lambda: c.wait_vm(('tx',), lambda t: t == ('X', 15)))
        if 4 <= n < 8: fill += [x_read(c, 15, (n - 4) >> 1, ((n - 4) & 1) * 2 + k) for k in range(2)]
        if 8 <= n < 12: fill += [b_read(c, 15, (n - 8) >> 1, ((n - 8) & 1) * 2 + k) for k in range(2)]
        k = 0
        while nxt < len(FS) and k < 2 and nxt <= done + 5 + (g[0] == 'F') - 1 + 1 - 1:
            u = FS[nxt][1]
            if (u in (29, 30) and n <= T1) or (u == 31 and n <= T2): break
            fill += fread(nxt); nxt += 1; k += 1
        if n < 20:
            for _ in range(min(4, len(pre))): fill.append(pre.pop(0))
        if n >= 22:
            assert not pre
            k = 0
            while wp < len(work) and k < PACE:
                if wp in marks and n < marks[wp]: break
                fill.append(work[wp]); wp += 1; k += 1
        if g[0] == 'S':
            _, s_, hh, k = g
            if k == 0: c.wait_lg((site, 'bf'), lambda t: t in (('BF', s_, hh), ('XF', s_, hh)))
            kind, jt = SSM[k]; areg = BH + hh * 16 + k * 4
        else:
            _, u, t = g; s_ = u >> 1; hh = u & 1
            i = fidx[g]
            c.wait_lg((site, 'f'), lambda tg: tg == (('F', 28, t) if i < 4 else ('F2', i)))
            kind, jt = FFN[t]; areg = RING + (i % 7) * 4
            done += 1
        nf = len(fill); k2 = 0
        for i4 in range(4):
            f, bb = acc_reg(kind, jt, i4)
            c.I('v_mfma_f32_16x16x32_bf16 %s, %s, %s, %s' % (rr(f, bb), rr('a', areg), rr('a', XSET + (s_ % 2) * 32 + hh * 16 + i4 * 4), rr(f, bb)))
            take = (nf * (i4 + 1) + 3) // 4 - k2
            for _ in range(take):
                fill[k2](); k2 += 1
        if n == T1:
            c.wait_vm((site, 'd'), lambda t: t in (('W', 29), ('W', 30), ('B', 15))); c.I('s_barrier')
        if n == T2:
            c.wait_vm((site, 'd'), lambda t: t == ('W', 31)); c.I('s_barrier')
            init_check(c)
    stamp(c.I, 5)
    if c.emit: code_touch(c.P, 'CP_c', 'CP_end', 9)
    run(work[wp:])
    c.I('v_mov_b32 v26, 1')
    c.wait_vm(('ef',), lambda t: t == ('FS', 1))
    c.I('s_mov_b64 exec, 1')
    c.vmem('buffer_store_dword v26, off, s[20:23], s76 sc1', ('SV',))
    c.I('s_mov_b64 exec, -1')
    stamp(c.I, 14)
    if c.emit: p2_setup(c.P)
    c.wait_vm(('tlw',), lambda t: t == ('TL',))

def epilogue(P):
    LAM, S = BA, BC
    cw = Ctx(P, {})
    wq = w_loads(cw, 0) + w_loads(cw, 1)
    stamp(P, 7)
    PWr = F + 64; AC = F + 80
    S2 = BD
    for k, o in enumerate((0, 16, 128, 144)):
        P('ds_read_b128 v[%d:%d], v21 offset:%d' % (PWr + 4 * k, PWr + 4 * k + 3, 2048 + o))
        P('ds_read_b128 v[%d:%d], v20 offset:%d' % (S2 + 4 * k, S2 + 4 * k + 3, 5 * 256 + o))
    cond = 'v_max3_u32 v24, v%d, v%d, v%d\nv_max3_u32 v25, v%d, v%d, v%d\n' % (TA, TA + 1, TA + 2, TB, TB + 1, TB + 2)
    for r in range(3, 15, 2):
        cond += 'v_max3_u32 v24, v24, v%d, v%d\nv_max3_u32 v25, v25, v%d, v%d\n' % (TA + r, TA + r + 1, TB + r, TB + r + 1)
    cond += 'v_max3_u32 v24, v24, v%d, v%d\nv_max_u32 v24, v24, v25\nv_cmp_eq_u32 vcc, -1, v24\n' % (TA + 15, TB + 15)
    spin(P, 'K1_tchk', cond, tl)
    stamp(P, 8)
    P('s_waitcnt lgkmcnt(0)')
    P('s_barrier')
    def wsome(n):
        for _ in range(n):
            if wq: wq.pop(0)()
    wsome(6)
    cmul16(P, blk(AC), blk(WA), blk(TA))
    wsome(1)
    cmul16(P, blk(AC), blk(WBk), blk(TB), blk(AC))
    for sh in (8, 4, 2, 1):
        wsome(1)
        for r in range(16):
            P('v_add_f32_dpp v%d, v%d, v%d row_ror:%d row_mask:0xf bank_mask:0xf' % (AC + r, AC + r, AC + r, sh))
    wsome(1)
    cmul16(P, blk(S), blk(PWr), blk(AC), blk(S))
    wsome(2)
    assert len(wq) == 14
    p2_pre(P)
    P('buffer_load_dword v56, v20, s[20:23], s72 offen sc1')
    wsome(4)
    for i in range(4):
        O = TA if (i & 1) else TB
        wsome(2 if i in (0, 2) else 1)
        cmul16(P, uacc(i), blk(LAM), blk(S) if i == 0 else uacc(i - 1), uacc(i))
        cmul16(P, blk(O), blk(S2), uacc(i))
        wsome(1)
        for k in range(8): P(pk_bc('mul', O + 2 * k, O + 2 * k, 28 + i))
        d = RES + i * 8
        for k in range(4):
            P('v_cvt_pk_bf16_f32 v%d, v%d, v%d' % (d + k, O + 2 * k, O + 2 * k + 1))
        for k in range(4):
            P('v_cvt_pk_bf16_f32 v%d, -v%d, -v%d' % (d + 4 + k, O + 8 + 2 * k, O + 8 + 2 * k + 1))
    assert not wq
    stamp(P, 9)

def p2_pre(P):
    P("""
    v_mov_b32 v27, v15
    v_lshlrev_b32 v15, 4, v17
    v_and_b32 v20, 7, v17
    v_lshlrev_b32 v20, 7, v20
    s_lshl_b32 s72, s92, 13
    s_lshl_b32 s7, s95, 10
    s_add_u32 s72, s72, s7
    s_add_u32 s72, s72, %d
    s_lshl_b32 s6, s93, 19
    s_add_u32 s6, s6, %d
    v_add_u32 v24, s6, v15
    v_add_u32 v25, s31, v15
    s_lshl_b32 s7, s94, 12
    s_add_u32 s32, s32, s7
    s_add_u32 s70, s5, 112
    s_lshl_b32 s70, s70, 13
    s_add_u32 s71, s70, 262144
    s_lshl_b32 s6, s92, 13
    s_add_u32 s6, s6, 0x20000
    s_lshl_b32 s7, s93, 1
    s_add_u32 s7, s7, s94
    s_lshl_b32 s7, s7, 13
    v_mov_b32 v22, s6
    v_mov_b32 v23, s7
    v_and_b32 v21, 16, v17
    v_cmp_eq_u32 vcc, 0, v21
    v_cndmask_b32 v22, v23, v22, vcc
    v_lshl_add_u32 v22, v18, 7, v22
    s_lshl_b32 s73, s3, 11
    s_add_u32 s73, s73, %d
    """ % (WS_FL, WS_C2, WS_FL))

def p2_enter(c):
    I = c.I
    I('s_waitcnt vmcnt(8)')
    c.vm.issue(('W', 1))
    stamp(I, 12)
    if c.emit:
        spin(c.P, 'P2_pf', 'v_cmp_gt_u32 vcc, 1, v56', 'buffer_load_dword v56, v20, s[20:23], s72 offen sc1', 1)
    stamp(I, 13); stamp_rt(I, 23)
    run(act_loads(c, 0))
    I('v_mov_b32 v57, 2\ns_mov_b64 exec, 1')
    c.vmem('buffer_store_dword v57, off, s[20:23], s76 sc1', ('SV',))
    I('s_mov_b64 exec, -1')
    for k in range(FD): run(frag_read(c, k))
    run(act_loads(c, 1))
    for n in range(2, DP): run(w_loads(c, n)); run(act_loads(c, n))

def ss_stores(c):
    th = []
    for i in range(4):
        d = RES + i * 8
        th.append(lambda d=d, i=i: c.vmem('buffer_store_dwordx4 v[%d:%d], v27, s[20:23], s70 offen offset:%d sc1' % (d, d + 3, i * 1024), ('SS',)))
        th.append(lambda d=d, i=i: c.vmem('buffer_store_dwordx4 v[%d:%d], v27, s[20:23], s71 offen offset:%d sc1' % (d + 4, d + 7, i * 1024), ('SS',)))
    return th

def e0_setup(c):
    pre = """
    s_lshl_b32 s6, s92, 7
    s_lshr_b32 s7, s3, 1
    s_lshl_b32 s7, s7, 6
    s_add_u32 s6, s6, s7
    s_and_b32 s7, s3, 1
    s_lshl_b32 s7, s7, 1
    s_add_u32 s74, s6, s7
    v_lshl_add_u32 v20, v18, 2, s74
    s_lshl_b32 s7, s93, 7
    s_lshl_b32 s6, s94, 6
    s_add_u32 s7, s7, s6
    v_lshl_add_u32 v21, v19, 2, s7
    v_lshlrev_b32 v28, 10, v20
    v_add_u32 v28, v28, v21
    v_lshlrev_b32 v28, 2, v28
    v_add_u32 v29, 0x1000, v28
    v_lshlrev_b32 v22, 1, v21
    v_lshlrev_b32 v21, 2, v20
    v_bfe_u32 v20, v17, 3, 1
    v_lshl_add_u32 v20, v19, 2, v20
    v_add_u32 v20, s74, v20
    v_lshlrev_b32 v20, 11, v20
    v_and_b32 v23, 7, v17
    v_xor_b32 v23, v23, v19
    v_lshl_add_u32 v23, v23, 4, v20
    s_lshl_b32 s7, s7, 1
    v_add_u32 v23, s7, v23
    v_xor_b32 v11, 64, v23
    v_add_u32 v11, 0x7c00, v11
    v_and_b32 v20, 7, v18
    v_lshrrev_b32 v10, 1, v19
    v_xor_b32 v20, v20, v10
    v_lshlrev_b32 v20, 4, v20
    v_and_b32 v10, 1, v19
    v_lshl_add_u32 v20, v10, 3, v20
    v_lshl_add_u32 v20, v18, 8, v20
    v_add_u32 v10, s31, v20
    s_mov_b32 s74, %d
    s_mov_b32 s89, 0xf800
    """ % WS_G
    return [lambda l=l.strip(): c.I(l) for l in pre.splitlines() if l.strip()]

def e0_loads(c):
    th = [lambda: c.vmem('buffer_load_dwordx2 v[30:31], v21, s[20:23], s74 offen sc1', ('E0',))]
    for jt in range(4):
        th.append(lambda jt=jt: c.vmem('global_load_dwordx2 v[%d:%d], v22, s[52:53] offset:%d' % (80 + jt * 2, 81 + jt * 2, jt * 32), ('E0',)))
    th.append(lambda: c.I('s_add_u32 m0, s31, 16384'))
    for j in range(4):
        th.append(lambda j=j: c.vmem('buffer_load_dwordx4 v%d, s[8:11], %s offen offset:%d lds' % (11 if j & 1 else 23, 's89' if j >> 1 else '0', j * 1024), ('EX',)))
    return th
def e0_reads(c):
    th = [lambda: c.wait_vm(('exw',), lambda t: t == ('EX',))]
    for jt in range(1, 4): th.append(lambda jt=jt: c.I('v_xor_b32 v%d, %d, v10' % (11 + jt, jt * 32)))
    for k in range(2):
        for jt in range(4):
            r = 64 + (k * 4 + jt) * 2
            th.append(lambda r=r, k=k, jt=jt: c.ds('ds_read_b64 v[%d:%d], v%d offset:%d' % (r, r + 1, 11 + jt if jt else 10, 16384 + k * 128), ('ER',)))
    return th

def xd_math(I, Z):
    for jt in range(4):
        for h in range(2):
            I('v_and_b32 v89, 0xffff0000, v%d\nv_lshlrev_b32 v88, 16, v%d' % (80 + jt * 2 + h, 80 + jt * 2 + h))
            seqs = []
            for k in range(2):
                t = k * 4 + jt; xs = 64 + t * 2 + h; a = 90 + 2 * k; z = Z + t * 4 + 2 * h
                seqs.append(['v_lshlrev_b32 v%d, 16, v%d' % (a, xs), 'v_and_b32 v%d, 0xffff0000, v%d' % (a + 1, xs),
                             'v_pk_mul_f32 v[%d:%d], v[%d:%d], v[88:89]' % (a, a + 1, a, a + 1),
                             'v_cvt_pk_bf16_f32 v%d, v%d, v%d' % (a, a, a + 1),
                             'v_and_b32 v%d, 0xffff0000, v%d' % (a + 1, a), 'v_lshlrev_b32 v%d, 16, v%d' % (a, a),
                             pk_bc('fma', z, a, 30 + k, z)])
            for x, y in zip(*seqs): I(x); I(y)

CPC = int(os.environ.get('CPC', '4'))
ZS = 160
add = lambda d, a, b: 'v_pk_add_f32 v[%d:%d], v[%d:%d], v[%d:%d]' % (d, d + 1, a, a + 1, b, b + 1)
def own_copy(P, jt0, dst, tag):
    for Q in range(4):
        if Q < 3: P('s_cmp_lg_u32 s3, %d\ns_cbranch_scc1 P2_%s%d' % (Q, tag, Q))
        for t in range(8):
            b = acc2(2 * Q + (t >> 2), jt0 + (t & 3))
            for r in range(4): P('v_accvgpr_read_b32 v%d, a%d' % (dst + t * 4 + r, b + r))
        if Q < 3:
            P('s_branch P2_%sx' % tag)
            P.label('P2_%s%d' % (tag, Q))
    P.label('P2_%sx' % tag)

def tail_setup(c):
    t = 'v_add_u32 v20, s31, v15\n'
    for Q in range(4):
        t += """
        s_cmp_lt_u32 s3, %d
        s_cselect_b32 s6, %d, %d
        s_lshl_b32 s6, s6, 13
        v_add_u32 v%d, s6, v20
        """ % (Q, max(Q - 1, 0), min(Q, 2), 3 + Q)
    for sl in range(3):
        t += """
        s_cmp_le_u32 s3, %d
        s_cselect_b32 s6, %d, %d
        s_cselect_b32 s7, 0, 1
        s_mul_i32 s6, s6, 40960
        s_sub_u32 s7, s3, s7
        s_lshl_b32 s7, s7, 13
        s_add_u32 s7, s7, s6
        v_add_u32 v%d, s7, v15
        """ % (sl, sl + 1, sl, 7 + sl)
    t += """
    s_lshl_b32 s6, s2, 2
    s_add_u32 s6, s6, s3
    s_lshl_b32 s78, s6, 13
    s_add_u32 s78, s78, %d
    s_add_u32 s79, s78, 4096
    s_xor_b32 s80, s78, 0x8000
    s_add_u32 s81, s80, 4096
    s_lshl_b32 s82, s6, 7
    s_add_u32 s82, s82, %d
    s_xor_b32 s83, s82, 0x200
    """ % (WS_XB, WS_FL + 0x40000)
    L = [l.strip() for l in t.splitlines() if l.strip()]
    out = []; i = 0
    while i < len(L):
        j = i + 1
        if L[i].startswith('s_cmp'):
            while L[j].startswith('s_cselect'): j += 1
        out.append(lambda x='\n'.join(L[i:j]): c.I(x)); i = j
    return out

def p2_main(c):
    def flagS():
        c.wait_vm(('ssw',), lambda t: t == ('SS',))
        c.I('s_add_u32 s7, s76, 0x20000\ns_mov_b64 exec, 1')
        c.vmem('buffer_store_dword v26, off, s[20:23], s7 sc1', ('SV',))
        c.I('s_mov_b64 exec, -1')
    def pollS():
        c.I('v_mov_b32 v23, 1\ns_mov_b64 exec, 0xffffffff')
        c.vmem('buffer_load_dword v23, v22, s[20:23], s73 offen sc1', ('PS',))
        c.I('s_mov_b64 exec, -1')
    def chkS():
        c.wait_vm(('psw',), lambda t: t == ('PS',))
        if c.emit:
            spin(c.P, 'P2_ps', 'v_cmp_gt_u32 vcc, 1, v23', 'buffer_load_dword v23, v22, s[20:23], s73 offen sc1', 2)
    def flagS_pollF():
        flagS()
    def pollF():
        c.vmem('buffer_load_dword v21, v20, s[20:23], s72 offen sc1', ('PF',))
    def chkF():
        c.wait_vm(('pfw',), lambda t: t == ('PF',))
        if c.emit:
            spin(c.P, 'P2_pg', 'v_cmp_gt_u32 vcc, 2, v21', 'buffer_load_dword v21, v20, s[20:23], s72 offen sc1', 1)
    misc = None
    ssq = [] if SSE else ss_stores(c)
    SS0 = int(os.environ.get('SS0', '1'))
    ev = {(0 if SSE else SS0 + 3 + DP + 1): flagS, 7 - DP: pollF, 8 - DP: chkF, 12 - DP: pollS, NB - DP: chkS}
    for n in range(NTL):
        if n == CPC: c.I('CP_c:')
        if os.environ.get('ST2') and n < 18: stamp(c.I, 32 + n)
        vm = step_vm(c, n)
        if SS0 <= n < SS0 + 4: vm = ssq[(n - SS0) * 2:(n - SS0) * 2 + 2] + vm
        if n == 19: vm = vm + e0_loads(c)
        if n == 15: misc = tail_setup(c) + e0_setup(c)
        per = -(-len(vm) // 8)
        for jt in range(8):
            side = vm[jt * per:(jt + 1) * per]
            if misc:
                side = side + misc[:3]; misc = misc[3:]
            group(c, n * 8 + jt, side, pre=ev.get(n) if jt == 0 else None)
    assert not misc
    er = e0_reads(c)
    for g in range(8):
        group(c, NTL * 8 + g, er[(g - 4) * 3:(g - 3) * 3] if g >= 4 else [])
    stamp(c.I, 15); stamp_rt(c.I, 24)
    def wr(Q, ts):
        def f():
            L = 'P2_w%d_%d' % (Q, ts[0])
            c.I('s_cmp_eq_u32 s3, %d\ns_cbranch_scc1 %s' % (Q, L))
            for t in ts: c.I('ds_write_b128 v%d, %s offset:%d' % (3 + Q, rr('a', acc2(2 * Q + (t >> 2), 4 + (t & 3))), 16384 + t * 1024))
            c.I(L + ':')
        return f
    def bar():
        c.I('s_waitcnt lgkmcnt(0)'); c.lg.q = []; c.I('s_barrier')
    def rds(t):
        T = 192 + (t & 3) * 12
        return [lambda sl=sl: c.ds('ds_read_b128 v[%d:%d], v%d offset:%d' % (T + sl * 4, T + sl * 4 + 3, 7 + sl, 16384 + t * 1024), ('SR', t)) for sl in range(3)]
    def sums(t):
        T = 192 + (t & 3) * 12; z = ZS + t * 4
        th = [lambda: c.wait_lg(('srw', t), lambda x: x == ('SR', t))]
        for x in (add(T, T, T + 4), add(T + 2, T + 2, T + 6), add(z, z, T + 8), add(z + 2, z + 2, T + 10), add(z, z, T), add(z + 2, z + 2, T + 2)):
            th.append(lambda x=x: c.I(x))
        th.append(lambda: c.vmem('buffer_store_dwordx4 v[%d:%d], v15, s[20:23], s%d offen offset:%d sc1' % (z, z + 3, 78 + (t >> 2), (t & 3) * 1024), ('XS',)))
        return th
    for g in range(8):
        side = []; post = None; pre = None
        if g == 0: pre = lambda: c.wait_lg(('erw',), lambda x: x == ('ER',))
        if g < 3: side = [wr(Q, ts) for Q in range(4) for ts in ([[0, 1, 4], [2, 5, 6], [3, 7]][g],)]
        if g == 2 and c.emit: post = lambda: own_copy(c.P, 4, ZS, 'so')
        if g == 3: post = bar
        if g >= 5: side += sums(2 * (g - 5)) + sums(2 * (g - 5) + 1)
        if g >= 4: side += rds(2 * (g - 4)) + rds(2 * (g - 4) + 1)
        group(c, KP0 + g, side, pre=pre, post=post)
    run(sums(6) + sums(7))
    bar()

def p2_final(P):
    ZK, TMP, XR = 128, 160, 96
    for Q in range(4):
        P('s_cmp_eq_u32 s3, %d\ns_cbranch_scc1 P2_kw%d' % (Q, Q))
        for t in range(8):
            P('ds_write_b128 v%d, %s offset:%d' % (3 + Q, rr('a', acc2(2 * Q + (t >> 2), t & 3)), t * 1024))
        P.label('P2_kw%d' % Q)
    own_copy(P, 0, ZK, 'ko')
    P('s_waitcnt vmcnt(0)\ns_mov_b64 exec, 1\nbuffer_store_dword v26, off, s[20:23], s82 sc1\ns_mov_b64 exec, -1')
    P('s_waitcnt lgkmcnt(0)')
    P('s_barrier')
    stamp(P, 16)
    for t in range(8):
        for sl in range(3):
            P('ds_read_b128 v[%d:%d], v%d offset:%d' % (TMP + sl * 32 + t * 4, TMP + sl * 32 + t * 4 + 3, 7 + sl, t * 1024))
    xl = ''.join('buffer_load_dwordx4 v[%d:%d], v15, s[20:23], s%d offen offset:%d sc1\n' % (XR + t * 4, XR + t * 4 + 3, 80 + (t >> 2), (t & 3) * 1024) for t in range(8))
    P('buffer_load_dword v59, off, s[20:23], s83 sc1')
    xd_math(P, ZK)
    P('s_waitcnt vmcnt(0)\nv_cmp_ne_u32 vcc, 1, v59\ns_mov_b32 s74, 0\ns_cmp_eq_u64 vcc, 0\ns_cbranch_scc0 P2_xa')
    P(xl)
    P('s_mov_b32 s74, 1\ns_branch P2_xb')
    P.label('P2_xa')
    P('buffer_load_dword v59, off, s[20:23], s83 sc1')
    P.label('P2_xb')
    P('s_waitcnt lgkmcnt(0)')
    for t in range(8):
        for h in range(2):
            r = t * 4 + 2 * h
            P(add(TMP + r, TMP + r, TMP + 32 + r)); P(add(ZK + r, ZK + r, TMP + 64 + r))
        for h in range(2):
            r = t * 4 + 2 * h
            P(add(ZK + r, ZK + r, TMP + r))
    stamp(P, 17)
    P('s_cmp_eq_u32 s74, 1\ns_cbranch_scc1 P2_xc')
    P('s_waitcnt vmcnt(0)')
    spin(P, 'P2_x', 'v_cmp_ne_u32 vcc, 1, v59', 'buffer_load_dword v59, off, s[20:23], s83 sc1', 1)
    P(xl)
    P.label('P2_xc')
    stamp(P, 18)
    for t in range(8):
        P('s_waitcnt vmcnt(7)')
        for h in range(2):
            r = t * 4 + 2 * h
            P(add(ZK + r, ZK + r, XR + r))
        P('buffer_store_dwordx4 v[%d:%d], v%d, s[12:15], 0 offen offset:%d %s' % (ZK + t * 4, ZK + t * 4 + 3, 29 if t >= 4 else 28, (t & 3) * 64, os.environ.get('OMOD', '')))

CPF = int(os.environ.get('CPF', '1'))
_cpn = [0]
def code_touch(I, start, end, vt=26, sp=84):
    if not CPF: return
    _cpn[0] += 1
    L = 'CT%d' % _cpn[0]
    I('s_getpc_b64 s[%d:%d]' % (sp, sp + 1))
    I(L + ':')
    I('s_add_u32 s%d, s%d, %s-%s' % (sp, sp, start, L))
    I('s_addc_u32 s%d, s%d, 0' % (sp + 1, sp + 1))
    I('v_lshlrev_b32 v%d, 7, v0' % vt)
    I('v_min_u32 v%d, %s-%s-4, v%d' % (vt, end, start, vt))
    I('global_load_dword a255, v%d, s[%d:%d]' % (vt, sp, sp + 1))

NP = int(os.environ.get('NP', '4'))
ROOM = int(os.environ.get('ROOM', '7'))
def site_of(u):
    if u < NP: return ('F', u)
    if u >= 28: return ('E', u)
    return ('L', u % 4)

def body(c, emit):
    P = c.P
    prologue(c)
    if PRE:
        for u in range(NP): substep(c, u, site_of(u), first=(u == 0), tch=(u >= 4 and u % 4 == TPOS))
    else:
        g1, g2 = g_work(c, 64, 32)
        extra = g1 + [lambda: c.wait_vm(('s',), lambda t: t == ('S',))] + g2[:0]
        tb = as_fill(c, tables_text())
        q = [g1, g2, [lambda: c.wait_vm(('s',), lambda t: t == ('S',))] + tb]
        extra = []
        for u in range(NP):
            if u == 0: extra += q[0]
            if u == 1: extra += q[1] + q[2]
            substep(c, u, site_of(u), extra=extra, first=(u == 0), tch=(u >= 4 and u % 4 == TPOS), room_extra=ROOM - 7)
        assert not extra, len(extra)
    if emit:
        stamp(P, 1); stamp_rt(P, 21)
        P('.p2align 6')
        P.label('K1_loop')
        P('s_cmp_eq_u32 s33, s93\ns_cbranch_scc1 K1_t1')
        P.label('K1_tback')
        c_loads(P)
        for u in range(NP, NP + 4): substep(c, u, site_of(u), tch=(u % 4 == TPOS))
        P("""
        s_add_u32 s33, s33, 1
        s_cmp_lt_u32 s33, 6
        s_cbranch_scc1 K1_loop
        """)
    else:
        for u in range(NP, 28): substep(c, u, site_of(u), tch=(u % 4 == TPOS))
    c.I('CP_b:')
    stamp(c.I, 2); stamp_rt(c.I, 22)
    tail1(c)

DIAG = int(os.environ.get('DIAG', '0'))
if DIAG:
    DMAP = {0: 0, 4: 1, 1: 2, 2: 3, 5: 4, 7: 5, 9: 6, 12: 7, 13: 8, 15: 9, 16: 10, 17: 11, 18: 12, 19: 13, 20: 14}
    def stamp(I, idx, vr=16):
        if idx in DMAP:
            I('s_memrealtime s[84:85]')
            I('s_waitcnt lgkmcnt(0)')
            if idx == 0:
                I('s_not_b32 s85, s84')
                I('v_writelane_b32 v16, s85, 15')
            I('v_writelane_b32 v16, s84, %d' % DMAP[idx])
    def stamp_rt(I, idx, vr=16): pass
    def stamp_out(I, kern, vr=16, va=23):
        I('v_lshlrev_b32 v23, 2, v17')
        I('s_mov_b64 exec, 0xffff')
        I('buffer_atomic_umax v16, v23, s[24:27], 0 offen sc1')
        I('s_mov_b64 exec, -1')
PROBE = os.environ.get('PROBE', '')
if PROBE:
    PA, PB = [int(x) for x in PROBE.split(',')]
    def stamp(I, idx, vr=16):
        if idx == PA or idx == PB:
            I('s_memrealtime s[84:85]')
            I('s_waitcnt lgkmcnt(0)')
            I('v_writelane_b32 v16, s84, %d' % (0 if idx == PA else 1))
    def stamp_rt(I, idx, vr=16): pass
    def stamp_out(I, kern, vr=16, va=23):
        I('v_readlane_b32 s6, v16, 0')
        I('v_readlane_b32 s7, v16, 1')
        I('s_memrealtime s[84:85]')
        I('s_waitcnt lgkmcnt(0)')
        I('s_sub_u32 s6, s7, s6')
        I('s_mul_i32 s6, s6, %d' % int(os.environ.get('PMUL', '1')))
        I('s_add_u32 s6, s6, s84')
        I('PROBE_l:')
        I('s_memrealtime s[84:85]')
        I('s_waitcnt lgkmcnt(0)')
        I('s_sub_u32 s7, s84, s6')
        I('s_cmp_lt_i32 s7, 0')
        I('s_cbranch_scc1 PROBE_l')
if os.environ.get('PROBE2'):
    def stamp(I, idx, vr=16):
        if idx == 0:
            I('s_memrealtime s[84:85]')
            I('s_waitcnt lgkmcnt(0)')
            I('v_writelane_b32 v16, s84, 0')
            I('s_not_b32 s85, s84')
            I('v_mov_b32 v20, s85')
            I('s_mov_b64 exec, 1')
            I('buffer_atomic_umax v20, off, s[24:27], 0 sc1')
            I('s_mov_b64 exec, -1')
    def stamp_rt(I, idx, vr=16): pass
    def stamp_out(I, kern, vr=16, va=23):
        I('buffer_load_dword v20, off, s[24:27], 0 sc1')
        I('s_waitcnt vmcnt(0)')
        I('v_readfirstlane_b32 s6, v20')
        I('v_readlane_b32 s7, v16, 0')
        I('s_not_b32 s6, s6')
        I('s_memrealtime s[84:85]')
        I('s_waitcnt lgkmcnt(0)')
        I('s_sub_u32 s6, s7, s6')
        I('s_min_u32 s6, s6, 5000')
        I('s_mul_i32 s6, s6, %d' % int(os.environ.get('PMUL', '1')))
        I('s_add_u32 s6, s6, s84')
        I('PROBE_l:')
        I('s_memrealtime s[84:85]')
        I('s_waitcnt lgkmcnt(0)')
        I('s_sub_u32 s7, s84, s6')
        I('s_cmp_lt_i32 s7, 0')
        I('s_cbranch_scc1 PROBE_l')
JIT = int(os.environ.get('JIT', '0'))
if JIT:
    _jn = [0]
    def stamp(I, idx, vr=16):
        _jn[0] += 1
        L = 'JIT%d' % _jn[0]
        I('s_lshl_b32 s84, s2, 2')
        I('s_add_u32 s84, s84, s3')
        I('s_mul_i32 s84, s84, 0x%x' % ((2654435761 * (2 * idx + 1 + 64 * JIT)) & 0x7fffffff | 1))
        I('s_lshr_b32 s84, s84, 27')
        I('s_cmp_lt_u32 s84, 24')
        I('s_cselect_b32 s84, 0, s84')
        I(L + ':')
        I('s_cmp_eq_u32 s84, 0')
        I('s_cbranch_scc1 %sx' % L)
        I('s_sleep 32')
        I('s_sub_u32 s84, s84, 1')
        I('s_branch %s' % L)
        I(L + 'x:')
    def stamp_rt(I, idx, vr=16): pass
    def stamp_out(I, kern, vr=16, va=23): pass
KNAME = 'gated_mix__ssm_conv_s5__glu_gated_reglu__prompt_kernel'
def gen():
    waits = {}
    body(Ctx(None, waits), False)
    c = Ctx(None, waits)
    p2_enter(c); p2_main(c)
    P = Prog()
    c = Ctx(P, waits)
    P('.globl %s\n.p2align 8\n.type %s,@function' % (KNAME, KNAME))
    P.label(KNAME)
    body(c, True)
    epilogue(P)
    p2_enter(c)
    p2_main(c)
    P('s_nop 7')
    p2_final(P)
    stamp(P, 19); stamp_rt(P, 11)
    P('s_waitcnt vmcnt(0)')
    stamp(P, 20)
    stamp_out(P, 0)
    P.label('K1_done')
    P('s_endpgm')
    P.label('K1_t1')
    P("""
    s_lshl_b32 s6, 1, s4
    v_mov_b32 v26, s6
    s_lshl_b32 s7, s5, 2
    s_mov_b64 exec, 1
    buffer_atomic_add v26, off, s[24:27], s7 offset:128 sc1
    s_mov_b64 exec, -1
    s_branch K1_tback
    """)
    P.label('CP_end')
    txt = P.text()
    X = os.environ.get('XP', '')
    if X:
        a = txt.index('K1_tback:'); b = txt.index('s_cbranch_scc1 K1_loop')
        L = txt[a:b].split('\n')
        if 'r' in X: L = [l for l in L if 'ds_read' not in l]
        if 'd' in X: L = [l for l in L if ' lds' not in l]
        if 't' in X: L = [l for l in L if 'ds_read_b64_tr' not in l]
        if 'h' in X: L = [l for k, l in enumerate(L) if not ('ds_read_b64_tr' in l and (int(l.split('offset:')[1]) // 4096) % 2)]
        if 'b' in X: L = [l for l in L if 's_barrier' not in l]
        txt = txt[:a] + '\n'.join(L) + txt[b:]
    return txt, waits

DOC = """; ---------------------------------------------------------------------------------------------
; ---------------------------------------------------------------------------------------------
"""
if __name__ == '__main__':
    import sys
    NAME = 'gated_mix__ssm_conv_s5__glu_gated_reglu__prompt'
    ref = open('cdna_kernels/%s.s.ref' % NAME).read().splitlines()
    hdr = [l for l in ref if l.startswith(';') and '@launch' not in l]
    t, w = gen()
    out = '\n'.join(hdr) + '\n; @launch grid=(256,1,1) block=(256,1,1) lds=%d\n' % K1_LDS
    out += DOC + '.amdgcn_target "amdgcn-amd-amdhsa--gfx950"\n.text\n' + t
    out += '.section .rodata,"a"\n.p2align 6\n' + K1_DESC.replace('k1_kernel', KNAME)
    dst = sys.argv[1] if len(sys.argv) > 1 else 'cdna_kernels/%s.s' % NAME
    open(dst, 'w').write(out)
    print('wrote', dst, len(out))
```
